```python
import torch

def _softmax(x, axis=-1):
    return torch.softmax(x, dim=axis)
def _gelu(x):
    return torch.nn.functional.gelu(x, approximate="tanh")
def _silu(x):
    return torch.nn.functional.silu(x)
def _sigmoid(x):
    return torch.sigmoid(x)
def _layernorm(x, axis=-1, eps=1e-5):
    m = x.mean(dim=axis, keepdim=True)
    v = x.var(dim=axis, keepdim=True, unbiased=False)
    return (x - m) / torch.sqrt(v + eps)
def _scatter_add(tgt, idx, src, axis=0):
    return tgt.clone().index_add_(axis, idx, src)
def _segment_sum(src, seg, n):
    out = torch.zeros((n,) + src.shape[1:], dtype=src.dtype)
    return out.index_add_(0, seg, src)
def _pad(x, pw):
    flat = tuple(v for pair in reversed(pw) for v in pair)
    return torch.nn.functional.pad(x, flat)

kernel_name = 'recurrent_scan__mha_block_cached__glu_gated_glu__prompt'

def setup_inputs():

    _w = (lambda a: (lambda t: t.to(torch.bfloat16) if t.is_floating_point() else t)(torch.as_tensor(a)))
    def _A_setup():
        B, Sq, D = 1, 2048, 576
        H, Sk, Dh = 32, 2048, 128
        return {
            "x": _w((lambda *s: torch.randn(*s, dtype=torch.bfloat16) * 0.05)(B, Sq, D)),
            "k_cache": _w((lambda *s: torch.randn(*s, dtype=torch.bfloat16) * 0.8)(B, H, Sk, Dh)),
            "v_cache": _w((lambda *s: torch.randn(*s, dtype=torch.bfloat16) * 0.2)(B, H, Sk, Dh)),
            "wq": _w((lambda *s: torch.randn(*s, dtype=torch.bfloat16) * 0.8)(D, H * Dh) * (D ** -0.5)),
            "wo": _w((lambda *s: torch.randn(*s, dtype=torch.bfloat16) * 0.2)(H * Dh, D) * ((H * Dh) ** -0.5)),
        }
    _A_in = _A_setup()

    def _B_setup():
        B, S, D, F = 1, 2048, 576, 4608
        return {
            "x": _w((lambda *s: torch.randn(*s, dtype=torch.bfloat16) * 0.05)(B, S, D)),
            "w_gate": _w((lambda *s: torch.randn(*s, dtype=torch.bfloat16) * 0.2)(D, F)),
            "w_up": _w((lambda *s: torch.randn(*s, dtype=torch.bfloat16) * 0.1)(D, F)),
            "w_down": _w((lambda *s: torch.randn(*s, dtype=torch.bfloat16) * 0.1)(F, D)),
        }
    _B_in = _B_setup()

    return {
        "A_x": _A_in["x"],
        "A_k_cache": _A_in["k_cache"],
        "A_v_cache": _A_in["v_cache"],
        "A_wq": _A_in["wq"],
        "A_wo": _A_in["wo"],
        "B_x": _B_in["x"],
        "B_w_gate": _B_in["w_gate"],
        "B_w_up": _B_in["w_up"],
        "B_w_down": _B_in["w_down"],
    }

def reference(A_x, A_k_cache, A_v_cache, A_wq, A_wo, B_x, B_w_gate, B_w_up, B_w_down):
    def _A_ref(x, k_cache, v_cache, wq, wo):
        B, Sq, D = x.shape
        H, Dh = 32, 128
        q = (lambda x, *d: x.permute(*d))((x @ wq).reshape(B, Sq, H, Dh), 0, 2, 1, 3)
        scores = torch.einsum("bhqd,bhkd->bhqk", q, k_cache) * (Dh ** -0.5)
        p = _softmax(scores, axis=-1)
        o = torch.einsum("bhqk,bhkd->bhqd", p, v_cache)
        return (lambda x, *d: x.permute(*d))(o, 0, 2, 1, 3).reshape(B, Sq, H * Dh) @ wo

    def _B_ref(x, w_gate, w_up, w_down):
        g = torch.einsum("bsd,df->bsf", x, w_gate)
        u = torch.einsum("bsd,df->bsf", x, w_up)
        h = _sigmoid(g) * u
        return torch.einsum("bsf,fd->bsd", h, w_down)

    x = A_x
    xn = _layernorm(x, axis=-1)
    s = _A_ref(xn, A_k_cache, A_v_cache, A_wq, A_wo)
    g = _silu(_B_ref(xn, B_w_gate, B_w_up, B_w_down))
    return x + s * g
```

```python
import re

TRANS = ("v_exp_f32", "v_log_f32", "v_rcp_f32", "v_rsq_f32", "v_sqrt_f32")
_REG = re.compile(r"^(-|abs\()?([vas])(\d+)\)?$|^([vas])\[(\d+):(\d+)\]$")


def regs_of(op):
    op = op.strip()
    if op in ("vcc", "exec", "m0", "scc"):
        return [op]
    m = _REG.match(op)
    if not m:
        return []
    if m.group(2):
        return [m.group(2) + m.group(3)]
    return [m.group(4) + str(i) for i in range(int(m.group(5)), int(m.group(6)) + 1)]


class I:
    def __init__(self, text):
        self.text = text
        t = text.split(";")[0].strip()
        self.label = t.endswith(":")
        self.directive = t.startswith(".") or t == ""
        self.op = t.split()[0] if t else ""
        rest = t[len(self.op):].strip()
        toks = [x.strip() for x in rest.split(",")] if rest else []
        self.mods = []
        if toks:
            last = toks[-1].split()
            toks[-1] = last[0] if last else ""
            self.mods = last[1:]
        self.ops = toks
        self.r, self.w = set(), set()
        self.srcc = set()
        self.ab = set()
        op = self.op
        R = lambda xs: set(r for x in xs for r in regs_of(x))
        if self.label or self.directive:
            self.kind = "none"
        elif op.startswith("v_mfma"):
            self.kind = "mfma"
            self.w = R(toks[:1]); self.ab = R(toks[1:3]); self.srcc = R(toks[3:4]); self.r = self.ab | self.srcc
            self.passes = 4 if "16x16x32" in op else 8
            self.dst = toks[0]; self.c = toks[3]
        elif op.startswith("ds_"):
            self.kind = "lds"
            if op.startswith("ds_read"):
                self.w = R(toks[:1]); self.r = R(toks[1:])
            else:
                self.r = R(toks)
        elif op.startswith("buffer_") or op.startswith("global_"):
            self.kind = "vmem"
            self.dma = "lds" in self.mods
            if op in ("buffer_inv", "buffer_wbl2"):
                pass
            elif self.dma:
                self.r = R(toks) | {"m0"}
            elif "load" in op:
                self.w = R(toks[:1]); self.r = R(toks[1:])
            elif "atomic" in op:
                self.r = R(toks)
                if "sc0" in self.mods: self.w = R(toks[:1])
            else:
                self.r = R(toks)
                self.data = R(toks[:1])
        elif op.startswith("v_"):
            self.kind = "trans" if op.replace("_e32", "").replace("_e64", "") in TRANS else "valu"
            if op.startswith("v_cmp"):
                self.w = R(toks[:1]); self.r = R(toks[1:])
            elif op.startswith("v_permlane"):
                self.w = R(toks[:2]); self.r = R(toks[:2])
            elif op.startswith("v_fmac") or op.startswith("v_pk_fmac"):
                self.w = R(toks[:1]); self.r = R(toks)
            elif op.startswith("v_add_co") or op.startswith("v_addc_co"):
                self.w = R(toks[:2]); self.r = R(toks[2:])
            else:
                self.w = R(toks[:1]); self.r = R(toks[1:])
        elif op in ("WAITVM", "CODEPF"):
            self.kind = "salu"
        elif op == "s_waitcnt":
            self.kind = "wait"
            self.vm = self.lgkm = None
            for k, v in re.findall(r"(vmcnt|lgkmcnt)\((\d+)\)", t):
                if k == "vmcnt": self.vm = int(v)
                else: self.lgkm = int(v)
        elif op.startswith("s_load") or op.startswith("s_memtime") or op.startswith("s_memrealtime"):
            self.kind = "smem"
            self.w = R(toks[:1]); self.r = R(toks[1:])
        elif op.startswith("s_"):
            self.kind = "salu"
            if op in ("s_nop", "s_barrier", "s_endpgm", "s_sleep", "s_setprio") or op.startswith("s_cbranch") or op == "s_branch":
                pass
            elif op.startswith("s_cmp") or op.startswith("s_bitcmp"):
                self.r = R(toks)
            else:
                self.w = R(toks[:1]); self.r = R(toks[1:])
                if "saveexec" in op: self.w |= {"exec"}
        else:
            raise ValueError("cannot parse: " + text)

    @property
    def states(self):
        if self.kind == "none": return 0
        if self.op == "s_nop": return int(self.ops[0]) + 1
        return 1

    @property
    def is_valu(self):
        return self.kind in ("valu", "trans")


def need_states(p, c):
    n = 0
    vreg = lambda s: set(x for x in s if x[0] in "va" and x != "vcc")
    sreg = lambda s: set(x for x in s if x[0] == "s" or x == "vcc")
    if p.is_valu:
        pv = vreg(p.w); ps = sreg(p.w)
        if c.kind == "mfma" and pv & c.r: n = max(n, 2)
        if c.op.startswith("v_permlane") and pv & c.r: n = max(n, 2)
        if (c.op.startswith("v_readfirstlane") or c.op.startswith("v_readlane")) and pv & c.r: n = max(n, 1)
        if p.kind == "trans" and c.kind == "valu" and pv & c.r: n = max(n, 1)
        if c.is_valu and ps & c.r: n = max(n, 2)
        if c.kind == "vmem" and ps & c.r: n = max(n, 5)
    if p.kind == "mfma":
        big = p.passes == 8
        if c.kind == "mfma":
            if p.w & c.srcc and not (c.c == p.dst and c.passes == p.passes): n = max(n, 10 if big else 6)
            if p.w & c.ab: n = max(n, 12 if big else 8)
        elif c.is_valu or c.kind in ("vmem", "lds"):
            if p.w & (c.r | c.w): n = max(n, 12 if big else 8)
        if c.is_valu and p.srcc & c.w: n = max(n, 7 if big else 3)
    if p.kind == "salu" and "m0" in p.w and c.kind == "vmem" and getattr(c, "dma", False): n = max(n, 1)
    if p.kind == "vmem" and hasattr(p, "data") and len(p.data) >= 3 and p.data & c.w:
        n = max(n, 2)
    return n


def check_trace(lines, name=""):
    ins = [I(x) for l in lines for x in l.split("\n")]
    ins = [x for x in ins if x.kind != "none"]
    errs = []
    for j, c in enumerate(ins):
        d = 0
        for i in range(j - 1, max(-1, j - 24), -1):
            p = ins[i]
            n = need_states(p, c)
            if d < n:
                errs.append("%s: hazard need %d have %d:\n   %s\n   %s" % (name, n, d, p.text, c.text))
            d += p.states
            if d >= 20: break
    lg, vm = [], []
    for c in ins:
        if c.kind == "wait":
            if c.lgkm is not None:
                if any(k == "smem" for k, _ in lg) and c.lgkm != 0:
                    errs.append("%s: counted lgkm wait with smem pending: %s" % (name, c.text))
                lg = lg[len(lg) - c.lgkm:] if c.lgkm < len(lg) and c.lgkm > 0 else ([] if c.lgkm == 0 else lg)
            if c.vm is not None:
                vm = vm[len(vm) - c.vm:] if c.vm < len(vm) and c.vm > 0 else ([] if c.vm == 0 else vm)
            continue
        for q, nm in ((lg, "lgkm"), (vm, "vm")):
            for k, p in q:
                if p.w & (c.r | c.w):
                    errs.append("%s: %s result not waited:\n   %s\n   %s" % (name, nm, p.text, c.text))
        if c.kind in ("lds", "smem"): lg.append((c.kind, c))
        if c.kind == "vmem": vm.append((c.kind, c))
    return errs


def cost(i):
    if i.kind == "trans": return 2
    if i.kind == "vmem": return 2
    if i.kind in ("valu", "lds"): return 1
    return 0


class Flt:
    def __init__(self, text, lo=0, hi=None, pre=None):
        self.i = I(text); self.lo = lo; self.hi = hi; self.pre = pre or []
        self.gap = None


def schedule(mfmas, pinned, floats, cap=2, window=48, blocked=()):
    out = []
    pend = list(floats)
    for g, m in enumerate(mfmas):
        out.append(m)
        here = [I(t) for t in pinned.get(g, [])]
        used = sum(cost(x) for x in here)
        nscalar = sum(1 for x in here if cost(x) == 0)
        placed = []
        k = 0
        while k < len(pend) and k < window and used < cap and g not in blocked:
            f = pend[k]
            c = cost(f.i)
            ok = f.lo <= g and used + c <= cap
            if ok and f.i.kind in ("vmem", "lds") and used > 0: ok = False
            if ok and f.i.kind == "vmem" and nscalar > 0: ok = False
            if ok:
                for e in pend[:k]:
                    if (e.i.w & (f.i.r | f.i.w)) or (e.i.r & f.i.w):
                        ok = False; break
            if ok:
                for e in placed:
                    if e.i.w & f.i.r: ok = False; break
            if ok:
                f.gap = g; placed.append(f); used += c; pend.pop(k)
            else:
                k += 1
        pre = [t for f in placed for t in f.pre]
        here.sort(key=lambda x: 0 if cost(x) == 0 else (1 if x.kind in ("lds", "vmem") else 2))
        out += pre + [x.text for x in here] + [f.i.text for f in placed]
        for f in pend:
            assert f.hi is None or f.hi > g, "deadline missed at gap %d: %s" % (g, f.i.text)
    return out, pend


def resolve_waits(lines):
    out = []
    n = 0
    last = {}
    for l in lines:
        if l.startswith("WAITVM"):
            p = l.split()
            idx = max(last[t] for t in p[1].split(","))
            out.append(("s_waitcnt vmcnt(%d) " % min(63, n - idx) + " ".join(p[2:])).strip())
            continue
        i = I(l)
        if i.kind == "vmem":
            n += 1
            if ";@" in l: last[l.split(";@")[1].strip()] = n
        out.append(l.split(";@")[0].rstrip())
    return out


def vr(b, n=4): return "v[%d:%d]" % (b, b + n - 1)
def ar(b, n=4): return "a[%d:%d]" % (b, b + n - 1)
def sr(b, n=4): return "s[%d:%d]" % (b, b + n - 1)
def mfma(d, a, b, c): return "v_mfma_f32_16x16x32_bf16 %s, %s, %s, %s" % (d, a, b, c)


def srd(s, base, size):
    return ["s_mov_b32 s%d, s%d" % (s, base), "s_and_b32 s%d, s%d, 0xffff" % (s + 1, base + 1),
            "s_mov_b32 s%d, 0x%x" % (s + 2, size), "s_mov_b32 s%d, 0x20000" % (s + 3)]


def descriptor(name, vgpr, acc_off, sgpr=102):
    return [".amdhsa_kernel %s" % name,
            "  .amdhsa_next_free_vgpr %d" % vgpr, "  .amdhsa_next_free_sgpr %d" % sgpr,
            "  .amdhsa_accum_offset %d" % acc_off, "  .amdhsa_group_segment_fixed_size 0",
            "  .amdhsa_kernarg_size 96", "  .amdhsa_user_sgpr_count 2",
            "  .amdhsa_user_sgpr_kernarg_segment_ptr 1", "  .amdhsa_system_sgpr_workgroup_id_x 1",
            ".end_amdhsa_kernel"]
```

```python
import sys, importlib
from asmlib import *

HEADER = open("recurrent_scan__mha_block_cached__glu_gated_glu__prompt.s.ref").read().split("; Override launch")[0]

def emit(kernels, path, check=True):
    out = [HEADER.rstrip()]
    for k in kernels:
        out.append("; @launch kernel=%s grid=(%d,1,1) block=(%d,1,1) lds=%d" % (k["name"], k["grid"], k["block"], k["lds"]))
    out += ['.amdgcn_target "amdgcn-amd-amdhsa--gfx950"', ".text"]
    seen = []
    nerr = 0
    for k in kernels:
        if k["name"] in seen: continue
        seen.append(k["name"])
        if check:
            for i, t in enumerate(k["traces"]):
                errs = check_trace(t, "%s/%d" % (k["name"], i))
                for e in errs[:20]: print(e)
                nerr += len(errs)
        out += [".globl %s" % k["name"], ".p2align 8", ".type %s,@function" % k["name"], "%s:" % k["name"]]
        out += [l if l.endswith(":") or l.startswith(".") else "    " + l for l in k["lines"]]
    out += ['.section .rodata,"a"']
    done = []
    for k in kernels:
        if k["name"] in done: continue
        done.append(k["name"])
        out += [".p2align 6"] + descriptor(k["name"], k["vgpr"], k["acc"], k["sgpr"])
    open(path, "w").write("\n".join(out) + "\n")
    print("wrote %s, %d lines, %d check errors" % (path, len(out), nerr))
    return nerr
```

```python
from asmlib import *
from layout import *

def gen():
    L = []
    A = L.append
    A("s_cmp_ge_u32 s2, 128")
    A("s_cbranch_scc1 L_ln_end")
    A("s_load_dwordx2 s[4:5], s[0:1], %d" % ARG["x"])
    A("s_load_dwordx2 s[6:7], s[0:1], %d" % ARG["ws"])
    A("v_and_b32 v1, 63, v0")
    A("v_lshrrev_b32 v2, 6, v0")
    A("v_and_b32 v3, 15, v0")
    A("v_lshrrev_b32 v4, 4, v1")
    A("v_mul_u32_u24 v5, 1152, v3")
    A("v_lshl_add_u32 v5, v2, 7, v5")
    A("v_lshl_add_u32 v5, v4, 4, v5")
    A("s_mul_i32 s3, s2, %d" % (16 * 1152))
    A("s_waitcnt lgkmcnt(0)")
    L += srd(8, 4, X_BYTES) + srd(12, 6, WS_BYTES)
    A("buffer_load_dwordx4 v[8:11], v5, s[8:11], s3 offen")
    A("buffer_load_dwordx4 v[12:15], v5, s[8:11], s3 offen offset:64")
    A("v_mov_b32 v6, 0")
    A("v_lshlrev_b32 v7, 6, v0")
    A("s_lshl_b32 s16, s2, 8")
    A("s_add_u32 s16, s16, 0x%x" % FLAG_OFF)
    A("v_cmp_gt_u32 vcc, 4, v0")
    A("s_and_saveexec_b64 s[18:19], vcc")
    A("s_cbranch_execz L_ln_noflag")
    A("buffer_store_dword v6, v7, s[12:15], s16 offen")
    A("L_ln_noflag:")
    A("s_mov_b64 exec, s[18:19]")
    A("v_mul_u32_u24 v6, 144, v3")
    A("v_lshl_add_u32 v7, v2, 2, v4")
    A("v_lshl_add_u32 v7, v7, 2, v6")
    A("s_lshr_b32 s16, s2, 2")
    A("s_mul_i32 s16, s16, %d" % (18 * 4096))
    A("s_and_b32 s17, s2, 3")
    A("s_lshl_b32 s17, s17, 10")
    A("s_add_u32 s16, s16, s17")
    A("s_add_u32 s17, s16, 4096")
    A("v_lshlrev_b32 v5, 13, v2")
    A("v_lshl_add_u32 v5, v1, 4, v5")
    A("s_waitcnt vmcnt(0)")
    for i in range(8):
        A("v_lshlrev_b32 v%d, 16, v%d" % (16 + 2 * i, 8 + i))
        A("v_and_b32 v%d, 0xffff0000, v%d" % (17 + 2 * i, 8 + i))
    def reduce(src, off, dst):
        A("ds_write_b32 v7, v%d offset:%d" % (src, off))
        A("s_waitcnt lgkmcnt(0)")
        A("s_barrier")
        for i in range(9):
            A("ds_read_b128 v[%d:%d], v6 offset:%d" % (32 + 4 * i, 35 + 4 * i, off + 16 * i))
        A("s_waitcnt lgkmcnt(0)")
        n = 36
        while n > 1:
            h = n // 2
            for i in range(h):
                A("v_add_f32 v%d, v%d, v%d" % (32 + i, 32 + i, 32 + n - 1 - i))
            n -= h
        A("v_mul_f32 v%d, %s, v32" % (dst, f32(1.0 / 576)))
    for i in range(8):
        A("v_add_f32 v%d, v%d, v%d" % (32 + i, 16 + i, 24 + i))
    for i in range(4):
        A("v_add_f32 v%d, v%d, v%d" % (32 + i, 32 + i, 36 + i))
    A("v_add_f32 v32, v32, v34")
    A("v_add_f32 v33, v33, v35")
    A("v_add_f32 v68, v32, v33")
    reduce(68, 0, 69)
    for i in range(16):
        A("v_sub_f32 v%d, v%d, v69" % (32 + i, 16 + i))
    for i in range(4):
        A("v_mul_f32 v%d, v%d, v%d" % (48 + i, 32 + i, 32 + i))
    for i in range(4, 16):
        A("v_fmac_f32 v%d, v%d, v%d" % (48 + i % 4, 32 + i, 32 + i))
    A("v_add_f32 v48, v48, v50")
    A("v_add_f32 v49, v49, v51")
    A("v_add_f32 v68, v48, v49")
    reduce(68, 2304, 70)
    A("v_cvt_pk_bf16_f32 v71, v69, v70")
    A("v_lshlrev_b32 v69, 16, v71")
    A("v_and_b32 v70, 0xffff0000, v71")
    A("v_add_f32 v70, %s, v70" % f32(1e-5))
    A("v_cvt_pk_bf16_f32 v70, v70, v70")
    A("v_lshlrev_b32 v70, 16, v70")
    A("v_sqrt_f32 v70, v70")
    A("s_nop 0")
    A("v_cvt_pk_bf16_f32 v70, v70, v70")
    A("v_lshlrev_b32 v70, 16, v70")
    A("v_rcp_f32 v70, v70")
    for i in range(16):
        A("v_sub_f32 v%d, v%d, v69" % (16 + i, 16 + i))
    for i in range(8):
        A("v_cvt_pk_bf16_f32 v%d, v%d, v%d" % (8 + i, 16 + 2 * i, 17 + 2 * i))
    for i in range(8):
        A("v_lshlrev_b32 v%d, 16, v%d" % (16 + 2 * i, 8 + i))
        A("v_and_b32 v%d, 0xffff0000, v%d" % (17 + 2 * i, 8 + i))
    for i in range(16):
        A("v_mul_f32 v%d, v%d, v70" % (16 + i, 16 + i))
    for i in range(8):
        A("v_cvt_pk_bf16_f32 v%d, v%d, v%d" % (8 + i, 16 + 2 * i, 17 + 2 * i))
    A("buffer_store_dwordx4 v[8:11], v5, s[12:15], s16 offen")
    A("buffer_store_dwordx4 v[12:15], v5, s[12:15], s17 offen")
    A("L_ln_end:")
    A("s_endpgm")
    return dict(name="ln_kernel", lines=L, traces=[L], grid=128, block=576, lds=4608, vgpr=72, acc=72, sgpr=24)
```

```python
from asmlib import *
from layout import *

SLOT = 36864
V_FR, V_TU, V_TQ, V_TH = 1, 2, 6, 8
V_DG, V_DQ, V_DH, V_DK, V_DV, V_HS = 9, 10, 11, 12, 13, 14
VA, VXN, VG, VU, VH = 16, 40, 72, 136, 200
V_KA, V_VA, V_ONE, V_TMP = 232, 236, 244, 248
VS, VNEG, VVF, VKF = 16, 40, 200, 216
VP = [[VG + 16, VG + 48], [VU + 16, VU + 48]]
S_WS, S_WG, S_WU, S_WQ, S_K, S_V, S_WH = 4, 8, 12, 16, 20, 24, 28
S_WAVE, S_SL, S_RB = 32, 33, 34
S_L1K, S_GB, S_QB, S_HB, S_HL, S_XN = 35, 36, 37, 38, 39, 40
S_T0, S_T1, S_HST, S_HHST, S_OST = 41, 42, 43, 44, 45
S_KO, S_VO, S_CNT, S_NL2E, S_QC, S_REDO, S_KV0 = 46, 47, 48, 49, 50, 51, 52
S_T2 = 53
KOFF = lambda j: (((j - 1) // 2) & 1) * 32768 + ((j - 1) & 1) * 16384
VOFF = lambda j: ((j // 2) & 1) * 32768 + (j & 1) * 16384
FLAG_LDS = 4 * SLOT

def xn(ks, rt):
    return ar(16 * ks + 4 * rt) if ks < 16 else vr(VXN + 16 * (ks - 16) + 4 * rt)
def qf(t, ks):
    return vr((VG if ks < 2 else VU) + 32 * (ks & 1) + 4 * t)
def oacc(dt, t): return ar(16 * dt + 4 * t)
def lacc(t): return ar(128 + 4 * t)

def dma(srd_, voff, sbase, sconst, lbase, lconst, tag, tmp=S_T0):
    return (["s_add_u32 s%d, s%d, 0x%x" % (tmp, sbase, sconst), "s_add_u32 m0, s%d, 0x%x" % (lbase, lconst)],
            "buffer_load_dwordx4 v%d, %s, s%d offen lds ;@%s" % (voff, sr(srd_), tmp, tag))

def chunk_slot(c): return 3 * SLOT if c == 11 else ((c + 1) % 3) * SLOT
TS = []
for c in range(12):
    TS.append(dict(kind="guguqq"[c // 2], unit=(c // 4) if c < 8 else (c - 8) // 2, half=c & 1, off=chunk_slot(c), tag="c%d" % c))
TS.insert(8, dict(kind="h", unit=0, half=0, off=3 * SLOT, tag="h"))

def chunk_dmas(ts):
    out = []
    for i in range(9):
        if ts["kind"] == "h":
            out.append(dma(S_WH, V_DH, S_HB, i * 32 * 9216, S_HL, 3 * SLOT + i * 1024, "h"))
        else:
            row = ts["half"] * 288 + i * 32
            if ts["kind"] == "q":
                out.append(dma(S_WQ, V_DQ, S_QB, row * 8192 + ts["unit"] * 128, S_L1K, ts["off"] + i * 4096, ts["tag"]))
            else:
                out.append(dma(S_WG if ts["kind"] == "g" else S_WU, V_DG, S_GB, row * 9216 + ts["unit"] * 128,
                               S_L1K, ts["off"] + i * 4096, ts["tag"]))
    return out

def kv_dmas(which, j, tag):
    out = []
    for n in range(4):
        if which == "k":
            out.append(dma(S_K, V_DK, S_KV0, j * 16384 + n * 4096, S_L1K, KOFF(j) + n * 4096, tag))
        else:
            out.append(dma(S_V, V_DV, S_KV0, j * 16384 + n * 4096, S_L1K, 65536 + VOFF(j) + n * 4096, tag))
    return out

def xn_load(ks, rt):
    so = (S_T1, S_T2)[ks & 1]
    pre = ["s_add_u32 s%d, s%d, 0x%x" % (so, S_XN, ks * 4096)] if rt == 0 else []
    return (pre, "buffer_load_dwordx4 %s, v%d, %s, s%d offen offset:%d ;@x%d" % (xn(ks, rt), V_FR, sr(S_WS), so, rt * 1024, ks // 3))

def setup(stamp):
    P = []
    A = P.append
    A("s_cmp_ge_u32 s2, 256")
    A("s_cbranch_scc1 L_k2_end")
    if stamp: A("s_memrealtime s[80:81]")
    A("s_load_dwordx2 s[60:61], s[0:1], %d" % ARG["ws"])
    A("s_load_dwordx4 s[64:67], s[0:1], %d" % ARG["wg"])
    A("s_load_dwordx2 s[68:69], s[0:1], %d" % ARG["k"])
    A("s_load_dwordx4 s[72:75], s[0:1], %d" % ARG["v"])
    A("v_lshrrev_b32 v15, 6, v0")
    A("v_and_b32 v0, 63, v0")
    A("v_readfirstlane_b32 s%d, v15" % S_WAVE)
    A("v_lshlrev_b32 v%d, 4, v0" % V_FR)
    A("s_and_b32 s54, s2, 7")
    A("s_lshl_b32 s54, s54, 2")
    A("s_bfe_u32 s55, s2, 0x20003")
    A("s_add_u32 s%d, s54, s55" % S_SL)
    A("s_lshr_b32 s54, s2, 5")
    A("s_lshl_b32 s54, s54, 2")
    A("s_add_u32 s%d, s54, s%d" % (S_RB, S_WAVE))
    A("s_lshl_b32 s%d, s%d, 10" % (S_L1K, S_WAVE))
    A("s_mul_i32 s%d, s%d, %d" % (S_XN, S_RB, 18 * 4096))
    A("s_lshl_b32 s54, s%d, 8" % S_SL)
    A("s_mul_i32 s55, s%d, %d" % (S_WAVE, 8 * 9216))
    A("s_add_u32 s%d, s54, s55" % S_GB)
    A("s_lshl_b32 s55, s%d, 16" % S_WAVE)
    A("s_add_u32 s%d, s54, s55" % S_QB)
    A("v_lshrrev_b32 v15, 3, v0")
    A("v_bfe_u32 v%d, v0, 4, 1" % V_TMP)
    A("s_and_b32 s54, s%d, 1" % S_WAVE)
    A("s_lshl_b32 s54, s54, 1")
    A("v_or_b32 v%d, s54, v%d" % (V_TMP, V_TMP))
    A("v_lshlrev_b32 v%d, 1, v%d" % (V_TMP, V_TMP))
    A("v_and_b32 v%d, 7, v0" % (V_TMP + 1))
    A("v_xor_b32 v%d, v%d, v%d" % (V_TMP, V_TMP, V_TMP + 1))
    A("v_lshlrev_b32 v%d, 4, v%d" % (V_TMP, V_TMP))
    A("v_mul_u32_u24 v%d, 9216, v15" % V_DG)
    A("v_add_u32 v%d, v%d, v%d" % (V_DG, V_DG, V_TMP))
    A("v_lshl_add_u32 v%d, v15, 13, v%d" % (V_DQ, V_TMP))
    A("s_waitcnt lgkmcnt(0)")
    P += srd(S_WS, 60, WS_BYTES) + srd(S_WG, 64, WG_BYTES)
    return P

def setup2():
    P = []
    A = P.append
    P += srd(S_WU, 66, WG_BYTES) + srd(S_WQ, 74, WQ_BYTES) + srd(S_K, 68, KV_BYTES) + srd(S_V, 72, KV_BYTES)
    A("s_cmp_lt_u32 s%d, 2" % S_WAVE)
    A("s_cselect_b32 s62, s64, s66")
    A("s_cselect_b32 s63, s65, s67")
    P += srd(S_WH, 62, WG_BYTES)
    t0, t1, t2, t3 = V_TMP, V_TMP + 1, V_TMP + 2, V_TMP + 3
    A("v_lshrrev_b32 v%d, 4, v0" % t0)
    A("v_bfe_u32 v%d, v0, 2, 2" % t1)
    A("v_lshl_add_u32 v15, v%d, 3, v%d" % (t0, t1))
    A("v_lshlrev_b32 v15, 7, v15")
    A("v_add_u32 v15, %d, v15" % TS[0]["off"])
    A("v_bfe_u32 v%d, v0, 3, 2" % t2)
    A("v_and_b32 v%d, 3, v0" % t3)
    for j in range(4):
        A("v_xor_b32 v%d, %d, v%d" % (V_TU + j, j, t2))
        A("v_lshl_add_u32 v%d, v%d, 5, v15" % (V_TU + j, V_TU + j))
        A("v_lshl_add_u32 v%d, v%d, 3, v%d" % (V_TU + j, t3, V_TU + j))
    A("v_add_u32 v15, %d, v15" % ((TS[9]["off"] - TS[0]["off"]) & 0xffffffff))
    A("v_lshlrev_b32 v%d, 1, v%d" % (t2, t2))
    for m in range(2):
        A("v_or_b32 v%d, %d, v%d" % (V_TQ + m, 4 * m, t3))
        A("v_xor_b32 v%d, v%d, v%d" % (V_TQ + m, V_TQ + m, t2))
        A("v_lshl_add_u32 v%d, v%d, 4, v15" % (V_TQ + m, V_TQ + m))
    A("v_lshlrev_b32 v%d, 3, v0" % V_TH)
    A("v_add_u32 v%d, %d, v%d" % (V_TH, 3 * SLOT, V_TH))
    A("v_bfe_u32 v15, v0, 3, 2")
    A("v_lshlrev_b32 v15, 3, v15")
    A("v_lshrrev_b32 v%d, 5, v0" % t2)
    A("v_lshl_add_u32 v15, v%d, 2, v15" % t2)
    A("v_bfe_u32 v%d, v0, 1, 2" % t2)
    A("v_add_u32 v15, v15, v%d" % t2)
    A("v_mul_u32_u24 v15, 9216, v15")
    A("v_and_b32 v%d, 1, v0" % t2)
    A("v_lshl_add_u32 v%d, v%d, 4, v15" % (V_DH, t2))
    A("s_and_b32 s54, s%d, 1" % S_WAVE)
    A("s_mul_i32 s55, s54, %d" % (288 * 9216))
    A("s_lshl_b32 s56, s%d, 5" % S_SL)
    A("s_add_u32 s55, s55, s56")
    A("s_add_u32 s%d, s55, 8192" % S_HB)
    A("s_mul_i32 s%d, s%d, 9216" % (S_HL, S_WAVE))
    A("s_mul_i32 s54, s%d, %d" % (S_RB, 144 * 4096))
    A("s_add_u32 s54, s54, 0x%x" % H_OFF)
    A("s_lshl_b32 s55, s%d, 14" % S_SL)
    A("s_add_u32 s%d, s54, s55" % S_HST)
    A("s_lshr_b32 s56, s%d, 1" % S_SL)
    A("s_add_u32 s56, s56, 128")
    A("s_lshl_b32 s56, s56, 12")
    A("s_add_u32 s%d, s54, s56" % S_HHST)
    A("s_and_b32 s56, s%d, 1" % S_SL)
    A("s_lshl_b32 s56, s56, 3")
    A("v_add_u32 v%d, s56, v%d" % (V_HS, V_FR))
    A("s_lshl_b32 s54, s%d, 19" % S_RB)
    A("s_add_u32 s54, s54, s55")
    A("s_add_u32 s%d, s54, 0x%x" % (S_OST, O_OFF))
    A("s_mov_b32 s%d, %s" % (S_NL2E, f32(-LOG2E)))
    A("s_mov_b32 s%d, %s" % (S_QC, f32(LOG2E * 128 ** -0.5)))
    A("s_mov_b32 s%d, 0" % S_REDO)
    A("s_lshl_b32 s54, s%d, 19" % S_SL)
    A("s_add_u32 s%d, s54, s%d" % (S_KV0, S_L1K))
    A("s_lshl_b32 s54, s%d, 2" % S_WAVE)
    A("v_add_u32 v15, s54, v%d" % t0)
    A("v_and_b32 v%d, 15, v0" % t2)
    A("v_xor_b32 v%d, v%d, v15" % (V_DK, t2))
    A("v_lshlrev_b32 v%d, 4, v%d" % (V_DK, V_DK))
    A("v_lshl_add_u32 v%d, v%d, 8, v%d" % (V_DK, t0, V_DK))
    A("v_and_b32 v15, 7, v15")
    A("v_lshlrev_b32 v15, 1, v15")
    A("v_xor_b32 v%d, v%d, v15" % (V_DV, t2))
    A("v_lshlrev_b32 v%d, 4, v%d" % (V_DV, V_DV))
    A("v_lshl_add_u32 v%d, v%d, 8, v%d" % (V_DV, t0, V_DV))
    for ks in range(4):
        A("v_or_b32 v15, %d, v%d" % (4 * ks, t0))
        A("v_xor_b32 v15, v15, v%d" % t2)
        A("v_lshlrev_b32 v15, 4, v15")
        A("v_lshl_add_u32 v%d, v%d, 8, v15" % (V_KA + ks, t2))
    A("v_lshrrev_b32 v%d, 2, v0" % t1)
    A("v_and_b32 v%d, 7, v%d" % (t2, t1))
    A("v_lshlrev_b32 v%d, 8, v%d" % (t1, t1))
    A("v_lshl_add_u32 v%d, v%d, 3, v%d" % (t1, t3, t1))
    A("v_add_u32 v%d, 0x10000, v%d" % (t1, t1))
    for dt in range(8):
        A("v_xor_b32 v15, %d, v%d" % (dt, t2))
        A("v_lshl_add_u32 v%d, v15, 5, v%d" % (V_VA + dt, t1))
    for r in range(4):
        A("v_mov_b32 v%d, 0x3f803f80" % (V_ONE + r))
    A("v_mov_b32 v15, %d" % FLAG_LDS)
    A("v_mov_b32 v%d, 0" % t0)
    A("ds_write_b32 v15, v%d" % t0)
    return P

def groups(tau):
    ts = TS[tau]
    if ts["kind"] == "h":
        return [(t, 3 * kg) for t in range(2) for kg in range(6)]
    if tau < 2:
        return [(t, 9 * ts["half"] + 3 * kg) for kg in range(3) for t in range(4)]
    return [(t, 9 * ts["half"] + 3 * kg) for t in range(4) for kg in range(3)]

def accbase(tau):
    ts = TS[tau]
    return {"g": VG, "u": VU, "h": VH, "q": VG if ts["unit"] == 0 else VU}[ts["kind"]]

def treads(tau, grp, buf):
    ts = TS[tau]
    t, k0 = groups(tau)[grp]
    out = []
    for kk in range(3):
        for h in range(2):
            d = vr(VA + 12 * buf + 4 * kk + 2 * h, 2)
            if ts["kind"] == "h":
                out.append("ds_read_b64_tr_b16 %s, v%d offset:%d" % (d, V_TH, t * 18432 + (k0 + kk) * 1024 + h * 512))
            else:
                o = (k0 + kk - 9 * ts["half"]) * 4096 + h * 512
                if ts["kind"] == "q":
                    out.append("ds_read_b64_tr_b16 %s, v%d offset:%d" % (d, V_TQ + t // 2, o + (t & 1) * 8))
                else:
                    out.append("ds_read_b64_tr_b16 %s, v%d offset:%d" % (d, V_TU + t, o))
    return out

def projection():
    mf, pin = [], {}
    done, first = {}, {}
    P = lambda g, x: pin.setdefault(g, []).append(x)
    for tau in range(13):
        base = accbase(tau)
        for gi, (t, k0) in enumerate(groups(tau)):
            buf = (12 * tau + gi) & 1
            g0 = len(mf)
            for rt in range(4):
                d = vr(base + 16 * t + 4 * rt)
                for kk in range(3):
                    ks = k0 + kk
                    if ks == 0: first[(tau, t, rt)] = len(mf)
                    mf.append(mfma(d, vr(VA + 12 * buf + 4 * kk), xn(ks, rt), "0" if ks == 0 else d))
                    if ks == 17: done[(TS[tau]["kind"], TS[tau]["unit"], t, rt)] = len(mf) - 1
            nt, ng = (tau, gi + 1) if gi < 11 else (tau + 1, 0)
            if nt < 13:
                for i, x in enumerate(treads(nt, ng, buf ^ 1)): P(g0 + i, x)
            w = "s_waitcnt lgkmcnt(0)"
            if tau < 2 and gi in (3, 7, 11) and 3 * tau + gi // 4 + 1 < 6:
                w = "WAITVM x%d lgkmcnt(0)" % (3 * tau + gi // 4 + 1)
            if gi == 10 and tau < 12:
                tags = TS[tau + 1]["tag"] + (",k0" if tau == 11 else "")
                P(g0 + 11, "WAITVM %s lgkmcnt(0)" % tags)
                P(g0 + 11, "s_barrier")
            elif nt < 13:
                P(g0 + 11, w)
        ts = TS[tau]
        nxt = [x for x in TS[tau + 1:] if (x["kind"] == "q") == (ts["kind"] == "q") and x["kind"] != "h"]
        if ts["kind"] != "h" and nxt:
            delta = (nxt[0]["off"] - ts["off"]) & 0xffffffff
            regs = {}
            for gi, (t, k0) in enumerate(groups(tau)):
                regs[V_TQ + t // 2 if ts["kind"] == "q" else V_TU + t] = gi
            for r, gi in regs.items():
                P(144 * tau + 12 * (gi - 1) + 6, "v_add_u32 v%d, 0x%x, v%d" % (r, delta, r))
    plan = {t: [] for t in range(13)}
    order = [0, 1, 2, 3, 4, 5, 6, 7, 9, 10, 11, 12]
    hd = chunk_dmas(TS[8])
    plan[1] = chunk_dmas(TS[3])
    plan[2] = chunk_dmas(TS[4]) + hd[0:2]
    plan[3] = chunk_dmas(TS[5]) + hd[2:4]
    plan[4] = chunk_dmas(TS[6]) + hd[4:6]
    plan[5] = chunk_dmas(TS[7]) + hd[6:9]
    plan[6] = chunk_dmas(TS[9])
    plan[7] = chunk_dmas(TS[10])
    plan[8] = chunk_dmas(TS[11])
    plan[9] = chunk_dmas(TS[12])
    plan[10] = kv_dmas("k", 1, "s0") + kv_dmas("k", 2, "s0")
    plan[11] = kv_dmas("k", 0, "k0")
    plan[12] = kv_dmas("v", 0, "s0") + kv_dmas("v", 1, "s0")
    for tau in range(13):
        ops = plan[tau]
        if tau == 0:
            for i, (pre, x) in enumerate(chunk_dmas(TS[2])):
                P(12 * i + 4, pre[0]); P(12 * i + 5, pre[1]); P(12 * i + 7, x)
            for n in range(36):
                pre, x = xn_load(9 + n // 4, n % 4)
                if pre: P(12 * (n // 3) + 2, pre[0])
                P(12 * (n // 3) + 8 + n % 3, x)
        else:
            for i, (pre, x) in enumerate(ops):
                g = 144 * tau + 12 * i + 8
                assert i < 12
                P(g - 5, pre[0]); P(g - 4, pre[1]); P(g, x)
    for ks in range(4):
        P(144 * 12 + 132 + ks, "ds_read_b128 %s, v%d offset:%d" % (vr(VKF + 4 * ks), V_KA + ks, KOFF(0)))
    fl = []
    LAT = 6
    def sig(base, key, t, rt, hi):
        lo = done[key + (t, rt)] + LAT
        r0 = base + 16 * t + 4 * rt
        for op in ("v_mul_f32 v%d, s{c}, v%d".replace("{c}", str(S_NL2E)), "v_exp_f32 v%d, v%d", "v_add_f32 v%d, 1.0, v%d", "v_rcp_f32 v%d, v%d"):
            for r in range(4): fl.append(Flt(op % (r0 + r, r0 + r), lo, hi))
    def prod(gb, ub, lo, hi):
        for r in range(4): fl.append(Flt("v_mul_f32 v%d, v%d, v%d" % (ub + r, ub + r, gb + r), lo, hi))
    def cvt(d, a, lo, hi): fl.append(Flt("v_cvt_pk_bf16_f32 v%d, v%d, v%d" % (d, a, a + 1), lo, hi))
    for unit in range(2):
        tg_next = 4 if unit == 0 else 9
        tu_next = 6 if unit == 0 else 11
        for t in range(4):
            for rt in range(4): sig(VG, ("g", unit), t, rt, first[(tg_next, t, rt)] - 2)
        for t in range(4):
            for rt in range(4):
                lo = done[("u", unit, t, rt)] + LAT
                prod(VG + 16 * t + 4 * rt, VU + 16 * t + 4 * rt, lo, first[(tg_next, t, rt)] - 2)
                d = VU + 16 * (t & 2) + 4 * rt
                hi = first[(tu_next, t & 2, rt)] - 4
                cvt(d + 2 * (t & 1), VU + 16 * t + 4 * rt, lo, hi)
                cvt(d + 2 * (t & 1) + 1, VU + 16 * t + 4 * rt + 2, lo, hi)
                if t & 1:
                    f = Flt("buffer_store_dwordx4 %s, v%d, %s, s%d offen offset:%d" % (vr(d), V_FR, sr(S_WS), 56 + 2 * unit + t // 2, rt * 1024), lo, hi)
                    fl.append(f)
    for rt in range(4): sig(VH, ("h", 0), 0, rt, None)
    for rt in range(4):
        lo = done[("h", 0, 1, rt)] + LAT
        hi = 144 * 12 + 100
        prod(VH + 4 * rt, VH + 16 + 4 * rt, lo, hi)
        cvt(VH + 4 * rt, VH + 16 + 4 * rt, lo, hi)
        cvt(VH + 4 * rt + 1, VH + 16 + 4 * rt + 2, lo, hi)
        fl.append(Flt("buffer_store_dwordx2 %s, v%d, %s, s%d offen offset:%d" % (vr(VH + 4 * rt, 2), V_HS, sr(S_WS), S_HHST, rt * 1024), lo, hi))
    for unit in range(2):
        base = VG if unit == 0 else VU
        for t in range(4):
            for rt in range(4):
                lo = done[("q", unit, t, rt)] + LAT
                r0 = base + 16 * t + 4 * rt
                for r in range(4): fl.append(Flt("v_mul_f32 v%d, s%d, v%d" % (r0 + r, S_QC, r0 + r), lo))
                d = base + 16 * (t & 2) + 4 * rt + 2 * (t & 1)
                cvt(d, r0, lo, None); cvt(d + 1, r0 + 2, lo, None)
    fl.sort(key=lambda f: f.lo)
    out, left = schedule(mf, pin, fl, window=64)
    out.append("s_nop 7")
    out += [f.i.text for f in left]
    return out

def kread(buf, j, kt):
    return ["ds_read_b128 %s, v%d offset:%d" % (vr(buf + 4 * ks), V_KA + ks, KOFF(j) + kt * 4096) for ks in range(4)]
def vread(buf, j, u):
    return ["ds_read_b64_tr_b16 %s, v%d offset:%d" % (vr(buf + 8 * d + 4 * b + 2 * h, 2), V_VA + 2 * u + d, VOFF(j) + b * 8192 + h * 4096)
            for d in range(2) for b in range(2) for h in range(2)]
def E(t, r): return "v_exp_f32 v%d, v%d" % (VS + 4 * t + r, VS + 4 * t + r)
def C(par, kt, t, h): return "v_cvt_pk_bf16_f32 v%d, v%d, v%d" % (VP[par][kt >> 1] + 4 * t + 2 * (kt & 1) + h, VS + 4 * t + 2 * h, VS + 4 * t + 2 * h + 1)
def qk(kbuf, t, c0):
    d = vr(VS + 4 * t)
    return [mfma(d, vr(kbuf + 4 * ks), qf(t, ks), c0 if ks == 0 else d) for ks in range(4)]
def pv(vbuf, par, u, init):
    return [mfma(oacc(2 * u + d, t), vr(vbuf + 8 * d + 4 * b), vr(VP[par][b] + 4 * t), "0" if init and b == 0 else oacc(2 * u + d, t))
            for d in range(2) for t in range(4) for b in range(2)]
def psum(par, t, init):
    return [mfma(lacc(t), vr(V_ONE), vr(VP[par][b] + 4 * t), "0" if init and b == 0 else lacc(t)) for b in range(2)]

def rowmax(src):
    P = []
    A = P.append
    for t in range(4):
        A("v_max3_f32 v%d, v%d, v%d, v%d" % (V_TMP + t, src + 4 * t, src + 4 * t + 1, src + 4 * t + 2))
    for t in range(4):
        A("v_max_f32 v%d, v%d, v%d" % (V_TMP + t, V_TMP + t, src + 4 * t + 3))
    for op in ("v_permlane32_swap_b32", "v_permlane16_swap_b32"):
        for t in range(4): A("v_mov_b32 v%d, v%d" % (V_TMP + 4 + t, V_TMP + t))
        A("s_nop 1")
        for t in range(4): A("%s v%d, v%d" % (op, V_TMP + t, V_TMP + 4 + t))
        for t in range(4): A("v_max_f32 v%d, v%d, v%d" % (V_TMP + t, V_TMP + t, V_TMP + 4 + t))
    for t in range(4):
        for r in range(4): A("v_sub_f32 v%d, 0, v%d" % (VNEG + 4 * t + r, V_TMP + t))
    return P

def first_max():
    P = ["s_waitcnt lgkmcnt(0)", "s_nop 1"]
    for t in range(4): P += qk(VKF, t, "0")
    P.append("s_nop 7")
    return P + rowmax(VS)

def step_pre():
    P = ["s_add_u32 s%d, s%d, %d" % (S_KO, S_KV0, 3 * 16384), "s_add_u32 s%d, s%d, %d" % (S_VO, S_KV0, 2 * 16384)]
    for n in range(16):
        kt, t = n >> 2, n & 3
        kbuf = VKF if kt % 2 == 0 else VVF
        ms = qk(kbuf, t, vr(VNEG + 4 * t))
        rd = []
        if t == 0:
            if kt > 0: P.append("s_waitcnt lgkmcnt(0)")
            if kt == 3: P += ["WAITVM s0", "s_barrier"]
            rd = kread(VVF if kt % 2 == 0 else VKF, 0, kt + 1) if kt < 3 else kread(VKF, 1, 0)
        for i, m in enumerate(ms):
            P.append(m)
            if rd: P.append(rd[i])
            if n >= 2: P.append(E((n - 2) & 3, i))
            if n == 1: P.append("s_nop 0")
        if n >= 2:
            P += [C(0, (n - 2) >> 2, (n - 2) & 3, 0), C(0, (n - 2) >> 2, (n - 2) & 3, 1)]
    P += [E(2, r) for r in range(4)] + [C(0, 3, 2, 0), C(0, 3, 2, 1), "s_nop 1", E(3, 0), E(3, 1), "s_waitcnt lgkmcnt(0)"]
    return P

def step(i, tail_scalars=()):
    par = i & 1
    mf, pin = [], {}
    P = lambda g, x: pin.setdefault(g, []).append(x)
    for u in range(4):
        g0 = 34 * u
        for t in range(4): mf += qk(VKF, t, vr(VNEG + 4 * t))
        mf += pv(VVF, par, u, i == 0) + psum(par, u, i == 0)
        ppar, pkt = (par, 3) if u == 0 else (par ^ 1, u - 1)
        tr = vread(VVF, i, u)
        for g, k in zip((0, 2, 2, 4, 6, 6, 8, 8), range(8)): P(g0 + g, tr[k])
        P(g0 + 0, C(ppar, pkt, 3, 0)); P(g0 + 1, E(3, 2)); P(g0 + 3, E(3, 3)); P(g0 + 4, C(ppar, pkt, 3, 1))
        for e in range(14): P(g0 + 7 + 2 * e, E(e >> 2, e & 3))
        for c in range(6): P(g0 + 10 + 4 * c, C(par ^ 1, u, c >> 1, c & 1))
        if u == 3 and par == 1:
            P(g0 + 15, "s_waitcnt vmcnt(0) lgkmcnt(0)"); P(g0 + 15, "s_barrier")
        else:
            P(g0 + 15, "s_waitcnt lgkmcnt(0)")
        if i == 30 and u == 3:
            tr = vread(VKF, 31, 0)
            for g, k in zip((16, 16, 18, 20, 20, 22, 24, 24), range(8)): P(g0 + g, tr[k])
        else:
            rd = kread(VKF, i + 1, u + 1) if u < 3 else kread(VKF, i + 2, 0)
            for g, k in zip((16, 18, 20, 22), range(4)): P(g0 + g, rd[k])
        P(g0 + 33, "s_waitcnt lgkmcnt(0)")
        if par == 0 and i < 30:
            for n, g in enumerate((5, 12, 24, 28)):
                k = 4 * u + n
                isk = k < 8
                lo = (KOFF(i + 3) if isk else 65536 + VOFF(i + 2)) + (k & 7) * 4096
                so = S_KO if isk else S_VO
                P(g0 + g - 1, "s_add_u32 m0, s%d, 0x%x" % (S_L1K, lo))
                P(g0 + g, "buffer_load_dwordx4 v%d, %s, s%d offen lds" % (V_DK if isk else V_DV, sr(S_K if isk else S_V), so))
                P(g0 + g + 1, "s_add_u32 s%d, s%d, 4096" % (so, so))
    for k, x in enumerate(tail_scalars): P(102 + 31 + k, x)
    out, _ = schedule(mf, pin, [])
    return out

def step_last():
    par = 1
    mf, pin, fl = [], {}, []
    P = lambda g, x: pin.setdefault(g, []).append(x)
    P(0, C(par, 3, 3, 0)); P(1, E(3, 2)); P(3, E(3, 3)); P(4, C(par, 3, 3, 1))
    ends = {}
    for u in range(4):
        g0 = len(mf)
        mf += pv(VKF if u % 2 == 0 else VVF, par, u, False)
        ends[u] = len(mf) - 1
        if u < 3:
            tr = vread(VVF if u % 2 == 0 else VKF, 31, u + 1)
            gs = (0, 2, 4, 5, 6, 7, 8, 9) if u == 0 else range(8)
            for g, k in zip(gs, range(8)): P(g0 + g, tr[k])
        if u == 0:
            for t in range(4): mf += psum(par, t, False)
            lsum = len(mf) - 1
        if u < 3: P(len(mf) - 1, "s_waitcnt lgkmcnt(0)")
    RL = V_TMP
    for t in range(4): fl.append(Flt("v_accvgpr_read_b32 v%d, a%d" % (RL + 4 + t, 128 + 4 * t), lsum + 5))
    for t in range(4): fl.append(Flt("v_rcp_f32 v%d, v%d" % (RL + t, RL + 4 + t), lsum + 5))
    tmp = [VP[0][0], VP[0][0] + 8, VP[0][1], VP[0][1] + 8, VS, VS + 8, 56, 64]
    k = 0
    for u in range(4):
        for t in range(4):
            b = tmp[k % 8]; k += 1
            lo = max(ends[u], lsum) + 5
            for d in range(2):
                for r in range(4): fl.append(Flt("v_accvgpr_read_b32 v%d, a%d" % (b + 4 * d + r, 16 * (2 * u + d) + 4 * t + r), lo))
            for r in range(8): fl.append(Flt("v_mul_f32 v%d, v%d, v%d" % (b + r, b + r, RL + t), lo))
            for r in range(4): fl.append(Flt("v_cvt_pk_bf16_f32 v%d, v%d, v%d" % (b + r, b + 2 * r, b + 2 * r + 1), lo))
            fl.append(Flt("buffer_store_dwordx4 %s, v%d, %s, s%d offen offset:%d" % (vr(b), V_FR, sr(S_WS), 56 + u, t * 1024), lo))
    for u in range(4): P(10 + u, "s_add_u32 s%d, s%d, %d" % (56 + u, S_OST, u * 4096))
    out, left = schedule(mf, pin, fl)
    out.append("s_nop 7")
    out += [f.i.text for f in left]
    A = out.append
    A("v_add_f32 v%d, v%d, v%d" % (RL + 4, RL + 4, RL + 5))
    A("v_add_f32 v%d, v%d, v%d" % (RL + 6, RL + 6, RL + 7))
    A("v_add_f32 v%d, v%d, v%d" % (RL + 4, RL + 4, RL + 6))
    A("v_mov_b32 v15, %d" % FLAG_LDS)
    A("v_cmp_nge_f32 vcc, %s, v%d" % (f32(2.0 ** 40), RL + 4))
    A("s_nop 1")
    A("v_cndmask_b32 v%d, 0, 1, vcc" % RL)
    A("ds_or_b32 v15, v%d" % RL)
    A("s_waitcnt lgkmcnt(0)")
    A("s_barrier")
    A("ds_read_b32 v%d, v15" % RL)
    A("s_waitcnt lgkmcnt(0)")
    A("v_readfirstlane_b32 s54, v%d" % RL)
    A("s_nop 1")
    A("s_cmp_gt_u32 s54, s%d" % S_REDO)
    return out

def redo():
    P = []
    A = P.append
    A("L_k2_redo:")
    A("s_mov_b32 s%d, 1" % S_REDO)
    for pre, x in kv_dmas("k", 0, "k0") + kv_dmas("k", 1, "s0") + kv_dmas("k", 2, "s0") + kv_dmas("v", 0, "s0") + kv_dmas("v", 1, "s0"):
        P += pre + ["s_nop 0", x]
    A("v_and_b32 v15, 15, v0")
    A("v_lshlrev_b32 v15, 8, v15")
    A("v_lshrrev_b32 v%d, 4, v0" % V_TMP)
    A("v_lshl_add_u32 v15, v%d, 4, v15" % V_TMP)
    A("s_lshl_b32 s54, s%d, 19" % S_SL)
    A("s_mov_b32 s55, 128")
    for r in range(16): A("v_mov_b32 v%d, 0xff800000" % (56 + r))
    B = []
    A = B.append
    for ks in range(4):
        A("buffer_load_dwordx4 %s, v15, %s, s54 offen offset:%d" % (vr(VKF + 4 * ks), sr(S_K), ks * 64))
    A("s_waitcnt vmcnt(0)")
    for t in range(4): B += qk(VKF, t, "0")
    A("s_nop 7")
    for r in range(16): A("v_max_f32 v%d, v%d, v%d" % (56 + r, 56 + r, VS + r))
    A("s_add_u32 s54, s54, 4096")
    A("s_sub_u32 s55, s55, 1")
    A("s_cmp_lg_u32 s55, 0")
    A("s_cbranch_scc1 L_k2_maxloop")
    T = rowmax(56) + ["s_barrier"] + kread(VKF, 0, 0) + ["s_waitcnt lgkmcnt(0)", "s_branch L_k2_attn"]
    return P, B, T

def gen(stamp=False):
    S = setup(stamp)
    for pre, x in chunk_dmas(TS[0]) + [xn_load(ks, rt) for ks in range(9) for rt in range(4)] + chunk_dmas(TS[1]):
        S += pre + (["s_nop 0"] if len(pre) == 2 else []) + [x]
    S += setup2()
    for unit in range(2):
        for p in range(2):
            S.append("s_add_u32 s%d, s%d, %d" % (56 + 2 * unit + p, S_HST, (2 * unit + p) * 4096))
    S += ["WAITVM c0 lgkmcnt(0)", "s_barrier"] + treads(0, 0, 0) + ["WAITVM x0 lgkmcnt(0)"]
    st = lambda r: ["s_memrealtime s[%d:%d]" % (r, r + 1), "s_waitcnt lgkmcnt(0)"] if stamp else []
    G = st(82) + projection() + st(84) + first_max()
    PRE = step_pre()
    head = resolve_waits(S + G + ["L_k2_attn:"] + PRE)
    S0 = step(0) + ["s_mov_b32 s%d, 7" % S_CNT]
    BODY = step(1) + step(2) + step(3) + step(4, ["s_sub_u32 s%d, s%d, 1" % (S_CNT, S_CNT), "s_cmp_lg_u32 s%d, 0" % S_CNT])
    br = ["s_cbranch_scc1 L_k2_loop"]
    TAIL = step(29) + step(30) + st(86) + step_last() + ["s_cbranch_scc1 L_k2_redo"]
    D = []
    if stamp:
        D += ["s_waitcnt vmcnt(0)", "s_memrealtime s[88:89]", "s_waitcnt lgkmcnt(0)", "v_mov_b32 v16, s80", "v_mov_b32 v17, s82",
              "v_mov_b32 v18, s84", "v_mov_b32 v19, s86", "v_mov_b32 v20, s88", "s_lshl_b32 s54, s2, 2", "s_add_u32 s54, s54, s%d" % S_WAVE,
              "s_lshl_b32 s54, s54, 5", "s_add_u32 s54, s54, 0x%x" % STAMP_OFF, "v_mov_b32 v15, 0", "s_mov_b64 exec, 1",
              "buffer_store_dwordx4 v[16:19], v15, %s, s54 offen" % sr(S_WS), "buffer_store_dword v20, v15, %s, s54 offen offset:16" % sr(S_WS)]
    D += ["L_k2_end:", "s_endpgm"]
    R0, RB, RT = redo()
    R0 = resolve_waits(R0)
    lines = head + S0 + [".p2align 6", "L_k2_loop:"] + BODY + br + TAIL + D + R0 + ["L_k2_maxloop:"] + RB + RT
    pre_only = head[head.index("L_k2_attn:"):]
    traces = [head + S0 + BODY + br + BODY + br + TAIL + D,
              step(30) + step_last() + R0 + RB + RB + RT + pre_only + S0]
    return dict(name="attn_kernel", lines=lines, traces=traces, grid=256, block=256, lds=4 * SLOT + 64, vgpr=512, acc=256, sgpr=102)
```

```python
from asmlib import *
from layout import *

VB = 16
VA = 80
VR = 96
VT = 132
VX = 240
SLOT = 9216

def acc(t, rt): return ar(16 * t + 4 * rt)

def loads(slot):
    out = []
    for n in range(9):
        pre = "s_add_u32 m0, s28, %d" % (slot * SLOT + (n // 4) * 4096) if n % 4 == 0 else None
        out.append((pre, "buffer_load_dwordx4 v%d, s[8:11], s25 offen offset:%d lds" % (3 + n, (n % 4) * 1024)))
    for rt in range(4):
        out.append((None, "buffer_load_dwordx4 %s, v1, s[4:7], s24 offen offset:%d" % (vr(VB + 16 * slot + 4 * rt), rt * 1024)))
    return [out[i] for i in (0, 1, 2, 3, 9, 4, 5, 6, 7, 10, 8, 11, 12)]

ADV = ["s_add_u32 s24, s24, 4096", "s_add_u32 s25, s25, %d" % (32 * 1152), "s_sub_u32 s26, s26, 1",
       "s_cmp_gt_i32 s26, 0", "s_cselect_b32 s6, s6, 0", "s_cselect_b32 s10, s10, 0"]

def tread(c, slot, tile, half):
    return "ds_read_b64_tr_b16 %s, v2 offset:%d" % (vr(VA + 4 * (c % 4) + 2 * half, 2), slot * SLOT + tile * 32 + half * 4608)

def gen(stamp=False):
    P = []
    A = P.append
    A("s_cmp_ge_u32 s2, 256")
    A("s_cbranch_scc1 L_k3_end")
    if stamp: A("s_memrealtime s[60:61]")
    A("s_load_dwordx2 s[32:33], s[0:1], %d" % ARG["ws"])
    A("s_load_dwordx2 s[34:35], s[0:1], %d" % ARG["wo"])
    A("s_load_dwordx2 s[36:37], s[0:1], %d" % ARG["wd"])
    A("s_load_dwordx2 s[38:39], s[0:1], %d" % ARG["x"])
    A("s_load_dwordx2 s[40:41], s[0:1], %d" % ARG["out"])
    A("v_lshrrev_b32 v12, 6, v0")
    A("v_and_b32 v13, 63, v0")
    A("v_readfirstlane_b32 s29, v12")
    A("v_lshlrev_b32 v1, 4, v13")
    A("s_and_b32 s30, s2, 1")
    A("s_bfe_u32 s31, s2, 0x20001")
    A("s_lshr_b32 s42, s2, 5")
    A("s_lshl_b32 s31, s31, 3")
    A("s_add_u32 s31, s31, s42")
    A("s_bfe_u32 s42, s2, 0x20003")
    A("s_mul_i32 s28, s29, %d" % (4 * SLOT))
    A("v_lshrrev_b32 v12, 2, v13")
    A("v_mul_u32_u24 v2, 288, v12")
    A("v_and_b32 v12, 3, v13")
    A("v_lshl_add_u32 v2, v12, 3, v2")
    A("v_add_u32 v2, s28, v2")
    for n in range(9):
        A("v_add_u32 v12, %d, v13" % (64 * n))
        A("v_mul_u32_u24 v14, 3641, v12")
        A("v_lshrrev_b32 v14, 16, v14")
        A("v_mul_u32_u24 v15, %d, v14" % (1152 - 288))
        A("v_lshl_add_u32 v15, v12, 4, v15")
        A("v_subrev_u32 v%d, %d, v15" % (3 + n, (n % 4) * 1024))
    A("s_cmp_eq_u32 s30, 0")
    A("s_cselect_b32 s26, 32, 36")
    A("s_cselect_b32 s43, 0x%x, s26" % O_OFF)
    A("s_cselect_b32 s43, s43, 0x%x" % H_OFF)
    A("s_lshr_b32 s27, s26, 2")
    A("s_lshl_b32 s44, s31, 2")
    A("s_add_u32 s44, s44, s29")
    A("s_mul_i32 s44, s44, s26")
    A("s_lshl_b32 s44, s44, 12")
    A("s_add_u32 s24, s43, s44")
    A("s_mul_i32 s44, s29, s26")
    A("s_mul_i32 s44, s44, %d" % (32 * 1152))
    A("s_mul_i32 s45, s42, 288")
    A("s_add_u32 s25, s44, s45")
    A("s_waitcnt lgkmcnt(0)")
    A("s_cmp_eq_u32 s30, 0")
    A("s_cselect_b32 s34, s34, s36")
    A("s_cselect_b32 s35, s35, s37")
    P += srd(4, 32, WS_BYTES) + srd(8, 34, 4096 * 1152) + srd(12, 38, X_BYTES) + srd(16, 40, X_BYTES) + srd(20, 32, WS_BYTES)
    A("s_cmp_eq_u32 s30, 0")
    A("s_cselect_b32 s10, s10, 0x%x" % (4608 * 1152))
    for s in range(3):
        for pre, ld in loads(s):
            if pre: A(pre); A("s_nop 0")
            A(ld)
        P += ADV
    for i in range(144):
        A("v_accvgpr_write_b32 a%d, 0" % i)
    A("s_waitcnt vmcnt(26)")
    for t in range(3):
        A(tread(t, 0, t, 0)); A(tread(t, 0, t, 1))
    A("s_waitcnt lgkmcnt(4)")
    B = []
    gpos = [2, 3, 6, 10, 11, 14, 18, 19, 22, 26, 27, 30, 34]
    for s in range(4):
        mf = [mfma(acc(t, rt), vr(VA + 4 * ((9 * s + t) % 4)), vr(VB + 16 * s + 4 * rt), acc(t, rt)) for t in range(9) for rt in range(4)]
        pin = {g: [] for g in range(36)}
        for t in range(9):
            pin[4 * t].append("s_waitcnt vmcnt(22) lgkmcnt(2)" if t == 6 else "s_waitcnt lgkmcnt(2)")
        ld = loads((s + 3) % 4)
        for g, (pre, x) in zip(gpos, ld):
            if pre:
                pg = g - 1 if (g - 1) % 4 == 1 else g - 2
                pin[pg].append(pre)
            pin[g].append(x)
        for t in range(9):
            n = t + 3
            sl, tl = (s, n) if n < 9 else ((s + 1) % 4, n - 9)
            pin[4 * t].append(tread(9 * s + n, sl, tl, 0))
            pin[4 * t + 1].append(tread(9 * s + n, sl, tl, 1))
        pin[35] += ADV
        if s == 3:
            pin[35] += ["s_sub_u32 s27, s27, 1", "s_cmp_lg_u32 s27, 0"]
        o, left = schedule(mf, pin, [])
        B += o
    E = []
    A = E.append
    A("v_and_b32 v12, 15, v13")
    A("v_mul_u32_u24 v12, 1152, v12")
    A("v_lshrrev_b32 v14, 4, v13")
    A("v_lshl_add_u32 v12, v14, 3, v12")
    A("s_lshl_b32 s44, s31, 2")
    A("s_add_u32 s44, s44, s29")
    A("s_mul_i32 s46, s44, %d" % (16 * 1152))
    A("s_add_u32 s46, s46, s45")
    A("s_lshl_b32 s47, s31, 2")
    A("s_add_u32 s47, s47, s42")
    A("s_lshl_b32 s48, s47, 2")
    A("s_add_u32 s48, s48, s29")
    A("s_lshl_b32 s49, s48, 6")
    A("s_add_u32 s49, s49, 0x%x" % FLAG_OFF)
    A("s_lshl_b32 s48, s48, 1")
    A("s_add_u32 s50, s48, s30")
    A("s_xor_b32 s51, s50, 1")
    A("s_mul_i32 s50, s50, %d" % SLOT)
    A("s_mul_i32 s51, s51, %d" % SLOT)
    A("s_add_u32 s50, s50, 0x%x" % PART_OFF)
    A("s_add_u32 s51, s51, 0x%x" % PART_OFF)
    A("v_add_u32 v14, s28, v1")
    A("s_mul_i32 s52, s29, %d" % SLOT)
    A("v_add_u32 v15, s52, v1")
    A("s_waitcnt vmcnt(0) lgkmcnt(0)")
    for t in range(9):
        A("buffer_load_dwordx2 %s, v12, s[12:15], s46 offen offset:%d" % (vr(VB + 2 * t, 2), t * 32))
    for rt in range(4):
        for t in range(9):
            A("ds_write_b128 v14, %s offset:%d" % (acc(t, rt), rt * SLOT + t * 1024))
    A("v_add_u32 v3, %d, v15" % (4 * SLOT))
    A("v_add_u32 v4, %d, v15" % (8 * SLOT))
    A("v_add_u32 v5, %d, v15" % (12 * SLOT))
    A("s_waitcnt lgkmcnt(0)")
    A("s_barrier")
    A("v_mov_b32 v6, 0")
    A("buffer_load_dword v7, v6, s[20:23], s49 offen sc1")
    for t in range(9):
        for j, (adr, dst) in enumerate(((15, VR), (3, VT), (4, VT + 36), (5, VT + 72))):
            A("ds_read_b128 %s, v%d offset:%d" % (vr(dst + 4 * t), adr, t * 1024))
        if t >= 2:
            A("s_waitcnt lgkmcnt(8)")
            for r in range(4 * (t - 2), 4 * (t - 2) + 4):
                A("v_add_f32 v%d, v%d, v%d" % (VR + r, VR + r, VT + r))
                A("v_add_f32 v%d, v%d, v%d" % (VT + 36 + r, VT + 36 + r, VT + 72 + r))
    A("s_waitcnt lgkmcnt(0)")
    for r in range(28, 36):
        A("v_add_f32 v%d, v%d, v%d" % (VR + r, VR + r, VT + r))
        A("v_add_f32 v%d, v%d, v%d" % (VT + 36 + r, VT + 36 + r, VT + 72 + r))
    for r in range(36):
        A("v_add_f32 v%d, v%d, v%d" % (VR + r, VR + r, VT + 36 + r))
    A("s_waitcnt vmcnt(0)")
    A("v_readfirstlane_b32 s53, v7")
    A("s_nop 1")
    A("s_cmp_lg_u32 s53, 0")
    A("s_cbranch_scc1 L_k3_fin")
    PUB = []
    A = PUB.append
    for t in range(9):
        if t % 4 == 0: A("s_add_u32 s54, s50, %d" % (t * 1024))
        A("buffer_store_dwordx4 %s, v1, s[20:23], s54 offen offset:%d sc0 sc1" % (vr(VR + 4 * t), (t % 4) * 1024))
    A("v_mov_b32 v7, 1")
    A("s_waitcnt vmcnt(0)")
    A("s_mov_b64 exec, 1")
    A("buffer_atomic_add v7, v6, s[20:23], s49 offen sc0 sc1")
    A("s_waitcnt vmcnt(0)")
    A("v_readfirstlane_b32 s53, v7")
    A("s_mov_b64 exec, -1")
    A("s_cmp_eq_u32 s53, 0")
    A("s_cbranch_scc1 L_k3_done")
    F = []
    A = F.append
    A("L_k3_fin:")
    for t in range(9):
        if t % 4 == 0: A("s_add_u32 s54, s51, %d" % (t * 1024))
        A("buffer_load_dwordx4 %s, v1, s[20:23], s54 offen offset:%d sc0 sc1" % (vr(VT + 4 * t), (t % 4) * 1024))
    A("s_cmp_eq_u32 s30, 0")
    A("s_cselect_b64 vcc, -1, 0")
    A("s_mov_b32 s55, %s" % f32(-LOG2E))
    for t in range(9):
        A("s_waitcnt vmcnt(%d)" % (8 - t + t))
        for r in range(4):
            i = 4 * t + r
            A("v_cndmask_b32 v%d, v%d, v%d, vcc" % (VX + r, VR + i, VT + i))
        for r in range(4):
            i = 4 * t + r
            A("v_mul_f32 v%d, v%d, v%d" % (VR + i, VR + i, VT + i))
            A("v_mul_f32 v%d, s55, v%d" % (VX + r, VX + r))
        for r in range(4): A("v_exp_f32 v%d, v%d" % (VX + r, VX + r))
        A("v_lshlrev_b32 v%d, 16, v%d" % (VX + 4, VB + 2 * t))
        for r in range(4): A("v_add_f32 v%d, 1.0, v%d" % (VX + r, VX + r))
        for r in range(4): A("v_rcp_f32 v%d, v%d" % (VX + r, VX + r))
        A("v_and_b32 v%d, 0xffff0000, v%d" % (VX + 5, VB + 2 * t))
        A("v_lshlrev_b32 v%d, 16, v%d" % (VX + 6, VB + 2 * t + 1))
        A("v_and_b32 v%d, 0xffff0000, v%d" % (VX + 7, VB + 2 * t + 1))
        for r in range(4): A("v_fmac_f32 v%d, v%d, v%d" % (VX + 4 + r, VR + 4 * t + r, VX + r))
        A("v_cvt_pk_bf16_f32 v%d, v%d, v%d" % (VB + 2 * t, VX + 4, VX + 5))
        A("v_cvt_pk_bf16_f32 v%d, v%d, v%d" % (VB + 2 * t + 1, VX + 6, VX + 7))
        A("buffer_store_dwordx2 %s, v12, s[16:19], s46 offen offset:%d" % (vr(VB + 2 * t, 2), t * 32))
    D = ["L_k3_done:"]
    if stamp:
        D += ["s_waitcnt vmcnt(0)", "s_memrealtime s[62:63]", "s_waitcnt lgkmcnt(0)", "v_mov_b32 v8, s60", "v_mov_b32 v9, s62",
              "s_lshl_b32 s54, s2, 2", "s_add_u32 s54, s54, s29", "s_lshl_b32 s54, s54, 4", "s_add_u32 s54, s54, 0x%x" % (STAMP_OFF + 0x20000),
              "v_mov_b32 v6, 0", "s_mov_b64 exec, 1", "buffer_store_dwordx2 v[8:9], v6, s[20:23], s54 offen"]
    D += ["L_k3_end:", "s_endpgm"]
    lines = P + [".p2align 6", "L_k3_loop:"] + B + ["s_cbranch_scc1 L_k3_loop"] + E + PUB + F + D
    br = ["s_cbranch_scc1 L_k3_loop"]
    traces = [P + B + br + B + br + E + PUB + F + D, P + B + br + E + F + D]
    return dict(name="fin_kernel", lines=lines, traces=traces, grid=256, block=256, lds=16 * SLOT, vgpr=400, acc=256, sgpr=102)
```

```python
WS_BYTES = 268435456
XN_OFF = 0
HW_OFF = 0x280000
H_OFF = 0x400000
O_OFF = 0x1800000
H2_OFF = 0x1400000
WF_OFF = 0x2800000
PART_OFF = 0x4000000
FLAG_OFF = 0x3400000
STAMP_OFF = 0x3800000
X_BYTES = 2048 * 576 * 2
KV_BYTES = 32 * 2048 * 128 * 2
WQ_BYTES = 576 * 4096 * 2
WG_BYTES = 576 * 4608 * 2
ARG = dict(x=0, k=8, v=16, wq=24, wo=32, bx=40, wg=48, wu=56, wd=64, out=72, dbg=80, ws=88)
LOG2E = 1.4426950408889634
import struct
def f32(x): return "0x%08x" % struct.unpack("<I", struct.pack("<f", x))[0]
SCALE = dict(XE=4)
HOP = dict(waves=9)
```

```python
import sys, k1, k2, k3
from build import emit
stamp = "stamp" in sys.argv
out = "full_stamp.s" if stamp else "recurrent_scan__mha_block_cached__glu_gated_glu__prompt.s"
emit([k1.gen(), k2.gen(stamp), k3.gen(stamp)], out)
```

```python
import sys, k1, k2, k3
from build import emit
a, b, c = k1.gen(), k2.gen(), k3.gen()
emit([a, b, c], "v_base.s")
emit([a, a, b, c], "v_k1x2.s")
emit([a, a, a, b, c], "v_k1x3.s")
emit([a, b, a, c], "v_k1mid.s")
emit([a, b, b, c], "v_k2x2.s")
emit([a, b, c, a, c], "v_k3x2.s")
```

```python
from asmlib import *
from layout import *

def gen():
    L = []
    A = L.append
    A("s_cmp_ge_u32 s2, 128")
    A("s_cbranch_scc1 L_ln_end")
    A("s_load_dwordx2 s[4:5], s[0:1], %d" % ARG["x"])
    A("s_load_dwordx2 s[6:7], s[0:1], %d" % ARG["ws"])
    A("v_and_b32 v1, 63, v0")
    A("v_lshrrev_b32 v2, 6, v0")
    A("v_and_b32 v3, 15, v0")
    A("v_lshrrev_b32 v4, 4, v1")
    A("v_mul_u32_u24 v5, 1152, v3")
    A("v_lshl_add_u32 v5, v2, 7, v5")
    A("v_lshl_add_u32 v5, v4, 4, v5")
    A("s_mul_i32 s3, s2, %d" % (16 * 1152))
    A("s_waitcnt lgkmcnt(0)")
    L += srd(8, 4, X_BYTES) + srd(12, 6, WS_BYTES)
    A("buffer_load_dwordx4 v[8:11], v5, s[8:11], s3 offen")
    A("buffer_load_dwordx4 v[12:15], v5, s[8:11], s3 offen offset:64")
    A("v_mov_b32 v6, 0")
    A("v_lshlrev_b32 v7, 2, v0")
    A("s_lshl_b32 s16, s2, 6")
    A("s_add_u32 s16, s16, 0x%x" % FLAG_OFF)
    A("v_cmp_gt_u32 vcc, 16, v0")
    A("s_and_saveexec_b64 s[18:19], vcc")
    A("s_cbranch_execz L_ln_noflag")
    A("buffer_store_dword v6, v7, s[12:15], s16 offen")
    A("L_ln_noflag:")
    A("s_mov_b64 exec, s[18:19]")
    A("v_mul_u32_u24 v6, 144, v3")
    A("v_lshl_add_u32 v7, v2, 2, v4")
    A("v_lshl_add_u32 v7, v7, 2, v6")
    A("s_lshr_b32 s16, s2, 2")
    A("s_mul_i32 s16, s16, %d" % (18 * 4096))
    A("s_and_b32 s17, s2, 3")
    A("s_lshl_b32 s17, s17, 10")
    A("s_add_u32 s16, s16, s17")
    A("s_add_u32 s17, s16, 4096")
    A("v_lshlrev_b32 v5, 13, v2")
    A("v_lshl_add_u32 v5, v1, 4, v5")
    A("s_waitcnt vmcnt(0)")
    for i in range(8):
        A("v_lshlrev_b32 v%d, 16, v%d" % (16 + 2 * i, 8 + i))
        A("v_and_b32 v%d, 0xffff0000, v%d" % (17 + 2 * i, 8 + i))
    def reduce(src, off, dst):
        A("ds_write_b32 v7, v%d offset:%d" % (src, off))
        A("s_waitcnt lgkmcnt(0)")
        A("s_barrier")
        for i in range(9):
            A("ds_read_b128 v[%d:%d], v6 offset:%d" % (32 + 4 * i, 35 + 4 * i, off + 16 * i))
        A("s_waitcnt lgkmcnt(0)")
        n = 36
        while n > 1:
            h = n // 2
            for i in range(h):
                A("v_add_f32 v%d, v%d, v%d" % (32 + i, 32 + i, 32 + n - 1 - i))
            n -= h
        A("v_mul_f32 v%d, %s, v32" % (dst, f32(1.0 / 576)))
    for i in range(8):
        A("v_add_f32 v%d, v%d, v%d" % (32 + i, 16 + i, 24 + i))
    for i in range(4):
        A("v_add_f32 v%d, v%d, v%d" % (32 + i, 32 + i, 36 + i))
    A("v_add_f32 v32, v32, v34")
    A("v_add_f32 v33, v33, v35")
    A("v_add_f32 v68, v32, v33")
    reduce(68, 0, 69)
    for i in range(16):
        A("v_sub_f32 v%d, v%d, v69" % (32 + i, 16 + i))
    for i in range(4):
        A("v_mul_f32 v%d, v%d, v%d" % (48 + i, 32 + i, 32 + i))
    for i in range(4, 16):
        A("v_fmac_f32 v%d, v%d, v%d" % (48 + i % 4, 32 + i, 32 + i))
    A("v_add_f32 v48, v48, v50")
    A("v_add_f32 v49, v49, v51")
    A("v_add_f32 v68, v48, v49")
    reduce(68, 2304, 70)
    A("v_cvt_pk_bf16_f32 v71, v69, v70")
    A("v_lshlrev_b32 v69, 16, v71")
    A("v_and_b32 v70, 0xffff0000, v71")
    A("v_add_f32 v70, %s, v70" % f32(1e-5))
    A("v_cvt_pk_bf16_f32 v70, v70, v70")
    A("v_lshlrev_b32 v70, 16, v70")
    A("v_sqrt_f32 v70, v70")
    A("s_nop 0")
    A("v_cvt_pk_bf16_f32 v70, v70, v70")
    A("v_lshlrev_b32 v70, 16, v70")
    A("v_rcp_f32 v70, v70")
    for i in range(16):
        A("v_sub_f32 v%d, v%d, v69" % (16 + i, 16 + i))
    for i in range(8):
        A("v_cvt_pk_bf16_f32 v%d, v%d, v%d" % (8 + i, 16 + 2 * i, 17 + 2 * i))
    for i in range(8):
        A("v_lshlrev_b32 v%d, 16, v%d" % (16 + 2 * i, 8 + i))
        A("v_and_b32 v%d, 0xffff0000, v%d" % (17 + 2 * i, 8 + i))
    for i in range(16):
        A("v_mul_f32 v%d, v%d, v70" % (16 + i, 16 + i))
    for i in range(8):
        A("v_cvt_pk_bf16_f32 v%d, v%d, v%d" % (8 + i, 16 + 2 * i, 17 + 2 * i))
    A("buffer_store_dwordx4 v[8:11], v5, s[12:15], s16 offen")
    A("buffer_store_dwordx4 v[12:15], v5, s[12:15], s17 offen")
    A("L_ln_end:")
    A("s_endpgm")
    return dict(name="ln_kernel", lines=L, traces=[L], grid=128, block=576, lds=4608, vgpr=72, acc=72, sgpr=24)
```

```python
from asmlib import *
from layout import *

SLOT = 36864
V_FR, V_TU, V_TQ, V_TH = 1, 2, 6, 8
V_DG, V_DQ, V_DH, V_DK, V_DV, V_DS, V_TS = 9, 10, 11, 12, 13, 14, 15
VA, VXN, VG, VU, VH = 16, 40, 72, 136, 200
V_KA, V_VA, V_ONE, V_TMP = 232, 236, 244, 248
VS, VNEG, VVF, VKF = 16, 40, 200, 216
VP = [[VG + 16, VG + 48], [VU + 16, VU + 48]]
S_WS, S_WG, S_WU, S_WQ, S_K, S_V, S_WH = 4, 8, 12, 16, 20, 24, 28
S_WAVE, S_SL, S_RB = 32, 33, 34
S_L1K, S_GB, S_QB, S_HB, S_HL, S_XN = 35, 36, 37, 38, 39, 40
S_T0, S_T1, S_HST, S_HHST, S_OST = 41, 42, 43, 44, 45
S_KO, S_VO, S_CNT, S_NL2E, S_QC, S_REDO, S_KV0 = 46, 47, 48, 49, 50, 51, 52
S_T2 = 53
KOFF = lambda j: (((j - 1) // 2) & 1) * 32768 + ((j - 1) & 1) * 16384
VOFF = lambda j: ((j // 2) & 1) * 32768 + (j & 1) * 16384
FLAG_LDS = 163776
SCR = 4 * SLOT
S_SRC, S_WF = 84, 88
S_PUB = 60
S_SHS, S_SHD, S_SCR = 69, 72, 73
S_U, S_AFL = 74, 75
SC = " sc1"
NST = 17
XS = [49152, 12288, 86016, 122880]
AB = [144, 176, 208, 0]
VD, VSA, VPK, VXX, VT, VIN = 16, 88, 192, 220, 232, 40
WBUF = [160, 176, 240]
V_RD, V_RD2, V_H2, V_XO, V_L0, V_PL, V_F4, V_B8, V_1 = 2, 3, 4, 5, 7, 8, 9, 10, 11
V_PA = 32
S_X, S_OUT, S_AUX = 8, 12, 16
S_TO = [28, 29, 30, 31, 36, 37, 38, 39, 40]
S_WB, S_WB2, S_LB, S_HA, S_H2, S_XO, S_BP, S_BC, S_WST = 43, 44, 69, 72, 73, 74, 82, 83, 84
S_IN = 85
OPT = dict(codepf=True)

def xn(ks, rt):
    return ar(16 * ks + 4 * rt) if ks < 16 else vr(VXN + 16 * (ks - 16) + 4 * rt)
def qf(t, ks):
    return vr((VG if ks < 2 else VU) + 32 * (ks & 1) + 4 * t)
def oacc(dt, t): return ar(16 * dt + 4 * t)
def lacc(t): return ar(128 + 4 * t)

def dma(srd_, voff, sbase, sconst, lbase, lconst, tag, tmp=S_T0):
    return (["s_add_u32 s%d, s%d, 0x%x" % (tmp, sbase, sconst), "s_add_u32 m0, s%d, 0x%x" % (lbase, lconst)],
            "buffer_load_dwordx4 v%d, %s, s%d offen lds ;@%s" % (voff, sr(srd_), tmp, tag))

def chunk_slot(c): return 3 * SLOT if c == 11 else ((c + 1) % 3) * SLOT
TS = []
for c in range(12):
    TS.append(dict(kind="guguqq"[c // 2], unit=(c // 4) if c < 8 else (c - 8) // 2, half=c & 1, off=chunk_slot(c), tag="c%d" % c))
TS.insert(8, dict(kind="h", unit=0, half=0, off=3 * SLOT, tag="h"))

def chunk_dmas(ts):
    out = []
    for i in range(9):
        if ts["kind"] == "h":
            out.append(dma(S_WH, V_DH, S_HB, i * 32 * 9216, S_HL, 3 * SLOT + i * 1024, "h"))
        else:
            row = ts["half"] * 288 + i * 32
            if ts["kind"] == "q":
                out.append(dma(S_WQ, V_DQ, S_QB, row * 8192 + ts["unit"] * 128, S_L1K, ts["off"] + i * 4096, ts["tag"]))
            else:
                out.append(dma(S_WG if ts["kind"] == "g" else S_WU, V_DG, S_GB, row * 9216 + ts["unit"] * 128,
                               S_L1K, ts["off"] + i * 4096, ts["tag"]))
    return out

def kv_dmas(which, j, tag):
    out = []
    for n in range(4):
        if which == "k":
            out.append(dma(S_K, V_DK, S_KV0, j * 16384 + n * 4096, S_L1K, KOFF(j) + n * 4096, tag))
        else:
            out.append(dma(S_V, V_DV, S_KV0, j * 16384 + n * 4096, S_L1K, 65536 + VOFF(j) + n * 4096, tag))
    return out

def xn_load(ks, rt):
    so = (S_T1, S_T2)[ks & 1]
    pre = ["s_add_u32 s%d, s%d, 0x%x" % (so, S_XN, ks * 4096)] if rt == 0 else []
    return (pre, "buffer_load_dwordx4 %s, v%d, %s, s%d offen offset:%d ;@x%d" % (xn(ks, rt), V_FR, sr(S_WS), so, rt * 1024, ks // 3))

def setup(st):
    P = []
    A = P.append
    A("s_cmp_ge_u32 s2, 256")
    A("s_cbranch_scc1 L_k2_end")
    P += st(0)
    A("s_load_dwordx2 s[60:61], s[0:1], %d" % ARG["ws"])
    A("s_load_dwordx4 s[64:67], s[0:1], %d" % ARG["wg"])
    A("s_load_dwordx2 s[68:69], s[0:1], %d" % ARG["k"])
    A("s_load_dwordx4 s[72:75], s[0:1], %d" % ARG["v"])
    A("s_load_dwordx2 s[70:71], s[0:1], %d" % ARG["wo"])
    A("s_load_dwordx4 s[76:79], s[0:1], %d" % ARG["wd"])
    A("s_load_dwordx2 s[80:81], s[0:1], %d" % ARG["x"])
    if OPT["codepf"]:
        A("s_getpc_b64 s[54:55]")
        A("L_k2_pc:")
        A("v_lshlrev_b32 v7, 7, v0")
        A("CODEPF")
    A("v_lshrrev_b32 v15, 6, v0")
    A("v_and_b32 v0, 63, v0")
    A("v_readfirstlane_b32 s%d, v15" % S_WAVE)
    A("v_lshlrev_b32 v%d, 4, v0" % V_FR)
    A("s_and_b32 s54, s2, 7")
    A("s_lshl_b32 s54, s54, 2")
    A("s_bfe_u32 s55, s2, 0x20003")
    A("s_add_u32 s%d, s54, s55" % S_SL)
    A("s_lshr_b32 s54, s2, 5")
    A("s_lshl_b32 s54, s54, 2")
    A("s_add_u32 s%d, s54, s%d" % (S_RB, S_WAVE))
    A("s_lshl_b32 s%d, s%d, 10" % (S_L1K, S_WAVE))
    A("s_mul_i32 s%d, s%d, %d" % (S_XN, S_RB, 18 * 4096))
    A("s_lshl_b32 s54, s%d, 8" % S_SL)
    A("s_mul_i32 s55, s%d, %d" % (S_WAVE, 8 * 9216))
    A("s_add_u32 s%d, s54, s55" % S_GB)
    A("s_lshl_b32 s55, s%d, 16" % S_WAVE)
    A("s_add_u32 s%d, s54, s55" % S_QB)
    A("v_lshrrev_b32 v15, 3, v0")
    A("v_bfe_u32 v%d, v0, 4, 1" % V_TMP)
    A("s_and_b32 s54, s%d, 1" % S_WAVE)
    A("s_lshl_b32 s54, s54, 1")
    A("v_or_b32 v%d, s54, v%d" % (V_TMP, V_TMP))
    A("v_lshlrev_b32 v%d, 1, v%d" % (V_TMP, V_TMP))
    A("v_and_b32 v%d, 7, v0" % (V_TMP + 1))
    A("v_xor_b32 v%d, v%d, v%d" % (V_TMP, V_TMP, V_TMP + 1))
    A("v_lshlrev_b32 v%d, 4, v%d" % (V_TMP, V_TMP))
    A("v_mul_u32_u24 v%d, 9216, v15" % V_DG)
    A("v_add_u32 v%d, v%d, v%d" % (V_DG, V_DG, V_TMP))
    A("v_lshl_add_u32 v%d, v15, 13, v%d" % (V_DQ, V_TMP))
    A("s_waitcnt lgkmcnt(0)")
    P += srd(S_WS, 60, WS_BYTES) + srd(S_WG, 64, WG_BYTES)
    return P

def setup2():
    P = []
    A = P.append
    P += srd(S_WU, 66, WG_BYTES) + srd(S_WQ, 74, WQ_BYTES) + srd(S_K, 68, KV_BYTES) + srd(S_V, 72, KV_BYTES)
    A("s_cmp_lt_u32 s%d, 2" % S_WAVE)
    A("s_cselect_b32 s62, s64, s66")
    A("s_cselect_b32 s63, s65, s67")
    P += srd(S_WH, 62, WG_BYTES)
    t0, t1, t2, t3 = V_TMP, V_TMP + 1, V_TMP + 2, V_TMP + 3
    A("v_lshrrev_b32 v%d, 4, v0" % t0)
    A("v_bfe_u32 v%d, v0, 2, 2" % t1)
    A("v_lshl_add_u32 v15, v%d, 3, v%d" % (t0, t1))
    A("v_lshlrev_b32 v15, 7, v15")
    A("v_add_u32 v15, %d, v15" % TS[0]["off"])
    A("v_bfe_u32 v%d, v0, 3, 2" % t2)
    A("v_and_b32 v%d, 3, v0" % t3)
    for j in range(4):
        A("v_xor_b32 v%d, %d, v%d" % (V_TU + j, j, t2))
        A("v_lshl_add_u32 v%d, v%d, 5, v15" % (V_TU + j, V_TU + j))
        A("v_lshl_add_u32 v%d, v%d, 3, v%d" % (V_TU + j, t3, V_TU + j))
    A("v_add_u32 v15, %d, v15" % ((TS[9]["off"] - TS[0]["off"]) & 0xffffffff))
    A("v_lshlrev_b32 v%d, 1, v%d" % (t2, t2))
    for m in range(2):
        A("v_or_b32 v%d, %d, v%d" % (V_TQ + m, 4 * m, t3))
        A("v_xor_b32 v%d, v%d, v%d" % (V_TQ + m, V_TQ + m, t2))
        A("v_lshl_add_u32 v%d, v%d, 4, v15" % (V_TQ + m, V_TQ + m))
    A("v_lshlrev_b32 v%d, 3, v0" % V_TH)
    A("v_add_u32 v%d, %d, v%d" % (V_TH, 3 * SLOT, V_TH))
    A("v_bfe_u32 v15, v0, 3, 2")
    A("v_lshlrev_b32 v15, 3, v15")
    A("v_lshrrev_b32 v%d, 5, v0" % t2)
    A("v_lshl_add_u32 v15, v%d, 2, v15" % t2)
    A("v_bfe_u32 v%d, v0, 1, 2" % t2)
    A("v_add_u32 v15, v15, v%d" % t2)
    A("v_mul_u32_u24 v15, 9216, v15")
    A("v_and_b32 v%d, 1, v0" % t2)
    A("v_lshl_add_u32 v%d, v%d, 4, v15" % (V_DH, t2))
    A("s_and_b32 s54, s%d, 1" % S_WAVE)
    A("s_mul_i32 s55, s54, %d" % (288 * 9216))
    A("s_lshl_b32 s56, s%d, 5" % S_SL)
    A("s_add_u32 s55, s55, s56")
    A("s_add_u32 s%d, s55, 8192" % S_HB)
    A("s_mul_i32 s%d, s%d, 9216" % (S_HL, S_WAVE))
    A("s_lshl_b32 s54, s%d, 19" % S_RB)
    A("s_lshl_b32 s55, s%d, 14" % S_SL)
    A("s_add_u32 s54, s54, s55")
    A("s_add_u32 s%d, s54, 0x%x" % (S_HST, H_OFF))
    A("s_add_u32 s%d, s54, 0x%x" % (S_OST, O_OFF))
    A("s_lshr_b32 s54, s54, 3")
    A("s_add_u32 s%d, s54, 0x%x" % (S_HHST, H2_OFF - 3 * SLOT))
    A("s_mov_b32 s%d, %s" % (S_NL2E, f32(-LOG2E)))
    A("s_mov_b32 s%d, %s" % (S_QC, f32(LOG2E * 128 ** -0.5)))
    A("s_mov_b32 s%d, 0" % S_REDO)
    A("s_lshl_b32 s54, s%d, 19" % S_SL)
    A("s_add_u32 s%d, s54, s%d" % (S_KV0, S_L1K))
    A("s_lshl_b32 s54, s%d, 2" % S_WAVE)
    A("v_add_u32 v15, s54, v%d" % t0)
    A("v_and_b32 v%d, 15, v0" % t2)
    A("v_xor_b32 v%d, v%d, v15" % (V_DK, t2))
    A("v_lshlrev_b32 v%d, 4, v%d" % (V_DK, V_DK))
    A("v_lshl_add_u32 v%d, v%d, 8, v%d" % (V_DK, t0, V_DK))
    A("v_and_b32 v15, 7, v15")
    A("v_lshlrev_b32 v15, 1, v15")
    A("v_xor_b32 v%d, v%d, v15" % (V_DV, t2))
    A("v_lshlrev_b32 v%d, 4, v%d" % (V_DV, V_DV))
    A("v_lshl_add_u32 v%d, v%d, 8, v%d" % (V_DV, t0, V_DV))
    for ks in range(4):
        A("v_or_b32 v15, %d, v%d" % (4 * ks, t0))
        A("v_xor_b32 v15, v15, v%d" % t2)
        A("v_lshlrev_b32 v15, 4, v15")
        A("v_lshl_add_u32 v%d, v%d, 8, v15" % (V_KA + ks, t2))
    A("v_lshrrev_b32 v%d, 2, v0" % t1)
    A("v_and_b32 v%d, 7, v%d" % (t2, t1))
    A("v_lshlrev_b32 v%d, 8, v%d" % (t1, t1))
    A("v_lshl_add_u32 v%d, v%d, 3, v%d" % (t1, t3, t1))
    A("v_add_u32 v%d, 0x10000, v%d" % (t1, t1))
    for dt in range(8):
        A("v_xor_b32 v15, %d, v%d" % (dt, t2))
        A("v_lshl_add_u32 v%d, v15, 5, v%d" % (V_VA + dt, t1))
    for r in range(4):
        A("v_mov_b32 v%d, -1" % (V_ONE + r))
    A("s_add_u32 s%d, s60, 0x%x" % (S_WF, WF_OFF))
    A("s_addc_u32 s%d, s61, 0" % (S_WF + 1))
    A("s_and_b32 s%d, s%d, 0xffff" % (S_WF + 1, S_WF + 1))
    A("s_mov_b32 s%d, 0x%x" % (S_WF + 2, 272 * SLOT))
    A("s_mov_b32 s%d, 0x20000" % (S_WF + 3))
    A("s_mov_b32 s%d, 0x20000" % (S_SRC + 3))
    A("s_lshl_b32 s%d, s2, 2" % S_U)
    A("s_add_u32 s%d, s%d, s%d" % (S_U, S_U, S_WAVE))
    A("s_lshl_b32 s%d, s%d, 12" % (S_SCR, S_WAVE))
    A("s_add_u32 s%d, s%d, %d" % (S_SCR, S_SCR, SCR))
    A("v_lshrrev_b32 v%d, 3, v0" % t0)
    A("v_mul_u32_u24 v%d, 1152, v%d" % (t0, t0))
    A("v_and_b32 v%d, 7, v0" % t1)
    A("v_lshl_add_u32 v%d, v%d, 4, v%d" % (V_DS, t1, t0))
    A("v_lshrrev_b32 v%d, 2, v0" % t0)
    A("v_lshlrev_b32 v%d, 7, v%d" % (t0, t0))
    A("v_lshl_add_u32 v%d, v%d, 3, v%d" % (t0, t3, t0))
    A("v_add_u32 v%d, s%d, v%d" % (V_TS, S_SCR, t0))
    P += slab_base(54) + rot(55)
    A("s_bfe_u32 s56, s2, 0x20001")
    A("s_mul_i32 s56, s56, %d" % (18 * 1024))
    A("s_add_u32 s54, s54, s56")
    for c in range(2, 9):
        A("s_add_u32 s56, s55, %d" % c)
        A("s_sub_u32 s57, s56, 9")
        A("s_min_u32 s56, s56, s57")
        A("s_lshl_b32 s56, s56, 11")
        A("s_add_u32 s%d, s54, s56" % (S_PUB + c))
    A("s_lshl_b32 s%d, s2, 2" % S_AFL)
    A("s_add_u32 s%d, s%d, 0x%x" % (S_AFL, S_AFL, FLAG_OFF + 4096))
    return P

def slab_base(r):
    return ["s_lshr_b32 s%d, s2, 3" % r, "s_lshl_b32 s%d, s%d, 1" % (r, r), "s_and_b32 s%d, s2, 1" % (r + 1),
            "s_add_u32 s%d, s%d, s%d" % (r, r, r + 1), "s_lshl_b32 s%d, s%d, 2" % (r, r), "s_add_u32 s%d, s%d, s%d" % (r, r, S_WAVE),
            "s_mul_i32 s%d, s%d, %d" % (r, r, 72 * 1024), "s_add_u32 s%d, s%d, 0x%x" % (r, r, PART_OFF)]

def rot(r):
    return ["s_bfe_u32 s%d, s2, 0x20001" % r, "s_min_u32 s%d, s%d, 1" % (r + 1, r), "s_lshl_b32 s%d, s%d, 1" % (r, r),
            "s_add_u32 s%d, s%d, s%d" % (r, r, r + 1)]

def shuffle_round(r):
    sc = [["s_add_u32 s54, s%d, %d" % (S_U, r * 1024)], ["s_mul_i32 s55, s54, 7282"], ["s_lshr_b32 s55, s55, 16"],
          ["s_lshl_b32 s%d, s54, 12" % S_SHD], ["s_mul_i32 s%d, s55, 9" % S_SHS], ["s_sub_u32 s54, s54, s%d" % S_SHS],
          ["s_lshl_b32 s54, s54, 7"],
          ["s_cmp_lt_u32 s55, 144", "s_cselect_b32 s%d, s76, s70" % S_SRC, "s_cselect_b32 s%d, s77, s71" % (S_SRC + 1)],
          ["s_cmp_lt_u32 s55, 144", "s_cselect_b32 s%d, 0, 144" % S_SHS],
          ["s_cmp_lt_u32 s55, 144", "s_cselect_b32 s%d, 9, 8" % (S_SRC + 2)],
          ["s_mul_i32 s%d, s%d, %d" % (S_SRC + 2, S_SRC + 2, 512 * 1152)],
          ["s_and_b32 s%d, s%d, 0xffff" % (S_SRC + 1, S_SRC + 1)],
          ["s_sub_u32 s55, s55, s%d" % S_SHS], ["s_mul_i32 s55, s55, %d" % SLOT], ["s_add_u32 s%d, s55, s54" % S_SHS]]
    dm = [dma(S_SRC, V_DS, S_SHS, n * 9216, S_SCR, n * 1024, "sh%d" % r) for n in range(4)]
    halves = []
    for p in range(2):
        rd = ["ds_read_b64_tr_b16 %s, v%d offset:%d" % (vr(V_TMP + 4 * q + 2 * h, 2), V_TS, (2 * p + q) * 32 + h * 2048) for q in range(2) for h in range(2)]
        stv = ["buffer_store_dwordx4 %s, v%d, %s, s%d offen offset:%d%s" % (vr(V_TMP + 4 * q), V_FR, sr(S_WF), S_SHD, (2 * p + q) * 1024, SC) for q in range(2)]
        halves.append((rd, stv))
    return sc, dm, halves

def groups(tau):
    ts = TS[tau]
    if ts["kind"] == "h":
        return [(t, 3 * kg) for t in range(2) for kg in range(6)]
    if tau < 2:
        return [(t, 9 * ts["half"] + 3 * kg) for kg in range(3) for t in range(4)]
    return [(t, 9 * ts["half"] + 3 * kg) for t in range(4) for kg in range(3)]

def accbase(tau):
    ts = TS[tau]
    return {"g": VG, "u": VU, "h": VH, "q": VG if ts["unit"] == 0 else VU}[ts["kind"]]

def treads(tau, grp, buf):
    ts = TS[tau]
    t, k0 = groups(tau)[grp]
    out = []
    for kk in range(3):
        for h in range(2):
            d = vr(VA + 12 * buf + 4 * kk + 2 * h, 2)
            if ts["kind"] == "h":
                out.append("ds_read_b64_tr_b16 %s, v%d offset:%d" % (d, V_TH, t * 18432 + (k0 + kk) * 1024 + h * 512))
            else:
                o = (k0 + kk - 9 * ts["half"]) * 4096 + h * 512
                if ts["kind"] == "q":
                    out.append("ds_read_b64_tr_b16 %s, v%d offset:%d" % (d, V_TQ + t // 2, o + (t & 1) * 8))
                else:
                    out.append("ds_read_b64_tr_b16 %s, v%d offset:%d" % (d, V_TU + t, o))
    return out

def projection():
    mf, pin = [], {}
    done, first, blocked = {}, {}, set()
    P = lambda g, x: pin.setdefault(g, []).append(x)
    for tau in range(13):
        base = accbase(tau)
        for gi, (t, k0) in enumerate(groups(tau)):
            buf = (12 * tau + gi) & 1
            g0 = len(mf)
            for rt in range(4):
                d = vr(base + 16 * t + 4 * rt)
                for kk in range(3):
                    ks = k0 + kk
                    if ks == 0: first[(tau, t, rt)] = len(mf)
                    mf.append(mfma(d, vr(VA + 12 * buf + 4 * kk), xn(ks, rt), "0" if ks == 0 else d))
                    if ks == 17: done[(TS[tau]["kind"], TS[tau]["unit"], t, rt)] = len(mf) - 1
            nt, ng = (tau, gi + 1) if gi < 11 else (tau + 1, 0)
            if nt < 13:
                for i, x in enumerate(treads(nt, ng, buf ^ 1)): P(g0 + i, x)
            w = "s_waitcnt lgkmcnt(0)"
            if tau < 2 and gi in (3, 7, 11) and 3 * tau + gi // 4 + 1 < 6:
                w = "WAITVM x%d lgkmcnt(0)" % (3 * tau + gi // 4 + 1)
            if gi == 10 and tau < 12:
                tags = TS[tau + 1]["tag"] + (",k0" if tau == 11 else "")
                P(g0 + 11, "WAITVM %s lgkmcnt(0)" % tags)
                P(g0 + 11, "s_barrier")
            elif nt < 13:
                P(g0 + 11, w)
        ts = TS[tau]
        nxt = [x for x in TS[tau + 1:] if (x["kind"] == "q") == (ts["kind"] == "q") and x["kind"] != "h"]
        if ts["kind"] != "h" and nxt:
            delta = (nxt[0]["off"] - ts["off"]) & 0xffffffff
            regs = {}
            for gi, (t, k0) in enumerate(groups(tau)):
                regs[V_TQ + t // 2 if ts["kind"] == "q" else V_TU + t] = gi
            for r, gi in regs.items():
                P(144 * tau + 12 * (gi - 1) + 6, "v_add_u32 v%d, 0x%x, v%d" % (r, delta, r))
    plan = {t: [] for t in range(13)}
    order = [0, 1, 2, 3, 4, 5, 6, 7, 9, 10, 11, 12]
    hd = chunk_dmas(TS[8])
    plan[1] = chunk_dmas(TS[3])
    plan[2] = chunk_dmas(TS[4]) + hd[0:2]
    plan[3] = chunk_dmas(TS[5]) + hd[2:4]
    plan[4] = chunk_dmas(TS[6]) + hd[4:6]
    plan[5] = chunk_dmas(TS[7]) + hd[6:9]
    plan[6] = chunk_dmas(TS[9])
    plan[7] = chunk_dmas(TS[10])
    plan[8] = chunk_dmas(TS[11])
    plan[9] = chunk_dmas(TS[12])
    plan[10] = kv_dmas("k", 1, "s0") + kv_dmas("k", 2, "s0")
    plan[11] = kv_dmas("k", 0, "k0")
    plan[12] = kv_dmas("v", 0, "s0") + kv_dmas("v", 1, "s0")
    for tau in range(13):
        ops = plan[tau]
        if tau == 0:
            for i, (pre, x) in enumerate(chunk_dmas(TS[2])):
                P(12 * i + 4, pre[0]); P(12 * i + 5, pre[1]); P(12 * i + 7, x)
            for n in range(36):
                pre, x = xn_load(9 + n // 4, n % 4)
                if pre: P(12 * (n // 3) + 2, pre[0])
                P(12 * (n // 3) + 8 + n % 3, x)
        else:
            for i, (pre, x) in enumerate(ops):
                g = 144 * tau + 12 * i + 8
                assert i < 12
                P(g - 5, pre[0]); P(g - 4, pre[1]); P(g, x)
    for r, (td, tr_) in enumerate(((5, 7), (7, 9), (9, 11))):
        sc, dm, halves = shuffle_round(r)
        g = 144 * td + 12 * 4
        for grp in sc:
            while g % 12 not in ((0, 1, 2, 5, 6, 7, 9, 10) if len(grp) == 1 else (6, 7, 9, 10)) or any(cost(I(x)) == 0 or len(grp) > 1 for x in pin.get(g, [])): g += 1
            for x in grp: P(g, x)
            if len(grp) > 1: blocked.add(g)
            g += 1
        assert g <= 144 * td + 12 * 8, (g - 144 * td) / 12
        for n, (pre, x) in enumerate(dm):
            g = 144 * td + 12 * (8 + n)
            P(g, pre[0].replace("s%d," % S_T0, "s%d," % S_T1, 1)); P(g + 9, pre[1]); P(g + 10, x.replace("s%d offen" % S_T0, "s%d offen" % S_T1))
        for p, (rd, stv) in enumerate(halves):
            g = 144 * tr_ + 24 * p
            if p == 0: P(g + 5, "WAITVM sh%d" % r)
            for i, x in enumerate(rd): P(g + (6, 7, 9, 10)[i], x)
            assert pin[g + 11] == ["s_waitcnt lgkmcnt(0)"]
            pin[g + 11] = ["s_waitcnt lgkmcnt(4)"]
            P(g + 12 + 5, "s_waitcnt lgkmcnt(5)")
            P(g + 12 + 6, stv[0]); P(g + 12 + 9, stv[1])
    P(144 * 12 + 6, "v_mov_b32 v%d, %d" % (V_TMP, FLAG_LDS))
    P(144 * 12 + 7, "v_mov_b32 v%d, 0" % (V_TMP + 1))
    P(144 * 12 + 9, "ds_write_b32 v%d, v%d" % (V_TMP, V_TMP + 1))
    for r in range(4): P(144 * 12 + 18 + 12 * r, "v_mov_b32 v%d, 0x3f803f80" % (V_ONE + r))
    for ks in range(4):
        P(144 * 12 + 132 + ks, "ds_read_b128 %s, v%d offset:%d" % (vr(VKF + 4 * ks), V_KA + ks, KOFF(0)))
    fl = []
    LAT = 6
    def sig(base, key, t, rt, hi):
        lo = done[key + (t, rt)] + LAT
        r0 = base + 16 * t + 4 * rt
        for op in ("v_mul_f32 v%d, s{c}, v%d".replace("{c}", str(S_NL2E)), "v_exp_f32 v%d, v%d", "v_add_f32 v%d, 1.0, v%d", "v_rcp_f32 v%d, v%d"):
            for r in range(4): fl.append(Flt(op % (r0 + r, r0 + r), lo, hi))
    def prod(gb, ub, lo, hi):
        for r in range(4): fl.append(Flt("v_mul_f32 v%d, v%d, v%d" % (ub + r, ub + r, gb + r), lo, hi))
    def cvt(d, a, lo, hi): fl.append(Flt("v_cvt_pk_bf16_f32 v%d, v%d, v%d" % (d, a, a + 1), lo, hi))
    for unit in range(2):
        tg_next = 4 if unit == 0 else 9
        tu_next = 6 if unit == 0 else 11
        for t in range(4):
            for rt in range(4): sig(VG, ("g", unit), t, rt, first[(tg_next, t, rt)] - 2)
        for t in range(4):
            for rt in range(4):
                lo = done[("u", unit, t, rt)] + LAT
                prod(VG + 16 * t + 4 * rt, VU + 16 * t + 4 * rt, lo, first[(tg_next, t, rt)] - 2)
                d = VU + 16 * (t & 2) + 4 * rt
                hi = first[(tu_next, t & 2, rt)] - 4
                cvt(d + 2 * (t & 1), VU + 16 * t + 4 * rt, lo, hi)
                cvt(d + 2 * (t & 1) + 1, VU + 16 * t + 4 * rt + 2, lo, hi)
                if t & 1:
                    f = Flt("buffer_store_dwordx4 %s, v%d, %s, s%d offen offset:%d" % (vr(d), V_FR, sr(S_WS), 56 + 2 * unit + t // 2, rt * 1024) + SC, lo, hi)
                    fl.append(f)
    for rt in range(4): sig(VH, ("h", 0), 0, rt, None)
    for rt in range(4):
        lo = done[("h", 0, 1, rt)] + LAT
        hi = 144 * 12
        prod(VH + 4 * rt, VH + 16 + 4 * rt, lo, hi)
        cvt(VH + 4 * rt, VH + 16 + 4 * rt, lo, hi)
        cvt(VH + 4 * rt + 1, VH + 16 + 4 * rt + 2, lo, hi)
        fl.append(Flt("buffer_store_dwordx2 %s, v%d, %s, s%d offen offset:%d" % (vr(VH + 4 * rt, 2), V_TH, sr(S_WS), S_HHST, rt * 512) + SC, lo, hi))
    for unit in range(2):
        base = VG if unit == 0 else VU
        for t in range(4):
            for rt in range(4):
                lo = done[("q", unit, t, rt)] + LAT
                r0 = base + 16 * t + 4 * rt
                for r in range(4): fl.append(Flt("v_mul_f32 v%d, s%d, v%d" % (r0 + r, S_QC, r0 + r), lo))
                d = base + 16 * (t & 2) + 4 * rt + 2 * (t & 1)
                cvt(d, r0, lo, None); cvt(d + 1, r0 + 2, lo, None)
    for c in range(2, 9):
        for job in range(2):
            fl.append(Flt("buffer_store_dwordx4 %s, v%d, %s, s%d offen offset:%d%s" % (vr(V_ONE), V_FR, sr(S_WS), S_PUB + c, job * 1024, SC),
                          144 * 10 + 20 * (2 * (c - 2) + job), 144 * 12))
    fl.sort(key=lambda f: f.lo)
    out, left = schedule(mf, pin, fl, window=64, blocked=blocked)
    out.append("s_nop 7")
    out += [f.i.text for f in left]
    return out

def kread(buf, j, kt):
    return ["ds_read_b128 %s, v%d offset:%d" % (vr(buf + 4 * ks), V_KA + ks, KOFF(j) + kt * 4096) for ks in range(4)]
def vread(buf, j, u):
    return ["ds_read_b64_tr_b16 %s, v%d offset:%d" % (vr(buf + 8 * d + 4 * b + 2 * h, 2), V_VA + 2 * u + d, VOFF(j) + b * 8192 + h * 4096)
            for d in range(2) for b in range(2) for h in range(2)]
def E(t, r): return "v_exp_f32 v%d, v%d" % (VS + 4 * t + r, VS + 4 * t + r)
def C(par, kt, t, h): return "v_cvt_pk_bf16_f32 v%d, v%d, v%d" % (VP[par][kt >> 1] + 4 * t + 2 * (kt & 1) + h, VS + 4 * t + 2 * h, VS + 4 * t + 2 * h + 1)
def qk(kbuf, t, c0):
    d = vr(VS + 4 * t)
    return [mfma(d, vr(kbuf + 4 * ks), qf(t, ks), c0 if ks == 0 else d) for ks in range(4)]
def pv(vbuf, par, u, init):
    return [mfma(oacc(2 * u + d, t), vr(vbuf + 8 * d + 4 * b), vr(VP[par][b] + 4 * t), "0" if init and b == 0 else oacc(2 * u + d, t))
            for d in range(2) for t in range(4) for b in range(2)]
def psum(par, t, init):
    return [mfma(lacc(t), vr(V_ONE), vr(VP[par][b] + 4 * t), "0" if init and b == 0 else lacc(t)) for b in range(2)]

def rowmax(src):
    P = []
    A = P.append
    for t in range(4):
        A("v_max3_f32 v%d, v%d, v%d, v%d" % (V_TMP + t, src + 4 * t, src + 4 * t + 1, src + 4 * t + 2))
    for t in range(4):
        A("v_max_f32 v%d, v%d, v%d" % (V_TMP + t, V_TMP + t, src + 4 * t + 3))
    for op in ("v_permlane32_swap_b32", "v_permlane16_swap_b32"):
        for t in range(4): A("v_mov_b32 v%d, v%d" % (V_TMP + 4 + t, V_TMP + t))
        A("s_nop 1")
        for t in range(4): A("%s v%d, v%d" % (op, V_TMP + t, V_TMP + 4 + t))
        for t in range(4): A("v_max_f32 v%d, v%d, v%d" % (V_TMP + t, V_TMP + t, V_TMP + 4 + t))
    for t in range(4):
        for r in range(4): A("v_sub_f32 v%d, 0, v%d" % (VNEG + 4 * t + r, V_TMP + t))
    return P

def first_max():
    P = ["s_waitcnt lgkmcnt(0)", "s_nop 1"]
    sc = tile_offsets()
    for t in range(4):
        for m in qk(VKF, t, "0"):
            P += [m] + sc[:2]
            sc = sc[2:]
    P += sc + ["s_nop 1"]
    return P + rowmax(VS)

def step_pre():
    P = ["s_add_u32 s%d, s%d, %d" % (S_KO, S_KV0, 3 * 16384), "s_add_u32 s%d, s%d, %d" % (S_VO, S_KV0, 2 * 16384)]
    for n in range(16):
        kt, t = n >> 2, n & 3
        kbuf = VKF if kt % 2 == 0 else VVF
        ms = qk(kbuf, t, vr(VNEG + 4 * t))
        rd = []
        if t == 0:
            if kt > 0: P.append("s_waitcnt lgkmcnt(0)")
            if kt == 3: P += ["WAITVM s0", "s_barrier"]
            rd = kread(VVF if kt % 2 == 0 else VKF, 0, kt + 1) if kt < 3 else kread(VKF, 1, 0)
        for i, m in enumerate(ms):
            P.append(m)
            if rd: P.append(rd[i])
            if n >= 2: P.append(E((n - 2) & 3, i))
            if n == 1: P.append("s_nop 0")
        if n >= 2:
            P += [C(0, (n - 2) >> 2, (n - 2) & 3, 0), C(0, (n - 2) >> 2, (n - 2) & 3, 1)]
    P += [E(2, r) for r in range(4)] + [C(0, 3, 2, 0), C(0, 3, 2, 1), "s_nop 1", E(3, 0), E(3, 1), "s_waitcnt lgkmcnt(0)"]
    return P

def step(i, tail_scalars=()):
    par = i & 1
    mf, pin, fl = [], {}, []
    P = lambda g, x: pin.setdefault(g, []).append(x)
    for u in range(4):
        g0 = 34 * u
        for t in range(4): mf += qk(VKF, t, vr(VNEG + 4 * t))
        mf += pv(VVF, par, u, i == 0) + psum(par, u, i == 0)
        ppar, pkt = (par, 3) if u == 0 else (par ^ 1, u - 1)
        tr = vread(VVF, i, u)
        for g, k in zip((0, 2, 2, 4, 6, 6, 8, 8), range(8)): P(g0 + g, tr[k])
        P(g0 + 0, C(ppar, pkt, 3, 0)); P(g0 + 1, E(3, 2)); P(g0 + 3, E(3, 3)); P(g0 + 4, C(ppar, pkt, 3, 1))
        for e in range(14): P(g0 + 7 + 2 * e, E(e >> 2, e & 3))
        for c in range(6): P(g0 + 10 + 4 * c, C(par ^ 1, u, c >> 1, c & 1))
        if u == 3 and par == 1:
            P(g0 + 15, "s_waitcnt vmcnt(0) lgkmcnt(0)"); P(g0 + 15, "s_barrier")
        elif u == 3 and i == 30:
            P(g0 + 15, "s_waitcnt lgkmcnt(0)"); P(g0 + 15, "s_barrier")
        else:
            P(g0 + 15, "s_waitcnt lgkmcnt(0)")
        if i == 30 and u == 3:
            tr = vread(VKF, 31, 0)
            for g, k in zip((16, 16, 18, 20, 20, 22, 24, 24), range(8)): P(g0 + g, tr[k])
        else:
            rd = kread(VKF, i + 1, u + 1) if u < 3 else kread(VKF, i + 2, 0)
            for g, k in zip((16, 18, 20, 22), range(4)): P(g0 + g, rd[k])
        P(g0 + 33, "s_waitcnt lgkmcnt(0)")
        if par == 0 and i < 30:
            for n, g in enumerate((5, 12, 24, 28)):
                k = 4 * u + n
                isk = k < 8
                lo = (KOFF(i + 3) if isk else 65536 + VOFF(i + 2)) + (k & 7) * 4096
                so = S_KO if isk else S_VO
                P(g0 + g - 1, "s_add_u32 m0, s%d, 0x%x" % (S_L1K, lo))
                P(g0 + g, "buffer_load_dwordx4 v%d, %s, s%d offen lds" % (V_DK if isk else V_DV, sr(S_K if isk else S_V), so))
                P(g0 + g + 1, "s_add_u32 s%d, s%d, 4096" % (so, so))
    for k, x in enumerate(tail_scalars): P(102 + 31 + k, x)
    if i == 0:
        sc, va = tail_setup()
        fl = [Flt(x) for x in va]
        P(66, "buffer_store_dword v%d, v%d, %s, s%d offen%s" % (V_1, V_L0, sr(S_WS), S_AFL, SC))
        g = 0
        for x in sc:
            while any(cost(I(y)) == 0 or I(y).kind == "vmem" for y in pin.get(g, [])): g += 1
            P(g, x)
        assert g < 136
    if i == 29:
        P(4, "s_mov_b32 s54, 0x%x" % (FLAG_OFF + 4096))
        P(5, poll_a()[0])
        for g, x in zip((102 + 24, 102 + 24, 102 + 28, 102 + 32), poll_a()[1]): P(g, x)
    if i == 30:
        w0, a0 = stage_loads(0)
        w1, a1 = stage_loads(1)
        gaps = [34 * u + g for u in range(4) for g in (5, 12, 24, 28, 32) if not (u == 3 and g == 24)]
        P(1, stage_base(0))
        for g, (pre, x) in zip(gaps, w0 + a0 + a1[:2]):
            for k, y in enumerate(pre): P(g - len(pre) + k, y)
            P(g, x)
    out, left = schedule(mf, pin, fl)
    assert not left
    return out

def poll_a():
    a = V_PA
    return ("buffer_load_dwordx4 %s, v%d, %s, s54 offen%s" % (vr(a), V_FR, sr(S_WS), SC),
            ["v_and_b32 v%d, v%d, v%d" % (a, a, a + 1), "v_and_b32 v%d, v%d, v%d" % (a + 2, a + 2, a + 3),
             "v_and_b32 v%d, v%d, v%d" % (a, a, a + 2), "v_cmp_eq_u32 vcc, 0, v%d" % a])

def poll_b():
    return ("buffer_load_dword v%d, v%d, %s, s%d offen%s" % (V_PL, V_B8, sr(S_WS), S_BC, SC), ["v_cmp_eq_u32 vcc, 0, v%d" % V_PL])

def spin(name, loads, check):
    return ["L_%s_spin:" % name, "s_mov_b32 s55, 0x100000", "L_%s_loop:" % name] + loads + ["s_sub_u32 s55, s55, 1", "s_waitcnt vmcnt(0)"] + check + \
           ["s_cmp_eq_u32 s55, 0", "s_cbranch_scc1 L_%s_ret" % name, "s_cbranch_vccnz L_%s_loop" % name, "s_branch L_%s_ret" % name]

def guard(name):
    return ["s_cbranch_vccnz L_%s_spin" % name, "L_%s_ret:" % name]

def tail_setup():
    P = []
    A = P.append
    P += srd(S_X, 80, X_BYTES) + srd(S_OUT, 78, X_BYTES) + srd(S_AUX, 60, 0)
    A("s_bfe_u32 s54, s2, 0x20001")
    A("s_min_u32 s55, s54, 1")
    A("s_sub_u32 s55, 1, s55")
    A("s_lshl_b32 s%d, s55, 28" % (S_AUX + 2))
    A("s_lshr_b32 s55, s2, 5")
    A("s_lshl_b32 s55, s55, 1")
    A("s_and_b32 s56, s2, 1")
    A("s_add_u32 s55, s55, s56")
    A("s_lshl_b32 s56, s55, 2")
    A("s_add_u32 s56, s56, s%d" % S_WAVE)
    A("s_mul_i32 s%d, s56, %d" % (S_XO, 32 * 1152))
    A("s_lshr_b32 s55, s56, 1")
    A("s_and_b32 s56, s56, 1")
    A("s_lshl_b32 s57, s55, 2")
    A("s_add_u32 s57, s57, s54")
    A("s_lshl_b32 s%d, s57, 5" % S_BC)
    A("s_add_u32 s%d, s%d, 0x%x" % (S_BC, S_BC, FLAG_OFF))
    A("s_lshl_b32 s%d, s57, 17" % S_HA)
    A("s_lshl_b32 s%d, s57, 14" % S_H2)
    A("s_lshl_b32 s57, s56, 11")
    A("s_add_u32 s%d, s%d, s57" % (S_HA, S_HA))
    A("s_lshl_b32 s57, s56, 10")
    A("s_add_u32 s%d, s%d, s57" % (S_H2, S_H2))
    A("s_lshl_b32 s57, s%d, 5" % S_RB)
    A("s_add_u32 s57, s57, s%d" % S_SL)
    A("s_lshl_b32 s57, s57, 2")
    A("s_add_u32 s%d, s57, 0x%x" % (S_BP, FLAG_OFF))
    A("s_bfe_u32 s55, s2, 0x20003")
    A("s_mul_i32 s56, s55, 288")
    A("s_add_u32 s%d, s%d, s56" % (S_XO, S_XO))
    A("s_mul_i32 s55, s55, 9216")
    A("s_mul_i32 s56, s%d, %d" % (S_WAVE, SLOT))
    A("s_add_u32 s55, s55, s56")
    A("s_mul_i32 s56, s54, %d" % (32 * SLOT))
    A("s_add_u32 s%d, s55, s56" % S_WB)
    A("s_mul_i32 s56, s54, %d" % (4 * SLOT))
    A("s_add_u32 s%d, s55, s56" % S_WB2)
    A("s_mul_i32 s%d, s%d, 9216" % (S_LB, S_WAVE))
    P += slab_base(56) + rot(58)
    A("s_lshl_b32 s55, s58, 5")
    A("s_add_u32 s%d, s%d, s55" % (S_XO, S_XO))
    A("s_lshl_b32 s55, s58, 11")
    A("s_add_u32 s56, s56, s55")
    for n in range(3):
        A("s_add_u32 s55, s54, %d" % (n + 1))
        A("s_and_b32 s55, s55, 3")
        A("s_mul_i32 s55, s55, %d" % (18 * 1024))
        A("s_add_u32 s%d, s55, s56" % (S_IN + n))
    V = ["v_mov_b32 v%d, 1" % V_1, "v_min_u32 v%d, 1, v0" % V_L0, "v_lshlrev_b32 v%d, 30, v%d" % (V_L0, V_L0),
         "v_add_u32 v%d, 0x10000, v%d" % (V_RD, V_FR), "v_add_u32 v%d, 0x20000, v%d" % (V_RD2, V_FR), "v_lshlrev_b32 v%d, 3, v0" % V_H2,
         "v_add_u32 v%d, 0x1000, v%d" % (V_F4, V_FR), "v_and_b32 v%d, 7, v0" % V_B8, "v_lshlrev_b32 v%d, 2, v%d" % (V_B8, V_B8),
         "v_and_b32 v%d, 15, v0" % V_XO, "v_mul_u32_u24 v%d, 1152, v%d" % (V_XO, V_XO), "v_lshrrev_b32 v%d, 4, v0" % (V_XO + 1),
         "v_lshl_add_u32 v%d, v%d, 3, v%d" % (V_XO, V_XO + 1, V_XO), "v_add_u32 v%d, %d, v%d" % (V_XO + 1, 16 * 1152, V_XO)]
    return P, V

def tile_offsets():
    P = rot(54)
    for c in range(9):
        P += ["s_add_u32 s55, s54, %d" % c, "s_sub_u32 s56, s55, 9", "s_min_u32 s55, s55, s56", "s_lshl_b32 s%d, s55, 10" % S_TO[c]]
    return P

def accr(job, c, rt): return (VD if job == 0 else VSA) + 8 * c + 4 * rt
def act(st, k, rt, n=4, o=0): return ar(AB[st % 4] + 8 * k + 4 * rt + o, n)

def stage_base(st):
    if st == 8: return "s_add_u32 s%d, s%d, 0x%x" % (S_WST, S_WB2, 128 * SLOT)
    return "s_add_u32 s%d, s%d, 0x%x" % (S_WST, S_WB, (4 * st if st < 8 else 144 + 4 * (st - 9)) * SLOT)

def stage_loads(st):
    w, a = [], []
    for c in range(9):
        pre = ["s_add_u32 s%d, s%d, s%d" % (S_T0, S_WST, S_TO[c]), "s_add_u32 m0, s%d, 0x%x" % (S_LB, XS[st % 4] + c * 1024)]
        w.append((pre, "buffer_load_dwordx4 v%d, %s, s%d offen%s lds ;@w%d" % (V_FR, sr(S_WF), S_T0, SC, st)))
    for k in range(4):
        so = (S_T1, S_T2)[k & 1]
        if st == 8:
            for hf in range(2):
                for rt in range(2):
                    pre = ["s_add_u32 s%d, s%d, 0x%x" % (so, S_H2, H2_OFF + k * 4096)] if hf == 0 and rt == 0 else []
                    a.append((pre, "buffer_load_dwordx2 %s, v%d, %s, s%d offen offset:%d%s ;@w%d" %
                              (act(st, k, rt, 2, 2 * hf), V_H2, sr(S_WS), so, hf * 2048 + rt * 512, SC, st)))
        else:
            base, ks = (H_OFF, 4 * st + k) if st < 8 else (O_OFF, 4 * (st - 9) + k)
            for rt in range(2):
                pre = ["s_add_u32 s%d, s%d, 0x%x" % (so, S_HA, base + ks * 4096)] if rt == 0 else []
                a.append((pre, "buffer_load_dwordx4 %s, v%d, %s, s%d offen offset:%d%s ;@w%d" % (act(st, k, rt), V_FR, sr(S_WS), so, rt * 1024, SC, st)))
    return w, a

def wread(st, c, buf):
    out = []
    for k in range(4):
        off = XS[st % 4] + c * 1024 + k * 9216
        out.append("ds_read_b128 %s, v%d offset:%d" % (vr(WBUF[buf] + 4 * k), (V_FR, V_RD, V_RD2)[off >> 16], off & 0xffff))
    return out

def inreg(job, c, n): return (VD if job == 0 else VSA) + 24 + 12 * c + 4 * n
def fetch(job):
    return ["buffer_load_dwordx4 %s, v%d, %s, s%d offen offset:%d%s ;@in%d" %
            (vr(inreg(job, c, n)), V_FR if c < 2 else V_F4, sr(S_WS if c < 2 else S_AUX), S_IN + n, (c & 1) * 2048 + job * 1024, SC, job)
            for c in range(3) for n in range(3)]
def arrived(job):
    b = inreg(job, 0, 0)
    P = ["v_max3_u32 v%d, v%d, v%d, v%d" % (VT + q, b + 9 * q, b + 9 * q + 1, b + 9 * q + 2) for q in range(4)]
    for k in range(3):
        P += ["v_max3_u32 v%d, v%d, v%d, v%d" % (VT + q, VT + q, b + 9 * q + 3 + 2 * k, b + 9 * q + 4 + 2 * k) for q in range(4)]
    return P + ["v_max3_u32 v%d, v%d, v%d, v%d" % (VT, VT, VT + 1, VT + 2), "v_max_u32 v%d, v%d, v%d" % (VT, VT, VT + 3), "v_cmp_eq_u32 vcc, -1, v%d" % VT]
def gather(job, c):
    P = []
    for n in range(3):
        for q in range(4):
            P += ["v_lshlrev_b32 v%d, 16, v%d" % (VT + 2 * q, inreg(job, c, n) + q), "v_and_b32 v%d, 0xffff0000, v%d" % (VT + 2 * q + 1, inreg(job, c, n) + q)]
        P += ["v_add_f32 v%d, v%d, v%d" % (accr(job, c, 0) + r, accr(job, c, 0) + r, VT + r) for r in range(8)]
    return P

def out_proj():
    mf, pin, fl = [], {}, []
    P = lambda g, x: pin.setdefault(g, []).append(x)
    seq = [(st, c) for st in range(NST - 1) for c in range(9)] + [(NST - 1, c) for c in (2, 3, 4, 5, 6, 7, 8, 0, 1)]
    done = {}
    for n, (st, c) in enumerate(seq):
        job = 0 if st < 9 else 1
        g0 = len(mf)
        for rt in range(2):
            d = vr(accr(job, c, rt))
            for k in range(4):
                mf.append(mfma(d, vr(WBUF[n % 3] + 4 * k), act(st, k, rt), "0" if st in (0, 9) and k == 0 else d))
            done[(job, c, rt)] = len(mf) - 1
        if n + 2 < len(seq):
            for i, x in enumerate(wread(seq[n + 2][0], seq[n + 2][1], (n + 2) % 3)): P(g0 + i, x)
        lw = "lgkmcnt(%d)" % (4 if n + 2 < len(seq) else 0)
        if n % 9 == 6 and st + 1 < NST:
            P(g0 + 7, "WAITVM w%d %s" % (st + 1, lw)); P(g0 + 7, "s_barrier")
        elif n + 1 < len(seq):
            P(g0 + 7, "s_waitcnt " + lw)
    for st in range(NST - 2):
        w, a = stage_loads(st + 2)
        if st > 0: P(72 * st - 5, stage_base(st + 2))
        for c, (pre, x) in enumerate(w):
            g = 72 * st + 8 * c
            P(g, pre[0]); P(g + 1, pre[1]); P(g + 4, x)
        per = len(a) // 8
        for n, (pre, x) in enumerate(a):
            g = 72 * st + 8 * (n // per)
            if pre: P(g + 2, pre[0])
            P(g + 5 + n % per, x)
    P(72 * 1 + 64 + 2, "WAITVM o")
    P(72 * 1 + 64 + 5, "buffer_store_dword v%d, v%d, %s, s%d offen%s" % (V_1, V_L0, sr(S_WS), S_BP, SC))
    P(72 * 5 + 64 + 5, poll_b()[0] + " ;@w7")
    P(72 * 6 + 64 + 5, poll_b()[1][0])
    late = fetch(0) + ["buffer_load_dwordx2 %s, v%d, %s, s%d offen offset:%d ;@in0" % (vr(VXX + 4 * c + 2 * rt, 2), V_XO + rt, sr(S_X), S_XO, c * 32)
                       for c in range(3) for rt in range(2)]
    for n, x in enumerate(late): P(72 * 15 + 8 * (n // 2) + 4 + n % 2, x)
    for job in range(2):
        for c in range(2, 9):
            lo = done[(job, c, 1)] + 6
            hi = 72 * 14 if job == 0 else None
            b = VPK + 4 * (c - 2)
            for rt in range(2):
                for h in range(2):
                    r = accr(job, c, rt) + 2 * h
                    fl.append(Flt("v_cvt_pk_bf16_f32 v%d, v%d, v%d" % (b + 2 * rt + h, r, r + 1), lo, hi))
            for q in range(4): fl.append(Flt("v_min_u32 v%d, -2, v%d" % (b + q, b + q), lo, hi))
            fl.append(Flt("buffer_store_dwordx4 %s, v%d, %s, s%d offen offset:%d%s" % (vr(b), V_FR, sr(S_WS), S_PUB + c, job * 1024, SC), lo, hi))
    out, left = schedule(mf, pin, fl)
    k = [i for i, x in enumerate(out) if x.startswith("v_mfma")][72 * 7]
    return out[:k], out[k:] + [f.i.text for f in left]

def combine(st):
    P = ["WAITVM in0"] + arrived(0) + guard("d")
    A = P.append
    XF = WBUF[0]
    for c in range(3):
        P += gather(0, c)
        d = accr(0, c, 0)
        for r in range(8): A("v_mul_f32 v%d, s%d, v%d" % (VT + r, S_NL2E, d + r))
        for r in range(8): A("v_exp_f32 v%d, v%d" % (VT + r, VT + r))
        for r in range(8): A("v_add_f32 v%d, 1.0, v%d" % (VT + r, VT + r))
        for r in range(8): A("v_rcp_f32 v%d, v%d" % (VT + r, VT + r))
        for q in range(4):
            A("v_lshlrev_b32 v%d, 16, v%d" % (XF + 8 * c + 2 * q, VXX + 4 * c + q))
            A("v_and_b32 v%d, 0xffff0000, v%d" % (XF + 8 * c + 2 * q + 1, VXX + 4 * c + q))
        for r in range(8): A("v_mul_f32 v%d, v%d, v%d" % (d + r, d + r, VT + r))
        if c == 1: P += fetch(1)
    P += st(5) + ["s_waitcnt vmcnt(0)"] + arrived(1) + guard("s") + st(6)
    for c in range(3):
        if c == 2: P += ["s_cmp_lg_u32 s%d, 0" % (S_AUX + 2), "s_cbranch_scc0 L_k2_done"]
        P += gather(1, c)
        for r in range(8): A("v_fmac_f32 v%d, v%d, v%d" % (XF + 8 * c + r, accr(1, c, 0) + r, accr(0, c, 0) + r))
        for q in range(4): A("v_cvt_pk_bf16_f32 v%d, v%d, v%d" % (VXX + 4 * c + q, XF + 8 * c + 2 * q, XF + 8 * c + 2 * q + 1))
        for rt in range(2):
            A("buffer_store_dwordx2 %s, v%d, %s, s%d offen offset:%d" % (vr(VXX + 4 * c + 2 * rt, 2), V_XO + rt, sr(S_OUT), S_XO, c * 32))
    return P

def step_last():
    par = 1
    mf, pin, fl = [], {}, []
    P = lambda g, x: pin.setdefault(g, []).append(x)
    P(0, C(par, 3, 3, 0)); P(1, E(3, 2)); P(3, E(3, 3)); P(4, C(par, 3, 3, 1))
    ends = {}
    for u in range(4):
        g0 = len(mf)
        mf += pv(VKF if u % 2 == 0 else VVF, par, u, False)
        ends[u] = len(mf) - 1
        if u < 3:
            tr = vread(VVF if u % 2 == 0 else VKF, 31, u + 1)
            gs = (0, 2, 4, 5, 6, 7, 8, 9) if u == 0 else range(8)
            for g, k in zip(gs, range(8)): P(g0 + g, tr[k])
        if u == 0:
            for t in range(4): mf += psum(par, t, False)
            lsum = len(mf) - 1
        if u < 3: P(len(mf) - 1, "s_waitcnt lgkmcnt(0)")
    RL = V_TMP
    for t in range(4): fl.append(Flt("v_accvgpr_read_b32 v%d, a%d" % (RL + 4 + t, 128 + 4 * t), lsum + 5))
    for t in range(4): fl.append(Flt("v_rcp_f32 v%d, v%d" % (RL + t, RL + 4 + t), lsum + 5))
    tmp = [VP[0][0], VP[0][0] + 8, VP[0][1], VP[0][1] + 8, VS, VS + 8, 56, 64]
    k = 0
    for u in range(4):
        for t in range(4):
            b = tmp[k % 8]; k += 1
            lo = max(ends[u], lsum) + 5
            for d in range(2):
                for r in range(4): fl.append(Flt("v_accvgpr_read_b32 v%d, a%d" % (b + 4 * d + r, 16 * (2 * u + d) + 4 * t + r), lo))
            for r in range(8): fl.append(Flt("v_mul_f32 v%d, v%d, v%d" % (b + r, b + r, RL + t), lo))
            for r in range(4): fl.append(Flt("v_cvt_pk_bf16_f32 v%d, v%d, v%d" % (b + r, b + 2 * r, b + 2 * r + 1), lo))
            fl.append(Flt("buffer_store_dwordx4 %s, v%d, %s, s%d offen offset:%d" % (vr(b), V_FR, sr(S_WS), 56 + u, t * 1024) + SC + " ;@o", lo))
    for u in range(4): P(4 + u, "s_add_u32 s%d, s%d, %d" % (56 + u, S_OST, u * 4096))
    w1, a1 = stage_loads(1)
    P(1, stage_base(1))
    g = 10
    for pre, x in w1 + a1[2:]:
        while pin.get(g) or any(cost(I(y)) == 0 or I(y).kind == "vmem" for k in range(1, len(pre) + 1) for y in pin.get(g - k, [])): g += 1
        for k, y in enumerate(pre): P(g - len(pre) + k, y)
        P(g, x)
    assert g < len(mf), g
    out, left = schedule(mf, pin, fl)
    out.append("s_nop 7")
    out += [f.i.text for f in left]
    A = out.append
    A("v_add_f32 v%d, v%d, v%d" % (RL + 4, RL + 4, RL + 5))
    A("v_add_f32 v%d, v%d, v%d" % (RL + 6, RL + 6, RL + 7))
    A("v_add_f32 v%d, v%d, v%d" % (RL + 4, RL + 4, RL + 6))
    A("v_mov_b32 v15, %d" % FLAG_LDS)
    A("v_cmp_nge_f32 vcc, %s, v%d" % (f32(2.0 ** 40), RL + 4))
    A("s_nop 1")
    A("v_cndmask_b32 v%d, 0, 1, vcc" % RL)
    A("ds_or_b32 v15, v%d" % RL)
    A("WAITVM w0 lgkmcnt(0)")
    A("s_barrier")
    A("ds_read_b32 v%d, v15" % RL)
    A(stage_base(2))
    A("s_waitcnt lgkmcnt(0)")
    A("v_readfirstlane_b32 s54, v%d" % RL)
    A("s_nop 1")
    A("s_cmp_gt_u32 s54, s%d" % S_REDO)
    return out

def redo():
    P = []
    A = P.append
    A("L_k2_redo:")
    A("s_mov_b32 s%d, 1" % S_REDO)
    A("s_waitcnt vmcnt(0)")
    A("s_barrier")
    for pre, x in kv_dmas("k", 0, "k0") + kv_dmas("k", 1, "s0") + kv_dmas("k", 2, "s0") + kv_dmas("v", 0, "s0") + kv_dmas("v", 1, "s0"):
        P += pre + ["s_nop 0", x]
    A("v_and_b32 v15, 15, v0")
    A("v_lshlrev_b32 v15, 8, v15")
    A("v_lshrrev_b32 v%d, 4, v0" % V_TMP)
    A("v_lshl_add_u32 v15, v%d, 4, v15" % V_TMP)
    A("s_lshl_b32 s54, s%d, 19" % S_SL)
    A("s_mov_b32 s55, 128")
    for r in range(16): A("v_mov_b32 v%d, 0xff800000" % (56 + r))
    B = []
    A = B.append
    for ks in range(4):
        A("buffer_load_dwordx4 %s, v15, %s, s54 offen offset:%d" % (vr(VKF + 4 * ks), sr(S_K), ks * 64))
    A("s_waitcnt vmcnt(0)")
    for t in range(4): B += qk(VKF, t, "0")
    A("s_nop 7")
    for r in range(16): A("v_max_f32 v%d, v%d, v%d" % (56 + r, 56 + r, VS + r))
    A("s_add_u32 s54, s54, 4096")
    A("s_sub_u32 s55, s55, 1")
    A("s_cmp_lg_u32 s55, 0")
    A("s_cbranch_scc1 L_k2_maxloop")
    T = rowmax(56) + ["s_barrier"] + kread(VKF, 0, 0) + ["s_waitcnt lgkmcnt(0)", "s_branch L_k2_attn"]
    return P, B, T

def gen(stamp=False):
    clk = OPT.get("clk", "s_memrealtime")
    st = lambda n: ["%s s[100:101]" % clk, "s_waitcnt lgkmcnt(0)", "s_mov_b32 s%d, s100" % (92 + n)] if stamp else []
    S = setup(st)
    for pre, x in chunk_dmas(TS[0]) + [xn_load(ks, rt) for ks in range(9) for rt in range(4)] + chunk_dmas(TS[1]):
        S += pre + (["s_nop 0"] if len(pre) == 2 else []) + [x]
    S += setup2()
    for unit in range(2):
        for p in range(2):
            S.append("s_add_u32 s%d, s%d, %d" % (56 + 2 * unit + p, S_HST, (2 * unit + p) * 4096))
    S += ["WAITVM c0 lgkmcnt(0)", "s_barrier"] + treads(0, 0, 0) + ["WAITVM x0 lgkmcnt(0)"]
    G = st(1) + projection() + st(2) + first_max()
    PRE = step_pre()
    S0 = step(0) + ["s_mov_b32 s%d, 7" % S_CNT]
    BODY = step(1) + step(2) + step(3) + step(4, ["s_sub_u32 s%d, s%d, 1" % (S_CNT, S_CNT), "s_cmp_lg_u32 s%d, 0" % S_CNT])
    br = ["s_cbranch_scc1 L_k2_loop"]
    M0, M1 = out_proj()
    T0 = step(29) + guard("a") + step(30) + step_last() + ["s_cbranch_scc1 L_k2_redo"]
    TAIL = resolve_waits(T0 + wread(0, 0, 0) + wread(0, 1, 1) + st(3) + ["s_waitcnt lgkmcnt(4)"] + M0 + guard("b") + M1 + st(4) + combine(st))
    D = ["L_k2_done:"]
    if stamp:
        D += ["s_waitcnt vmcnt(0)"] + st(7) + ["v_mov_b32 v%d, s%d" % (16 + n, 92 + n) for n in range(8)] + \
             ["s_lshl_b32 s54, s2, 2", "s_add_u32 s54, s54, s%d" % S_WAVE, "s_lshl_b32 s54, s54, 5", "s_add_u32 s54, s54, 0x%x" % STAMP_OFF,
              "buffer_store_dwordx4 v[16:19], v%d, %s, s54 offen" % (V_L0, sr(S_WS)), "buffer_store_dwordx4 v[20:23], v%d, %s, s54 offen offset:16" % (V_L0, sr(S_WS))]
    D += ["L_k2_end:", "s_endpgm"]
    R0, RB, RT = redo()
    R0 = resolve_waits(R0)
    strip = lambda xs: [x.split(";@")[0].rstrip() for x in xs]
    SP = spin("a", [poll_a()[0]], poll_a()[1]) + spin("b", [poll_b()[0]], poll_b()[1]) + spin("d", strip(fetch(0)), arrived(0)) + spin("s", strip(fetch(1)), arrived(1))
    rest = S0 + [".p2align 6", "L_k2_loop:"] + BODY + br + TAIL + D + SP + R0 + ["L_k2_maxloop:"] + RB + RT
    if OPT["codepf"]:
        pf = []
        for n in range(OPT.get("npf", 3)):
            pf += ["v_min_u32 v2, L_k2_last-L_k2_pc, v7", "v_mov_b32 v3, s55", "v_add_co_u32 v2, vcc, s54, v2", "v_add_u32 v7, 0x8000, v7", "s_nop 0",
                   "v_addc_co_u32 v3, vcc, 0, v3, vcc", "global_load_dword v%d, v[2:3], off" % (4 + n)]
        k = S.index("CODEPF")
        S = S[:k] + pf + S[k + 1:]
        k = S.index("s_mov_b32 s%d, s66" % S_WU)
        S = S[:k] + ["s_waitcnt vmcnt(54)"] + S[k:]
        rest = rest[:-1] + ["L_k2_last:"] + rest[-1:]
    head = resolve_waits(S + G + ["L_k2_attn:"] + PRE)
    pre_only = head[head.index("L_k2_attn:"):]
    traces = [head + S0 + BODY + br + BODY + br + TAIL + D,
              TAIL[:len(T0)] + R0 + RB + RB + RT + pre_only + S0, SP]
    return dict(name="attn_kernel", lines=head + rest, traces=traces, grid=256, block=256, lds=163840, vgpr=512, acc=256, sgpr=102)
```

```python
import re

TRANS = ("v_exp_f32", "v_log_f32", "v_rcp_f32", "v_rsq_f32", "v_sqrt_f32")
_REG = re.compile(r"^(-|abs\()?([vas])(\d+)\)?$|^([vas])\[(\d+):(\d+)\]$")


def regs_of(op):
    op = op.strip()
    if op in ("vcc", "exec", "m0", "scc"):
        return [op]
    m = _REG.match(op)
    if not m:
        return []
    if m.group(2):
        return [m.group(2) + m.group(3)]
    return [m.group(4) + str(i) for i in range(int(m.group(5)), int(m.group(6)) + 1)]


class I:
    def __init__(self, text):
        self.text = text
        t = text.split(";")[0].strip()
        self.label = t.endswith(":")
        self.directive = t.startswith(".") or t == ""
        self.op = t.split()[0] if t else ""
        rest = t[len(self.op):].strip()
        toks = [x.strip() for x in rest.split(",")] if rest else []
        self.mods = []
        if toks:
            last = toks[-1].split()
            toks[-1] = last[0] if last else ""
            self.mods = last[1:]
        self.ops = toks
        self.r, self.w = set(), set()
        self.srcc = set()
        self.ab = set()
        op = self.op
        R = lambda xs: set(r for x in xs for r in regs_of(x))
        if self.label or self.directive:
            self.kind = "none"
        elif op.startswith("v_mfma"):
            self.kind = "mfma"
            self.w = R(toks[:1]); self.ab = R(toks[1:3]); self.srcc = R(toks[3:4]); self.r = self.ab | self.srcc
            self.passes = 4 if "16x16x32" in op else 8
            self.dst = toks[0]; self.c = toks[3]
        elif op.startswith("ds_"):
            self.kind = "lds"
            if op.startswith("ds_read"):
                self.w = R(toks[:1]); self.r = R(toks[1:])
            else:
                self.r = R(toks)
        elif op.startswith("buffer_") or op.startswith("global_"):
            self.kind = "vmem"
            self.dma = "lds" in self.mods
            if op in ("buffer_inv", "buffer_wbl2"):
                pass
            elif self.dma:
                self.r = R(toks) | {"m0"}
            elif "load" in op:
                self.w = R(toks[:1]); self.r = R(toks[1:])
            elif "atomic" in op:
                self.r = R(toks)
                if "sc0" in self.mods: self.w = R(toks[:1])
            else:
                self.r = R(toks)
                self.data = R(toks[:1])
        elif op.startswith("v_"):
            self.kind = "trans" if op.replace("_e32", "").replace("_e64", "") in TRANS else "valu"
            if op.startswith("v_cmp"):
                self.w = R(toks[:1]); self.r = R(toks[1:])
            elif op.startswith("v_permlane"):
                self.w = R(toks[:2]); self.r = R(toks[:2])
            elif op.startswith("v_fmac") or op.startswith("v_pk_fmac"):
                self.w = R(toks[:1]); self.r = R(toks)
            elif op.startswith("v_add_co") or op.startswith("v_addc_co"):
                self.w = R(toks[:2]); self.r = R(toks[2:])
            else:
                self.w = R(toks[:1]); self.r = R(toks[1:])
        elif op in ("WAITVM", "CODEPF"):
            self.kind = "salu"
        elif op == "s_waitcnt":
            self.kind = "wait"
            self.vm = self.lgkm = None
            for k, v in re.findall(r"(vmcnt|lgkmcnt)\((\d+)\)", t):
                if k == "vmcnt": self.vm = int(v)
                else: self.lgkm = int(v)
        elif op.startswith("s_load") or op.startswith("s_memtime") or op.startswith("s_memrealtime"):
            self.kind = "smem"
            self.w = R(toks[:1]); self.r = R(toks[1:])
        elif op.startswith("s_"):
            self.kind = "salu"
            if op in ("s_nop", "s_barrier", "s_endpgm", "s_sleep", "s_setprio") or op.startswith("s_cbranch") or op == "s_branch":
                pass
            elif op.startswith("s_cmp") or op.startswith("s_bitcmp"):
                self.r = R(toks)
            else:
                self.w = R(toks[:1]); self.r = R(toks[1:])
                if "saveexec" in op: self.w |= {"exec"}
        else:
            raise ValueError("cannot parse: " + text)

    @property
    def states(self):
        if self.kind == "none": return 0
        if self.op == "s_nop": return int(self.ops[0]) + 1
        return 1

    @property
    def is_valu(self):
        return self.kind in ("valu", "trans")


def need_states(p, c):
    n = 0
    vreg = lambda s: set(x for x in s if x[0] in "va" and x != "vcc")
    sreg = lambda s: set(x for x in s if x[0] == "s" or x == "vcc")
    if p.is_valu:
        pv = vreg(p.w); ps = sreg(p.w)
        if c.kind == "mfma" and pv & c.r: n = max(n, 2)
        if c.op.startswith("v_permlane") and pv & c.r: n = max(n, 2)
        if (c.op.startswith("v_readfirstlane") or c.op.startswith("v_readlane")) and pv & c.r: n = max(n, 1)
        if p.kind == "trans" and c.kind == "valu" and pv & c.r: n = max(n, 1)
        if c.is_valu and ps & c.r: n = max(n, 2)
        if c.kind == "vmem" and ps & c.r: n = max(n, 5)
    if p.kind == "mfma":
        big = p.passes == 8
        if c.kind == "mfma":
            if p.w & c.srcc and not (c.c == p.dst and c.passes == p.passes): n = max(n, 10 if big else 6)
            if p.w & c.ab: n = max(n, 12 if big else 8)
        elif c.is_valu or c.kind in ("vmem", "lds"):
            if p.w & (c.r | c.w): n = max(n, 12 if big else 8)
        if c.is_valu and p.srcc & c.w: n = max(n, 7 if big else 3)
    if p.kind == "salu" and "m0" in p.w and c.kind == "vmem" and getattr(c, "dma", False): n = max(n, 1)
    if p.kind == "vmem" and hasattr(p, "data") and len(p.data) >= 3 and p.data & c.w:
        n = max(n, 2)
    return n


def check_trace(lines, name=""):
    ins = [I(x) for l in lines for x in l.split("\n")]
    ins = [x for x in ins if x.kind != "none"]
    errs = []
    for j, c in enumerate(ins):
        d = 0
        for i in range(j - 1, max(-1, j - 24), -1):
            p = ins[i]
            n = need_states(p, c)
            if d < n:
                errs.append("%s: hazard need %d have %d:\n   %s\n   %s" % (name, n, d, p.text, c.text))
            d += p.states
            if d >= 20: break
    lg, vm = [], []
    for c in ins:
        if c.kind == "wait":
            if c.lgkm is not None:
                if any(k == "smem" for k, _ in lg) and c.lgkm != 0:
                    errs.append("%s: counted lgkm wait with smem pending: %s" % (name, c.text))
                lg = lg[len(lg) - c.lgkm:] if c.lgkm < len(lg) and c.lgkm > 0 else ([] if c.lgkm == 0 else lg)
            if c.vm is not None:
                vm = vm[len(vm) - c.vm:] if c.vm < len(vm) and c.vm > 0 else ([] if c.vm == 0 else vm)
            continue
        for q, nm in ((lg, "lgkm"), (vm, "vm")):
            for k, p in q:
                if p.w & (c.r | c.w) and p.text != c.text:
                    errs.append("%s: %s result not waited:\n   %s\n   %s" % (name, nm, p.text, c.text))
        if c.kind in ("lds", "smem"): lg.append((c.kind, c))
        if c.kind == "vmem": vm.append((c.kind, c))
    return errs


def cost(i):
    if i.kind == "trans": return 2
    if i.kind == "vmem": return 2
    if i.kind in ("valu", "lds"): return 1
    return 0


class Flt:
    def __init__(self, text, lo=0, hi=None, pre=None):
        self.i = I(text); self.lo = lo; self.hi = hi; self.pre = pre or []
        self.gap = None


def schedule(mfmas, pinned, floats, cap=2, window=48, blocked=()):
    out = []
    pend = list(floats)
    capf = cap
    recent = []
    for g, m in enumerate(mfmas):
        cap = capf(g) if callable(capf) else capf
        out.append(m)
        here = [I(t) for t in pinned.get(g, [])]
        used = sum(cost(x) for x in here)
        nscalar = sum(1 for x in here if cost(x) == 0)
        placed = []
        k = seen = 0
        while k < len(pend) and seen < window and used < cap and g not in blocked:
            f = pend[k]
            if f.lo > g:
                k += 1
                continue
            seen += 1
            c = cost(f.i)
            ok = f.lo <= g and used + c <= cap
            if ok and f.i.kind in ("vmem", "lds") and used > 0: ok = False
            if ok and f.i.kind == "vmem" and nscalar > 0: ok = False
            if ok:
                for e in pend[:k]:
                    if (e.i.w & (f.i.r | f.i.w)) or (e.i.r & f.i.w):
                        ok = False; break
            if ok:
                for e in placed:
                    if e.i.w & f.i.r: ok = False; break
            if ok and any(g - sg < 2 and data & f.i.w for sg, data in recent): ok = False
            if ok:
                f.gap = g; placed.append(f); used += c; pend.pop(k)
                if hasattr(f.i, "data"): recent.append((g, f.i.data))
            else:
                k += 1
        pre = [t for f in placed for t in f.pre]
        here.sort(key=lambda x: 0 if cost(x) == 0 else (1 if x.kind in ("lds", "vmem") else 2))
        out += pre + [x.text for x in here] + [f.i.text for f in placed]
        for f in pend:
            assert f.hi is None or f.hi > g, "deadline missed at gap %d: %s" % (g, f.i.text)
    return out, pend


def resolve_waits(lines):
    out = []
    n = 0
    last = {}
    for l in lines:
        if l.startswith("WAITVM"):
            p = l.split()
            idx = max(last[t] for t in p[1].split(","))
            out.append(("s_waitcnt vmcnt(%d) " % min(63, n - idx) + " ".join(p[2:])).strip())
            continue
        i = I(l)
        if i.kind == "vmem":
            n += 1
            if ";@" in l: last[l.split(";@")[1].strip()] = n
        out.append(l.split(";@")[0].rstrip())
    return out


def vr(b, n=4): return "v[%d:%d]" % (b, b + n - 1)
def ar(b, n=4): return "a[%d:%d]" % (b, b + n - 1)
def sr(b, n=4): return "s[%d:%d]" % (b, b + n - 1)
def mfma(d, a, b, c): return "v_mfma_f32_16x16x32_bf16 %s, %s, %s, %s" % (d, a, b, c)


def srd(s, base, size):
    return ["s_mov_b32 s%d, s%d" % (s, base), "s_and_b32 s%d, s%d, 0xffff" % (s + 1, base + 1),
            "s_mov_b32 s%d, 0x%x" % (s + 2, size), "s_mov_b32 s%d, 0x20000" % (s + 3)]


def descriptor(name, vgpr, acc_off, sgpr=102):
    return [".amdhsa_kernel %s" % name,
            "  .amdhsa_next_free_vgpr %d" % vgpr, "  .amdhsa_next_free_sgpr %d" % sgpr,
            "  .amdhsa_accum_offset %d" % acc_off, "  .amdhsa_group_segment_fixed_size 0",
            "  .amdhsa_kernarg_size 96", "  .amdhsa_user_sgpr_count 2",
            "  .amdhsa_user_sgpr_kernarg_segment_ptr 1", "  .amdhsa_system_sgpr_workgroup_id_x 1",
            ".end_amdhsa_kernel"]
```

```python
from asmlib import *
from layout import *

OPT = dict(pf=(), code=True, ntp=" nt", ntx="")

def gen():
    L = []
    A = L.append
    A("s_cmp_ge_u32 s2, 256")
    A("s_cbranch_scc1 L_ln_end")
    A("s_load_dwordx4 s[20:23], s[0:1], %d" % ARG["wg"])
    A("s_load_dwordx2 s[24:25], s[0:1], %d" % ARG["wq"])
    A("s_load_dwordx2 s[4:5], s[0:1], %d" % ARG["x"])
    A("s_load_dwordx2 s[6:7], s[0:1], %d" % ARG["ws"])
    A("v_and_b32 v1, 63, v0")
    A("v_lshrrev_b32 v2, 6, v0")
    A("v_and_b32 v3, 15, v0")
    A("v_lshrrev_b32 v4, 4, v1")
    A("v_mul_u32_u24 v5, 1152, v3")
    A("v_lshl_add_u32 v5, v2, 7, v5")
    A("v_lshl_add_u32 v5, v4, 4, v5")
    A("s_mul_i32 s3, s2, %d" % (16 * 1152))
    A("s_waitcnt lgkmcnt(0)")
    L += srd(8, 4, X_BYTES) + srd(12, 6, WS_BYTES)
    A("buffer_load_dwordx4 v[8:11], v5, s[8:11], s3 offen" + OPT["ntx"])
    A("buffer_load_dwordx4 v[12:15], v5, s[8:11], s3 offen offset:64" + OPT["ntx"])
    npf = 0
    A("s_mul_i32 s16, s2, 9216")
    A("v_lshlrev_b32 v72, 4, v0")
    for nm in OPT["pf"]:
        base, size = {"wg": (20, WG_BYTES), "wu": (22, WG_BYTES), "wq": (24, WQ_BYTES)}[nm]
        L += srd(28, base, size)
        for n in range(-(-size // (256 * 9216))):
            A("s_add_u32 s17, s16, %d" % (n * 256 * 9216))
            A("buffer_load_dwordx4 v[76:79], v72, s[28:31], s17 offen")
            npf += 1
    if OPT["code"]:
        A("s_getpc_b64 s[26:27]")
        A("L_ln_pc:")
        A("v_add_u32 v72, s16, v72")
        A("v_min_u32 v72, L_k2_last-L_ln_pc-12, v72")
        A("v_mov_b32 v73, s27")
        A("v_add_co_u32 v72, vcc, s26, v72")
        A("s_nop 1")
        A("v_addc_co_u32 v73, vcc, 0, v73, vcc")
        A("global_load_dword v74, v[72:73], off")
        npf += 1
    A("s_cmp_ge_u32 s2, 128")
    A("s_cbranch_scc1 L_ln_pack")
    A("v_mov_b32 v6, 0")
    A("v_lshlrev_b32 v7, 2, v0")
    A("s_lshl_b32 s16, s2, 7")
    A("s_add_u32 s16, s16, 0x%x" % FLAG_OFF)
    A("v_lshrrev_b32 v75, 5, v0")
    A("v_min_u32 v75, 1, v75")
    A("v_lshl_add_u32 v7, v75, 30, v7")
    A("buffer_store_dword v6, v7, s[12:15], s16 offen")
    A("v_mul_u32_u24 v6, 144, v3")
    A("v_lshl_add_u32 v7, v2, 2, v4")
    A("v_lshl_add_u32 v7, v7, 2, v6")
    A("s_lshr_b32 s16, s2, 2")
    A("s_mul_i32 s16, s16, %d" % (18 * 4096))
    A("s_and_b32 s17, s2, 3")
    A("s_lshl_b32 s17, s17, 10")
    A("s_add_u32 s16, s16, s17")
    A("s_add_u32 s17, s16, 4096")
    A("v_lshlrev_b32 v5, 13, v2")
    A("v_lshl_add_u32 v5, v1, 4, v5")
    A("s_waitcnt vmcnt(%d)" % (npf + 1))
    for i in range(8):
        A("v_lshlrev_b32 v%d, 16, v%d" % (16 + 2 * i, 8 + i))
        A("v_and_b32 v%d, 0xffff0000, v%d" % (17 + 2 * i, 8 + i))
    def reduce(src, off, dst):
        A("ds_write_b32 v7, v%d offset:%d" % (src, off))
        A("s_waitcnt lgkmcnt(0)")
        A("s_barrier")
        for i in range(9):
            A("ds_read_b128 v[%d:%d], v6 offset:%d" % (32 + 4 * i, 35 + 4 * i, off + 16 * i))
        A("s_waitcnt lgkmcnt(0)")
        n = 36
        while n > 1:
            h = n // 2
            for i in range(h):
                A("v_add_f32 v%d, v%d, v%d" % (32 + i, 32 + i, 32 + n - 1 - i))
            n -= h
        A("v_mul_f32 v%d, %s, v32" % (dst, f32(1.0 / 576)))
    for i in range(8):
        A("v_add_f32 v%d, v%d, v%d" % (32 + i, 16 + i, 24 + i))
    for i in range(4):
        A("v_add_f32 v%d, v%d, v%d" % (32 + i, 32 + i, 36 + i))
    A("v_add_f32 v32, v32, v34")
    A("v_add_f32 v33, v33, v35")
    A("v_add_f32 v68, v32, v33")
    reduce(68, 0, 69)
    for i in range(16):
        A("v_sub_f32 v%d, v%d, v69" % (32 + i, 16 + i))
    for i in range(4):
        A("v_mul_f32 v%d, v%d, v%d" % (48 + i, 32 + i, 32 + i))
    for i in range(4, 16):
        A("v_fmac_f32 v%d, v%d, v%d" % (48 + i % 4, 32 + i, 32 + i))
    A("v_add_f32 v48, v48, v50")
    A("v_add_f32 v49, v49, v51")
    A("v_add_f32 v68, v48, v49")
    reduce(68, 2304, 70)
    A("v_cvt_pk_bf16_f32 v71, v69, v70")
    A("v_lshlrev_b32 v69, 16, v71")
    A("v_and_b32 v70, 0xffff0000, v71")
    A("v_add_f32 v70, %s, v70" % f32(1e-5))
    A("v_cvt_pk_bf16_f32 v70, v70, v70")
    A("v_lshlrev_b32 v70, 16, v70")
    A("v_sqrt_f32 v70, v70")
    A("s_nop 0")
    A("v_cvt_pk_bf16_f32 v70, v70, v70")
    A("v_lshlrev_b32 v70, 16, v70")
    A("v_rcp_f32 v70, v70")
    for i in range(16):
        A("v_sub_f32 v%d, v%d, v69" % (16 + i, 16 + i))
    for i in range(8):
        A("v_cvt_pk_bf16_f32 v%d, v%d, v%d" % (8 + i, 16 + 2 * i, 17 + 2 * i))
    for i in range(8):
        A("v_lshlrev_b32 v%d, 16, v%d" % (16 + 2 * i, 8 + i))
        A("v_and_b32 v%d, 0xffff0000, v%d" % (17 + 2 * i, 8 + i))
    for i in range(16):
        A("v_mul_f32 v%d, v%d, v70" % (16 + i, 16 + i))
    for i in range(8):
        A("v_cvt_pk_bf16_f32 v%d, v%d, v%d" % (8 + i, 16 + 2 * i, 17 + 2 * i))
    A("buffer_store_dwordx4 v[8:11], v5, s[12:15], s16 offen")
    A("buffer_store_dwordx4 v[12:15], v5, s[12:15], s17 offen")
    A("L_ln_end:")
    A("s_endpgm")
    k = L.index("s_cbranch_scc1 L_ln_pack") + 1
    Q = []
    A = Q.append
    A("L_ln_pack:")
    A("v_readfirstlane_b32 s16, v2")
    A("s_sub_u32 s17, s2, 128")
    A("s_mul_i32 s17, s17, 9")
    A("s_add_u32 s16, s16, s17")
    A("s_and_b32 s17, s16, 31")
    A("s_lshr_b32 s16, s16, 5")
    A("s_mul_i32 s19, s17, 36")
    A("s_add_u32 s19, s19, s16")
    A("s_lshl_b32 s19, s19, 10")
    A("s_add_u32 s19, s19, 0x%x" % HW_OFF)
    A("s_cmp_lt_u32 s16, 18")
    A("s_cselect_b32 s20, s20, s22")
    A("s_cselect_b32 s21, s21, s23")
    A("s_cselect_b32 s18, 0, 18")
    A("s_sub_u32 s16, s16, s18")
    Q += srd(28, 20, WG_BYTES)
    A("s_mul_i32 s16, s16, %d" % (32 * 9216))
    A("s_lshl_b32 s17, s17, 5")
    A("s_add_u32 s16, s16, s17")
    A("s_add_u32 s16, s16, 8192")
    A("v_bfe_u32 v16, v1, 3, 2")
    A("v_lshlrev_b32 v16, 3, v16")
    A("v_lshrrev_b32 v17, 5, v1")
    A("v_lshl_add_u32 v16, v17, 2, v16")
    A("v_bfe_u32 v17, v1, 1, 2")
    A("v_add_u32 v16, v16, v17")
    A("v_mul_u32_u24 v16, 9216, v16")
    A("v_and_b32 v17, 1, v1")
    A("v_lshl_add_u32 v16, v17, 4, v16")
    A("buffer_load_dwordx4 v[20:23], v16, s[28:31], s16 offen" + OPT["ntp"])
    A("v_lshlrev_b32 v17, 4, v1")
    A("s_waitcnt vmcnt(0)")
    A("buffer_store_dwordx4 v[20:23], v17, s[12:15], s19 offen")
    A("s_endpgm")
    return dict(name="ln_kernel", lines=L + Q, traces=[L, L[:k] + Q], grid=256, block=576, lds=4608, vgpr=80, acc=80, sgpr=40)
```

```python
from asmlib import *
from layout import *

SLOT = 36864
V_FR, V_TU, V_TQ, V_TH = 1, 2, 6, 8
V_DG, V_DQ, V_DH, V_DK, V_DV, V_DS, V_TS = 9, 10, 11, 12, 13, 14, 15
VA, VXN, VG, VU, VH = 16, 40, 72, 136, 200
V_KA, V_VA, V_ONE, V_TMP = 232, 236, 244, 248
VS, VNEG, VVF, VKF = 16, 40, 200, 216
VP = [[VG + 32, VG + 48], [VU + 16, VU + 48]]
S_WS, S_WG, S_WU, S_WQ, S_K, S_V, S_WH = 4, 8, 12, 16, 20, 24, 28
S_WAVE, S_SL, S_RB = 32, 33, 34
S_L1K, S_GB, S_QB, S_HB, S_HL, S_XN = 35, 36, 37, 38, 39, 40
S_T0, S_T1, S_HST, S_HHST, S_OST = 41, 42, 43, 44, 45
S_KO, S_VO, S_CNT, S_NL2E, S_QC, S_REDO, S_KV0 = 46, 47, 48, 49, 50, 51, 52
S_T2 = 53
S_GB1 = 83
S_T3 = 46
S_RT = [28, 29, 30, 31, 46, 47, 48, 82, 84]
S_KVR = 3
KOFF = lambda j: (((j - 1) // 2) & 1) * 32768 + ((j - 1) & 1) * 16384
VOFF = lambda j: ((j // 2) & 1) * 32768 + (j & 1) * 16384
FLAG_LDS = 163776
SCR = 131072
V_SH, V_M1, V_FL = 56, 36, 8
S_SRC, S_SEN, S_WF = 8, 12, 88
S_PUB = 60
S_SHS, S_SHD, S_SCR, S_SO = 56, 57, 58, 59
S_U, S_AFL, S_DF = 42, 75, 50
SC = " sc1"
NST = 17
XS = [49152, 12288, 86016, 122880]
AB = [144, 176, 208, 0]
VD, VSA, VXX, VT, XF = 16, 88, 232, 248, 200
VPK = [160, 164, 184, 188, 192, 196, 244]
WBUF = [216, 168, 200]
V_RD, V_RD2, V_H2, V_XO, V_L0, V_PL, V_F4, V_B8, V_1 = 2, 3, 4, 5, 7, 8, 9, 10, 11
V_PA = 32
S_X, S_OUT, S_AUX = 8, 12, 16
S_TO = [28, 29, 30, 31, 36, 37, 38, 39, 40]
S_WB, S_WB2, S_LB, S_HA, S_H2, S_XO, S_BP, S_BC, S_WST = 43, 44, 69, 72, 73, 74, 82, 83, 84
S_IN = 85
S_KVP, S_PF = 84, 82
OPT = dict(codepf=True, touch=False, nt=[9, 10, 11, 12, 13, 14], oflag=2, ocap=3, l2pf=0, order=1,
           k3=4, k5=0, rotw=1, rotkv=0, kvmix=0, early=0, sgaps=(6, 8, 10), hspread=((4.3, 66), (8.0, 54)), park=1)

def xn(ks, rt):
    return ar(16 * ks + 4 * rt) if ks < 16 else vr(VXN + 16 * (ks - 16) + 4 * rt)
def qf(t, ks):
    return vr((VG, VG + 16, VU, VU + 32)[ks] + 4 * t)
def oacc(dt, t): return ar(16 * dt + 4 * t)
def lacc(t): return ar(128 + 4 * t)

def dma(srd_, voff, sbase, sconst, lbase, lconst, tag, tmp=S_T0):
    return (["s_add_u32 m0, s%d, 0x%x" % (lbase, lconst), "s_add_u32 s%d, s%d, 0x%x" % (tmp, sbase, sconst)],
            "buffer_load_dwordx4 v%d, %s, s%d offen lds ;@%s" % (voff, sr(srd_), tmp, tag))

def chunk_slot(c): return 3 * SLOT if c == 11 else ((c + 1) % 3) * SLOT
TS = []
for c in range(12):
    TS.append(dict(kind="gugugguuqqqq"[c], unit=(c // 4) if c < 8 else (c - 8) // 2, half=(c >> 1 if c < 4 else c & 1), off=chunk_slot(c), tag="c%d" % c))
TS.insert(8, dict(kind="h", unit=0, half=0, off=3 * SLOT, tag="h"))

def chunk_dmas(ts):
    out = []
    for i in range(9):
        if ts["kind"] == "h":
            out.append(dma(S_WS, V_FR, S_HB, i * 1024, S_HL, 3 * SLOT + i * 1024, "h"))
        else:
            q = ts["kind"] == "q"
            const = ts["half"] * 288 * (8192 if q else 9216) + (ts["unit"] * 128 if q else 0)
            pre = ["s_add_u32 m0, s%d, 0x%x" % (S_RT[i], ts["off"]), "s_mul_i32 s%d, s%d, %d" % (S_T0, S_RT[i], 64 if q else 72),
                   "s_add_u32 s%d, s%d, s%d" % (S_T0, S_T0, S_QB if q else (S_GB, S_GB1)[ts["unit"]])]
            if const: pre.append("s_add_u32 s%d, s%d, 0x%x" % (S_T0, S_T0, const))
            out.append((pre, "buffer_load_dwordx4 v%d, %s, s%d offen lds ;@%s" %
                        (V_DQ if q else V_DG, sr(S_WQ if q else (S_WG if ts["kind"] == "g" else S_WU)), S_T0, ts["tag"])))
    return out

def kv_dmas(which, j, tag):
    out = []
    for n in range(4):
        if which == "k":
            out.append(dma(S_K, V_DK, S_KV0, j * 16384 + n * 4096, S_L1K, KOFF(j) + n * 4096, tag))
        else:
            out.append(dma(S_V, V_DV, S_KV0, j * 16384 + n * 4096, S_L1K, 65536 + VOFF(j) + n * 4096, tag))
    return out

def xn_load(ks, rt):
    so = (S_T1, S_T2)[ks & 1]
    pre = ["s_add_u32 s%d, s%d, 0x%x" % (so, S_XN, ks * 4096)] if rt == 0 else []
    return (pre, "buffer_load_dwordx4 %s, v%d, %s, s%d offen offset:%d ;@x%d" % (xn(ks, rt), V_FR, sr(S_WS), so, rt * 1024, ks // 3))

def unit_line(r, u):
    if not OPT.get("perm", True):
        return ["s_lshl_b32 s%d, s%d, 1" % (r, S_SL), "s_add_u32 s%d, s%d, %d" % (r, r, u)]
    return ["s_add_u32 s%d, s%d, %d" % (r, S_SL, u + 1), "s_and_b32 s%d, s%d, 3" % (r, r), "s_and_b32 s%d, s%d, 28" % (r + 1, S_SL),
            "s_add_u32 s%d, s%d, s%d" % (r, r, r + 1), "s_lshl_b32 s%d, s%d, 1" % (r, r), "s_add_u32 s%d, s%d, %d" % (r, r, u)]

def setup(st):
    P = []
    A = P.append
    A("s_cmp_ge_u32 s2, 256")
    A("s_cbranch_scc1 L_k2_end")
    P += st("start")
    A("s_load_dwordx2 s[60:61], s[0:1], %d" % ARG["ws"])
    A("s_load_dwordx4 s[64:67], s[0:1], %d" % ARG["wg"])
    A("s_load_dwordx2 s[68:69], s[0:1], %d" % ARG["k"])
    A("s_load_dwordx4 s[72:75], s[0:1], %d" % ARG["v"])
    A("s_load_dwordx2 s[70:71], s[0:1], %d" % ARG["wo"])
    A("s_load_dwordx4 s[76:79], s[0:1], %d" % ARG["wd"])
    A("s_load_dwordx2 s[80:81], s[0:1], %d" % ARG["x"])
    A("v_lshrrev_b32 v15, 6, v0")
    A("v_and_b32 v0, 63, v0")
    A("v_readfirstlane_b32 s%d, v15" % S_WAVE)
    A("v_lshlrev_b32 v%d, 4, v0" % V_FR)
    A("s_and_b32 s54, s2, 7")
    A("s_lshl_b32 s54, s54, 2")
    A("s_bfe_u32 s55, s2, 0x20003")
    A("s_add_u32 s%d, s54, s55" % S_SL)
    A("s_lshr_b32 s54, s2, 5")
    A("s_lshl_b32 s54, s54, 2")
    A("s_add_u32 s%d, s54, s%d" % (S_RB, S_WAVE))
    A("s_lshl_b32 s%d, s%d, 10" % (S_L1K, S_WAVE))
    A("s_mul_i32 s%d, s%d, %d" % (S_XN, S_RB, 18 * 4096))
    A("s_lshl_b32 s%d, s%d, 8" % (S_QB, S_SL))
    for u_, r_ in ((0, S_GB), (1, S_GB1)):
        P += unit_line(56, u_)
        A("s_lshl_b32 s%d, s56, 7" % r_)
    A("s_lshr_b32 s54, s2, 5")
    A("s_lshl_b32 s54, s54, 12")
    A("s_mul_i32 s55, s54, %d" % OPT["rotkv"])
    A("s_add_u32 s%d, s55, s%d" % (S_KVR, S_L1K))
    A("s_mul_i32 s54, s54, %d" % OPT["rotw"])
    A("s_add_u32 s%d, s54, s%d" % (S_RT[0], S_L1K))
    for i in range(1, 9):
        A("s_add_u32 s54, s%d, %d" % (S_RT[0], i * 4096))
        A("s_sub_u32 s55, s54, %d" % SLOT)
        A("s_min_u32 s%d, s54, s55" % S_RT[i])
    A("v_lshrrev_b32 v15, 3, v0")
    A("v_bfe_u32 v%d, v0, 4, 1" % V_TMP)
    A("s_and_b32 s54, s%d, 1" % S_WAVE)
    A("s_lshl_b32 s54, s54, 1")
    A("v_or_b32 v%d, s54, v%d" % (V_TMP, V_TMP))
    A("v_lshlrev_b32 v%d, 1, v%d" % (V_TMP, V_TMP))
    A("v_and_b32 v%d, 7, v0" % (V_TMP + 1))
    A("v_xor_b32 v%d, v%d, v%d" % (V_TMP, V_TMP, V_TMP + 1))
    A("v_lshlrev_b32 v%d, 4, v%d" % (V_TMP, V_TMP))
    A("v_mul_u32_u24 v%d, 9216, v15" % V_DG)
    A("v_add_u32 v%d, v%d, v%d" % (V_DG, V_DG, V_TMP))
    A("v_lshl_add_u32 v%d, v15, 13, v%d" % (V_DQ, V_TMP))
    A("s_waitcnt lgkmcnt(0)")
    P += srd(S_WS, 60, WS_BYTES) + srd(S_WG, 64, WG_BYTES)
    return P

def touch_setup():
    t = V_TMP
    P = srd(S_WU, 66, WG_BYTES)
    A = P.append
    A("v_min_u32 v%d, 53, v0" % t)
    A("v_mul_u32_u24 v%d, 86, v%d" % (t + 1, t))
    A("v_lshrrev_b32 v%d, 8, v%d" % (t + 1, t + 1))
    A("v_mul_u32_u24 v%d, 3, v%d" % (t + 2, t + 1))
    A("v_sub_u32 v%d, v%d, v%d" % (t, t, t + 2))
    A("s_mul_i32 s54, s%d, 18" % S_RB)
    A("v_add_u32 v%d, s54, v%d" % (t + 1, t + 1))
    A("s_lshl_b32 s54, s%d, 8" % S_SL)
    A("v_and_b32 v%d, 1, v%d" % (t + 2, t))
    A("v_lshl_add_u32 v%d, v%d, 7, s54" % (t + 2, t + 2))
    A("v_lshl_add_u32 v%d, v%d, 13, v%d" % (t + 5, t + 1, t + 2))
    A("s_lshl_b32 s54, s%d, 5" % S_SL)
    A("s_add_u32 s54, s54, 8192")
    A("v_mov_b32 v%d, s54" % (t + 3))
    A("v_cmp_eq_u32 vcc, 2, v%d" % t)
    A("v_mul_u32_u24 v%d, 9216, v%d" % (t + 1, t + 1))
    A("s_nop 0")
    A("v_cndmask_b32 v%d, v%d, v%d, vcc" % (t + 2, t + 2, t + 3))
    A("v_add_u32 v%d, v%d, v%d" % (t + 4, t + 1, t + 2))
    return P

def kvp_setup():
    a = V_TMP + 6
    return ["s_cmp_lt_u32 s%d, 2" % S_WAVE, "s_cselect_b32 s54, s%d, s%d" % (S_K, S_V), "s_cselect_b32 s55, s%d, s%d" % (S_K + 1, S_V + 1),
            "s_lshl_b32 s56, s%d, 19" % S_SL, "s_add_u32 s54, s54, s56", "s_addc_u32 s55, s55, 0"] + srd(S_KVP, 54, 524288) + \
           ["s_lshr_b32 s54, s2, 5", "s_lshl_b32 s54, s54, 1", "s_and_b32 s55, s%d, 1" % S_WAVE, "s_add_u32 s54, s54, s55", "s_lshl_b32 s54, s54, 12",
            "v_min_u32 v%d, 31, v0" % a, "v_lshl_add_u32 v%d, v%d, 7, s54" % (a, a), "s_mov_b32 s%d, %d" % (S_PF, 2 * 65536)]

def kv_touch():
    return "buffer_load_dword v%d, v%d, %s, s%d offen" % (V_TMP + 7, V_TMP + 6, sr(S_KVP), S_PF)

def setup2():
    P = []
    A = P.append
    P += srd(S_WQ, 74, WQ_BYTES) + srd(S_K, 68, KV_BYTES) + srd(S_V, 72, KV_BYTES)
    if OPT["touch"]: P += kvp_setup()
    t0, t1, t2, t3 = V_TMP, V_TMP + 1, V_TMP + 2, V_TMP + 3
    A("v_lshrrev_b32 v%d, 4, v0" % t0)
    A("v_bfe_u32 v%d, v0, 2, 2" % t1)
    A("v_lshl_add_u32 v15, v%d, 3, v%d" % (t0, t1))
    A("v_lshlrev_b32 v15, 7, v15")
    A("v_add_u32 v15, %d, v15" % TS[0]["off"])
    A("v_bfe_u32 v%d, v0, 3, 2" % t2)
    A("v_and_b32 v%d, 3, v0" % t3)
    for j in range(4):
        A("v_xor_b32 v%d, %d, v%d" % (V_TU + j, j, t2))
        A("v_lshl_add_u32 v%d, v%d, 5, v15" % (V_TU + j, V_TU + j))
        A("v_lshl_add_u32 v%d, v%d, 3, v%d" % (V_TU + j, t3, V_TU + j))
    A("v_add_u32 v15, %d, v15" % ((TS[9]["off"] - TS[0]["off"]) & 0xffffffff))
    A("v_lshlrev_b32 v%d, 1, v%d" % (t2, t2))
    for m in range(2):
        A("v_or_b32 v%d, %d, v%d" % (V_TQ + m, 4 * m, t3))
        A("v_xor_b32 v%d, v%d, v%d" % (V_TQ + m, V_TQ + m, t2))
        A("v_lshl_add_u32 v%d, v%d, 4, v15" % (V_TQ + m, V_TQ + m))
    A("v_lshlrev_b32 v%d, 3, v0" % V_TH)
    A("v_add_u32 v%d, %d, v%d" % (V_TH, 3 * SLOT, V_TH))
    A("s_mul_i32 s%d, s%d, 9216" % (S_HL, S_WAVE))
    A("s_mul_i32 s54, s%d, %d" % (S_SL, SLOT))
    A("s_add_u32 s54, s54, s%d" % S_HL)
    A("s_add_u32 s%d, s54, 0x%x" % (S_HB, HW_OFF))
    A("s_lshl_b32 s54, s%d, 19" % S_RB)
    A("s_add_u32 s%d, s54, 0x%x" % (S_HST, H_OFF))
    A("s_lshl_b32 s55, s%d, 14" % S_SL)
    A("s_add_u32 s54, s54, s55")
    A("s_add_u32 s%d, s54, 0x%x" % (S_OST, O_OFF))
    A("s_lshr_b32 s54, s54, 3")
    A("s_add_u32 s%d, s54, 0x%x" % (S_HHST, H2_OFF - 3 * SLOT))
    A("s_mov_b32 s%d, %s" % (S_NL2E, f32(-LOG2E)))
    A("s_mov_b32 s%d, %s" % (S_QC, f32(LOG2E * 128 ** -0.5)))
    A("s_mov_b32 s%d, 0" % S_REDO)
    A("s_lshl_b32 s54, s%d, 19" % S_SL)
    A("s_add_u32 s%d, s54, s%d" % (S_KV0, S_L1K))
    A("s_lshl_b32 s54, s%d, 2" % S_WAVE)
    A("v_add_u32 v15, s54, v%d" % t0)
    A("v_and_b32 v%d, 15, v0" % t2)
    A("v_xor_b32 v%d, v%d, v15" % (V_DK, t2))
    A("v_lshlrev_b32 v%d, 4, v%d" % (V_DK, V_DK))
    A("v_lshl_add_u32 v%d, v%d, 8, v%d" % (V_DK, t0, V_DK))
    A("v_and_b32 v15, 7, v15")
    A("v_lshlrev_b32 v15, 1, v15")
    A("v_xor_b32 v%d, v%d, v15" % (V_DV, t2))
    A("v_lshlrev_b32 v%d, 4, v%d" % (V_DV, V_DV))
    A("v_lshl_add_u32 v%d, v%d, 8, v%d" % (V_DV, t0, V_DV))
    for ks in range(4):
        A("v_or_b32 v15, %d, v%d" % (4 * ks, t0))
        A("v_xor_b32 v15, v15, v%d" % t2)
        A("v_lshlrev_b32 v15, 4, v15")
        A("v_lshl_add_u32 v%d, v%d, 8, v15" % (V_KA + ks, t2))
    A("v_lshrrev_b32 v%d, 2, v0" % t1)
    A("v_and_b32 v%d, 7, v%d" % (t2, t1))
    A("v_lshlrev_b32 v%d, 8, v%d" % (t1, t1))
    A("v_lshl_add_u32 v%d, v%d, 3, v%d" % (t1, t3, t1))
    A("v_add_u32 v%d, 0x10000, v%d" % (t1, t1))
    for dt in range(8):
        A("v_xor_b32 v15, %d, v%d" % (dt, t2))
        A("v_lshl_add_u32 v%d, v15, 5, v%d" % (V_VA + dt, t1))
    for r in range(4):
        A("v_mov_b32 v%d, 0x3f803f80" % (V_ONE + r))
    A("s_add_u32 s%d, s60, 0x%x" % (S_WF, WF_OFF))
    A("s_addc_u32 s%d, s61, 0" % (S_WF + 1))
    A("s_and_b32 s%d, s%d, 0xffff" % (S_WF + 1, S_WF + 1))
    A("s_mov_b32 s%d, 0x%x" % (S_WF + 2, 272 * SLOT))
    A("s_mov_b32 s%d, 0x20000" % (S_WF + 3))
    A("v_lshrrev_b32 v%d, 3, v0" % t0)
    A("v_mul_u32_u24 v%d, 1152, v%d" % (t0, t0))
    A("v_and_b32 v%d, 7, v0" % t1)
    A("v_lshl_add_u32 v%d, v%d, 4, v%d" % (V_DS, t1, t0))
    A("s_lshl_b32 s54, s%d, 12" % S_WAVE)
    A("s_add_u32 s54, s54, %d" % SCR)
    A("v_lshrrev_b32 v%d, 2, v0" % t0)
    A("v_lshlrev_b32 v%d, 7, v%d" % (t0, t0))
    A("v_lshl_add_u32 v%d, v%d, 3, v%d" % (t0, t3, t0))
    A("v_add_u32 v%d, s54, v%d" % (V_TS, t0))
    P += slab_base(54) + rot(55)
    A("s_bfe_u32 s56, s2, 0x20001")
    A("s_mul_i32 s56, s56, %d" % (18 * 1024))
    A("s_add_u32 s54, s54, s56")
    for c in range(2, 9):
        A("s_add_u32 s56, s55, %d" % c)
        A("s_sub_u32 s57, s56, 9")
        A("s_min_u32 s56, s56, s57")
        A("s_lshl_b32 s56, s56, 11")
        A("s_add_u32 s%d, s54, s56" % (S_PUB + c))
    return P

def slab_base(r):
    return ["s_lshr_b32 s%d, s2, 3" % r, "s_lshl_b32 s%d, s%d, 1" % (r, r), "s_and_b32 s%d, s2, 1" % (r + 1),
            "s_add_u32 s%d, s%d, s%d" % (r, r, r + 1), "s_lshl_b32 s%d, s%d, 2" % (r, r), "s_add_u32 s%d, s%d, s%d" % (r, r, S_WAVE),
            "s_mul_i32 s%d, s%d, %d" % (r, r, 72 * 1024), "s_add_u32 s%d, s%d, 0x%x" % (r, r, PART_OFF)]

def rot(r):
    return ["s_bfe_u32 s%d, s2, 0x20001" % r, "s_min_u32 s%d, s%d, 1" % (r + 1, r), "s_lshl_b32 s%d, s%d, 1" % (r, r),
            "s_add_u32 s%d, s%d, s%d" % (r, r, r + 1)]

def relayout():
    sc = [["s_mul_i32 s55, s%d, 7282" % S_U], ["s_lshr_b32 s55, s55, 16"],
          ["s_lshl_b32 s%d, s%d, 12" % (S_SHD, S_U)], ["s_mul_i32 s%d, s55, 9" % S_SHS], ["s_sub_u32 s54, s%d, s%d" % (S_U, S_SHS)],
          ["s_lshl_b32 s54, s54, 7"],
          ["s_cmp_lt_u32 s55, 144", "s_cselect_b32 s%d, s76, s70" % S_SRC, "s_cselect_b32 s%d, s77, s71" % (S_SRC + 1)],
          ["s_cmp_lt_u32 s55, 144", "s_cselect_b32 s%d, 0, 144" % S_SHS, "s_cselect_b32 s%d, 9, 8" % (S_SRC + 2)],
          ["s_mul_i32 s%d, s%d, %d" % (S_SRC + 2, S_SRC + 2, 512 * 1152)],
          ["s_and_b32 s%d, s%d, 0xffff" % (S_SRC + 1, S_SRC + 1)],
          ["s_sub_u32 s55, s55, s%d" % S_SHS], ["s_mul_i32 s55, s55, %d" % SLOT], ["s_add_u32 s%d, s55, s54" % S_SHS],
          ["s_add_u32 s%d, s%d, 1024" % (S_U, S_U)],
          ["s_cmp_gt_u32 s%d, 4" % S_CNT, "s_cselect_b32 s%d, s%d, 0" % (S_SEN + 2, S_SEN + 2), "s_cselect_b32 s54, 0, 1"]]
    dm = [dma(S_SRC, V_DS, S_SHS, n * 9216, S_SCR, n * 1024, "sh") for n in range(4)]
    rd = [["ds_read_b64_tr_b16 %s, v%d offset:%d" % (vr(V_SH + 4 * q + 2 * h, 2), V_TS, q * 32 + h * 2048) for h in range(2)] for q in range(4)]
    stv = ["buffer_store_dwordx4 %s, v%d, %s, s%d offen offset:%d%s" % (vr(V_SH + 4 * q), V_FR, sr(S_WF), S_SHD, q * 1024, SC) for q in range(4)]
    mk = ["buffer_store_dwordx4 %s, v%d, %s, s%d offen offset:%d%s" % (vr(V_M1), v, sr(S_SEN), S_SO, o, SC) for v, o in ((V_FR, 1024), (V_FR, 3072), (V_F4, 1024))]
    return sc, dm, rd, stv, mk

def groups(tau):
    ts = TS[tau]
    if ts["kind"] == "h":
        return [(t, 3 * kg) for t in range(2) for kg in range(6)]
    if tau in (0, 2):
        return [(t, 9 * ts["half"] + 3 * kg) for kg in range(3) for t in range(4)]
    return [(t, 9 * ts["half"] + 3 * kg) for t in range(4) for kg in range(3)]

BLK = {("g", 0): [VG, VG + 16, VG + 32, VG + 48], ("g", 1): [VH, VH + 16, VG, VG + 16], ("h", 0): [VG + 32, VG + 48],
       ("q", 0): [VG, VH, VG + 16, VH + 16]}
for key in (("u", 0), ("u", 1), ("q", 1)): BLK[key] = [VU, VU + 16, VU + 32, VU + 48]

def treads(tau, grp, buf):
    ts = TS[tau]
    t, k0 = groups(tau)[grp]
    out = []
    for kk in range(3):
        for h in range(2):
            d = vr(VA + 12 * buf + 4 * kk + 2 * h, 2)
            if ts["kind"] == "h":
                out.append("ds_read_b64_tr_b16 %s, v%d offset:%d" % (d, V_TH, t * 18432 + (k0 + kk) * 1024 + h * 512))
            else:
                o = (k0 + kk - 9 * ts["half"]) * 4096 + h * 512
                if ts["kind"] == "q":
                    out.append("ds_read_b64_tr_b16 %s, v%d offset:%d" % (d, V_TQ + t // 2, o + (t & 1) * 8))
                else:
                    out.append("ds_read_b64_tr_b16 %s, v%d offset:%d" % (d, V_TU + t, o))
    return out

def projection():
    mf, pin = [], {}
    done, first, blocked = {}, {}, set()
    XW = {(0, 3): 1, (0, 7): 2, (1, 11): 3, (2, 3): 4, (2, 7): 5}
    P = lambda g, x: pin.setdefault(g, []).append(x)
    for tau in range(13):
        blk = BLK[(TS[tau]["kind"], TS[tau]["unit"])]
        for gi, (t, k0) in enumerate(groups(tau)):
            buf = (12 * tau + gi) & 1
            g0 = len(mf)
            for rt in range(4):
                d = vr(blk[t] + 4 * rt)
                for kk in range(3):
                    ks = k0 + kk
                    if ks == 0: first.setdefault(blk[t] + 4 * rt, []).append(len(mf))
                    mf.append(mfma(d, vr(VA + 12 * buf + 4 * kk), xn(ks, rt), "0" if ks == 0 else d))
                    if ks == 17: done[(TS[tau]["kind"], TS[tau]["unit"], t, rt)] = len(mf) - 1
            nt, ng = (tau, gi + 1) if gi < 11 else (tau + 1, 0)
            if nt < 13:
                for i, x in enumerate(treads(nt, ng, buf ^ 1)): P(g0 + i, x)
            w = "s_waitcnt lgkmcnt(0)"
            if (tau, gi) in XW: w = "WAITVM x%d lgkmcnt(0)" % XW[(tau, gi)]
            if gi == 10 and tau < 12:
                tags = TS[tau + 1]["tag"] + (",k0" if tau == 11 else "")
                P(g0 + 11, "WAITVM %s lgkmcnt(0)" % tags)
                P(g0 + 11, "s_barrier")
            elif nt < 13:
                P(g0 + 11, w)
        ts = TS[tau]
        nxt = [x for x in TS[tau + 1:] if (x["kind"] == "q") == (ts["kind"] == "q") and x["kind"] != "h"]
        if ts["kind"] != "h" and nxt:
            delta = (nxt[0]["off"] - ts["off"]) & 0xffffffff
            regs = {}
            for gi, (t, k0) in enumerate(groups(tau)):
                regs[V_TQ + t // 2 if ts["kind"] == "q" else V_TU + t] = gi
            for r, gi in regs.items():
                P(144 * tau + 12 * (gi - 1) + 6, "v_add_u32 v%d, 0x%x, v%d" % (r, delta, r))
    plan = {t: [] for t in range(13)}
    order = [0, 1, 2, 3, 4, 5, 6, 7, 9, 10, 11, 12]
    hd = chunk_dmas(TS[8])
    kg = lambda n: [xn_load(ks, rt) for ks in range(3 * n, 3 * n + 3) for rt in range(4)]
    e = OPT["early"]
    plan[0] = kg(2) + chunk_dmas(TS[1])[e:] + kg(3)[:OPT["k3"]]
    plan[1] = chunk_dmas(TS[2])[e:] + kg(3)[OPT["k3"]:] + kg(4) + kg(5)[:OPT["k5"]] + chunk_dmas(TS[3])[:e]
    plan[2] = kg(5)[OPT["k5"]:] + chunk_dmas(TS[3])[e:] + chunk_dmas(TS[4])
    for tau in range(3, 10): plan[tau] = chunk_dmas(TS[tau + 2 if tau < 7 else tau + 3])
    plan[5] += chunk_dmas(TS[8])[:3]
    plan[6] = chunk_dmas(TS[8])[3:] + chunk_dmas(TS[9])[:6]
    plan[7] = chunk_dmas(TS[9])[6:] + plan[7]
    plan[10] = kv_dmas("k", 1, "s0") + kv_dmas("k", 2, "s0")
    plan[11] = kv_dmas("k", 0, "k0")
    plan[12] = kv_dmas("v", 0, "s0") + kv_dmas("v", 1, "s0")
    for tau in range(13):
        ops = plan[tau]
        if tau < 3:
            free = [g for g in range(144 * tau, 144 * tau + 144) if g % 12 in OPT["sgaps"] and not pin.get(g)]
            for g, (pre, x) in zip(free, ops):
                for y in pre: P(g, y)
                P(g, x)
            assert len(ops) <= len(free)
        else:
            for i, (pre, x) in enumerate(ops):
                g = 144 * tau + 12 * i + 8
                assert i < 12
                for k, y in enumerate(pre): P(g - 7 + k, y)
                P(g, x)
    P(144 * 12 + 6, "v_mov_b32 v%d, %d" % (V_TMP, FLAG_LDS))
    P(144 * 12 + 7, "v_mov_b32 v%d, 0" % (V_TMP + 1))
    P(144 * 12 + 9, "ds_write_b32 v%d, v%d" % (V_TMP, V_TMP + 1))
    if OPT["touch"]:
        P(144 * 2 + 10, "buffer_load_dword v%d, v%d, %s, 0 offen" % (V_TMP + 7, V_TMP + 5, sr(S_WQ)))
        for n in range(3):
            P(144 * (6 + n) + 120 + 5, "s_mov_b32 s%d, %d" % (S_PF, n * 65536))
            P(144 * (6 + n) + 120 + 7, kv_touch())
    for ks in range(4):
        P(144 * 12 + 132 + ks, "ds_read_b128 %s, v%d offset:%d" % (vr(VKF + 4 * ks), V_KA + ks, KOFF(0)))
    fl = []
    LAT = 6
    END = 144 * 12
    def reuse(reg, after):
        return min([g for g in first[reg] if g > after] + [END + 4]) - 4
    def add(text, lo, hi): fl.append(Flt(text, lo, hi))
    def glu(gkey, gt, ukey, ut, rt, dst):
        gb, ub = BLK[gkey][gt] + 4 * rt, BLK[ukey][ut] + 4 * rt
        lo, lu = done[gkey + (gt, rt)] + LAT, done[ukey + (ut, rt)] + LAT
        hu = min(reuse(ub, lu), reuse(dst & ~3, lu))
        hi = min(reuse(gb, lo), hu)
        for op in ("v_mul_f32 v%%d, s%d, v%%d" % S_NL2E, "v_exp_f32 v%d, v%d", "v_add_f32 v%d, 1.0, v%d", "v_rcp_f32 v%d, v%d"):
            for r in range(4): add(op % (gb + r, gb + r), lo, hi)
        for r in range(4): add("v_mul_f32 v%d, v%d, v%d" % (ub + r, ub + r, gb + r), lu, hi)
        for h in range(2): add("v_cvt_pk_bf16_f32 v%d, v%d, v%d" % (dst + h, ub + 2 * h, ub + 2 * h + 1), lu, hu)
        return lu
    for unit in range(2):
        for t in range(4):
            for rt in range(4):
                d = VU + 16 * (t & 2) + 4 * rt if unit or t < 2 or not OPT["park"] else VG + 32 + 4 * rt
                lu = glu(("g", unit), t, ("u", unit), t, rt, d + 2 * (t & 1))
                if t & 1:
                    t0_, dt_ = OPT["hspread"][unit]
                    add("buffer_store_dwordx4 %s, v%d, %s, s%d offen offset:%d" % (vr(d), V_FR, sr(S_WS), 56 + 2 * unit + t // 2, rt * 1024) + SC,
                        max(lu, int(144 * t0_) + (2 * (t & 2) + rt) * dt_), reuse(d, lu))
    for rt in range(4):
        d = BLK[("h", 0)][0] + 4 * rt
        lu = glu(("h", 0), 0, ("h", 0), 1, rt, d)
        add("buffer_store_dwordx2 %s, v%d, %s, s%d offen offset:%d" % (vr(d, 2), V_TH, sr(S_WS), S_HHST, rt * 512) + SC, max(lu, 144 * 11 + 30 * rt), END)
    for unit in range(2):
        blk = BLK[("q", unit)]
        for t in range(4):
            for rt in range(4):
                lo = done[("q", unit, t, rt)] + LAT
                hi = END + 120 if unit == 0 else None
                r0 = blk[t] + 4 * rt
                for r in range(4): add("v_mul_f32 v%d, s%d, v%d" % (r0 + r, S_QC, r0 + r), lo, hi)
                d = blk[t & 2] + 4 * rt + 2 * (t & 1)
                for h in range(2): add("v_cvt_pk_bf16_f32 v%d, v%d, v%d" % (d + h, r0 + 2 * h, r0 + 2 * h + 1), lo, hi)
    fl.sort(key=lambda f: f.hi if f.hi is not None else 1 << 30)
    out, left = schedule(mf, pin, fl, window=64, blocked=blocked)
    out.append("s_nop 7")
    out += [f.i.text for f in left]
    if OPT.get("hflag") is not None: out = [x.replace(SC, OPT["hflag"]) if x.startswith("buffer_store") else x for x in out]
    if OPT.get("nost"): out = [x for x in out if not x.startswith("buffer_store")]
    idx = [i for i, x in enumerate(out) if x.startswith("v_mfma")]
    for q in range(38, 0, -1):
        out[idx[48 * q]:idx[48 * q]] = OPT["st"]("q%d" % q) + (OPT["st"]("t%d" % (q // 3)) if q % 3 == 0 else [])
    return out

def kread(buf, j, kt):
    return ["ds_read_b128 %s, v%d offset:%d" % (vr(buf + 4 * ks), V_KA + ks, KOFF(j) + kt * 4096) for ks in range(4)]
def vread(buf, j, u):
    return ["ds_read_b64_tr_b16 %s, v%d offset:%d" % (vr(buf + 8 * d + 4 * b + 2 * h, 2), V_VA + 2 * u + d, VOFF(j) + b * 8192 + h * 4096)
            for d in range(2) for b in range(2) for h in range(2)]
def E(t, r): return "v_exp_f32 v%d, v%d" % (VS + 4 * t + r, VS + 4 * t + r)
def C(par, kt, t, h): return "v_cvt_pk_bf16_f32 v%d, v%d, v%d" % (VP[par][kt >> 1] + 4 * t + 2 * (kt & 1) + h, VS + 4 * t + 2 * h, VS + 4 * t + 2 * h + 1)
def qk(kbuf, t, c0):
    d = vr(VS + 4 * t)
    return [mfma(d, vr(kbuf + 4 * ks), qf(t, ks), c0 if ks == 0 else d) for ks in range(4)]
def pv(vbuf, par, u, init):
    return [mfma(oacc(2 * u + d, t), vr(vbuf + 8 * d + 4 * b), vr(VP[par][b] + 4 * t), "0" if init and b == 0 else oacc(2 * u + d, t))
            for d in range(2) for t in range(4) for b in range(2)]
def psum(par, t, init):
    return [mfma(lacc(t), vr(V_ONE), vr(VP[par][b] + 4 * t), "0" if init and b == 0 else lacc(t)) for b in range(2)]

def rowmax(src):
    P = []
    A = P.append
    for t in range(4):
        A("v_max3_f32 v%d, v%d, v%d, v%d" % (V_TMP + t, src + 4 * t, src + 4 * t + 1, src + 4 * t + 2))
    for t in range(4):
        A("v_max_f32 v%d, v%d, v%d" % (V_TMP + t, V_TMP + t, src + 4 * t + 3))
    for op in ("v_permlane32_swap_b32", "v_permlane16_swap_b32"):
        for t in range(4): A("v_mov_b32 v%d, v%d" % (32 + t, V_TMP + t))
        A("s_nop 1")
        for t in range(4): A("%s v%d, v%d" % (op, V_TMP + t, 32 + t))
        for t in range(4): A("v_max_f32 v%d, v%d, v%d" % (V_TMP + t, V_TMP + t, 32 + t))
    for t in range(4):
        for r in range(4): A("v_sub_f32 v%d, 0, v%d" % (VNEG + 4 * t + r, V_TMP + t))
    return P

def first_max():
    P = ["s_waitcnt lgkmcnt(0)", "s_nop 1"]
    sc = tile_offsets()
    for t in range(4):
        for m in qk(VKF, t, "0"):
            P += [m] + sc[:2]
            sc = sc[2:]
    P += sc + ["s_nop 1"]
    return P + rowmax(VS)

def step_pre():
    P = ["s_lshl_b32 s%d, s%d, 19" % (S_VO, S_SL), "s_add_u32 s%d, s%d, %d" % (S_KO, S_VO, 3 * 16384), "s_add_u32 s%d, s%d, %d" % (S_VO, S_VO, 2 * 16384)]
    for n in range(16):
        kt, t = n >> 2, n & 3
        kbuf = VKF if kt % 2 == 0 else VVF
        ms = qk(kbuf, t, vr(VNEG + 4 * t))
        rd = []
        if t == 0:
            if kt > 0: P.append("s_waitcnt lgkmcnt(0)")
            if kt == 3: P += ["WAITVM s0", "s_barrier"]
            rd = kread(VVF if kt % 2 == 0 else VKF, 0, kt + 1) if kt < 3 else kread(VKF, 1, 0)
        for i, m in enumerate(ms):
            P.append(m)
            if rd: P.append(rd[i])
            if n >= 2: P.append(E((n - 2) & 3, i))
            if n == 1: P.append("s_nop 0")
        if n >= 2:
            P += [C(0, (n - 2) >> 2, (n - 2) & 3, 0), C(0, (n - 2) >> 2, (n - 2) & 3, 1)]
    P += [E(2, r) for r in range(4)] + [C(0, 3, 2, 0), C(0, 3, 2, 1), "s_nop 1", E(3, 0), E(3, 1), "s_waitcnt lgkmcnt(0)"]
    return P

def step(i, tail_scalars=()):
    par = i & 1
    mf, pin, fl = [], {}, []
    P = lambda g, x: pin.setdefault(g, []).append(x)
    for u in range(4):
        g0 = 34 * u
        for t in range(4): mf += qk(VKF, t, vr(VNEG + 4 * t))
        mf += pv(VVF, par, u, i == 0) + psum(par, u, i == 0)
        ppar, pkt = (par, 3) if u == 0 else (par ^ 1, u - 1)
        tr = vread(VVF, i, u)
        for g, k in zip(OPT.get('tpos', (0, 2, 2, 4, 6, 6, 8, 8)), range(8)): P(g0 + g, tr[k])
        P(g0 + 0, C(ppar, pkt, 3, 0)); P(g0 + 1, E(3, 2)); P(g0 + 3, E(3, 3)); P(g0 + 4, C(ppar, pkt, 3, 1))
        for e in range(14): P(g0 + 7 + 2 * e, E(e >> 2, e & 3))
        for c in range(6): P(g0 + 10 + 4 * c, C(par ^ 1, u, c >> 1, c & 1))
        if u == 3 and par == 1:
            P(g0 + 15, "s_waitcnt vmcnt(%d) lgkmcnt(0)" % ({} if OPT.get('norel') else {1: 7 + OPT['l2pf'], 3: 4 + OPT['l2pf']}).get(i, 0)); P(g0 + 15, "s_barrier")
        elif u == 3 and i == 30:
            P(g0 + 15, "s_waitcnt lgkmcnt(0)"); P(g0 + 15, "s_barrier")
        else:
            P(g0 + 15, "s_waitcnt lgkmcnt(0)")
        if i == 30 and u == 3:
            tr = vread(VKF, 31, 0)
            for g, k in zip((16, 16, 18, 20, 20, 22, 24, 24), range(8)): P(g0 + g, tr[k])
        else:
            rd = kread(VKF, i + 1, u + 1) if u < 3 else kread(VKF, i + 2, 0)
            for g, k in zip((16, 18, 20, 22), range(4)): P(g0 + g, rd[k])
        P(g0 + 33, "s_waitcnt lgkmcnt(0)")
        if par == 0 and i < 30:
            for n, g in enumerate(OPT.get('gpos', (5, 12, 24, 28))):
                k = 4 * u + n
                isk, pc = (k % 2 == 0, k // 2) if OPT["kvmix"] else (k < 8, k & 7)
                so = S_KO if isk else S_VO
                P(g0 + g - 3, "s_xor_b32 s%d, s%d, %d" % (S_T0, S_KVR, pc * 4096))
                P(g0 + g - 2, "s_add_u32 m0, s%d, 0x%x" % (S_T0, KOFF(i + 3) if isk else 65536 + VOFF(i + 2)))
                P(g0 + g - 1, "s_add_u32 s%d, s%d, s%d" % (S_T0, S_T0, so))
                P(g0 + g, "buffer_load_dwordx4 v%d, %s, s%d offen lds" % (V_DK if isk else V_DV, sr(S_K if isk else S_V), S_T0))
            if u == 3:
                P(g0 + 29, "s_add_u32 s%d, s%d, 32768" % (S_KO, S_KO)); P(g0 + 30, "s_add_u32 s%d, s%d, 32768" % (S_VO, S_VO))
    for k, x in enumerate(tail_scalars): P(102 + 31 + k, x)
    if i == 0:
        sc, va = loop_setup()
        fl = [Flt(x) for x in va]
        sc2, va2 = pf_setup() if OPT["l2pf"] else ([], [])
        g = 0
        for k, x in enumerate(sc2 + sc):
            while any(cost(I(y)) == 0 or I(y).kind == "vmem" for y in pin.get(g, [])): g += 1
            P(g, x)
            if k == len(sc2) - 1: fl += [Flt(y, g + 1) for y in va2]
        assert g < 136
    if i == 1 and not OPT.get('norel'):
        sc, dm, rd, stv, mk = relayout()
        g = 0
        for grp in sc:
            while (pin.get(g) if len(grp) > 1 else any(cost(I(y)) == 0 for y in pin.get(g, []))): g += 1
            for x in grp: P(g, x)
            g += 1
        assert g <= 42, g
        P(34 + 10, "v_mov_b32 v%d, s54" % V_FL)
        for g, (pre, x) in zip((34 + 12, 34 + 24, 34 + 28, 34 + 32), dm):
            P(g - 2, pre[0]); P(g - 1, pre[1]); P(g, x.split(";@")[0].rstrip())
        for g, x in zip((68 + 12, 68 + 28, 102 + 12), mk): P(g, x)
        P(102 + 13, "s_add_u32 s%d, s%d, 6144" % (S_SO, S_SO))
        if OPT["touch"]:
            P(102 + 27, "s_add_u32 s%d, s%d, 65536" % (S_PF, S_PF))
            P(102 + 28, kv_touch())
        P(102 + 24, "buffer_store_dword v%d, v%d, %s, s%d offen%s" % (V_FL, V_L0, sr(S_WS), S_AFL, SC))
    if i == 3 and not OPT.get('norel'):
        sc, dm, rd, stv, mk = relayout()
        P(23, "s_waitcnt vmcnt(%d)" % (20 + OPT["touch"] + 2 * OPT["l2pf"]))
        for g, xs in zip((24, 28, 34 + 24, 34 + 28), rd):
            for x in xs: P(g, x)
        for g, x in zip((34 + 5, 34 + 12, 68 + 5, 68 + 24), stv): P(g, x)
    if i == 29:
        g = 13
        for x in tail_setup():
            while any(cost(I(y)) == 0 for y in pin.get(g, [])): g += 1
            P(g, x)
        assert g < 136
        P(4, "s_mov_b32 s%d, 0x%x" % (S_AFL, FLAG_OFF + 4096))
        P(5, poll_a()[0])
        for g, x in zip((102 + 24, 102 + 24, 102 + 28, 102 + 32), poll_a()[1]): P(g, x)
    if i == 30:
        w0, a0 = stage_loads(0)
        w1, a1 = stage_loads(1)
        gaps = [34 * u + g for u in range(4) for g in (5, 12, 24, 28, 32) if not (u == 3 and g == 24)]
        P(1, stage_base(0))
        for g, (pre, x) in zip(gaps, w0 + a0 + a1[:2]):
            for k, y in enumerate(pre): P(g - len(pre) + k, y)
            P(g, x)
    if OPT["l2pf"]:
        if i == 1: P(68 + 5, pf_touch(0))
        if i == 3:
            P(5, pf_touch(1))
            P(102 + 24, "s_cmp_eq_u32 s%d, 2" % S_CNT); P(102 + 24, "s_cselect_b32 s%d, 0x10000000, s%d" % (S_KVP + 2, S_KVP + 2))
        if i == 29: P(12, pf_touch(2))
    out, left = schedule(mf, pin, fl, cap=3 if i == 0 and OPT["l2pf"] else 2)
    assert not left
    if 1 <= i <= 4:
        for pat in OPT.get("drop", []):
            out = [x for x in out if not x.startswith(pat)]
        for pat, a_, b_ in OPT.get("sub", []):
            out = [x.replace(a_, b_) if x.startswith(pat) else x for x in out]
    return out

def poll_a():
    a = V_PA
    return ("buffer_load_dwordx4 %s, v%d, %s, s%d offen%s" % (vr(a), V_FR, sr(S_WS), S_AFL, SC),
            ["v_and_b32 v%d, v%d, v%d" % (a, a, a + 1), "v_and_b32 v%d, v%d, v%d" % (a + 2, a + 2, a + 3),
             "v_and_b32 v%d, v%d, v%d" % (a, a, a + 2), "v_cmp_eq_u32 vcc, 0, v%d" % a])

def poll_b():
    return ("buffer_load_dword v%d, v%d, %s, s%d offen%s" % (V_PL, V_B8, sr(S_WS), S_BC, SC), ["v_cmp_eq_u32 vcc, 0, v%d" % V_PL])

def poll_d():
    return ("buffer_load_dword v%d, v%d, %s, s%d offen%s" % (V_PL, V_B8, sr(S_WS), S_DF, SC), ["v_cmp_eq_u32 vcc, 0, v%d" % V_PL])

def spin(name, loads, check):
    return ["L_%s_spin:" % name, "s_mov_b32 s55, 0x%x" % OPT.get("spin", 0x100000), "L_%s_loop:" % name] + loads + ["s_sub_u32 s55, s55, 1", "s_waitcnt vmcnt(0)"] + check + \
           ["s_cmp_eq_u32 s55, 0", "s_cbranch_scc1 L_%s_ret" % name, "s_cbranch_vccnz L_%s_loop" % name, "s_branch L_%s_ret" % name]

def guard(name):
    return ["s_cbranch_vccnz L_%s_spin" % name, "L_%s_ret:" % name]

def tail_setup():
    P = []
    A = P.append
    P += srd(S_X, 80, X_BYTES) + srd(S_OUT, 78, X_BYTES) + srd(S_AUX, 60, 0)
    A("s_bfe_u32 s54, s2, 0x20001")
    A("s_min_u32 s55, s54, 1")
    A("s_sub_u32 s55, 1, s55")
    A("s_lshl_b32 s%d, s55, 28" % (S_AUX + 2))
    A("s_lshr_b32 s55, s2, 5")
    A("s_lshl_b32 s55, s55, 1")
    A("s_and_b32 s56, s2, 1")
    A("s_add_u32 s55, s55, s56")
    A("s_lshl_b32 s56, s55, 2")
    A("s_add_u32 s56, s56, s%d" % S_WAVE)
    A("s_mul_i32 s%d, s56, %d" % (S_XO, 32 * 1152))
    A("s_lshr_b32 s55, s56, 1")
    A("s_and_b32 s56, s56, 1")
    A("s_lshl_b32 s57, s55, 2")
    A("s_add_u32 s57, s57, s54")
    A("s_lshl_b32 s%d, s57, 5" % S_BC)
    A("s_add_u32 s%d, s%d, 0x%x" % (S_BC, S_BC, FLAG_OFF))
    A("s_lshl_b32 s%d, s57, 17" % S_HA)
    A("s_lshl_b32 s%d, s57, 14" % S_H2)
    A("s_lshl_b32 s57, s56, 11")
    A("s_add_u32 s%d, s%d, s57" % (S_HA, S_HA))
    A("s_lshl_b32 s57, s56, 10")
    A("s_add_u32 s%d, s%d, s57" % (S_H2, S_H2))
    A("s_lshl_b32 s57, s%d, 5" % S_RB)
    A("s_add_u32 s57, s57, s%d" % S_SL)
    A("s_lshl_b32 s57, s57, 2")
    A("s_add_u32 s%d, s57, 0x%x" % (S_BP, FLAG_OFF))
    A("s_bfe_u32 s55, s2, 0x20003")
    A("s_mul_i32 s56, s55, 288")
    A("s_add_u32 s%d, s%d, s56" % (S_XO, S_XO))
    A("s_mul_i32 s55, s55, 9216")
    A("s_mul_i32 s56, s%d, %d" % (S_WAVE, SLOT))
    A("s_add_u32 s55, s55, s56")
    A("s_mul_i32 s56, s54, %d" % (32 * SLOT))
    A("s_add_u32 s%d, s55, s56" % S_WB)
    A("s_mul_i32 s56, s54, %d" % (4 * SLOT))
    A("s_add_u32 s%d, s55, s56" % S_WB2)
    A("s_mul_i32 s%d, s%d, 9216" % (S_LB, S_WAVE))
    P += slab_base(56) + rot(58)
    A("s_lshl_b32 s55, s58, 5")
    A("s_add_u32 s%d, s%d, s55" % (S_XO, S_XO))
    A("s_lshl_b32 s55, s58, 11")
    A("s_add_u32 s56, s56, s55")
    for n in range(3):
        A("s_add_u32 s55, s54, %d" % (n + 1))
        A("s_and_b32 s55, s55, 3")
        A("s_mul_i32 s55, s55, %d" % (18 * 1024))
        A("s_add_u32 s%d, s55, s56" % (S_IN + n))
    return P

def loop_setup():
    P = srd(S_SEN, 60, WS_BYTES) + slab_base(54)
    A = P.append
    A("s_mov_b32 s%d, 0x20000" % (S_SRC + 3))
    A("s_bfe_u32 s55, s2, 0x20001")
    A("s_mul_i32 s55, s55, %d" % (18 * 1024))
    A("s_add_u32 s%d, s55, s54" % S_SO)
    A("s_lshl_b32 s%d, s2, 2" % S_U)
    A("s_add_u32 s%d, s%d, 0x%x" % (S_AFL, S_U, FLAG_OFF + 4096))
    A("s_add_u32 s%d, s%d, s%d" % (S_U, S_U, S_WAVE))
    A("s_lshl_b32 s%d, s%d, 12" % (S_SCR, S_WAVE))
    A("s_add_u32 s%d, s%d, %d" % (S_SCR, S_SCR, SCR))
    V = ["v_mov_b32 v%d, -1" % (V_M1 + r) for r in range(4)]
    V += ["v_mov_b32 v%d, 1" % V_1, "v_min_u32 v%d, 1, v0" % V_L0, "v_lshlrev_b32 v%d, 30, v%d" % (V_L0, V_L0),
         "v_add_u32 v%d, 0x10000, v%d" % (V_RD, V_FR), "v_add_u32 v%d, 0x20000, v%d" % (V_RD2, V_FR), "v_lshlrev_b32 v%d, 3, v0" % V_H2,
         "v_add_u32 v%d, 0x1000, v%d" % (V_F4, V_FR), "v_and_b32 v%d, 7, v0" % V_B8, "v_lshlrev_b32 v%d, 2, v%d" % (V_B8, V_B8),
         "v_and_b32 v%d, 15, v0" % V_XO, "v_mul_u32_u24 v%d, 1152, v%d" % (V_XO, V_XO), "v_lshrrev_b32 v%d, 4, v0" % (V_XO + 1),
         "v_lshl_add_u32 v%d, v%d, 3, v%d" % (V_XO, V_XO + 1, V_XO), "v_add_u32 v%d, %d, v%d" % (V_XO + 1, 16 * 1152, V_XO)]
    return P, V

V_PX = 252
def pf_setup():
    x, y, z, t = V_PX, V_PX + 1, V_PX + 2, V_TMP
    S = srd(S_KVP, 60, 0) + ["s_bfe_u32 s16, s2, 0x20001", "s_bfe_u32 s17, s2, 0x20003", "s_mul_i32 s18, s%d, 63" % S_RB,
         "s_mul_i32 s19, s17, 9216", "s_add_u32 s19, s19, 0x%x" % WF_OFF,
         "s_lshl_b32 s43, s16, 5", "s_add_u32 s43, s43, 8", "s_mul_i32 s44, s16, 28", "s_sub_u32 s44, 96, s44",
         "s_lshr_b32 s69, s2, 5", "s_lshl_b32 s69, s69, 1", "s_and_b32 s72, s2, 1", "s_add_u32 s69, s69, s72", "s_lshl_b32 s69, s69, 1",
         "s_lshr_b32 s72, s%d, 1" % S_WAVE, "s_add_u32 s69, s69, s72", "s_lshl_b32 s69, s69, 2", "s_add_u32 s69, s69, s16",
         "s_and_b32 s72, s%d, 1" % S_WAVE, "s_lshl_b32 s73, s69, 14", "s_lshl_b32 s69, s69, 17", "s_lshl_b32 s74, s72, 11", "s_add_u32 s69, s69, s74",
         "s_lshl_b32 s74, s72, 10", "s_add_u32 s73, s73, s74", "s_lshl_b32 s74, s17, 12", "s_add_u32 s73, s73, s74", "s_add_u32 s69, s69, s74",
         "s_add_u32 s73, s73, 0x%x" % H2_OFF, "s_add_u32 s69, s69, 0x%x" % (H_OFF + 8 * 4096)]
    V = ["v_min_u32 v%d, 62, v0" % x, "v_add_u32 v%d, s18, v%d" % (x, x), "v_mul_u32_u24 v%d, 3641, v%d" % (t, x), "v_lshrrev_b32 v%d, 18, v%d" % (t, t),
         "v_mul_u32_u24 v%d, 72, v%d" % (t + 1, t), "v_sub_u32 v%d, v%d, v%d" % (x, x, t + 1), "v_lshl_add_u32 v%d, v%d, 7, s19" % (x, x),
         "v_mul_u32_u24 v%d, 43, v%d" % (t + 1, t), "v_lshrrev_b32 v%d, 10, v%d" % (t + 1, t + 1), "v_mul_u32_u24 v%d, s44, v%d" % (t + 1, t + 1),
         "v_add3_u32 v%d, v%d, v%d, s43" % (t, t, t + 1), "v_mul_u32_u24 v%d, %d, v%d" % (t, SLOT, t), "v_add_u32 v%d, v%d, v%d" % (x, x, t),
         "v_lshrrev_b32 v%d, 4, v0" % t, "v_and_b32 v%d, 15, v0" % (t + 1), "v_lshlrev_b32 v%d, 14, v%d" % (t, t),
         "v_lshl_add_u32 v%d, v%d, 7, v%d" % (y, t + 1, t), "v_add_u32 v%d, s69, v%d" % (y, y), "v_add_u32 v%d, 0x10000, v%d" % (z, y),
         "v_bfe_u32 v%d, v0, 3, 1" % t, "v_and_b32 v%d, 7, v0" % (t + 1), "v_lshlrev_b32 v%d, 11, v%d" % (t, t),
         "v_lshl_add_u32 v%d, v%d, 7, v%d" % (t, t + 1, t), "v_add_u32 v%d, s73, v%d" % (t, t), "v_cmp_lt_u32 vcc, 31, v0", "v_mov_b32 v%d, v0" % (t + 1),
         "v_mov_b32 v%d, v0" % (t + 2), "v_cndmask_b32 v%d, v%d, v%d, vcc" % (z, z, t)]
    return S, V

def pf_touch(n):
    return "buffer_load_dword v%d, v%d, %s, 0 offen%s" % (V_PX + 3, V_PX + n, sr(S_KVP), SC)

def tile_offsets():
    P = rot(54)
    for c in range(9):
        P += ["s_add_u32 s55, s54, %d" % c, "s_sub_u32 s56, s55, 9", "s_min_u32 s55, s55, s56", "s_lshl_b32 s%d, s55, 10" % S_TO[c]]
    return P

def accr(job, c, rt): return (VD if job == 0 else VSA) + 8 * c + 4 * rt
def act(st, k, rt, n=4, o=0): return ar(AB[st % 4] + 8 * k + 4 * rt + o, n)

def stage_base(st):
    if st == 8: return "s_add_u32 s%d, s%d, 0x%x" % (S_WST, S_WB2, 128 * SLOT)
    return "s_add_u32 s%d, s%d, 0x%x" % (S_WST, S_WB, (4 * st if st < 8 else 144 + 4 * (st - 9)) * SLOT)

def stage_loads(st):
    w, a = [], []
    for c in range(9):
        pre = ["s_add_u32 s%d, s%d, s%d" % (S_T0, S_WST, S_TO[c]), "s_add_u32 m0, s%d, 0x%x" % (S_LB, XS[st % 4] + c * 1024)]
        w.append((pre, "buffer_load_dwordx4 v%d, %s, s%d offen%s lds ;@w%d" % (V_FR, sr(S_WF), S_T0, SC, st)))
    for k in range(4):
        so = (S_T1, S_T2)[k & 1]
        if st == 8:
            for hf in range(2):
                for rt in range(2):
                    pre = ["s_add_u32 s%d, s%d, 0x%x" % (so, S_H2, H2_OFF + k * 4096)] if hf == 0 and rt == 0 else []
                    a.append((pre, "buffer_load_dwordx2 %s, v%d, %s, s%d offen offset:%d%s ;@w%d" %
                              (act(st, k, rt, 2, 2 * hf), V_H2, sr(S_WS), so, hf * 2048 + rt * 512, SC, st)))
        else:
            base, ks = (H_OFF, 4 * st + k) if st < 8 else (O_OFF, 4 * (st - 9) + k)
            for rt in range(2):
                pre = ["s_add_u32 s%d, s%d, 0x%x" % (so, S_HA, base + ks * 4096)] if rt == 0 else []
                a.append((pre, "buffer_load_dwordx4 %s, v%d, %s, s%d offen offset:%d%s ;@w%d" % (act(st, k, rt), V_FR, sr(S_WS), so, rt * 1024, SC, st)))
    return w, a

def wread(st, c, buf):
    out = []
    for k in range(4):
        off = XS[st % 4] + c * 1024 + k * 9216
        out.append("ds_read_b128 %s, v%d offset:%d" % (vr(WBUF[buf] + 4 * k), (V_FR, V_RD, V_RD2)[off >> 16], off & 0xffff))
    return out

def inreg(job, c, n): return (VD if job == 0 else VSA) + 24 + 12 * c + 4 * n
def fetch(job):
    return ["buffer_load_dwordx4 %s, v%d, %s, s%d offen offset:%d%s ;@in%d" %
            (vr(inreg(job, c, n)), V_FR if c < 2 else V_F4, sr(S_WS if c < 2 else S_AUX), S_IN + n, (c & 1) * 2048 + job * 1024, SC, job)
            for c in range(3) for n in range(3)]
def arrived(job):
    b = inreg(job, 0, 0)
    P = ["v_max3_u32 v%d, v%d, v%d, v%d" % (VT + q, b + 9 * q, b + 9 * q + 1, b + 9 * q + 2) for q in range(4)]
    for k in range(3):
        P += ["v_max3_u32 v%d, v%d, v%d, v%d" % (VT + q, VT + q, b + 9 * q + 3 + 2 * k, b + 9 * q + 4 + 2 * k) for q in range(4)]
    return P + ["v_max3_u32 v%d, v%d, v%d, v%d" % (VT, VT, VT + 1, VT + 2), "v_max_u32 v%d, v%d, v%d" % (VT, VT, VT + 3), "v_cmp_eq_u32 vcc, -1, v%d" % VT]
def gather(job, c):
    P = []
    for n in range(3):
        for q in range(4):
            P += ["v_lshlrev_b32 v%d, 16, v%d" % (VT + 2 * q, inreg(job, c, n) + q), "v_and_b32 v%d, 0xffff0000, v%d" % (VT + 2 * q + 1, inreg(job, c, n) + q)]
        P += ["v_add_f32 v%d, v%d, v%d" % (accr(job, c, 0) + r, accr(job, c, 0) + r, VT + r) for r in range(8)]
    return P

def out_proj():
    mf, pin, fl = [], {}, []
    P = lambda g, x: pin.setdefault(g, []).append(x)
    seq = [(st, c) for st in range(NST - 1) for c in range(9)] + [(NST - 1, c) for c in (2, 3, 4, 5, 6, 7, 8, 0, 1)]
    done = {}
    for n, (st, c) in enumerate(seq):
        job = 0 if st < 9 else 1
        g0 = len(mf)
        for rt in range(2):
            d = vr(accr(job, c, rt))
            for k in range(4):
                mf.append(mfma(d, vr(WBUF[n % 3] + 4 * k), act(st, k, rt), "0" if st in (0, 9) and k == 0 else d))
            done[(job, c, rt)] = len(mf) - 1
        if n + 2 < len(seq):
            for i, x in enumerate(wread(seq[n + 2][0], seq[n + 2][1], (n + 2) % 3)): P(g0 + i, x)
        lw = "lgkmcnt(%d)" % (4 if n + 2 < len(seq) else 0)
        if n % 9 == 6 and st + 1 < NST:
            P(g0 + 7, "WAITVM w%d %s" % (st + 1, lw)); P(g0 + 7, "s_barrier")
        elif n + 1 < len(seq):
            P(g0 + 7, "s_waitcnt " + lw)
    if OPT["order"] == 0:
        for st in range(NST - 2):
            w, a = stage_loads(st + 2)
            if st > 0: P(72 * st - 5, stage_base(st + 2))
            for c, (pre, x) in enumerate(w):
                g = 72 * st + 8 * c
                P(g, pre[0]); P(g + 1, pre[1]); P(g + 4, x)
            per = len(a) // 8
            for n, (pre, x) in enumerate(a):
                g = 72 * st + 8 * (n // per)
                if pre: P(g + 2, pre[0])
                P(g + 5 + n % per, x)
    else:
        for st in range(NST - 2):
            w, a = stage_loads(st + 2)
            if st > 0: P(72 * st - 5, stage_base(st + 2))
            for c, (pre, x) in enumerate(w):
                g = 72 * st + 8 * (c // 2)
                if c % 2 == 0:
                    P(g, pre[0]); P(g + 1, pre[1]); P(g + 4, x)
                else:
                    P(g + 2, pre[0].replace("s%d," % S_T0, "s%d," % S_T3, 1)); P(g + 5, pre[1]); P(g + 6, x.replace("s%d offen" % S_T0, "s%d offen" % S_T3))
            slots = [38, 44, 46, 52, 54, 60, 62, 68] if len(a) == 8 else [37, 38, 44, 45, 46, 47, 52, 53, 54, 60, 61, 62, 63, 68, 70, 71]
            for g, (pre, x) in zip(slots, a):
                if pre: P(72 * st + (g // 8) * 8 + 2, pre[0])
                P(72 * st + g, x.replace(";@w", ";@a"))
        for st in range(1, NST - 1):
            g = 72 * st + 71
            k = [n for n, y in enumerate(pin[g]) if y.startswith("s_waitcnt lgkm")][0]
            pin[g][k] = "WAITVM a%d %s" % (st + 1, pin[g][k].split()[1])
    P(72 * OPT["oflag"] + 64 + 2, "WAITVM o")
    P(72 * OPT["oflag"] + 64 + 5, "buffer_store_dword v%d, v%d, %s, s%d offen%s" % (V_1, V_L0, sr(S_WS), S_BP, SC))
    P(72 * 5 + 64 + 5, poll_b()[0] + " ;@pb")
    P(72 * 6 + 64 + 1, "WAITVM pb")
    P(72 * 6 + 64 + 5, poll_b()[1][0])
    for k, x in enumerate(["s_lshr_b32 s54, s2, 3", "s_lshl_b32 s54, s54, 1", "s_and_b32 s55, s2, 1", "s_add_u32 s54, s54, s55", "s_lshl_b32 s54, s54, 2",
                           "s_add_u32 s54, s54, s%d" % S_WAVE, "s_lshl_b32 s54, s54, 4", "s_add_u32 s%d, s54, 0x%x" % (S_DF, FLAG_OFF + 8192)]):
        P(72 * 9 + 8 * k + 3, x)
    for k, x in enumerate(["s_bfe_u32 s54, s2, 0x20001", "s_lshl_b32 s54, s54, 2", "s_add_u32 s54, s54, s%d" % S_DF]):
        P(72 * 10 + 8 * k + 3, x)
    P(72 * 10 + 3, "v_and_b32 v%d, 12, v%d" % (V_B8, V_B8))
    P(72 * 11 + 64 + 2, "WAITVM p0")
    P(72 * 11 + 64 + 5, "buffer_store_dword v%d, v%d, %s, s54 offen%s" % (V_1, V_L0, sr(S_WS), SC))
    P(72 * 13 + 64 + 5, poll_d()[0] + " ;@pd")
    P(72 * 14 + 64 + 1, "WAITVM pd")
    P(72 * 14 + 64 + 5, poll_d()[1][0])
    late = fetch(0) + ["buffer_load_dwordx2 %s, v%d, %s, s%d offen offset:%d ;@in0" % (vr(VXX + 4 * c + 2 * rt, 2), V_XO + rt, sr(S_X), S_XO, c * 32)
                       for c in range(3) for rt in range(2)]
    for n, x in enumerate(late): P(72 * 15 + 8 * (n // 2) + 4 + n % 2, x)
    for job in range(2):
        for c in range(2, 9):
            lo = done[(job, c, 1)] + 6
            hi = 72 * 11 if job == 0 else None
            b = VPK[c - 2]
            for rt in range(2):
                for h in range(2):
                    r = accr(job, c, rt) + 2 * h
                    fl.append(Flt("v_cvt_pk_bf16_f32 v%d, v%d, v%d" % (b + 2 * rt + h, r, r + 1), lo, hi))
            if job == 1:
                for q in range(4): fl.append(Flt("v_min_u32 v%d, -2, v%d" % (b + q, b + q), lo, hi))
            fl.append(Flt("buffer_store_dwordx4 %s, v%d, %s, s%d offen offset:%d%s" % (vr(b), V_FR, sr(S_WS), S_PUB + c, job * 1024, SC) + " ;@p%d" % job, lo, hi))
    mf0, pin0, fl0 = step_last()
    for g, xs in pin.items(): pin0[g + 72] = xs
    for f in fl:
        f.lo += 72
        if f.hi is not None: f.hi += 72
    out, left = schedule(mf0 + mf, pin0, fl0 + fl, cap=lambda g: OPT["ocap"] if g < 72 * 5 else 2)
    idx = [i for i, x in enumerate(out) if x.startswith("v_mfma")][72:]
    for st in range(NST - 1, -1, -1):
        out[idx[72 * st]:idx[72 * st]] = OPT["st"]("g%d" % st if st else "tail0") + {7: guard("b"), 15: guard("d")}.get(st, []) + OPT["st"]("h%d" % st)
    return out + [f.i.text for f in left]

def combine(st):
    P = ["WAITVM in0"]
    A = P.append
    for c in range(3):
        P += gather(0, c)
        d = accr(0, c, 0)
        for r in range(8): A("v_mul_f32 v%d, s%d, v%d" % (VT + r, S_NL2E, d + r))
        for r in range(8): A("v_exp_f32 v%d, v%d" % (VT + r, VT + r))
        for r in range(8): A("v_add_f32 v%d, 1.0, v%d" % (VT + r, VT + r))
        for r in range(8): A("v_rcp_f32 v%d, v%d" % (VT + r, VT + r))
        for q in range(4):
            A("v_lshlrev_b32 v%d, 16, v%d" % (XF + 8 * c + 2 * q, VXX + 4 * c + q))
            A("v_and_b32 v%d, 0xffff0000, v%d" % (XF + 8 * c + 2 * q + 1, VXX + 4 * c + q))
        for r in range(8): A("v_mul_f32 v%d, v%d, v%d" % (d + r, d + r, VT + r))
        if c == 1: P += fetch(1)
    P += st("dmath") + ["s_waitcnt vmcnt(0)"] + arrived(1) + guard("s") + st("sarr")
    for c in range(3):
        if c == 2: P += ["s_cmp_lg_u32 s%d, 0" % (S_AUX + 2), "s_cbranch_scc0 L_k2_done"]
        P += gather(1, c)
        for r in range(8): A("v_fmac_f32 v%d, v%d, v%d" % (XF + 8 * c + r, accr(1, c, 0) + r, accr(0, c, 0) + r))
        for q in range(4): A("v_cvt_pk_bf16_f32 v%d, v%d, v%d" % (VXX + 4 * c + q, XF + 8 * c + 2 * q, XF + 8 * c + 2 * q + 1))
        for rt in range(2):
            A("buffer_store_dwordx2 %s, v%d, %s, s%d offen offset:%d" % (vr(VXX + 4 * c + 2 * rt, 2), V_XO + rt, sr(S_OUT), S_XO, c * 32))
    return P

def step_last():
    par = 1
    mf, pin, fl = [], {}, []
    P = lambda g, x: pin.setdefault(g, []).append(x)
    P(0, C(par, 3, 3, 0)); P(1, E(3, 2)); P(3, E(3, 3)); P(4, C(par, 3, 3, 1))
    ends = {}
    for u in range(4):
        g0 = len(mf)
        mf += pv(VKF if u % 2 == 0 else VVF, par, u, False)
        ends[u] = len(mf) - 1
        if u < 3:
            tr = vread(VVF if u % 2 == 0 else VKF, 31, u + 1)
            gs = (0, 2, 4, 5, 6, 7, 8, 9) if u == 0 else range(8)
            for g, k in zip(gs, range(8)): P(g0 + g, tr[k])
        if u == 0:
            for t in range(4): mf += psum(par, t, False)
            lsum = len(mf) - 1
        if u < 2: P(len(mf) - 1, "s_waitcnt lgkmcnt(0)")
    RL = V_TMP
    for t in range(4):
        P(24 + 2 * t, "v_accvgpr_read_b32 v%d, a%d" % (RL + 4 + t, 128 + 4 * t))
        P(32 + t, "v_rcp_f32 v%d, v%d" % (RL + t, RL + 4 + t))
    P(36, "v_add_f32 v33, v%d, v%d" % (RL + 4, RL + 5)); P(36, "v_add_f32 v34, v%d, v%d" % (RL + 6, RL + 7))
    P(37, "v_add_f32 v33, v33, v34"); P(37, "v_mov_b32 v32, %d" % FLAG_LDS)
    P(38, "v_cmp_nge_f32 vcc, %s, v33" % f32(2.0 ** 40))
    P(40, "v_cndmask_b32 v33, 0, 1, vcc")
    P(48, "ds_or_b32 v32, v33")
    P(55, "WAITVM w0 lgkmcnt(0)"); P(55, "s_barrier")
    P(56, "ds_read_b32 v33, v32")
    for k, x in enumerate(wread(0, 0, 0)): P(57 + k, x)
    P(61, "s_waitcnt lgkmcnt(4)"); P(61, "v_readfirstlane_b32 s54, v33")
    P(63, "s_cmp_gt_u32 s54, s%d" % S_REDO); P(63, "s_cbranch_scc1 L_k2_redo")
    for k, x in enumerate(wread(0, 1, 1)): P(64 + k, x)
    P(70, stage_base(2))
    P(71, "s_waitcnt lgkmcnt(4)")
    tmp = [VP[0][0], VP[0][0] + 8, VP[0][1], VP[0][1] + 8]
    k = 0
    for u in range(4):
        for t in range(4):
            b = tmp[k % 4]; k += 1
            lo = max(ends[u] + 6, 37)
            for d in range(2):
                for r in range(4):
                    fl.append(Flt("v_accvgpr_read_b32 v%d, a%d" % (b + 4 * d + r, 16 * (2 * u + d) + 4 * t + r), ends[u] + 6, 144 if u == 0 else None))
            for r in range(8): fl.append(Flt("v_mul_f32 v%d, v%d, v%d" % (b + r, b + r, RL + t), lo))
            for r in range(4): fl.append(Flt("v_cvt_pk_bf16_f32 v%d, v%d, v%d" % (b + r, b + 2 * r, b + 2 * r + 1), lo))
            fl.append(Flt("buffer_store_dwordx4 %s, v%d, %s, s%d offen offset:%d" % (vr(b), V_FR, sr(S_WS), 56 + u, t * 1024) + SC + " ;@o", lo,
                          72 * (1 + OPT["oflag"]) + 60))
    for u in range(4): P(4 + u, "s_add_u32 s%d, s%d, %d" % (56 + u, S_OST, u * 4096))
    w1, a1 = stage_loads(1)
    P(1, stage_base(1))
    free = [g for g in range(10, 70) if not pin.get(g)]
    for g, (pre, x) in zip(free, w1 + a1[2:]):
        for y in reversed(pre): P(g, y)
        P(g, x)
    assert len(free) >= 15
    return mf, pin, fl

def redo():
    P = []
    A = P.append
    A("L_k2_redo:")
    A("s_mov_b32 s%d, 1" % S_REDO)
    A("s_waitcnt vmcnt(0) lgkmcnt(0)")
    A("s_barrier")
    for pre, x in kv_dmas("k", 0, "k0") + kv_dmas("k", 1, "s0") + kv_dmas("k", 2, "s0") + kv_dmas("v", 0, "s0") + kv_dmas("v", 1, "s0"):
        P += pre + [x]
    A("v_and_b32 v32, 15, v0")
    A("v_lshlrev_b32 v32, 8, v32")
    A("v_lshrrev_b32 v%d, 4, v0" % V_TMP)
    A("v_lshl_add_u32 v32, v%d, 4, v32" % V_TMP)
    A("s_lshl_b32 s54, s%d, 19" % S_SL)
    A("s_mov_b32 s55, 128")
    for r in range(16): A("v_mov_b32 v%d, 0xff800000" % (56 + r))
    B = []
    A = B.append
    for ks in range(4):
        A("buffer_load_dwordx4 %s, v32, %s, s54 offen offset:%d" % (vr(VKF + 4 * ks), sr(S_K), ks * 64))
    A("s_waitcnt vmcnt(0)")
    for t in range(4): B += qk(VKF, t, "0")
    A("s_nop 7")
    for r in range(16): A("v_max_f32 v%d, v%d, v%d" % (56 + r, 56 + r, VS + r))
    A("s_add_u32 s54, s54, 4096")
    A("s_sub_u32 s55, s55, 1")
    A("s_cmp_lg_u32 s55, 0")
    A("s_cbranch_scc1 L_k2_maxloop")
    T = rowmax(56) + (kvp_setup() if OPT["touch"] else []) + ["s_barrier"] + kread(VKF, 0, 0) + ["s_waitcnt lgkmcnt(0)", "s_branch L_k2_attn"]
    return P, B, T

def gen(stamp=False):
    clk = OPT.get("clk", "s_memrealtime")
    st = lambda n: ["%s s[100:101]" % clk, "s_waitcnt lgkmcnt(0)", "s_mov_b32 s%d, s100" % (92 + n)] if stamp else []
    names = OPT.get("stamps", ["start", "gemm0", "gemm1", "tail0", "tail1", "dmath", "sarr", "end"])
    st0 = st
    OPT["st"] = st = lambda nm: st0(names.index(nm)) if nm in names else []
    S = setup(st)
    S += st("p0")
    wt = lambda srd_, d: ["buffer_load_dword v%d, v%d, %s, 0 offen" % (d, V_TMP + 4, sr(srd_))] if OPT["touch"] else []
    S += srd(S_WU, 66, WG_BYTES)
    e = OPT["early"]
    for pre, x in chunk_dmas(TS[0])[:e] + chunk_dmas(TS[1])[:e] + chunk_dmas(TS[2])[:e] + chunk_dmas(TS[0])[e:]: S += pre + [x]
    S += (touch_setup() if OPT["touch"] else []) + wt(S_WG, VG + 1) + wt(S_WU, VG + 2) + ["CODEPF"]
    for pre, x in [xn_load(ks, rt) for ks in range(3) for rt in range(4)]: S += pre + [x]
    S += st("i21") + setup2() + st("p2")
    for pre, x in [xn_load(ks, rt) for ks in range(3, 6) for rt in range(4)]: S += pre + [x]
    for unit in range(2):
        r = 56 + 2 * unit
        S += unit_line(r, unit) + ["s_lshl_b32 s%d, s%d, 13" % (r, r), "s_add_u32 s%d, s%d, s%d" % (r, r, S_HST), "s_add_u32 s%d, s%d, 4096" % (r + 1, r)]
    S += ["WAITVM c0 lgkmcnt(0)"] + st("p3") + ["s_barrier"] + treads(0, 0, 0) + ["WAITVM x0 lgkmcnt(0)"]
    G = st("gemm0") + projection() + st("gemm1") + first_max() + st("max")
    PRE = step_pre()
    S0 = st("pre") + step(0) + st("s0") + ["s_mov_b32 s%d, 7" % S_CNT]
    BODY = step(1) + step(2) + step(3) + step(4, ["s_sub_u32 s%d, s%d, 1" % (S_CNT, S_CNT), "s_cmp_lg_u32 s%d, 0" % S_CNT])
    br = ["s_cbranch_scc1 L_k2_loop"]
    TAIL = resolve_waits(st("loop") + step(29) + guard("a") + st("s29") + step(30) + st("s30") + out_proj() + st("tail1") + combine(st))
    D = ["L_k2_done:"]
    if stamp:
        D += ["s_waitcnt vmcnt(0)"] + st("end") + ["v_mov_b32 v%d, s%d" % (16 + n, 92 + n) for n in range(8)] + \
             ["s_lshl_b32 s54, s2, 2", "s_add_u32 s54, s54, s%d" % S_WAVE, "s_lshl_b32 s54, s54, 5", "s_add_u32 s54, s54, 0x%x" % STAMP_OFF,
              "buffer_store_dwordx4 v[16:19], v%d, %s, s54 offen" % (V_L0, sr(S_WS)), "buffer_store_dwordx4 v[20:23], v%d, %s, s54 offen offset:16" % (V_L0, sr(S_WS))]
    D += ["L_k2_end:", "s_endpgm"]
    R0, RB, RT = redo()
    R0 = resolve_waits(R0)
    strip = lambda xs: [x.split(";@")[0].rstrip() for x in xs]
    SP = spin("a", [poll_a()[0]], poll_a()[1]) + spin("b", [poll_b()[0]], poll_b()[1]) + spin("d", [poll_d()[0]], poll_d()[1]) + spin("s", strip(fetch(1)), arrived(1))
    rest = S0 + [".p2align 6", "L_k2_loop:"] + BODY + br + TAIL + D + SP + R0 + ["L_k2_maxloop:"] + RB + RT
    pf = []
    if OPT["codepf"]:
        pf = ["s_getpc_b64 s[54:55]", "L_k2_pc:", "s_lshr_b32 s56, s2, 3", "s_lshl_b32 s56, s56, 2", "s_add_u32 s56, s56, s%d" % S_WAVE,
              "s_mul_i32 s56, s56, %d" % (6 * 128), "v_min_u32 v2, 5, v0", "v_lshlrev_b32 v2, 7, v2", "v_add_u32 v2, s56, v2",
              "v_min_u32 v2, L_k2_last-L_k2_pc, v2", "v_mov_b32 v3, s55", "v_add_co_u32 v2, vcc, s54, v2", "s_nop 1",
              "v_addc_co_u32 v3, vcc, 0, v3, vcc", "global_load_dword v%d, v[2:3], off" % VG]
    rest = rest[:-1] + ["L_k2_last:"] + rest[-1:]
    k = S.index("CODEPF")
    S = S[:k] + pf + S[k + 1:]
    head = resolve_waits(S + G + ["L_k2_attn:"] + PRE)
    pre_only = head[head.index("L_k2_attn:"):]
    traces = [head + S0 + BODY + br + BODY + br + TAIL + D,
              TAIL[:TAIL.index("s_cbranch_scc1 L_k2_redo") + 1] + R0 + RB + RB + RT + pre_only + S0, SP]
    lines = head + rest
    for v in OPT.get("nt", []):
        lines = [x.replace(" offen lds", " offen%s lds" % OPT.get("ntf", " nt")) if x.startswith("buffer_load_dwordx4 v%d," % v) else x for x in lines]
    return dict(name="attn_kernel", lines=lines, traces=traces, grid=256, block=256, lds=163840, vgpr=512, acc=256, sgpr=102)
```

```python
import re

TRANS = ("v_exp_f32", "v_log_f32", "v_rcp_f32", "v_rsq_f32", "v_sqrt_f32")
_REG = re.compile(r"^(-|abs\()?([vas])(\d+)\)?$|^([vas])\[(\d+):(\d+)\]$")


def regs_of(op):
    op = op.strip()
    if op in ("vcc", "exec", "m0", "scc"):
        return [op]
    if op in ("vcc_lo", "vcc_hi"):
        return ["vcc"]
    m = _REG.match(op)
    if not m:
        return []
    if m.group(2):
        return [m.group(2) + m.group(3)]
    return [m.group(4) + str(i) for i in range(int(m.group(5)), int(m.group(6)) + 1)]


class I:
    def __init__(self, text):
        self.text = text
        t = text.split("\n")[0].split(";")[0].strip()
        self.label = t.endswith(":")
        self.directive = t.startswith(".") or t == ""
        self.op = t.split()[0] if t else ""
        rest = t[len(self.op):].strip()
        toks = [x.strip() for x in rest.split(",")] if rest else []
        self.mods = []
        if toks:
            last = toks[-1].split()
            toks[-1] = last[0] if last else ""
            self.mods = last[1:]
        self.ops = toks
        self.r, self.w = set(), set()
        self.srcc = set()
        self.ab = set()
        op = self.op
        R = lambda xs: set(r for x in xs for r in regs_of(x))
        if self.label or self.directive:
            self.kind = "none"
        elif op.startswith("v_mfma"):
            self.kind = "mfma"
            self.w = R(toks[:1]); self.ab = R(toks[1:3]); self.srcc = R(toks[3:4]); self.r = self.ab | self.srcc
            self.passes = 4 if "16x16x32" in op else 8
            self.dst = toks[0]; self.c = toks[3]
        elif op.startswith("ds_"):
            self.kind = "lds"
            if op.startswith("ds_read"):
                self.w = R(toks[:1]); self.r = R(toks[1:])
            else:
                self.r = R(toks)
        elif op.startswith("buffer_") or op.startswith("global_"):
            self.kind = "vmem"
            self.dma = "lds" in self.mods
            if op in ("buffer_inv", "buffer_wbl2"):
                pass
            elif self.dma:
                self.r = R(toks) | {"m0"}
            elif "load" in op:
                self.w = R(toks[:1]); self.r = R(toks[1:])
            elif "atomic" in op:
                self.r = R(toks)
                if "sc0" in self.mods: self.w = R(toks[:1])
                if "cmpswap" in op: self.w = set(sorted(self.w)[:1])
            else:
                self.r = R(toks)
                self.data = R(toks[:1])
        elif op.startswith("v_"):
            self.kind = "trans" if op.replace("_e32", "").replace("_e64", "") in TRANS else "valu"
            if op.startswith("v_cmp"):
                self.w = R(toks[:1]); self.r = R(toks[1:])
            elif op.startswith("v_permlane"):
                self.w = R(toks[:2]); self.r = R(toks[:2])
            elif op.startswith("v_fmac") or op.startswith("v_pk_fmac"):
                self.w = R(toks[:1]); self.r = R(toks)
            elif op.startswith("v_add_co") or op.startswith("v_addc_co"):
                self.w = R(toks[:2]); self.r = R(toks[2:])
            else:
                self.w = R(toks[:1]); self.r = R(toks[1:])
        elif op in ("WAITVM", "CODEPF"):
            self.kind = "salu"
        elif op == "s_waitcnt":
            self.kind = "wait"
            self.vm = self.lgkm = None
            for k, v in re.findall(r"(vmcnt|lgkmcnt)\((\d+)\)", t):
                if k == "vmcnt": self.vm = int(v)
                else: self.lgkm = int(v)
        elif op.startswith("s_load") or op.startswith("s_memtime") or op.startswith("s_memrealtime"):
            self.kind = "smem"
            self.w = R(toks[:1]); self.r = R(toks[1:])
        elif op.startswith("s_"):
            self.kind = "salu"
            if op in ("s_nop", "s_barrier", "s_endpgm", "s_sleep", "s_setprio") or op.startswith("s_cbranch") or op == "s_branch":
                pass
            elif op.startswith("s_cmp") or op.startswith("s_bitcmp"):
                self.r = R(toks)
            else:
                self.w = R(toks[:1]); self.r = R(toks[1:])
                if "saveexec" in op: self.w |= {"exec"}
        else:
            raise ValueError("cannot parse: " + text)

    @property
    def states(self):
        if self.kind == "none": return 0
        if self.op == "s_nop": return int(self.ops[0]) + 1
        return 1

    @property
    def is_valu(self):
        return self.kind in ("valu", "trans")


def need_states(p, c):
    n = 0
    vreg = lambda s: set(x for x in s if x[0] in "va" and x != "vcc")
    sreg = lambda s: set(x for x in s if x[0] == "s" or x == "vcc")
    if p.is_valu:
        pv = vreg(p.w); ps = sreg(p.w)
        if c.kind == "mfma" and pv & c.r: n = max(n, 2)
        if c.op.startswith("v_permlane") and pv & c.r: n = max(n, 2)
        if (c.op.startswith("v_readfirstlane") or c.op.startswith("v_readlane")) and pv & c.r: n = max(n, 1)
        if p.kind == "trans" and c.kind == "valu" and pv & c.r: n = max(n, 1)
        if c.is_valu and ps & c.r: n = max(n, 2)
        if c.kind == "vmem" and ps & c.r: n = max(n, 5)
    if p.kind == "mfma":
        big = p.passes == 8
        if c.kind == "mfma":
            if p.w & c.srcc and not (c.c == p.dst and c.passes == p.passes): n = max(n, 10 if big else 6)
            if p.w & c.ab: n = max(n, 12 if big else 8)
        elif c.is_valu or c.kind in ("vmem", "lds"):
            if p.w & (c.r | c.w): n = max(n, 12 if big else 8)
        if c.is_valu and p.srcc & c.w: n = max(n, 7 if big else 3)
    if p.kind == "salu" and "m0" in p.w and c.kind == "vmem" and getattr(c, "dma", False): n = max(n, 1)
    if p.kind == "vmem" and hasattr(p, "data") and len(p.data) >= 3 and p.data & c.w:
        n = max(n, 2)
    return n


def check_trace(lines, name=""):
    ins = [I(x) for l in lines for x in l.split("\n")]
    ins = [x for x in ins if x.kind != "none"]
    errs = []
    for j, c in enumerate(ins):
        d = 0
        for i in range(j - 1, max(-1, j - 24), -1):
            p = ins[i]
            n = need_states(p, c)
            if d < n:
                errs.append("%s: hazard need %d have %d:\n   %s\n   %s" % (name, n, d, p.text, c.text))
            d += p.states
            if d >= 20: break
    lg, vm = [], []
    for c in ins:
        if c.kind == "wait":
            if c.lgkm is not None:
                if any(k == "smem" for k, _ in lg) and c.lgkm != 0:
                    errs.append("%s: counted lgkm wait with smem pending: %s" % (name, c.text))
                lg = lg[len(lg) - c.lgkm:] if c.lgkm < len(lg) and c.lgkm > 0 else ([] if c.lgkm == 0 else lg)
            if c.vm is not None:
                vm = vm[len(vm) - c.vm:] if c.vm < len(vm) and c.vm > 0 else ([] if c.vm == 0 else vm)
            continue
        for q, nm in ((lg, "lgkm"), (vm, "vm")):
            for k, p in q:
                if p.w & (c.r | c.w) and p.text != c.text:
                    errs.append("%s: %s result not waited:\n   %s\n   %s" % (name, nm, p.text, c.text))
        if c.kind in ("lds", "smem"): lg.append((c.kind, c))
        if c.kind == "vmem": vm.append((c.kind, c))
    return errs


def cost(i):
    if i.kind == "trans": return 2
    if i.kind == "vmem": return 2
    if i.kind in ("valu", "lds"): return 1
    return 0


class Flt:
    def __init__(self, text, lo=0, hi=None, pre=None):
        self.i = I(text); self.lo = lo; self.hi = hi; self.pre = pre or []
        self.gap = None


def schedule(mfmas, pinned, floats, cap=2, window=48, blocked=()):
    out = []
    pend = list(floats)
    capf = cap
    recent = []
    for g, m in enumerate(mfmas):
        cap = capf(g) if callable(capf) else capf
        out.append(m)
        here = [I(t) for t in pinned.get(g, [])]
        used = sum(cost(x) for x in here)
        nscalar = sum(1 for x in here if cost(x) == 0)
        placed = []
        k = seen = 0
        while k < len(pend) and seen < window and used < cap and g not in blocked:
            f = pend[k]
            if f.lo > g:
                k += 1
                continue
            seen += 1
            c = cost(f.i)
            ok = f.lo <= g and used + c <= cap
            if ok and f.i.kind in ("vmem", "lds") and used > 0: ok = False
            if ok and f.i.kind == "vmem" and nscalar > 0: ok = False
            if ok:
                for e in pend[:k]:
                    if (e.i.w & (f.i.r | f.i.w)) or (e.i.r & f.i.w):
                        ok = False; break
            if ok:
                for e in placed:
                    if e.i.w & f.i.r: ok = False; break
            if ok and any(g - sg < 2 and data & f.i.w for sg, data in recent): ok = False
            if ok:
                f.gap = g; placed.append(f); used += c; pend.pop(k)
                if hasattr(f.i, "data"): recent.append((g, f.i.data))
            else:
                k += 1
        pre = [t for f in placed for t in f.pre]
        here.sort(key=lambda x: 0 if cost(x) == 0 else (1 if x.kind in ("lds", "vmem") else 2))
        out += pre + [x.text for x in here] + [f.i.text for f in placed]
        for f in pend:
            assert f.hi is None or f.hi > g, "deadline missed at gap %d: %s" % (g, f.i.text)
    return out, pend


def resolve_waits(lines):
    out = []
    n = 0
    last = {}
    for l in lines:
        if l.startswith("WAITVM"):
            p = l.split()
            idx = max(last[t] for t in p[1].split(","))
            out.append(("s_waitcnt vmcnt(%d) " % min(63, n - idx) + " ".join(p[2:])).strip())
            continue
        i = I(l)
        if i.kind == "vmem":
            n += 1
            if ";@" in l: last[l.split(";@")[1].strip()] = n
        out.append(l.split(";@")[0].rstrip())
    return out


def vr(b, n=4): return "v[%d:%d]" % (b, b + n - 1)
def ar(b, n=4): return "a[%d:%d]" % (b, b + n - 1)
def sr(b, n=4): return "s[%d:%d]" % (b, b + n - 1)
def mfma(d, a, b, c): return "v_mfma_f32_16x16x32_bf16 %s, %s, %s, %s" % (d, a, b, c)


def srd(s, base, size):
    return ["s_mov_b32 s%d, s%d" % (s, base), "s_and_b32 s%d, s%d, 0xffff" % (s + 1, base + 1),
            "s_mov_b32 s%d, 0x%x" % (s + 2, size), "s_mov_b32 s%d, 0x20000" % (s + 3)]


def descriptor(name, vgpr, acc_off, sgpr=102):
    return [".amdhsa_kernel %s" % name,
            "  .amdhsa_next_free_vgpr %d" % vgpr, "  .amdhsa_next_free_sgpr %d" % sgpr,
            "  .amdhsa_accum_offset %d" % acc_off, "  .amdhsa_group_segment_fixed_size 0",
            "  .amdhsa_kernarg_size 96", "  .amdhsa_user_sgpr_count 2",
            "  .amdhsa_user_sgpr_kernarg_segment_ptr 1", "  .amdhsa_system_sgpr_workgroup_id_x 1",
            ".end_amdhsa_kernel"]
```

```python
import sys, importlib
from asmlib import *

HEADER = open("recurrent_scan__mha_block_cached__glu_gated_glu__prompt.s.ref").read().split("; Override launch")[0]

def emit(kernels, path, check=True, aslist=False):
    out = [HEADER.rstrip()]
    if len(kernels) == 1 and not aslist:
        k = kernels[0]
        out.append("; @launch grid=(%d,1,1) block=(%d,1,1) lds=%d" % (k["grid"], k["block"], k["lds"]))
    for k in (kernels if len(kernels) > 1 or aslist else []):
        out.append("; @launch kernel=%s grid=(%d,1,1) block=(%d,1,1) lds=%d" % (k["name"], k["grid"], k["block"], k["lds"]))
    out += ['.amdgcn_target "amdgcn-amd-amdhsa--gfx950"', ".text"]
    seen = []
    nerr = 0
    for k in kernels:
        if k["name"] in seen: continue
        seen.append(k["name"])
        if check:
            for i, t in enumerate(k["traces"]):
                errs = check_trace(t, "%s/%d" % (k["name"], i))
                for e in errs[:20]: print(e)
                nerr += len(errs)
        out += [".globl %s" % k["name"], ".p2align 8", ".type %s,@function" % k["name"], "%s:" % k["name"]]
        out += [l if l.endswith(":") or l.startswith(".") else "    " + l for l in k["lines"]]
    out += ['.section .rodata,"a"']
    done = []
    for k in kernels:
        if k["name"] in done: continue
        done.append(k["name"])
        out += [".p2align 6"] + descriptor(k["name"], k["vgpr"], k["acc"], k["sgpr"])
    open(path, "w").write("\n".join(out) + "\n")
    print("wrote %s, %d lines, %d check errors" % (path, len(out), nerr))
    return nerr
```

```python
from asmlib import *
from layout import *

OPT = dict(code=True, stf=" sc1", wpf=4, both=0, stamp=0, bar=1, tlb=0)

def gen():
    L = []
    A = L.append
    A("s_cmp_ge_u32 s2, 256")
    A("s_cbranch_scc1 L_ln_end")
    st = lambda n: L.extend(["s_memrealtime s[%d:%d]" % (40 + 2 * n, 41 + 2 * n)] if OPT.get("stamp") else [])
    st(0)
    A("s_load_dwordx2 s[4:5], s[0:1], %d" % ARG["x"])
    A("s_load_dwordx2 s[6:7], s[0:1], %d" % ARG["ws"])
    A("s_load_dwordx4 s[20:23], s[0:1], %d" % ARG["wg"])
    n = 0
    if OPT["code"]:
        A("s_getpc_b64 s[26:27]")
        A("L_ln_pc:")
        A("s_lshr_b32 s16, s2, 3")
        A("v_lshl_add_u32 v30, v0, 5, s16")
        A("v_lshlrev_b32 v30, 7, v30")
        A("v_min_u32 v30, L_k2_last-L_ln_pc, v30")
        A("v_mov_b32 v31, s27")
        A("v_add_co_u32 v30, vcc, s26, v30")
        A("v_and_b32 v3, 7, v0")
        A("v_lshrrev_b32 v4, 3, v0")
        A("v_addc_co_u32 v31, vcc, 0, v31, vcc")
        A("global_load_dword v32, v[30:31], off")
    else:
        A("v_and_b32 v3, 7, v0")
        A("v_lshrrev_b32 v4, 3, v0")
    A("v_mul_u32_u24 v5, 1152, v3")
    A("v_lshl_add_u32 v5, v4, 4, v5")
    A("s_mul_i32 s3, s2, %d" % (8 * 1152))
    A("v_lshrrev_b32 v2, 6, v0")
    A("v_and_b32 v1, 63, v0")
    A("v_readfirstlane_b32 s16, v2")
    A("s_waitcnt lgkmcnt(0)")
    st(1)
    L += srd(8, 4, X_BYTES)
    A("buffer_load_dwordx4 v[8:11], v5, s[8:11], s3 offen")
    L += srd(12, 6, WS_BYTES)
    A("s_mul_i32 s17, s2, 9")
    A("s_add_u32 s33, s16, s17")
    A("s_lshl_b32 s17, s2, 2")
    A("s_add_u32 s17, s17, s16")
    A("s_lshl_b32 s18, s16, 8")
    A("s_add_u32 s18, s18, s2")
    A("s_cmp_lt_u32 s16, 4")
    A("s_cselect_b32 s16, s17, s18")
    A("s_and_b32 s17, s16, 31")
    A("s_lshr_b32 s16, s16, 5")
    A("s_mul_i32 s19, s17, 36")
    A("s_add_u32 s19, s19, s16")
    A("s_lshl_b32 s19, s19, 10")
    A("s_add_u32 s19, s19, 0x%x" % HW_OFF)
    A("s_cmp_lt_u32 s16, 36")
    A("s_cselect_b32 s19, s19, 0x40000000")
    A("s_cmp_lt_u32 s16, 18")
    A("s_cselect_b32 s24, s20, s22")
    A("s_cselect_b32 s25, s21, s23")
    A("s_cselect_b32 s18, 0, 18")
    A("s_sub_u32 s16, s16, s18")
    L += srd(28, 24, WG_BYTES)
    A("s_mul_i32 s16, s16, %d" % (32 * 9216))
    A("s_lshl_b32 s17, s17, 5")
    A("s_add_u32 s16, s16, s17")
    A("s_add_u32 s16, s16, 8192")
    A("v_bfe_u32 v16, v1, 3, 2")
    A("v_lshlrev_b32 v16, 3, v16")
    A("v_lshrrev_b32 v17, 5, v1")
    A("v_lshl_add_u32 v16, v17, 2, v16")
    A("v_bfe_u32 v17, v1, 1, 2")
    A("v_add_u32 v16, v16, v17")
    A("v_mul_u32_u24 v16, 9216, v16")
    A("v_and_b32 v17, 1, v1")
    A("v_lshl_add_u32 v16, v17, 4, v16")
    if OPT["bar"] == 1: A("s_barrier")
    if OPT["bar"] == 2: A("s_waitcnt vmcnt(0)")
    A("buffer_load_dwordx4 v[36:39], v16, s[28:31], s16 offen")
    n += 1
    if OPT["wpf"]:
        A("s_lshr_b32 s16, s2, 3")
        A("s_mul_i32 s16, s16, 9")
        A("v_add_u32 v16, s16, v2")
        A("v_mul_u32_u24 v16, 9216, v16")
        A("v_and_b32 v17, %d, v1" % (7 if OPT["both"] else 3))
        A("v_lshl_add_u32 v16, v17, %d, v16" % (7 if OPT["both"] else 8))
        A("s_and_b32 s16, s2, 7")
        A("s_lshl_b32 s16, s16, 10")
        for k in range(OPT["wpf"]):
            L += srd(28, 20 + 2 * (k & 1), WG_BYTES)
            if k == 2: A("s_add_u32 s16, s16, %d" % (288 * 9216))
            A("buffer_load_dword v%d, v16, s[28:31], s16 offen" % (33 + k % 3))
            n += 1
    A("v_mov_b32 v6, 0")
    A("v_lshrrev_b32 v7, 4, v0")
    A("v_min_u32 v7, 1, v7")
    A("v_lshlrev_b32 v7, 30, v7")
    A("v_lshl_add_u32 v7, v0, 2, v7")
    A("s_lshl_b32 s16, s2, 6")
    A("s_add_u32 s16, s16, 0x%x" % FLAG_OFF)
    A("buffer_store_dword v6, v7, s[12:15], s16 offen" + OPT["stf"])
    A("v_mul_u32_u24 v6, 48, v3")
    A("v_lshl_add_u32 v7, v2, 2, v6")
    A("v_lshrrev_b32 v5, 2, v4")
    A("v_lshlrev_b32 v5, 12, v5")
    A("v_and_b32 v4, 3, v4")
    A("v_lshl_add_u32 v5, v4, 8, v5")
    A("v_lshl_add_u32 v5, v3, 4, v5")
    A("s_lshr_b32 s16, s2, 3")
    A("s_mul_i32 s16, s16, %d" % (18 * 4096))
    A("s_bfe_u32 s17, s2, 0x20001")
    A("s_lshl_b32 s17, s17, 10")
    A("s_add_u32 s16, s16, s17")
    A("s_and_b32 s17, s2, 1")
    A("s_lshl_b32 s17, s17, 7")
    A("s_add_u32 s16, s16, s17")
    A("v_lshlrev_b32 v1, 4, v1")
    if OPT["tlb"]:
        A("v_mov_b32 v26, 0")
        A("s_and_b32 s17, s16, 0xffe00000")
        A("s_add_u32 s17, s17, 0x%x" % OPT["tlb"])
        A("buffer_load_dword v27, v26, s[12:15], s17 offen")
        n += 1
    st(2)
    A("s_waitcnt vmcnt(%d)" % (n + 1))
    st(3)
    for i in range(4):
        A("v_lshlrev_b32 v%d, 16, v%d" % (16 + 2 * i, 8 + i))
        A("v_and_b32 v%d, 0xffff0000, v%d" % (17 + 2 * i, 8 + i))
    def reduce(off, dst):
        A("s_nop 1")
        A("v_add_f32_dpp v40, v40, v40 row_ror:8 row_mask:0xf bank_mask:0xf")
        for op in ("v_permlane16_swap_b32", "v_permlane32_swap_b32"):
            A("v_mov_b32 v41, v40")
            A("s_nop 1")
            A("%s v40, v41" % op)
            A("v_add_f32 v40, v40, v41")
        A("ds_write_b32 v7, v40 offset:%d" % off)
        A("s_waitcnt lgkmcnt(0)")
        A("s_barrier")
        A("ds_read_b128 v[40:43], v6 offset:%d" % off)
        A("ds_read_b128 v[44:47], v6 offset:%d" % (off + 16))
        A("ds_read_b32 v48, v6 offset:%d" % (off + 32))
        A("s_waitcnt lgkmcnt(1)")
        for i in range(4): A("v_add_f32 v%d, v%d, v%d" % (40 + i, 40 + i, 44 + i))
        A("v_add_f32 v40, v40, v42")
        A("v_add_f32 v41, v41, v43")
        A("s_waitcnt lgkmcnt(0)")
        A("v_add_f32 v40, v40, v48")
        A("v_add_f32 v40, v40, v41")
        A("v_mul_f32 v%d, %s, v40" % (dst, f32(1.0 / 576)))
    for i in range(4): A("v_add_f32 v%d, v%d, v%d" % (40 + i, 16 + i, 20 + i))
    A("v_add_f32 v40, v40, v42")
    A("v_add_f32 v41, v41, v43")
    A("v_add_f32 v40, v40, v41")
    reduce(0, 24)
    for i in range(8): A("v_sub_f32 v%d, v%d, v24" % (48 + i, 16 + i))
    A("v_mul_f32 v40, v48, v48")
    A("v_mul_f32 v41, v49, v49")
    for i in range(2, 8): A("v_fmac_f32 v%d, v%d, v%d" % (40 + i % 2, 48 + i, 48 + i))
    A("v_add_f32 v40, v40, v41")
    A("v_cvt_pk_bf16_f32 v24, v24, v24")
    A("v_lshlrev_b32 v24, 16, v24")
    for i in range(8): A("v_sub_f32 v%d, v%d, v24" % (16 + i, 16 + i))
    for i in range(4): A("v_cvt_pk_bf16_f32 v%d, v%d, v%d" % (8 + i, 16 + 2 * i, 17 + 2 * i))
    reduce(384, 25)
    A("v_cvt_pk_bf16_f32 v25, v25, v25")
    A("v_lshlrev_b32 v25, 16, v25")
    A("v_add_f32 v25, %s, v25" % f32(1e-5))
    A("v_cvt_pk_bf16_f32 v25, v25, v25")
    A("v_lshlrev_b32 v25, 16, v25")
    A("v_sqrt_f32 v25, v25")
    for i in range(4):
        A("v_lshlrev_b32 v%d, 16, v%d" % (16 + 2 * i, 8 + i))
        A("v_and_b32 v%d, 0xffff0000, v%d" % (17 + 2 * i, 8 + i))
    A("v_cvt_pk_bf16_f32 v25, v25, v25")
    A("v_lshlrev_b32 v25, 16, v25")
    A("v_rcp_f32 v25, v25")
    A("s_nop 0")
    if SCALE["XE"]: A("v_mul_f32 v25, %s, v25" % f32(2.0 ** -SCALE["XE"]))
    for i in range(8): A("v_mul_f32 v%d, v%d, v25" % (16 + i, 16 + i))
    for i in range(4): A("v_cvt_pk_bf16_f32 v%d, v%d, v%d" % (8 + i, 16 + 2 * i, 17 + 2 * i))
    A("buffer_store_dwordx4 v[8:11], v5, s[12:15], s16 offen" + OPT["stf"])
    A("s_waitcnt vmcnt(%d)" % (n + 1))
    A("buffer_store_dwordx4 v[36:39], v1, s[12:15], s19 offen" + OPT["stf"])
    if OPT.get("stamp"):
        st(4); A("s_waitcnt vmcnt(0)"); st(5); A("s_waitcnt lgkmcnt(0)")
        for q in range(6): A("v_mov_b32 v%d, s%d" % (16 + q, 40 + 2 * q))
        A("s_lshl_b32 s16, s33, 5"); A("s_add_u32 s16, s16, 0x%x" % (STAMP_OFF + 0x20000)); A("v_mov_b32 v1, 0"); A("s_mov_b64 exec, 1")
        A("buffer_store_dwordx4 v[16:19], v1, s[12:15], s16 offen"); A("buffer_store_dwordx2 v[20:21], v1, s[12:15], s16 offen offset:16")
    A("L_ln_end:")
    A("s_endpgm")
    return dict(name="ln_kernel", lines=L, traces=[L], grid=256, block=576, lds=768, vgpr=56, acc=56, sgpr=56 if OPT.get("stamp") else 40)
```

```python
from asmlib import *
from layout import *

SLOT = 36864
V_FR, V_TU, V_TQ, V_TH = 1, 2, 6, 8
V_DG, V_DQ, V_DH, V_DK, V_DV, V_DS, V_TS = 9, 10, 11, 12, 13, 14, 15
VA, VXN, VG, VU, VH = 16, 40, 72, 136, 200
V_KA, V_VA, V_ONE, V_TMP = 232, 236, 244, 248
VS, VNEG, VVF, VKF = 16, 40, 200, 216
VP = [[VG + 32, VG + 48], [VU + 16, VU + 48]]
S_WS, S_WG, S_WU, S_WQ, S_K, S_V, S_WH = 4, 8, 12, 16, 20, 24, 72
S_WAVE, S_SL, S_RB = 32, 33, 34
S_L1K, S_GB, S_QB, S_HB, S_HL, S_XN = 35, 36, 37, 38, 39, 40
S_T0, S_T1, S_HST, S_HHST, S_OST = 41, 42, 43, 44, 45
S_KO, S_VO, S_CNT, S_NL2E, S_QC, S_REDO, S_KV0 = 46, 47, 48, 49, 50, 51, 52
S_T2 = 53
S_GB1 = 83
S_T3 = 46
S_RT = [28, 29, 30, 31, 46, 47, 48, 82, 84]
S_HF = 3
KOFF = lambda j: (((j - 1) // 2) & 1) * 32768 + ((j - 1) & 1) * 16384
VOFF = lambda j: ((j // 2) & 1) * 32768 + (j & 1) * 16384
FLAG_LDS = 163776
SCR = 131072
V_SH, V_M1, V_FL = 56, 36, 8
S_SRC, S_SEN, S_WF = 8, 12, 88
S_PUB = 60
S_SHS, S_SHD, S_SCR, S_SO = 56, 57, 58, 59
S_U, S_AFL, S_DF = 42, 75, 50
SC = " sc1"
SUB = [[6, 7, 8, 9], [0, 1, 2, 13], [14, 15, 3, 4], [5, 10, 11, 12]]
SUBOFF = lambda i: i * 9216 + (16320 if i >= 12 else 0)
AX = 240
S_PG, S_PS = 50, 44
VD, VSA, VXX, VT, XF, VSEL = 16, 88, 232, 248, 40, 76
VPK = [160, 164, 184, 188, 192, 196, 244]
WBUF = [216, 168, 200]
V_RD, V_RD2, V_H2, V_XO, V_L0, V_PL, V_F4, V_B8, V_1 = 2, 3, 4, 5, 7, 8, 9, 10, 11
V_PA = 32
S_X, S_OUT, S_AUX = 8, 12, 16
S_TO = [28, 29, 30, 31, 36, 37, 38, 39, 40]
S_LB = [69, 72, 73, 74]
S_HA, S_H2, S_XO, S_W8, S_BP, S_BC, S_DO = 43, 82, 83, 84, 80, 81, 44
S_IN = 85
OPT = dict(codepf=True, nt=[9, 10, 12, 13, 14], oflag=2, ocap=3, k3=4, k5=0, rotw=1, rotkv=0, kvmix=0, early=0, sgaps=(6, 8, 10),
           hspread=((4.3, 66), (8.0, 54)), park=1, a3=48, o0=0, odt=0, cap31=3, codepf2=1, single=0, margin=8, pollahead=72, defer=3, dflag=2, hfmask=7, gain=28, fixed=0, dget=0, dlat=999, gdend=4, sdel=0, sleep=0, refc=-6.0, snake="qpgtPGT", codepf3=[], outf=" sc1",
           quota=[10, 10, 18, 18, 18, 18, 18, 18, 15, 15, 18, 18, 18, 18, 18])

def snake(n, i, key):
    return list(range(n))[::-1] if i % 2 and key in OPT["snake"] else list(range(n))

def xn(ks, rt):
    return ar(16 * ks + 4 * rt) if ks < 16 else vr(VXN + 16 * (ks - 16) + 4 * rt)
def qf(t, ks):
    return vr((VG, VG + 16, VU, VU + 32)[ks] + 4 * t)
def oacc(dt, t): return ar(16 * dt + 4 * t)
def lacc(t): return ar(128 + 4 * t)

def dma(srd_, voff, sbase, sconst, lbase, lconst, tag, tmp=S_T0):
    return (["s_add_u32 m0, s%d, 0x%x" % (lbase, lconst), "s_add_u32 s%d, s%d, 0x%x" % (tmp, sbase, sconst)],
            "buffer_load_dwordx4 v%d, %s, s%d offen lds ;@%s" % (voff, sr(srd_), tmp, tag))

def chunk_slot(c): return 3 * SLOT if c == 11 else ((c + 1) % 3) * SLOT
TS = []
for c in range(12):
    TS.append(dict(kind="gugugguuqqqq"[c], unit=(c // 4) if c < 8 else (c - 8) // 2, half=(c >> 1 if c < 4 else c & 1), off=chunk_slot(c), tag="c%d" % c))
TS.insert(8, dict(kind="h", unit=0, half=0, off=3 * SLOT, tag="h"))

def chunk_dmas(ts):
    out = []
    for i in range(9):
        if ts["kind"] == "h":
            pre, x = dma(S_WS, V_FR, S_HB, i * 1024, S_HL, 3 * SLOT + i * 1024, "h")
            out.append((pre, x.replace(" offen lds", " offen sc1 lds")))
        else:
            q = ts["kind"] == "q"
            const = ts["half"] * 288 * (8192 if q else 9216) + (ts["unit"] * 128 if q else 0)
            pre = ["s_add_u32 m0, s%d, 0x%x" % (S_RT[i], ts["off"]), "s_mul_i32 s%d, s%d, %d" % (S_T0, S_RT[i], 64 if q else 72),
                   "s_add_u32 s%d, s%d, s%d" % (S_T0, S_T0, S_QB if q else (S_GB, S_GB1)[ts["unit"]])]
            if const: pre.append("s_add_u32 s%d, s%d, 0x%x" % (S_T0, S_T0, const))
            out.append((pre, "buffer_load_dwordx4 v%d, %s, s%d offen lds ;@%s" %
                        (V_DQ if q else V_DG, sr(S_WQ if q else (S_WG if ts["kind"] == "g" else S_WU)), S_T0, ts["tag"])))
    return out

def kv_dmas(which, j, tag):
    out = []
    for n in range(4):
        if which == "k":
            out.append(dma(S_K, V_DK, S_KV0, j * 16384 + n * 4096, S_L1K, KOFF(j) + n * 4096, tag))
        else:
            out.append(dma(S_V, V_DV, S_KV0, j * 16384 + n * 4096, S_L1K, 65536 + VOFF(j) + n * 4096, tag))
    return out

def xn_load(ks, rt):
    so = (S_T1, S_T2)[ks & 1]
    pre = ["s_add_u32 s%d, s%d, 0x%x" % (so, S_XN, ks * 4096)] if rt == 0 else []
    return (pre, "buffer_load_dwordx4 %s, v%d, %s, s%d offen offset:%d ;@x%d" % (xn(ks, rt), V_FR, sr(S_WS), so, rt * 1024, ks // 3))

def unit_line(r, u):
    if not OPT.get("perm", True):
        return ["s_lshl_b32 s%d, s%d, 1" % (r, S_SL), "s_add_u32 s%d, s%d, %d" % (r, r, u)]
    return ["s_add_u32 s%d, s%d, %d" % (r, S_SL, u + 1), "s_and_b32 s%d, s%d, 3" % (r, r), "s_and_b32 s%d, s%d, 28" % (r + 1, S_SL),
            "s_add_u32 s%d, s%d, s%d" % (r, r, r + 1), "s_lshl_b32 s%d, s%d, 1" % (r, r), "s_add_u32 s%d, s%d, %d" % (r, r, u)]

def setup(st):
    P = []
    A = P.append
    A("s_cmp_ge_u32 s2, 256")
    A("s_cbranch_scc1 L_k2_end")
    P += st("start")
    A("s_load_dwordx2 s[60:61], s[0:1], %d" % ARG["ws"])
    A("s_load_dwordx4 s[64:67], s[0:1], %d" % ARG["wg"])
    A("s_load_dwordx2 s[68:69], s[0:1], %d" % ARG["k"])
    A("s_load_dwordx4 s[72:75], s[0:1], %d" % ARG["v"])
    A("s_load_dwordx2 s[70:71], s[0:1], %d" % ARG["wo"])
    A("s_load_dwordx4 s[76:79], s[0:1], %d" % ARG["wd"])
    A("s_load_dwordx2 s[80:81], s[0:1], %d" % ARG["x"])
    A("v_lshrrev_b32 v15, 6, v0")
    A("v_and_b32 v0, 63, v0")
    A("v_readfirstlane_b32 s%d, v15" % S_WAVE)
    A("v_lshlrev_b32 v%d, 4, v0" % V_FR)
    A("s_and_b32 s54, s2, 7")
    A("s_lshl_b32 s54, s54, 2")
    A("s_bfe_u32 s55, s2, 0x20003")
    A("s_add_u32 s%d, s54, s55" % S_SL)
    A("s_lshr_b32 s54, s2, 5")
    A("s_lshl_b32 s54, s54, 2")
    A("s_add_u32 s%d, s54, s%d" % (S_RB, S_WAVE))
    A("s_lshl_b32 s%d, s%d, 10" % (S_L1K, S_WAVE))
    A("s_mul_i32 s%d, s%d, %d" % (S_XN, S_RB, 18 * 4096))
    A("s_lshl_b32 s%d, s%d, 8" % (S_QB, S_SL))
    for u_, r_ in ((0, S_GB), (1, S_GB1)):
        P += unit_line(56, u_)
        A("s_lshl_b32 s%d, s56, 7" % r_)
    A("s_lshr_b32 s54, s2, 5")
    A("s_lshl_b32 s54, s54, 12")
    A("s_and_b32 s55, s2, %d" % OPT["hfmask"])
    A("s_bcnt1_i32_b32 s55, s55")
    A("s_and_b32 s%d, s55, 1" % S_HF)
    A("s_mul_i32 s54, s54, %d" % OPT["rotw"])
    A("s_add_u32 s%d, s54, s%d" % (S_RT[0], S_L1K))
    for i in range(1, 9):
        A("s_add_u32 s54, s%d, %d" % (S_RT[0], i * 4096))
        A("s_sub_u32 s55, s54, %d" % SLOT)
        A("s_min_u32 s%d, s54, s55" % S_RT[i])
    A("v_lshrrev_b32 v15, 3, v0")
    A("v_bfe_u32 v%d, v0, 4, 1" % V_TMP)
    A("s_and_b32 s54, s%d, 1" % S_WAVE)
    A("s_lshl_b32 s54, s54, 1")
    A("v_or_b32 v%d, s54, v%d" % (V_TMP, V_TMP))
    A("v_lshlrev_b32 v%d, 1, v%d" % (V_TMP, V_TMP))
    A("v_and_b32 v%d, 7, v0" % (V_TMP + 1))
    A("v_xor_b32 v%d, v%d, v%d" % (V_TMP, V_TMP, V_TMP + 1))
    A("v_lshlrev_b32 v%d, 4, v%d" % (V_TMP, V_TMP))
    A("v_mul_u32_u24 v%d, 9216, v15" % V_DG)
    A("v_add_u32 v%d, v%d, v%d" % (V_DG, V_DG, V_TMP))
    A("v_lshl_add_u32 v%d, v15, 13, v%d" % (V_DQ, V_TMP))
    A("s_waitcnt lgkmcnt(0)")
    P += srd(S_WS, 60, WS_BYTES) + srd(S_WG, 64, WG_BYTES)
    return P

def setup2():
    P = []
    A = P.append
    P += srd(S_WQ, 74, WQ_BYTES) + srd(S_K, 68, KV_BYTES) + srd(S_V, 72, KV_BYTES)
    t0, t1, t2, t3 = V_TMP, V_TMP + 1, V_TMP + 2, V_TMP + 3
    A("v_lshrrev_b32 v%d, 4, v0" % t0)
    A("v_bfe_u32 v%d, v0, 2, 2" % t1)
    A("v_lshl_add_u32 v15, v%d, 3, v%d" % (t0, t1))
    A("v_lshlrev_b32 v15, 7, v15")
    A("v_add_u32 v15, %d, v15" % TS[0]["off"])
    A("v_bfe_u32 v%d, v0, 3, 2" % t2)
    A("v_and_b32 v%d, 3, v0" % t3)
    for j in range(4):
        A("v_xor_b32 v%d, %d, v%d" % (V_TU + j, j, t2))
        A("v_lshl_add_u32 v%d, v%d, 5, v15" % (V_TU + j, V_TU + j))
        A("v_lshl_add_u32 v%d, v%d, 3, v%d" % (V_TU + j, t3, V_TU + j))
    A("v_add_u32 v15, %d, v15" % ((TS[9]["off"] - TS[0]["off"]) & 0xffffffff))
    A("v_lshlrev_b32 v%d, 1, v%d" % (t2, t2))
    for m in range(2):
        A("v_or_b32 v%d, %d, v%d" % (V_TQ + m, 4 * m, t3))
        A("v_xor_b32 v%d, v%d, v%d" % (V_TQ + m, V_TQ + m, t2))
        A("v_lshl_add_u32 v%d, v%d, 4, v15" % (V_TQ + m, V_TQ + m))
    A("v_lshlrev_b32 v%d, 3, v0" % V_TH)
    A("v_add_u32 v%d, %d, v%d" % (V_TH, 3 * SLOT, V_TH))
    A("s_mul_i32 s%d, s%d, 9216" % (S_HL, S_WAVE))
    A("s_mul_i32 s54, s%d, %d" % (S_SL, SLOT))
    A("s_add_u32 s54, s54, s%d" % S_HL)
    A("s_add_u32 s%d, s54, 0x%x" % (S_HB, HW_OFF))
    A("s_lshl_b32 s54, s%d, 19" % S_RB)
    A("s_add_u32 s%d, s54, 0x%x" % (S_HST, H_OFF))
    A("s_lshl_b32 s55, s%d, 14" % S_SL)
    A("s_add_u32 s54, s54, s55")
    A("s_add_u32 s%d, s54, 0x%x" % (S_OST, O_OFF))
    A("s_lshr_b32 s54, s54, 3")
    A("s_add_u32 s%d, s54, 0x%x" % (S_HHST, H2_OFF - 3 * SLOT))
    A("s_mov_b32 s%d, %s" % (S_NL2E, f32(-LOG2E)))
    A("s_mov_b32 s%d, %s" % (S_QC, f32(LOG2E * 128 ** -0.5)))
    A("s_mov_b32 s%d, 0" % S_REDO)
    A("s_lshl_b32 s54, s%d, 19" % S_SL)
    A("s_add_u32 s%d, s54, s%d" % (S_KV0, S_L1K))
    A("s_lshl_b32 s54, s%d, 2" % S_WAVE)
    A("v_add_u32 v15, s54, v%d" % t0)
    A("v_and_b32 v%d, 15, v0" % t2)
    A("v_xor_b32 v%d, v%d, v15" % (V_DK, t2))
    A("v_lshlrev_b32 v%d, 4, v%d" % (V_DK, V_DK))
    A("v_lshl_add_u32 v%d, v%d, 8, v%d" % (V_DK, t0, V_DK))
    A("v_and_b32 v15, 7, v15")
    A("v_lshlrev_b32 v15, 1, v15")
    A("v_xor_b32 v%d, v%d, v15" % (V_DV, t2))
    A("v_lshlrev_b32 v%d, 4, v%d" % (V_DV, V_DV))
    A("v_lshl_add_u32 v%d, v%d, 8, v%d" % (V_DV, t0, V_DV))
    for ks in range(4):
        A("v_or_b32 v15, %d, v%d" % (4 * ks, t0))
        A("v_xor_b32 v15, v15, v%d" % t2)
        A("v_lshlrev_b32 v15, 4, v15")
        A("v_lshl_add_u32 v%d, v%d, 8, v15" % (V_KA + ks, t2))
    A("v_lshrrev_b32 v%d, 2, v0" % t1)
    A("v_and_b32 v%d, 7, v%d" % (t2, t1))
    A("v_lshlrev_b32 v%d, 8, v%d" % (t1, t1))
    A("v_lshl_add_u32 v%d, v%d, 3, v%d" % (t1, t3, t1))
    A("v_add_u32 v%d, 0x10000, v%d" % (t1, t1))
    for dt in range(8):
        A("v_xor_b32 v15, %d, v%d" % (dt, t2))
        A("v_lshl_add_u32 v%d, v15, 5, v%d" % (V_VA + dt, t1))
    for r in range(4):
        A("v_mov_b32 v%d, 0x3f803f80" % (V_ONE + r))
    A("s_add_u32 s%d, s60, 0x%x" % (S_WF, WF_OFF))
    A("s_addc_u32 s%d, s61, 0" % (S_WF + 1))
    A("s_and_b32 s%d, s%d, 0xffff" % (S_WF + 1, S_WF + 1))
    A("s_mov_b32 s%d, 0x%x" % (S_WF + 2, 272 * SLOT))
    A("s_mov_b32 s%d, 0x20000" % (S_WF + 3))
    A("v_lshrrev_b32 v%d, 3, v0" % t0)
    A("v_mul_u32_u24 v%d, 1152, v%d" % (t0, t0))
    A("v_and_b32 v%d, 7, v0" % t1)
    A("v_lshl_add_u32 v%d, v%d, 4, v%d" % (V_DS, t1, t0))
    A("s_lshl_b32 s54, s%d, 12" % S_WAVE)
    A("s_add_u32 s54, s54, %d" % SCR)
    A("v_lshrrev_b32 v%d, 2, v0" % t0)
    A("v_lshlrev_b32 v%d, 7, v%d" % (t0, t0))
    A("v_lshl_add_u32 v%d, v%d, 3, v%d" % (t0, t3, t0))
    A("v_add_u32 v%d, s54, v%d" % (V_TS, t0))
    P += slab_base(54) + rot(55)
    A("s_bfe_u32 s56, s2, 0x20001")
    A("s_mul_i32 s56, s56, %d" % (18 * 1024))
    A("s_add_u32 s54, s54, s56")
    for c in range(2, 9):
        A("s_add_u32 s56, s55, %d" % c)
        A("s_sub_u32 s57, s56, 9")
        A("s_min_u32 s56, s56, s57")
        A("s_lshl_b32 s56, s56, 11")
        A("s_add_u32 s%d, s54, s56" % (S_PUB + c))
    return P

def slab_base(r):
    return ["s_lshr_b32 s%d, s2, 3" % r, "s_lshl_b32 s%d, s%d, 1" % (r, r),
            "s_add_u32 s%d, s%d, s%d" % (r, r, S_HF), "s_lshl_b32 s%d, s%d, 2" % (r, r), "s_add_u32 s%d, s%d, s%d" % (r, r, S_WAVE),
            "s_mul_i32 s%d, s%d, %d" % (r, r, 72 * 1024), "s_add_u32 s%d, s%d, 0x%x" % (r, r, PART_OFF)]

def rot(r):
    return ["s_bfe_u32 s%d, s2, 0x20001" % r, "s_min_u32 s%d, s%d, 1" % (r + 1, r), "s_lshl_b32 s%d, s%d, 1" % (r, r),
            "s_add_u32 s%d, s%d, s%d" % (r, r, r + 1)]

def relayout():
    sc = [["s_mul_i32 s55, s%d, 7282" % S_U], ["s_lshr_b32 s55, s55, 16"],
          ["s_lshl_b32 s%d, s%d, 12" % (S_SHD, S_U)], ["s_mul_i32 s%d, s55, 9" % S_SHS], ["s_sub_u32 s54, s%d, s%d" % (S_U, S_SHS)],
          ["s_lshl_b32 s54, s54, 7"],
          ["s_cmp_lt_u32 s55, 144", "s_cselect_b32 s%d, s76, s70" % S_SRC, "s_cselect_b32 s%d, s77, s71" % (S_SRC + 1)],
          ["s_cmp_lt_u32 s55, 144", "s_cselect_b32 s%d, 0, 144" % S_SHS, "s_cselect_b32 s%d, 9, 8" % (S_SRC + 2)],
          ["s_mul_i32 s%d, s%d, %d" % (S_SRC + 2, S_SRC + 2, 512 * 1152)],
          ["s_and_b32 s%d, s%d, 0xffff" % (S_SRC + 1, S_SRC + 1)],
          ["s_sub_u32 s55, s55, s%d" % S_SHS], ["s_mul_i32 s55, s55, %d" % SLOT], ["s_add_u32 s%d, s55, s54" % S_SHS],
          ["s_add_u32 s%d, s%d, 1024" % (S_U, S_U)],
          ["s_cmp_gt_u32 s%d, 4" % S_CNT, "s_cselect_b32 s%d, s%d, 0" % (S_SEN + 2, S_SEN + 2)],
          ["s_lshl_b32 s54, s%d, 3" % S_WAVE], ["s_add_u32 s54, s54, s%d" % S_CNT],
          ["s_cmp_eq_u32 s54, 4", "s_cselect_b32 s%d, s%d, 0x40000000" % (S_T2, S_AFL)]]
    dm = [dma(S_SRC, V_DS, S_SHS, n * 9216, S_SCR, n * 1024, "sh") for n in range(4)]
    rd = [["ds_read_b64_tr_b16 %s, v%d offset:%d" % (vr(V_SH + 4 * q + 2 * h, 2), V_TS, q * 32 + h * 2048) for h in range(2)] for q in range(4)]
    stv = ["buffer_store_dwordx4 %s, v%d, %s, s%d offen offset:%d%s" % (vr(V_SH + 4 * q), V_FR, sr(S_WF), S_SHD, q * 1024, SC) for q in range(4)]
    mk = ["buffer_store_dwordx4 %s, v%d, %s, s%d offen offset:%d%s" % (vr(V_M1), v, sr(S_SEN), S_SO, o, SC) for v, o in ((V_FR, 1024), (V_FR, 3072), (V_F4, 1024))]
    return sc, dm, rd, stv, mk

def groups(tau):
    ts = TS[tau]
    if ts["kind"] == "h":
        return [(t, 3 * kg) for t in range(2) for kg in snake(6, t, "G")]
    if tau in (0, 2):
        return [(t, 9 * ts["half"] + 3 * kg) for kg in range(3) for t in snake(4, kg, "G")]
    return [(t, 9 * ts["half"] + 3 * kg) for t in range(4) for kg in snake(3, t, "G")]

BLK = {("g", 0): [VG, VG + 16, VG + 32, VG + 48], ("g", 1): [VH, VH + 16, VG, VG + 16], ("h", 0): [VG + 32, VG + 48],
       ("q", 0): [VG, VH, VG + 16, VH + 16]}
for key in (("u", 0), ("u", 1), ("q", 1)): BLK[key] = [VU, VU + 16, VU + 32, VU + 48]

def treads(tau, grp, buf):
    ts = TS[tau]
    t, k0 = groups(tau)[grp]
    out = []
    for kk in range(3):
        for h in range(2):
            d = vr(VA + 12 * buf + 4 * kk + 2 * h, 2)
            if ts["kind"] == "h":
                out.append("ds_read_b64_tr_b16 %s, v%d offset:%d" % (d, V_TH, t * 18432 + (k0 + kk) * 1024 + h * 512))
            else:
                o = (k0 + kk - 9 * ts["half"]) * 4096 + h * 512
                if ts["kind"] == "q":
                    out.append("ds_read_b64_tr_b16 %s, v%d offset:%d" % (d, V_TQ + t // 2, o + (t & 1) * 8))
                else:
                    out.append("ds_read_b64_tr_b16 %s, v%d offset:%d" % (d, V_TU + t, o))
    return out

def projection():
    mf, pin = [], {}
    done, first, blocked = {}, {}, set()
    XW = {(0, 3): 1, (0, 7): 2, (1, 11): 3, (2, 3): 4, (2, 7): 5}
    P = lambda g, x: pin.setdefault(g, []).append(x)
    for tau in range(13):
        blk = BLK[(TS[tau]["kind"], TS[tau]["unit"])]
        for gi, (t, k0) in enumerate(groups(tau)):
            buf = (12 * tau + gi) & 1
            g0 = len(mf)
            for c, rt in enumerate(snake(4, gi, "G")):
                d = vr(blk[t] + 4 * rt)
                key = (TS[tau]["kind"], TS[tau]["unit"], t, rt)
                for kk in snake(3, c, "g"):
                    if key not in done: first.setdefault(blk[t] + 4 * rt, []).append(len(mf))
                    mf.append(mfma(d, vr(VA + 12 * buf + 4 * kk), xn(k0 + kk, rt), d if key in done else "0"))
                    done[key] = len(mf) - 1
            nt, ng = (tau, gi + 1) if gi < 11 else (tau + 1, 0)
            if nt < 13:
                for i, x in enumerate(treads(nt, ng, buf ^ 1)): P(g0 + i, x)
            w = "s_waitcnt lgkmcnt(0)"
            if (tau, gi) in XW: w = "WAITVM x%d lgkmcnt(0)" % XW[(tau, gi)]
            if gi == 10 and tau < 12:
                tags = TS[tau + 1]["tag"] + (",k0" if tau == 11 else "")
                P(g0 + 11, "WAITVM %s lgkmcnt(0)" % tags)
                P(g0 + 11, "s_barrier")
            elif nt < 13:
                P(g0 + 11, w)
        ts = TS[tau]
        nxt = [x for x in TS[tau + 1:] if (x["kind"] == "q") == (ts["kind"] == "q") and x["kind"] != "h"]
        if ts["kind"] != "h" and nxt:
            delta = (nxt[0]["off"] - ts["off"]) & 0xffffffff
            regs = {}
            for gi, (t, k0) in enumerate(groups(tau)):
                regs[V_TQ + t // 2 if ts["kind"] == "q" else V_TU + t] = gi
            for r, gi in regs.items():
                P(144 * tau + 12 * (gi - 1) + 6, "v_add_u32 v%d, 0x%x, v%d" % (r, delta, r))
    plan = {t: [] for t in range(13)}
    order = [0, 1, 2, 3, 4, 5, 6, 7, 9, 10, 11, 12]
    hd = chunk_dmas(TS[8])
    kg = lambda n: [xn_load(ks, rt) for ks in range(3 * n, 3 * n + 3) for rt in range(4)]
    e = OPT["early"]
    plan[0] = kg(2) + chunk_dmas(TS[1])[e:] + kg(3)[:OPT["k3"]]
    plan[1] = chunk_dmas(TS[2])[e:] + kg(3)[OPT["k3"]:] + kg(4) + kg(5)[:OPT["k5"]] + chunk_dmas(TS[3])[:e]
    plan[2] = kg(5)[OPT["k5"]:] + chunk_dmas(TS[3])[e:] + chunk_dmas(TS[4])
    for tau in range(3, 10): plan[tau] = chunk_dmas(TS[tau + 2 if tau < 7 else tau + 3])
    plan[5] += chunk_dmas(TS[8])[:3]
    plan[6] = chunk_dmas(TS[8])[3:] + chunk_dmas(TS[9])[:6]
    plan[7] = chunk_dmas(TS[9])[6:] + plan[7]
    plan[10] = kv_dmas("k", 1, "s0") + kv_dmas("k", 2, "s0")
    plan[11] = kv_dmas("k", 0, "k0")
    plan[12] = kv_dmas("v", 0, "s0") + kv_dmas("v", 1, "s0")
    for tau in range(13):
        ops = plan[tau]
        if tau < 3:
            free = [g for g in range(144 * tau, 144 * tau + 144) if g % 12 in OPT["sgaps"] and not pin.get(g)]
            for g, (pre, x) in zip(free, ops):
                for y in pre: P(g, y)
                P(g, x)
            assert len(ops) <= len(free)
        else:
            for i, (pre, x) in enumerate(ops):
                g = 144 * tau + 12 * i + 8
                assert i < 12
                for k, y in enumerate(pre): P(g - 7 + k, y)
                P(g, x)
    sc, va = tail_setup()
    g = 144 * 10
    for x in sc:
        while g % 12 > 5 or any(cost(I(y)) == 0 for y in pin.get(g, [])): g += 1
        P(g, x)
    assert g < 144 * 13 - 12, g
    for k, x in enumerate(va): P(144 * 12 + 72 + 12 * k, x)
    P(144 * 12 + 60, "v_lshrrev_b32 v%d, 4, v0" % V_TMP)
    P(144 * 12 + 61, "v_lshlrev_b32 v%d, 4, v%d" % (V_TMP, V_TMP))
    for ks in range(4):
        P(144 * 12 + 102 + ks, "ds_read_b128 %s, v%d offset:%d" % (vr(VVF + 4 * ks), V_TMP, KOFF(0) + 64 * ks))
    for r in range(16):
        P(144 * 12 + (114, 115, 116, 117, 118, 126, 127, 128)[r // 2], "v_xor_b32 v%d, 0x80008000, v%d" % (VVF + r, VVF + r))
    for r in range(4): P(144 * 12 + 129 + r // 2, "v_mov_b32 v%d, %s" % (V_TMP + r, f32(OPT["refc"])))
    for ks in range(4):
        P(144 * 12 + 132 + ks, "ds_read_b128 %s, v%d offset:%d" % (vr(VKF + 4 * ks), V_KA + ks, KOFF(0)))
    fl = []
    LAT = 6
    END = 144 * 12
    def reuse(reg, after):
        return min([g for g in first[reg] if g > after] + [END + 4]) - 4
    def add(text, lo, hi): fl.append(Flt(text, lo, hi))
    def glu(gkey, gt, ukey, ut, rt, dst):
        gb, ub = BLK[gkey][gt] + 4 * rt, BLK[ukey][ut] + 4 * rt
        lo, lu = done[gkey + (gt, rt)] + LAT, done[ukey + (ut, rt)] + LAT
        hu = min(reuse(ub, lu), reuse(dst & ~3, lu))
        hi = min(reuse(gb, lo), hu)
        for op in ("v_mul_f32 v%%d, s%d, v%%d" % S_NL2E, "v_exp_f32 v%d, v%d", "v_add_f32 v%d, 1.0, v%d", "v_rcp_f32 v%d, v%d"):
            for r in range(4): add(op % (gb + r, gb + r), lo, hi)
        for r in range(4): add("v_mul_f32 v%d, v%d, v%d" % (ub + r, ub + r, gb + r), lu, hi)
        for h in range(2): add("v_cvt_pk_bf16_f32 v%d, v%d, v%d" % (dst + h, ub + 2 * h, ub + 2 * h + 1), lu, hu)
        return lu
    for unit in range(2):
        for t in range(4):
            for rt in range(4):
                d = VU + 16 * (t & 2) + 4 * rt if unit or t < 2 or not OPT["park"] else VG + 32 + 4 * rt
                lu = glu(("g", unit), t, ("u", unit), t, rt, d + 2 * (t & 1))
                if t & 1:
                    t0_, dt_ = OPT["hspread"][unit]
                    add("buffer_store_dwordx4 %s, v%d, %s, s%d offen offset:%d" % (vr(d), V_FR, sr(S_WS), 56 + 2 * unit + t // 2, rt * 1024) + SC,
                        max(lu, int(144 * t0_) + (2 * (t & 2) + rt) * dt_), reuse(d, lu))
    for rt in range(4):
        d = BLK[("h", 0)][0] + 4 * rt
        lu = glu(("h", 0), 0, ("h", 0), 1, rt, d)
        add("buffer_store_dwordx2 %s, v%d, %s, s%d offen offset:%d" % (vr(d, 2), V_TH, sr(S_WS), S_HHST, rt * 512) + SC, max(lu, 144 * 11 + 30 * rt), END)
    for unit in range(2):
        blk = BLK[("q", unit)]
        for t in range(4):
            for rt in range(4):
                lo = done[("q", unit, t, rt)] + LAT
                hi = END + 96 if unit == 0 else None
                r0 = blk[t] + 4 * rt
                for r in range(4): add("v_mul_f32 v%d, s%d, v%d" % (r0 + r, S_QC, r0 + r), lo, hi)
                d = blk[t & 2] + 4 * rt + 2 * (t & 1)
                for h in range(2): add("v_cvt_pk_bf16_f32 v%d, v%d, v%d" % (d + h, r0 + 2 * h, r0 + 2 * h + 1), lo, hi)
    fl.sort(key=lambda f: f.hi if f.hi is not None else 1 << 30)
    out, left = schedule(mf, pin, fl, window=64, blocked=blocked)
    out.append("s_nop 7")
    out += [f.i.text for f in left]
    if OPT.get("hflag") is not None: out = [x.replace(SC, OPT["hflag"]) if x.startswith("buffer_store") else x for x in out]
    if OPT.get("nost"): out = [x for x in out if not x.startswith("buffer_store")]
    idx = [i for i, x in enumerate(out) if x.startswith("v_mfma")]
    for q in range(38, 0, -1):
        out[idx[48 * q]:idx[48 * q]] = OPT["st"]("q%d" % q) + (OPT["st"]("t%d" % (q // 3)) if q % 3 == 0 else [])
    return out

def kread(buf, j, kt):
    return ["ds_read_b128 %s, v%d offset:%d" % (vr(buf + 4 * ks), V_KA + ks, KOFF(j) + kt * 4096) for ks in range(4)]
def vread(buf, j, u):
    return ["ds_read_b64_tr_b16 %s, v%d offset:%d" % (vr(buf + 8 * d + 4 * b + 2 * h, 2), V_VA + 2 * u + d, VOFF(j) + b * 8192 + h * 4096)
            for d in range(2) for b in range(2) for h in range(2)]
def E(t, r): return "v_exp_f32 v%d, v%d" % (VS + 4 * t + r, VS + 4 * t + r)
def C(par, kt, t, h): return "v_cvt_pk_bf16_f32 v%d, v%d, v%d" % (VP[par][kt >> 1] + 4 * t + 2 * (kt & 1) + h, VS + 4 * t + 2 * h, VS + 4 * t + 2 * h + 1)
def qk(kbuf, t, c0):
    d = vr(VS + 4 * t)
    return [mfma(d, vr(kbuf + 4 * ks), qf(t, ks), c0 if n == 0 else d) for n, ks in enumerate(snake(4, t, "q"))]
def pv(vbuf, par, u, init):
    ts = [(u + k) % 4 for k in range(4)] if "P" in OPT["snake"] else list(range(4))
    return [mfma(oacc(2 * u + d, ts[k]), vr(vbuf + 8 * d + 4 * b), vr(VP[par][b] + 4 * ts[k]), "0" if init and n == 0 else oacc(2 * u + d, ts[k]))
            for d in range(2) for c, k in enumerate(snake(4, d, "P")) for n, b in enumerate(snake(2, c + 1, "p"))]
def psum(par, t, init):
    return [mfma(lacc(t), vr(V_ONE), vr(VP[par][b] + 4 * t), "0" if init and n == 0 else lacc(t)) for n, b in enumerate(snake(2, 1, "P"))]

def rowmax(src):
    P = []
    A = P.append
    for t in range(4):
        A("v_max3_f32 v%d, v%d, v%d, v%d" % (V_TMP + t, src + 4 * t, src + 4 * t + 1, src + 4 * t + 2))
    for t in range(4):
        A("v_max_f32 v%d, v%d, v%d" % (V_TMP + t, V_TMP + t, src + 4 * t + 3))
    for op in ("v_permlane32_swap_b32", "v_permlane16_swap_b32"):
        for t in range(4): A("v_mov_b32 v%d, v%d" % (32 + t, V_TMP + t))
        A("s_nop 1")
        for t in range(4): A("%s v%d, v%d" % (op, V_TMP + t, 32 + t))
        for t in range(4): A("v_max_f32 v%d, v%d, v%d" % (V_TMP + t, V_TMP + t, 32 + t))
    for t in range(4):
        for r in range(4): A("v_sub_f32 v%d, 0, v%d" % (VNEG + 4 * t + r, V_TMP + t))
    return P

def first_ref():
    P = ["s_waitcnt lgkmcnt(0)", "s_nop 1"]
    xl = ["buffer_load_dwordx2 %s, v%d, %s, s%d offen offset:%d" % (ar(AX + 4 * c + 2 * rt, 2), V_XO + rt, sr(S_X), S_XO, c * 32)
          for rt in range(2) for c in range(3)]
    for t in range(4):
        d = vr(VNEG + 4 * t)
        for ks in range(4):
            P.append(mfma(d, vr(VVF + 4 * ks), qf(t, ks), vr(V_TMP) if ks == 0 else d))
            if ks % 2 == 0 and xl: P.append(xl.pop(0))
    return P

def step_pre():
    P = ["s_add_u32 s%d, s%d, %d" % (S_KO, S_KV0, 3 * 16384), "s_add_u32 s%d, s%d, %d" % (S_VO, S_KV0, 2 * 16384)]
    for n in range(16):
        kt, t = n >> 2, n & 3
        kbuf = VKF if kt % 2 == 0 else VVF
        ms = qk(kbuf, t, vr(VNEG + 4 * t))
        rd = []
        if t == 0:
            if kt > 0: P.append("s_waitcnt lgkmcnt(0)")
            if kt == 3: P += ["WAITVM s0", "s_barrier"]
            rd = kread(VVF if kt % 2 == 0 else VKF, 0, kt + 1) if kt < 3 else kread(VKF, 1, 0)
        for i, m in enumerate(ms):
            P.append(m)
            if rd: P.append(rd[i])
            if n >= 2: P.append(E((n - 2) & 3, i))
            if n == 1: P.append("s_nop 0")
        if n >= 2:
            P += [C(0, (n - 2) >> 2, (n - 2) & 3, 0), C(0, (n - 2) >> 2, (n - 2) & 3, 1)]
    P += [E(2, r) for r in range(4)] + [C(0, 3, 2, 0), C(0, 3, 2, 1), "s_nop 1", E(3, 0), E(3, 1), "s_waitcnt lgkmcnt(0)"]
    return P

def step(i, tail_scalars=()):
    par = i & 1
    mf, pin, fl = [], {}, []
    P = lambda g, x: pin.setdefault(g, []).append(x)
    for u in range(4):
        g0 = 34 * u
        for t in range(4): mf += qk(VKF, t, vr(VNEG + 4 * t))
        mf += pv(VVF, par, u, i == 0) + psum(par, u, i == 0)
        ppar, pkt = (par, 3) if u == 0 else (par ^ 1, u - 1)
        tr = vread(VVF, i, u)
        for g, k in zip(OPT.get('tpos', (0, 2, 2, 4, 6, 6, 8, 8)), range(8)): P(g0 + g, tr[k])
        P(g0 + 0, C(ppar, pkt, 3, 0)); P(g0 + 1, E(3, 2)); P(g0 + 3, E(3, 3)); P(g0 + 4, C(ppar, pkt, 3, 1))
        for e in range(14): P(g0 + 7 + 2 * e, E(e >> 2, e & 3))
        for c in range(6): P(g0 + 10 + 4 * c, C(par ^ 1, u, c >> 1, c & 1))
        if u == 3 and par == 1:
            P(g0 + 15, "s_waitcnt vmcnt(%d) lgkmcnt(0)" % ({} if OPT.get('norel') else {1: 8, 3: 10, 29: 17}).get(i, 0)); P(g0 + 15, "s_barrier")
        elif u == 3 and i == 30:
            P(g0 + 15, "s_waitcnt lgkmcnt(0)"); P(g0 + 15, "s_barrier")
        else:
            P(g0 + 15, "s_waitcnt lgkmcnt(0)")
        if i == 30 and u == 3:
            tr = vread(VKF, 31, 0)
            for g, k in zip((16, 16, 18, 20, 20, 22, 24, 24), range(8)): P(g0 + g, tr[k])
        else:
            rd = kread(VKF, i + 1, u + 1) if u < 3 else kread(VKF, i + 2, 0)
            for g, k in zip((16, 18, 20, 22), range(4)): P(g0 + g, rd[k])
        P(g0 + 33, "s_waitcnt lgkmcnt(0)")
        if par == 0 and i < 30:
            for n, g in enumerate(OPT.get('gpos', (5, 12, 24, 28))):
                k = 4 * u + n
                isk, pc = (k % 2 == 0, k // 2) if OPT["kvmix"] else (k < 8, k & 7)
                so = S_KO if isk else S_VO
                P(g0 + g - 2, "s_add_u32 m0, s%d, 0x%x" % (S_L1K, (KOFF(i + 3) if isk else 65536 + VOFF(i + 2)) + pc * 4096))
                P(g0 + g - 1, "s_add_u32 s%d, s%d, %d" % (S_T0, so, pc * 4096))
                P(g0 + g, "buffer_load_dwordx4 v%d, %s, s%d offen lds" % (V_DK if isk else V_DV, sr(S_K if isk else S_V), S_T0))
            if u == 3:
                P(g0 + 29, "s_add_u32 s%d, s%d, 32768" % (S_KO, S_KO)); P(g0 + 30, "s_add_u32 s%d, s%d, 32768" % (S_VO, S_VO))
    for k, x in enumerate(tail_scalars): P(102 + 31 + k, x)
    if i == 0:
        sc, va = loop_setup()
        fl = [Flt(x) for x in va]
        g = 0
        for x in sc:
            while any(cost(I(y)) == 0 or I(y).kind == "vmem" for y in pin.get(g, [])): g += 1
            P(g, x)
        assert g < 136
    if i == 1 and not OPT.get('norel'):
        sc, dm, rd, stv, mk = relayout()
        g = 0
        for grp in sc:
            while (pin.get(g) if len(grp) > 1 else any(cost(I(y)) == 0 for y in pin.get(g, []))): g += 1
            for x in grp: P(g, x)
            g += 1
        assert g <= 42, g
        for g, (pre, x) in zip((34 + 12, 34 + 24, 34 + 28, 34 + 32), dm):
            P(g - 2, pre[0]); P(g - 1, pre[1]); P(g, x.split(";@")[0].rstrip())
        for g, x in zip((68 + 12, 68 + 28, 102 + 12), mk): P(g, x)
        P(102 + 13, "s_add_u32 s%d, s%d, 6144" % (S_SO, S_SO))
        P(102 + 24, "buffer_store_dword v%d, v%d, %s, s%d offen%s" % (V_1, V_L0, sr(S_WS), S_T2, SC))
    if i == 3 and not OPT.get('norel'):
        sc, dm, rd, stv, mk = relayout()
        P(23, "s_waitcnt vmcnt(23)")
        for g, xs in zip((24, 28, 34 + 24, 34 + 28), rd):
            for x in xs: P(g, x)
        for g, x in zip((34 + 5, 34 + 32, 68 + 5, 68 + 24), stv): P(g, x)
    if 1 <= i <= 4:
        P(68 + 32, "buffer_atomic_add v%d, v%d, %s, s%d offen%s" % (V_1, V_L0, sr(S_WS), S_PG, SC))
    if i == 3:
        P(102 + 5, "global_load_dword v%d, %s, off" % (V_TMP + 6, vr(V_TMP + 4, 2)))
        for u in range(4): P(34 * u + 12, "buffer_load_dword v%d, v%d, %s, s%d offen%s" % (V_TMP + u, V_B8, sr(S_WS), S_PS, SC))
    if i == 3:
        P(102 + 24, "s_cmp_eq_u32 s%d, 1" % S_CNT); P(102 + 24, "s_cselect_b32 s%d, 0, 0x40000000" % S_T2)
        P(102 + 25, "s_add_u32 s%d, s%d, 0x%x" % (S_T2, S_T2, FLAG_OFF + 4096))
        P(102 + 28, poll_a()[0])
    if i in (29, 30):
        gaps = [34 * u + g for u in range(4) for g in (5, 12, 24, 28, 32) if (u, g) != (3, 12 if i == 29 else 24)]
        ops = preload(i)
        assert len(ops) == len(gaps)
        for g, f in zip(gaps, ops):
            m, so, x = f(S_T0)
            if m: P(g - 2, m)
            P(g - 1, so); P(g, x)
        def scalars(g, xs):
            for x in xs:
                while any(cost(I(y)) == 0 or I(y).kind == "vmem" for y in pin.get(g, [])): g += 1
                P(g, x)
            return g
    if i == 29:
        t = V_TMP
        for g, n in zip((10, 14, 16, 20), range(4)): P(g, "v_readlane_b32 s%d, v%d, %d" % (56 + n, t, n))
        P(26, "v_mov_b32 v33, 0")
        assert scalars(21, proposal()) < 102 + 8
        P(102 + 10, "v_mov_b32 v32, s%d" % S_REM)
        P(102 + 12, "buffer_atomic_cmpswap v[32:33], v%d, %s, s%d offen offset:16 sc0 sc1 ;@cas" % (V_L0, sr(S_WS), S_PS))
    if i == 30:
        P(68 + 13, "WAITVM cas"); P(68 + 14, "v_readfirstlane_b32 s54, v32")
        g = scalars(68 + 16, ["s_min_u32 s55, s54, 1", "s_sub_u32 s55, s55, 1", "s_and_b32 s55, s55, s%d" % S_REM, "s_or_b32 s54, s54, s55",
                              "s_lshl_b32 s55, s%d, 2" % S_WAVE, "s_add_u32 s55, s55, %d" % (FLAG_LDS + 16)])
        assert g < 68 + 26
        P(68 + 26, "v_mov_b32 v32, s54"); P(68 + 30, "v_mov_b32 v33, s55")
        P(102 + 10, "ds_write_b32 v33, v32"); P(102 + 14, "v_mov_b32 v33, %d" % (FLAG_LDS + 16))
        P(102 + 26, "ds_read_b32 v32, v33")
        assert scalars(0, late_setup()) < 68
    out, left = schedule(mf, pin, fl)
    assert not left
    if 1 <= i <= 4:
        for pat in OPT.get("drop", []):
            out = [x for x in out if not x.startswith(pat)]
        for pat, a_, b_ in OPT.get("sub", []):
            out = [x.replace(a_, b_) if x.startswith(pat) else x for x in out]
    return out

def proposal():
    if OPT["fixed"]: return ["s_mov_b32 s%d, 0x%x" % (S_REM, OPT["fixed"])]
    P = ["s_add_u32 s54, s56, s57", "s_add_u32 s55, s58, s59", "s_add_u32 s54, s54, s55", "s_mul_i32 s54, s54, %d" % OPT["gain"], "s_sub_u32 s54, 1280, s54"]
    for r in range(56, 60):
        P += ["s_mul_i32 s%d, s%d, %d" % (r, r, 4 * OPT["gain"]), "s_add_u32 s%d, s%d, s54" % (r, r), "s_max_i32 s%d, s%d, 512" % (r, r)]
    P += ["s_add_u32 s54, s56, s57", "s_add_u32 s55, s58, s59", "s_add_u32 s54, s54, s55", "s_sub_u32 s54, s54, 5120", "s_mul_i32 s54, s54, 85", "s_lshr_b32 s54, s54, 8"]
    for r in (56, 57, 59):
        P += ["s_sub_u32 s%d, s%d, s54" % (r, r), "s_max_i32 s%d, s%d, 512" % (r, r)]
    P += ["s_add_u32 s56, s56, 128", "s_add_u32 s57, s57, s56", "s_lshr_b32 s56, s56, 8", "s_lshr_b32 s57, s57, 8", "s_add_u32 s59, s59, 128", "s_lshr_b32 s59, s59, 8",
          "s_sub_u32 s59, 20, s59", "s_min_u32 s56, s56, 14", "s_min_u32 s57, s57, 16", "s_add_u32 s54, s57, 2", "s_max_i32 s59, s59, s54",
          "s_lshl_b32 s57, s57, 8", "s_lshl_b32 s59, s59, 16", "s_or_b32 s56, s56, s57", "s_or_b32 s59, s59, 0x14000000", "s_or_b32 s%d, s56, s59" % S_REM]
    return P

def poll_a():
    a = V_PA
    return ("buffer_load_dwordx4 %s, v%d, %s, s%d offen%s" % (vr(a), V_FR, sr(S_WS), S_T2, SC),
            ["v_and_b32 v%d, v%d, v%d" % (a, a, a + 1), "v_and_b32 v%d, v%d, v%d" % (a + 2, a + 2, a + 3),
             "v_and_b32 v%d, v%d, v%d" % (a, a, a + 2), "v_cmp_eq_u32 vcc, 0, v%d" % a])

def poll_b():
    return ("buffer_load_dword v%d, v%d, %s, s%d offen%s" % (V_PL, V_B8, sr(S_WS), S_BC, SC), ["v_cmp_eq_u32 vcc, 0, v%d" % V_PL])

def poll_d():
    return ("buffer_load_dword v%d, v%d, %s, s%d offen%s" % (V_PL, V_B8, sr(S_WS), S_DF, SC), ["v_cmp_eq_u32 vcc, 0, v%d" % V_PL])

def spin(name, loads, check):
    return ["L_%s_spin:" % name, "s_mov_b32 s55, 0x%x" % OPT.get("spin", 0x100000), "L_%s_loop:" % name] + (["s_sleep %d" % OPT["sleep"]] if OPT["sleep"] and name == "s" else []) + loads + ["s_sub_u32 s55, s55, 1", "s_waitcnt vmcnt(0)"] + check + \
           ["s_cmp_eq_u32 s55, 0", "s_cbranch_scc1 L_%s_ret" % name, "s_cbranch_vccnz L_%s_loop" % name, "s_branch L_%s_ret" % name]

def guard(name):
    return ["s_cbranch_vccnz L_%s_spin" % name, "L_%s_ret:" % name]

def tail_setup():
    P = srd(S_X, 80, X_BYTES) + srd(S_AUX, 60, 0)
    A = P.append
    j, a, b, c, r = 42, 54, 55, 53, 46
    A("s_bfe_u32 s%d, s2, 0x20001" % j)
    A("s_min_u32 s%d, s%d, 1" % (a, j))
    A("s_sub_u32 s%d, 1, s%d" % (a, a))
    A("s_lshl_b32 s%d, s%d, 28" % (S_AUX + 2, a))
    A("s_lshr_b32 s%d, s2, 5" % a)
    A("s_lshl_b32 s%d, s%d, 1" % (a, a))
    A("s_add_u32 s%d, s%d, s%d" % (a, a, S_HF))
    A("s_lshl_b32 s%d, s%d, 2" % (b, a))
    A("s_add_u32 s%d, s%d, s%d" % (b, b, S_WAVE))
    A("s_mul_i32 s%d, s%d, %d" % (S_XO, b, 32 * 1152))
    A("s_lshr_b32 s%d, s%d, 1" % (a, b))
    A("s_and_b32 s%d, s%d, 1" % (b, b))
    A("s_lshl_b32 s%d, s%d, 2" % (c, a))
    A("s_add_u32 s%d, s%d, s%d" % (c, c, j))
    A("s_lshl_b32 s%d, s%d, 5" % (S_BC, c))
    A("s_add_u32 s%d, s%d, 0x%x" % (S_BC, S_BC, FLAG_OFF))
    A("s_lshl_b32 s%d, s%d, 17" % (S_HA, c))
    A("s_lshl_b32 s%d, s%d, 14" % (S_H2, c))
    A("s_lshl_b32 s%d, s%d, 11" % (c, b))
    A("s_add_u32 s%d, s%d, s%d" % (S_HA, S_HA, c))
    A("s_lshl_b32 s%d, s%d, 10" % (c, b))
    A("s_add_u32 s%d, s%d, s%d" % (S_H2, S_H2, c))
    A("s_lshl_b32 s%d, s%d, 5" % (c, S_RB))
    A("s_add_u32 s%d, s%d, s%d" % (c, c, S_SL))
    A("s_lshl_b32 s%d, s%d, 2" % (c, c))
    A("s_add_u32 s%d, s%d, 0x%x" % (S_BP, c, FLAG_OFF))
    A("s_bfe_u32 s%d, s2, 0x20003" % a)
    A("s_mul_i32 s%d, s%d, 288" % (b, a))
    A("s_add_u32 s%d, s%d, s%d" % (S_XO, S_XO, b))
    A("s_mul_i32 s%d, s%d, 9216" % (a, a))
    A("s_lshl_b32 s%d, s%d, 5" % (b, j))
    A("s_add_u32 s%d, s%d, s%d" % (b, b, S_WAVE))
    A("s_mul_i32 s%d, s%d, %d" % (b, b, SLOT))
    A("s_add_u32 s%d, s%d, s%d" % (c, a, b))
    A("s_mul_i32 s%d, s%d, 28" % (a, j))
    A("s_sub_u32 s%d, 128, s%d" % (a, a))
    A("s_mul_i32 s%d, s%d, %d" % (S_W8, a, SLOT))
    P += rot(r)
    for n in range(9):
        P += ["s_add_u32 s%d, s%d, %d" % (a, r, n), "s_sub_u32 s%d, s%d, 9" % (b, a), "s_min_u32 s%d, s%d, s%d" % (a, a, b),
              "s_lshl_b32 s%d, s%d, 10" % (a, a), "s_add_u32 s%d, s%d, s%d" % (S_TO[n], a, c)]
    A("s_lshl_b32 s%d, s%d, 5" % (a, r))
    A("s_add_u32 s%d, s%d, s%d" % (S_XO, S_XO, a))
    P += slab_base(47)
    A("s_lshl_b32 s%d, s%d, 11" % (a, r))
    A("s_add_u32 s47, s47, s%d" % a)
    for n in range(3):
        A("s_add_u32 s%d, s%d, %d" % (a, j, n + 1))
        A("s_and_b32 s%d, s%d, 3" % (a, a))
        A("s_mul_i32 s%d, s%d, %d" % (a, a, 18 * 1024))
        A("s_add_u32 s%d, s%d, s47" % (S_IN + n, a))
    A("s_lshl_b32 s%d, s%d, 2" % (c, S_WAVE))
    for q in range(4):
        A("s_lshr_b32 s%d, 0x%x, s%d" % (a, sum(v << (4 * k) for k, v in enumerate(SUB[q])), c))
        A("s_and_b32 s%d, s%d, 15" % (a, a))
        A("s_add_u32 s%d, s%d, 4" % (b, a))
        A("s_lshr_b32 s%d, s%d, 4" % (b, b))
        A("s_mul_i32 s%d, s%d, 16320" % (b, b))
        A("s_mul_i32 s%d, s%d, 9216" % (a, a))
        A("s_add_u32 s%d, s%d, s%d" % (S_LB[q], a, b))
    V = ["v_and_b32 v%d, 15, v0" % V_XO, "v_mul_u32_u24 v%d, 1152, v%d" % (V_XO, V_XO), "v_lshrrev_b32 v%d, 4, v0" % (V_XO + 1),
         "v_lshl_add_u32 v%d, v%d, 3, v%d" % (V_XO, V_XO + 1, V_XO), "v_add_u32 v%d, %d, v%d" % (V_XO + 1, 16 * 1152, V_XO)]
    return P, V

def late_setup():
    return srd(S_OUT, 78, X_BYTES) + ["s_lshr_b32 s54, s2, 3", "s_lshl_b32 s54, s54, 1", "s_add_u32 s54, s54, s%d" % S_HF,
            "s_lshl_b32 s54, s54, 2", "s_add_u32 s54, s54, s%d" % S_WAVE, "s_lshl_b32 s54, s54, 4",
            "s_add_u32 s%d, s54, 0x%x" % (S_DF, FLAG_OFF + 8192), "s_bfe_u32 s54, s2, 0x20001", "s_lshl_b32 s54, s54, 2",
            "s_add_u32 s%d, s54, s%d" % (S_DO, S_DF)]

def loop_setup():
    P = srd(S_SEN, 60, WS_BYTES) + slab_base(54)
    A = P.append
    A("s_mov_b32 s%d, 0x20000" % (S_SRC + 3))
    A("s_bfe_u32 s55, s2, 0x20001")
    A("s_mul_i32 s55, s55, %d" % (18 * 1024))
    A("s_add_u32 s%d, s55, s54" % S_SO)
    A("s_lshl_b32 s%d, s2, 2" % S_U)
    A("s_add_u32 s%d, s%d, 0x%x" % (S_AFL, S_U, FLAG_OFF + 4096))
    A("s_add_u32 s%d, s%d, s%d" % (S_U, S_U, S_WAVE))
    A("s_lshl_b32 s%d, s%d, 12" % (S_SCR, S_WAVE))
    A("s_add_u32 s%d, s%d, %d" % (S_SCR, S_SCR, SCR))
    A("s_lshr_b32 s54, s2, 3")
    A("s_lshl_b32 s54, s54, 1")
    A("s_add_u32 s54, s54, s%d" % S_HF)
    A("s_lshl_b32 s54, s54, 6")
    A("s_min_u32 s55, s%d, 1" % S_WAVE)
    A("s_lshl_b32 s55, s55, 30")
    A("s_add_u32 s54, s54, s55")
    A("s_add_u32 s%d, s54, 0x%x" % (S_PS, FLAG_OFF + 12288))
    A("s_bfe_u32 s55, s2, 0x20001")
    A("s_lshl_b32 s55, s55, 2")
    A("s_add_u32 s%d, s%d, s55" % (S_PG, S_PS))
    V = ["v_mov_b32 v%d, -1" % (V_M1 + r) for r in range(4)]
    V += ["v_mov_b32 v%d, 1" % V_1, "v_min_u32 v%d, 1, v0" % V_L0, "v_lshlrev_b32 v%d, 30, v%d" % (V_L0, V_L0),
         "v_add_u32 v%d, 0x10000, v%d" % (V_RD, V_FR), "v_add_u32 v%d, 0x20000, v%d" % (V_RD2, V_FR), "v_lshlrev_b32 v%d, 3, v0" % V_H2,
         "v_add_u32 v%d, 0x1000, v%d" % (V_F4, V_FR), "v_and_b32 v%d, 7, v0" % V_B8, "v_lshlrev_b32 v%d, 2, v%d" % (V_B8, V_B8)]
    return P, V

def accr(job, c, rt): return (VD if job == 0 else VSA) + 8 * c + 4 * rt
RING = [SUBOFF(6), SUBOFF(0), SUBOFF(12)]
V_RA = 12
S_KAP, S_WD, S_AD, S_REM = 47, 48, 42, 53
def stage(name, ring=None):
    k, n = name[0], int(name[1])
    if k == "p": return dict(name=name, job=0, ab=(144, 176, 208, 0)[n], sub=n, lb=S_LB[n], src=n if n < 3 else "h2", init=n == 0)
    if k == "f": return dict(name=name, job=0, ab=(144, 176, 208)[n], ring=n, lb=S_LB[n], src="dyn", init=False)
    r = n % 3 if ring is None else ring
    return dict(name=name, job=1, ab=(32, 64, 96, 0)[n % 4], ring=r, lb=S_LB[r], src=9 + n, init=n == 0)
def act(st, k, rt, n=4, o=0): return ar(st["ab"] + 8 * k + 4 * rt + o, n)

def stage_loads(st):
    w, a = [], []
    src, nm = st["src"], st["name"]
    for c in range(9):
        def f(t, c=c):
            so = "s_add_u32 s%d, s%d, s%d" % (t, S_TO[c], S_W8 if src == "h2" else S_WD) if src in ("h2", "dyn") else \
                 "s_add_u32 s%d, s%d, 0x%x" % (t, S_TO[c], (4 * src if src < 8 else 144 + 4 * (src - 9)) * SLOT)
            return ("s_add_u32 m0, s%d, 0x%x" % (st["lb"], c * 1024), so,
                    "buffer_load_dwordx4 v%d, %s, s%d offen%s lds ;@w%s" % (V_FR, sr(S_WF), t, SC, nm))
        w.append(f)
    for k in range(4):
        for hf in range(2 if src == "h2" else 1):
            for rt in range(2):
                def f(t, k=k, hf=hf, rt=rt):
                    if src == "h2":
                        return (None, "s_add_u32 s%d, s%d, 0x%x" % (t, S_H2, H2_OFF + k * 4096),
                                "buffer_load_dwordx2 %s, v%d, %s, s%d offen offset:%d%s ;@a%s" %
                                (act(st, k, rt, 2, 2 * hf), V_H2, sr(S_WS), t, hf * 2048 + rt * 512, SC, nm))
                    r, o = (S_AD, H_OFF + k * 4096) if src == "dyn" else \
                           (S_HA, H_OFF + (4 * src + k) * 4096 if src < 8 else O_OFF + (4 * (src - 9) + k) * 4096)
                    return (None, "s_add_u32 s%d, s%d, 0x%x" % (t, r, o),
                            "buffer_load_dwordx4 %s, v%d, %s, s%d offen offset:%d%s ;@a%s" % (act(st, k, rt), V_FR, sr(S_WS), t, rt * 1024, SC, nm))
                a.append(f)
    return w, a

def preload(i):
    w, a = zip(*[stage_loads(stage("p%d" % n)) for n in range(3)])
    return {29: a[0] + a[1] + w[0][:3], 30: w[0][3:] + w[1] + a[2][:4], 31: w[2] + a[2][4:]}[i]

def wread(st, c, buf):
    out = []
    for k in range(4):
        if "sub" in st:
            off = SUBOFF(SUB[st["sub"]][k]) + c * 1024
            adr, off = (V_FR, V_RD, V_RD2)[off >> 16], off & 0xffff
        else:
            adr, off = V_RA + st["ring"], k * 9216 + c * 1024
        out.append("ds_read_b128 %s, v%d offset:%d" % (vr(WBUF[buf] + 4 * k), adr, off))
    return out

def inreg(job, c, n): return (VD if job == 0 else VSA) + 24 + 12 * c + 4 * n
def fetch(job):
    return ["buffer_load_dwordx4 %s, v%d, %s, s%d offen offset:%d%s ;@in%d" %
            (vr(inreg(job, c, n)), V_FR if c < 2 else V_F4, sr(S_WS if c < 2 else S_AUX), S_IN + n, (c & 1) * 2048 + job * 1024, SC, job)
            for c in range(3) for n in range(3)]
def arrived(job):
    b = inreg(job, 0, 0)
    P = ["v_max3_u32 v%d, v%d, v%d, v%d" % (VT + q, b + 9 * q, b + 9 * q + 1, b + 9 * q + 2) for q in range(4)]
    for k in range(3):
        P += ["v_max3_u32 v%d, v%d, v%d, v%d" % (VT + q, VT + q, b + 9 * q + 3 + 2 * k, b + 9 * q + 4 + 2 * k) for q in range(4)]
    return P + ["v_max3_u32 v%d, v%d, v%d, v%d" % (VT, VT, VT + 1, VT + 2), "v_max_u32 v%d, v%d, v%d" % (VT, VT, VT + 3), "v_cmp_eq_u32 vcc, -1, v%d" % VT]
def gather(job, c):
    return [mfma(vr(accr(job, c, rt)), vr(VSEL + 2 - 2 * rt), vr(inreg(job, c, n)), vr(accr(job, c, rt))) for rt in range(2) for n in range(3)]
def sel_setup():
    z, t = VSEL, VT
    return ["v_mov_b32 v%d, 0" % (z + r) for r in (0, 1, 4, 5)] + \
           ["v_bfe_u32 v%d, v0, 2, 2" % t, "v_lshrrev_b32 v%d, 4, v0" % (t + 1), "v_xor_b32 v%d, v%d, v%d" % (t, t, t + 1), "v_min_u32 v%d, 1, v%d" % (t, t),
            "v_sub_u32 v%d, 1, v%d" % (t, t), "v_mul_u32_u24 v%d, 0x3f80, v%d" % (t, t), "v_and_b32 v%d, 1, v0" % (t + 1), "v_lshlrev_b32 v%d, 4, v%d" % (t + 1, t + 1),
            "v_lshlrev_b32 v%d, v%d, v%d" % (t, t + 1, t), "v_bfe_i32 v%d, v0, 1, 1" % (t + 1), "v_and_b32 v%d, v%d, v%d" % (z + 3, t, t + 1),
            "v_xor_b32 v%d, v%d, v%d" % (z + 2, t, z + 3)]

class Seg:
    def __init__(self, seq, nxt=None):
        self.mf, self.pin, self.fl, self.done, self.ins = [], {}, [], {}, {}
        ext = seq + ([(nxt, c) for c in range(3)] if nxt else [])
        self.start = {}
        for n, (st, c) in enumerate(ext): self.start.setdefault(st["name"], 8 * n)
        for n, (st, c) in enumerate(seq):
            g0 = len(self.mf)
            for e, rt in enumerate(snake(2, n, "T")):
                d = vr(accr(st["job"], c, rt))
                for q, k in enumerate(snake(4, e, "t")):
                    self.mf.append(mfma(d, vr(WBUF[n % 3] + 4 * k), act(st, k, rt), "0" if st["init"] and q == 0 else d))
            self.done[(st["job"], c)] = len(self.mf) - 1
            if n + 2 < len(ext):
                for i, x in enumerate(wread(ext[n + 2][0], ext[n + 2][1], (n + 2) % 3)): self.P(g0 + i, x)
            lw = "lgkmcnt(%d)" % (4 if n + 2 < len(ext) else 0)
            nxw = [q for q, g in self.start.items() if g == g0 + 24]
            nxa = [q for q, g in self.start.items() if g == g0 + 8]
            if nxw:
                self.P(g0 + 7, "WAITVM w%s %s" % (nxw[0], lw)); self.P(g0 + 7, "s_barrier")
            elif nxa:
                self.P(g0 + 7, "WAITVM a%s %s" % (nxa[0], lw))
            elif n + 1 < len(ext):
                self.P(g0 + 7, "s_waitcnt " + lw)
    def P(self, g, x): self.pin.setdefault(g, []).append(x)
    def put(self, g, f):
        m, so, x = f(S_T0 if g % 8 == 4 else S_T3)
        if m: self.P(g - 3 if g % 8 == 4 else g - 1, m)
        self.P(g - 4, so); self.P(g, x)
    def issue(self, g0, st, poll):
        w, a = stage_loads(st)
        for n, f in enumerate(w[:8] + a[:6] + w[8:] + a[6:]): self.put(g0 + 8 * (n // 2) + 4 + 2 * (n % 2), f)
        if poll: self.P(g0 + 70, poll_b()[0] + " ;@pb")
    def advance(self, g0):
        for k, x in enumerate(["s_add_u32 s%d, s%d, 4" % (S_KAP, S_KAP), "s_and_b32 s54, s%d, 31" % S_KAP, "s_sub_u32 s54, s54, 1", "s_lshr_b32 s54, s54, 31",
                               "s_mul_i32 s54, s54, 12", "s_add_u32 s%d, s%d, s54" % (S_KAP, S_KAP), "s_lshl_b32 s54, s%d, 12" % S_KAP,
                               "s_mul_i32 s%d, s%d, %d" % (S_WD, S_KAP, SLOT), "s_add_u32 s%d, s%d, s54" % (S_AD, S_HA)]):
            self.P(g0 + 8 * k + 3, x)
    def spot(self, g):
        while self.pin.get(g) or g % 8 < 4: g += 1
        return g
    def flag(self, g, tag, soff):
        self.P(g - 4, "WAITVM " + tag)
        self.P(self.spot(g), "buffer_store_dword v%d, v%d, %s, s%d offen%s" % (V_1, V_L0, sr(S_WS), soff, SC))
    def code(self, cap=2, head=None):
        mf, pin, fl, o = self.mf, self.pin, self.fl, 0
        if head:
            mf0, pin0, fl0 = head
            o = len(mf0)
            for g, xs in pin.items(): pin0[g + o] = xs
            for f in fl:
                f.lo += o
                if f.hi is not None: f.hi += o
            mf, pin, fl = mf0 + mf, pin0, fl0 + fl
        out, left = schedule(mf, pin, fl, cap=cap)
        idx = [i for i, x in enumerate(out) if x.startswith("v_mfma")][o:]
        for g in sorted(self.ins, reverse=True): out[idx[g]:idx[g]] = self.ins[g]
        return out, [f.i.text for f in left]

def full(names, **kw): return [(stage(n, **kw), c) for n in names for c in range(9)]
def count_down(S, g0):
    S.P(g0 + 69, "s_sub_u32 s%d, s%d, 1" % (S_REM, S_REM)); S.P(g0 + 71, "s_cmp_le_i32 s%d, 2" % S_REM)

def seg_prefix():
    st = OPT["st"]
    S = Seg(full(["p0", "p1", "p2", "p3"]), stage("f0"))
    w, a = stage_loads(stage("p3"))
    pos = [8 * (n // 2) + 4 + 2 * (n % 2) for n in range(36)]
    slots = [pos[(n * 36) // 25] for n in range(25)]
    assert slots[9] >= OPT["a3"]
    for g, f in zip(slots, w + a): S.put(g, f)
    S.issue(144, stage("f0"), False); S.advance(144)
    S.issue(216, stage("f1"), True); S.advance(216)
    S.P(216 + 71, "s_cmp_le_i32 s%d, 2" % S_REM)
    S.flag(72 * OPT["oflag"] + 69, "o", S_BP)
    sc = ["s_mul_i32 s%d, s%d, 9216" % (S_LB[1], S_WAVE), "s_add_u32 s%d, s%d, %d" % (S_LB[2], S_LB[1], RING[2]),
          "s_bfe_u32 s54, s2, 0x20001", "s_lshl_b32 s55, s54, 3", "s_lshl_b32 s%d, s%d, 8" % (S_KAP, S_REM), "s_lshr_b32 s%d, s%d, s55" % (S_KAP, S_KAP),
          "s_and_b32 s%d, s%d, 31" % (S_KAP, S_KAP), "s_lshr_b32 s%d, s%d, s55" % (S_REM, S_REM), "s_and_b32 s%d, s%d, 31" % (S_REM, S_REM),
          "s_sub_u32 s%d, s%d, s%d" % (S_REM, S_REM, S_KAP), "s_mul_i32 s55, s%d, 52" % S_KAP, "s_lshr_b32 s55, s55, 8", "s_mul_i32 s55, s55, 3",
          "s_add_u32 s%d, s%d, s55" % (S_KAP, S_KAP), "s_add_u32 s%d, s%d, 3" % (S_KAP, S_KAP), "s_lshl_b32 s54, s54, 3", "s_sub_u32 s%d, s%d, s54" % (S_KAP, S_KAP),
          "s_lshl_b32 s%d, s%d, 2" % (S_KAP, S_KAP), "s_lshl_b32 s54, s%d, 12" % S_KAP, "s_mul_i32 s%d, s%d, %d" % (S_WD, S_KAP, SLOT),
          "s_add_u32 s%d, s%d, s54" % (S_AD, S_HA)]
    g = 0
    for x in sc:
        while g % 8 > 3 or any(cost(I(y)) == 0 for y in S.pin.get(g, [])): g += 1
        S.P(g, x)
    assert g < 140
    for r in range(3): S.P(144 + r, "v_add_u32 v%d, %d, v%d" % (V_RA + r, RING[r], V_FR))
    S.ins = {0: st("tail0"), 144: st("g2")}
    out, left = S.code(cap=lambda g: OPT["cap31"] if g < 72 else OPT["ocap"], head=step_last())
    assert not left
    return out + st("g4")

def seg_flex(ph):
    S = Seg(full(["f%d" % ph]), stage("f%d" % ((ph + 1) % 3)))
    S.issue(0, stage("f%d" % ((ph + 2) % 3)), True); S.advance(0); count_down(S, 0)
    return S.code()[0]

def seg_bridge(ph):
    b0, b1 = stage("b0", (ph + 2) % 3), stage("b1", ph)
    S = Seg(full(["f%d" % ph, "f%d" % ((ph + 1) % 3)]), b0)
    S.issue(0, b0, False); S.issue(72, b1, False)
    S.P(27, "WAITVM pb"); S.P(27, poll_b()[1][0])
    S.ins = {0: OPT["st"]("br"), 32: OPT["st"]("preb") + guard("b%d" % ph) + OPT["st"]("postb")}
    if ph != 1:
        o = (0, 1, 2) if ph == 2 else (2, 1, 0)
        for k, (d, a_) in enumerate(((None, o[0]), (o[0], o[1]), (o[1], o[2]), (o[2], None))):
            S.P(72 + (65, 66, 67, 69)[k], "s_mov_b32 s%d, s%d" % (54 if d is None else S_LB[d], 54 if a_ is None else S_LB[a_]))
            S.P(72 + (69, 69, 70, 70)[k], "v_mov_b32 v%d, v%d" % (15 if d is None else V_RA + d, 15 if a_ is None else V_RA + a_))
    return S.code()[0]

def seg_rest():
    st, D = OPT["st"], OPT["defer"]
    B = [stage("b%d" % n) for n in range(8)]
    S = Seg([(B[n], c) for n in range(8) for c in range(9) if n < 8 - D or c > 1] + [(B[n], c) for c in range(2) for n in range(8 - D, 8)])
    for n in range(6): S.issue(72 * n, B[n + 2], False)
    S.P(3, "v_and_b32 v%d, 12, v%d" % (V_B8, V_B8))
    S.flag(72 * OPT["dflag"] + 69, "p0", S_DO)
    g = 72 * 6
    S.P(S.spot(g - OPT["pollahead"]), poll_d()[0] + " ;@pd")
    S.P(g - 5, "WAITVM pd"); S.P(g - 5, poll_d()[1][0])
    S.ins = {0: st("rest"), g: st("pred") + guard("d") + st("postd")}
    for x in fetch(0):
        g = S.spot(g)
        S.P(g, x)
    gd = len(S.mf) - 8 * OPT["gdend"]
    S.P(gd - 5, "WAITVM in0")
    S.ins[gd] = gather(0, 0) + gather(0, 1) + gather(0, 2)
    fl = S.fl
    for job in range(2):
        for c in range(2, 9):
            lo = S.done[(1, c)] + 6 if job else 6
            hi = 72 * OPT["dflag"] + 60 if job == 0 else None
            b = VPK[c - 2]
            for rt in range(2):
                for h in range(2):
                    r = accr(job, c, rt) + 2 * h
                    fl.append(Flt("v_cvt_pk_bf16_f32 v%d, v%d, v%d" % (b + 2 * rt + h, r, r + 1), lo, hi))
            if job == 1:
                for q in range(4): fl.append(Flt("v_min_u32 v%d, -2, v%d" % (b + q, b + q), lo, hi))
            fl.append(Flt("buffer_store_dwordx4 %s, v%d, %s, s%d offen offset:%d%s" % (vr(b), V_FR, sr(S_WS), S_PUB + c, job * 1024, SC) + " ;@p%d" % job, lo, hi))
        if job == 0:
            fl += [Flt(x, 6, gd - 4) for x in sel_setup()]
            fl += [Flt(x, 6) for x in ("v_and_b32 v5, 15, v0", "v_mul_u32_u24 v5, 1152, v5", "v_lshrrev_b32 v6, 5, v0", "v_lshl_add_u32 v5, v6, 4, v5",
                                       "v_bfe_u32 v6, v0, 4, 1", "v_mul_u32_u24 v15, %d, v6" % (16 * 1152), "v_add3_u32 v15, v15, v5, 64",
                                       "v_lshl_add_u32 v5, v6, 5, v5", "v_add_u32 v6, %d, v5" % (16 * 1152))]
            fl += [Flt("v_accvgpr_read_b32 v%d, a%d" % (VXX + r, AX + r), 6) for r in range(12)]
    fl += [Flt(x, S.done[(1, 8)] + 6 + OPT["sdel"]) for x in fetch(1)]
    for c in range(3):
        d, t = accr(0, c, 0), (VT, 64, VT)[c]
        for op in ("v_mul_f32 v%%d, s%d, v%%d" % S_NL2E, "v_exp_f32 v%d, v%d", "v_add_f32 v%d, 1.0, v%d", "v_rcp_f32 v%d, v%d"):
            fl += [Flt(op % (t + r, d + r if "mul" in op else t + r), gd + 5) for r in range(8)]
        fl += [Flt("v_mul_f32 v%d, v%d, v%d" % (d + r, d + r, t + r), gd + 5) for r in range(8)]
        for q in range(4):
            fl.append(Flt("v_lshlrev_b32 v%d, 16, v%d" % (XF + 8 * c + 2 * q, VXX + 4 * c + q), gd + 5))
            fl.append(Flt("v_and_b32 v%d, 0xffff0000, v%d" % (XF + 8 * c + 2 * q + 1, VXX + 4 * c + q), gd + 5))
    out, left = S.code()
    return out + st("mlast") + left

def combine(st):
    P = st("dmath") + ["s_waitcnt vmcnt(0)"] + arrived(1) + guard("s") + st("sarr")
    P += gather(1, 0) + gather(1, 1) + gather(1, 2)
    A = P.append
    def wide(q, adr, parts):
        for n, (c, rt) in enumerate(parts):
            f = XF + 8 * c + 4 * rt
            for r in range(4): A("v_fmac_f32 v%d, v%d, v%d" % (f + r, accr(1, c, rt) + r, accr(0, c, rt) + r))
        for n, (c, rt) in enumerate(parts):
            f = XF + 8 * c + 4 * rt
            for h in range(2): A("v_cvt_pk_bf16_f32 v%d, v%d, v%d" % (q + 2 * n + h, f + 2 * h, f + 2 * h + 1))
        A("s_nop 0")
        A("v_permlane16_swap_b32 v%d, v%d" % (q, q + 2))
        A("v_permlane16_swap_b32 v%d, v%d" % (q + 1, q + 3))
        A("buffer_store_dwordx4 %s, v%d, %s, s%d offen" % (vr(q), adr, sr(S_OUT), S_XO) + OPT["outf"])
    wide(VXX, 5, ((0, 0), (1, 0)))
    wide(VXX + 4, 6, ((0, 1), (1, 1)))
    P += st("u2") + ["s_cmp_lg_u32 s%d, 0" % (S_AUX + 2), "s_cbranch_scc0 L_k2_done"]
    wide(VXX + 8, 15, ((2, 0), (2, 1)))
    return P

def step_last():
    par = 1
    mf, pin, fl = [], {}, []
    P = lambda g, x: pin.setdefault(g, []).append(x)
    P(0, C(par, 3, 3, 0)); P(1, E(3, 2)); P(3, E(3, 3)); P(4, C(par, 3, 3, 1))
    P(2, "v_readfirstlane_b32 s%d, v32" % S_REM)
    ends = {}
    for u in range(4):
        g0 = len(mf)
        mf += pv(VKF if u % 2 == 0 else VVF, par, u, False)
        ends[u] = len(mf) - 1
        if u < 3:
            tr = vread(VVF if u % 2 == 0 else VKF, 31, u + 1)
            gs = (0, 2, 4, 5, 6, 7, 8, 9) if u == 0 else range(8)
            for g, k in zip(gs, range(8)): P(g0 + g, tr[k])
        if u == 0:
            for t in range(4): mf += psum(par, t, False)
            lsum = len(mf) - 1
        if u < 2: P(len(mf) - 1, "s_waitcnt lgkmcnt(0)")
    RL = V_TMP
    for t in range(4):
        P(24 + 2 * t, "v_accvgpr_read_b32 v%d, a%d" % (RL + 4 + t, 128 + 4 * t))
        P(32 + t, "v_rcp_f32 v%d, v%d" % (RL + t, RL + 4 + t))
    P(36, "v_add_f32 v33, v%d, v%d" % (RL + 4, RL + 5)); P(36, "v_add_f32 v34, v%d, v%d" % (RL + 6, RL + 7))
    P(36, "s_lshl_b32 s55, s%d, 2" % S_WAVE); P(37, "s_add_u32 s55, s55, %d" % FLAG_LDS)
    P(37, "v_add_f32 v33, v33, v34"); P(37, "v_mov_b32 v32, %d" % FLAG_LDS)
    P(38, "v_cmp_nge_f32 vcc, %s, v33" % f32(2.0 ** 40)); P(38, "v_mov_b32 v34, s55")
    P(41, "s_or_b32 s54, vcc_lo, vcc_hi")
    P(42, "v_mov_b32 v33, s54")
    P(48, "ds_write_b32 v34, v33")
    P(55, "WAITVM wp0 lgkmcnt(0)"); P(55, "s_barrier")
    P(56, "ds_read_b128 v[36:39], v32")
    for k, x in enumerate(wread(stage("p0"), 0, 0)): P(57 + k, x)
    P(60, "s_waitcnt lgkmcnt(3)"); P(60, "v_or3_b32 v36, v36, v37, v38")
    P(61, "v_or_b32 v36, v36, v39")
    P(62, "v_readfirstlane_b32 s54, v36")
    P(63, "s_andn2_b32 s54, s54, s%d" % S_REDO); P(63, "s_cbranch_scc1 L_k2_redo")
    for k, x in enumerate(wread(stage("p0"), 1, 1)): P(64 + k, x)
    P(71, "WAITVM ap0 lgkmcnt(4)")
    tmp = [VP[0][0], VP[0][0] + 8, VP[0][1], VP[0][1] + 8]
    k = 0
    for u in range(4):
        for t in range(4):
            b = tmp[k % 4]; k += 1
            lo = max(ends[u] + 6, 37)
            for d in range(2):
                for r in range(4):
                    fl.append(Flt("v_accvgpr_read_b32 v%d, a%d" % (b + 4 * d + r, 16 * (2 * u + d) + 4 * t + r), ends[u] + 6, 72 + OPT["a3"] - 2 if u == 0 else None))
            for r in range(8): fl.append(Flt("v_mul_f32 v%d, v%d, v%d" % (b + r, b + r, RL + t), lo))
            for r in range(4): fl.append(Flt("v_cvt_pk_bf16_f32 v%d, v%d, v%d" % (b + r, b + 2 * r, b + 2 * r + 1), lo))
            fl.append(Flt("buffer_store_dwordx4 %s, v%d, %s, s%d offen offset:%d" % (vr(b), V_FR, sr(S_WS), 56 + u, t * 1024) + SC + " ;@o", max(lo, OPT["o0"] + (k - 1) * OPT["odt"]),
                          72 * (1 + OPT["oflag"]) + 60))
    for u in range(4): P(4 + u, "s_add_u32 s%d, s%d, %d" % (56 + u, S_OST, u * 4096))
    free = [g for g in range(10, 70) if not pin.get(g)]
    ops = preload(31)
    for n, f in enumerate(ops):
        g = free[(n * len(free)) // len(ops)]
        for y in f(S_T0):
            if y: P(g, y)
    return mf, pin, fl

def redo():
    P = []
    A = P.append
    A("L_k2_redo:")
    A("s_mov_b32 s%d, -1" % S_REDO)
    A("s_waitcnt vmcnt(0) lgkmcnt(0)")
    A("s_barrier")
    for pre, x in kv_dmas("k", 0, "k0") + kv_dmas("k", 1, "s0") + kv_dmas("k", 2, "s0") + kv_dmas("v", 0, "s0") + kv_dmas("v", 1, "s0"):
        P += pre + [x]
    A("v_and_b32 v32, 15, v0")
    A("v_lshlrev_b32 v32, 8, v32")
    A("v_lshrrev_b32 v%d, 4, v0" % V_TMP)
    A("v_lshl_add_u32 v32, v%d, 4, v32" % V_TMP)
    A("s_lshl_b32 s54, s%d, 19" % S_SL)
    A("s_mov_b32 s55, 128")
    for r in range(16): A("v_mov_b32 v%d, 0xff800000" % (56 + r))
    B = []
    A = B.append
    for ks in range(4):
        A("buffer_load_dwordx4 %s, v32, %s, s54 offen offset:%d" % (vr(VKF + 4 * ks), sr(S_K), ks * 64))
    A("s_waitcnt vmcnt(0)")
    for t in range(4): B += qk(VKF, t, "0")
    A("s_nop 7")
    for r in range(16): A("v_max_f32 v%d, v%d, v%d" % (56 + r, 56 + r, VS + r))
    A("s_add_u32 s54, s54, 4096")
    A("s_sub_u32 s55, s55, 1")
    A("s_cmp_lg_u32 s55, 0")
    A("s_cbranch_scc1 L_k2_maxloop")
    T = rowmax(56) + ["s_getpc_b64 s[54:55]", "v_mov_b32 v%d, s54" % (V_TMP + 4), "v_mov_b32 v%d, s55" % (V_TMP + 5), "s_barrier"] + kread(VKF, 0, 0) + ["s_waitcnt lgkmcnt(0)", "s_branch L_k2_attn"]
    return P, B, T

def gen(stamp=False):
    clk = OPT.get("clk", "s_memrealtime")
    st = lambda n: ["%s s[100:101]" % clk, "s_waitcnt lgkmcnt(0)", "s_mov_b32 s%d, s100" % (92 + n)] if stamp else []
    names = OPT.get("stamps", ["start", "gemm0", "gemm1", "tail0", "tail1", "dmath", "sarr", "end"])
    st0 = st
    OPT["st"] = st = lambda nm: st0(names.index(nm)) if nm in names else []
    S = setup(st)
    S += st("p0")
    S += srd(S_WU, 66, WG_BYTES)
    e = OPT["early"]
    D0 = []
    for pre, x in chunk_dmas(TS[0])[:e] + chunk_dmas(TS[1])[:e] + chunk_dmas(TS[2])[:e] + chunk_dmas(TS[0])[e:]: D0 += pre + [x]
    S += D0
    S += ["CODEPF"]
    for pre, x in [xn_load(ks, rt) for ks in range(3) for rt in range(4)]: S += pre + [x]
    S += st("i21") + setup2() + st("p2")
    for pre, x in [xn_load(ks, rt) for ks in range(3, 6) for rt in range(4)]: S += pre + [x]
    for unit in range(2):
        r = 56 + 2 * unit
        S += unit_line(r, unit) + ["s_lshl_b32 s%d, s%d, 13" % (r, r), "s_add_u32 s%d, s%d, s%d" % (r, r, S_HST), "s_add_u32 s%d, s%d, 4096" % (r + 1, r)]
    S += ["WAITVM c0 lgkmcnt(0)"] + st("p3") + ["s_barrier"] + treads(0, 0, 0) + ["WAITVM x0 lgkmcnt(0)"]
    G = st("gemm0") + projection() + st("gemm1") + first_ref() + st("max")
    PRE = step_pre()
    S0 = st("pre") + step(0) + st("s0") + ["s_mov_b32 s%d, 7" % S_CNT]
    BODY = step(1) + step(2) + step(3) + step(4, ["s_sub_u32 s%d, s%d, 1" % (S_CNT, S_CNT), "s_cmp_lg_u32 s%d, 0" % S_CNT])
    br = ["s_cbranch_scc1 L_k2_loop"]
    T0 = resolve_waits(st("loop") + ["s_waitcnt vmcnt(17)", "v_add_u32 v%d, v%d, v%d" % (V_TMP, V_TMP, V_TMP + 1),
                        "v_add3_u32 v%d, v%d, v%d, v%d" % (V_TMP, V_TMP, V_TMP + 2, V_TMP + 3)] + poll_a()[1] + guard("a") + step(29) + st("s29") + step(30) + st("s30") + seg_prefix())
    def after(prev, cur):
        pv_ = [x for x in prev if I(x).kind == "vmem"]
        return resolve_waits(pv_ + cur)[len(pv_):]
    FX = [after(seg_flex((ph + 2) % 3), seg_flex(ph)) for ph in range(3)]
    BR = [after(seg_flex((ph + 2) % 3), seg_bridge(ph)) for ph in range(3)]
    RS = after(seg_bridge(1), seg_rest() + st("tail1") + combine(st))
    jb = lambda ph: ["s_cbranch_scc1 L_k2_br%d" % ph]
    TAIL = T0 + jb(0) + ["L_k2_flex:"] + FX[0] + jb(1) + FX[1] + jb(2) + FX[2] + ["s_cbranch_scc0 L_k2_flex", "L_k2_br0:"] + BR[0] + ["L_k2_rest:"] + RS
    SIDE = ["L_k2_br1:"] + BR[1] + ["s_branch L_k2_rest", "L_k2_br2:"] + BR[2] + ["s_branch L_k2_rest"]
    D = ["L_k2_done:"]
    if stamp:
        D += st("done") + ["s_waitcnt vmcnt(0)"] + st("end") + ["v_mov_b32 v%d, s%d" % (16 + n, 92 + n) for n in range(8)] + \
             ["s_lshl_b32 s54, s2, 2", "s_add_u32 s54, s54, s%d" % S_WAVE, "s_lshl_b32 s54, s54, 5", "s_add_u32 s54, s54, 0x%x" % STAMP_OFF,
              "buffer_store_dwordx4 v[16:19], v%d, %s, s54 offen" % (V_L0, sr(S_WS)), "buffer_store_dwordx4 v[20:23], v%d, %s, s54 offen offset:16" % (V_L0, sr(S_WS))]
    D += ["L_k2_end:", "s_endpgm"]
    R0, RB, RT = redo()
    R0 = resolve_waits(R0)
    strip = lambda xs: [x.split(";@")[0].rstrip() for x in xs]
    SP = spin("a", [poll_a()[0]], poll_a()[1]) + sum([spin("b%d" % ph, [poll_b()[0]], poll_b()[1]) for ph in range(3)], []) + spin("d", [poll_d()[0]], poll_d()[1]) + spin("s", strip(fetch(1)), arrived(1))
    rest = S0 + [".p2align 6", "L_k2_loop:"] + BODY + br + ["L_k2_exit:"] + TAIL + D + SIDE + SP + R0 + ["L_k2_maxloop:"] + RB + RT
    pf = []
    if OPT["codepf"]:
        pf = ["s_getpc_b64 s[54:55]", "L_k2_pc:", "s_lshr_b32 s56, s2, 3", "s_lshl_b32 s56, s56, 2", "s_add_u32 s56, s56, s%d" % S_WAVE,
              "s_mul_i32 s56, s56, %d" % (6 * 128), "v_min_u32 v2, 5, v0", "v_lshlrev_b32 v2, 7, v2", "v_add_u32 v2, s56, v2",
              "v_min_u32 v2, L_k2_last-L_k2_pc, v2", "v_mov_b32 v3, s55", "v_add_co_u32 v2, vcc, s54, v2", "s_nop 1",
              "v_addc_co_u32 v3, vcc, 0, v3, vcc", "global_load_dword v%d, v[2:3], off" % VG]
        a = V_TMP + 4
        pf += ["s_lshr_b32 s56, s56, 1", "s_add_u32 s56, s56, L_k2_exit-L_k2_pc", "v_min_u32 v%d, 2, v0" % a, "v_lshlrev_b32 v%d, 7, v%d" % (a, a),
               "v_add_u32 v%d, s56, v%d" % (a, a), "v_min_u32 v%d, L_k2_last-L_k2_pc, v%d" % (a, a), "v_mov_b32 v%d, s55" % (a + 1),
               "v_add_co_u32 v%d, vcc, s54, v%d" % (a, a), "s_nop 1", "v_addc_co_u32 v%d, vcc, 0, v%d, vcc" % (a + 1, a + 1)]
    rest = rest[:-1] + ["L_k2_last:"] + rest[-1:]
    k = S.index("CODEPF")
    S = S[:k] + pf + S[k + 1:]
    head = resolve_waits(S + G + ["L_k2_attn:"] + PRE)
    pre_only = head[head.index("L_k2_attn:"):]
    traces = [head + S0 + BODY + br + BODY + br + TAIL + D,
              TAIL[:TAIL.index("s_cbranch_scc1 L_k2_redo") + 1] + R0 + RB + RB + RT + pre_only + S0, SP,
              T0 + jb(0) + BR[0] + RS, T0 + jb(0) + FX[0] + jb(1) + BR[1] + jb(0) + RS, T0 + jb(0) + FX[0] + jb(1) + FX[1] + jb(2) + BR[2] + jb(0) + RS,
              T0 + jb(0) + FX[0] + jb(1) + FX[1] + jb(2) + FX[2] + jb(0) + FX[0] + jb(1) + BR[1] + jb(0) + RS]
    lines = head + rest
    for v in OPT.get("nt", []):
        lines = [x.replace(" offen lds", " offen%s lds" % OPT.get("ntf", " nt")) if x.startswith("buffer_load_dwordx4 v%d," % v) else x for x in lines]
    return dict(name="attn_kernel", lines=lines, traces=traces, grid=256, block=256, lds=163840, vgpr=512, acc=256, sgpr=102)
```

```python
import sys, importlib
from asmlib import *

HEADER = open("recurrent_scan__mha_block_cached__glu_gated_glu__prompt.s.ref").read().split("; Override launch")[0]

def emit(kernels, path, check=True, aslist=False):
    out = [HEADER.rstrip()]
    if len(kernels) == 1 and not aslist:
        k = kernels[0]
        out.append("; @launch grid=(%d,1,1) block=(%d,1,1) lds=%d" % (k["grid"], k["block"], k["lds"]))
    for k in (kernels if len(kernels) > 1 or aslist else []):
        out.append("; @launch kernel=%s grid=(%d,1,1) block=(%d,1,1) lds=%d" % (k["name"], k["grid"], k["block"], k["lds"]))
    out += ['.amdgcn_target "amdgcn-amd-amdhsa--gfx950"',
            "; ln_kernel: layer norm into MFMA fragment order, packing of the last 512 gate/up columns, reset of the hand-off words.",
            "; attn_kernel: one workgroup per (head / f-slice, 256 rows): projections, attention, output projections, final combine.",
            ".text"]
    seen = []
    nerr = 0
    for k in kernels:
        if k["name"] in seen: continue
        seen.append(k["name"])
        if check:
            for i, t in enumerate(k["traces"]):
                errs = check_trace(t, "%s/%d" % (k["name"], i))
                for e in errs[:20]: print(e)
                nerr += len(errs)
        out += [".globl %s" % k["name"], ".p2align 8", ".type %s,@function" % k["name"], "%s:" % k["name"]]
        out += [l if l.endswith(":") or l.startswith(".") or l.startswith(";") else "    " + l for l in k["lines"]]
    out += ['.section .rodata,"a"']
    done = []
    for k in kernels:
        if k["name"] in done: continue
        done.append(k["name"])
        out += [".p2align 6"] + descriptor(k["name"], k["vgpr"], k["acc"], k["sgpr"])
    open(path, "w").write("\n".join(out) + "\n")
    print("wrote %s, %d lines, %d check errors" % (path, len(out), nerr))
    return nerr
```

```python
import re
from asmlib import *
from layout import *

SLOT = 36864
V_FR, V_TU, V_TQ, V_TH = 1, 2, 6, 8
V_DG, V_DQ, V_DH, V_DK, V_DV, V_DS, V_TS = 9, 10, 11, 12, 13, 14, 15
VA, VXN, VG, VU, VH = 16, 40, 72, 136, 200
V_KA, V_VA, V_ONE, V_TMP = 232, 236, 244, 248
VS, VNEG, VVF, VKF = 16, 40, 200, 216
VP = [[VG + 32, VG + 48], [VU + 16, VU + 48]]
S_WS, S_WG, S_WU, S_WQ, S_K, S_V, S_WH = 4, 8, 12, 16, 20, 24, 72
S_WAVE, S_SL, S_RB = 32, 33, 34
S_L1K, S_GB, S_QB, S_HB, S_HL, S_XN = 35, 36, 37, 38, 39, 40
S_T0, S_T1, S_HST, S_HHST, S_OST = 41, 42, 43, 44, 45
S_KO, S_VO, S_CNT, S_NL2E, S_QC, S_REDO, S_KV0 = 46, 47, 48, 49, 50, 51, 52
S_T2 = 53
S_GB1 = 83
S_T3 = 46
S_RT = [28, 29, 30, 31, 46, 47, 48, 82, 84]
S_HF = 3
KOFF = lambda j: (((j - 1) // 2) & 1) * 32768 + ((j - 1) & 1) * 16384
VOFF = lambda j: ((j // 2) & 1) * 32768 + (j & 1) * 16384
FLAG_LDS = 163776
SCR = 131072
V_SH, V_M1, V_FL = 56, 36, 8
S_SRC, S_SEN, S_WF = 8, 12, 88
S_PUB = 60
S_SHS, S_SHD, S_SCR, S_SO = 56, 57, 58, 59
S_U, S_AFL, S_DF = 42, 75, 50
SC = " sc1"
SUB = [[6, 7, 8, 9], [0, 1, 2, 13], [14, 15, 3, 4], [5, 10, 11, 12], [4, 5, 10, 11]]
SUBOFF = lambda i: i * 9216 + (16320 if i >= 12 else 0)
AX = 240
S_PG, S_PS = 50, 44
VD, VSA, VXX, VT, XF, VSEL = 16, 88, 232, 248, 40, 76
VPK = [160, 164, 184, 188, 192, 196, 244]
WBUF = [216, 168, 200]
V_RD, V_RD2, V_H2, V_XO, V_L0, V_PL, V_F4, V_B8, V_1 = 2, 3, 4, 5, 7, 8, 9, 10, 11
V_PA = 32
S_X, S_OUT, S_AUX = 8, 12, 16
S_TO = [28, 29, 30, 31, 36, 37, 38, 39, 40]
S_LB = [69, 72, 73, 74]
S_HA, S_H2, S_XO, S_W8, S_BP, S_BC, S_DO = 43, 82, 83, 84, 80, 81, 44
S_IN = 85
OPT = dict(codepf=True, nt=[9, 10, 12, 13, 14], ogap=133, latepoll=0, lead=0, tie=(40, 16, 16, 0), mmin=1, dsp=0, pf3=240, pf3o=4096, perm16=0, ocap=4, k3=4, k5=0, rotw=1, rotkv=0, kvmix=0, early=0, sgaps=((6, 8, 10),) * 3, xfirst=0, k1n=12, mix=12, mix0=8, pf0=0,
           hspread=((4.3, 66), (8.0, 54)), park=1, a3=48, o0=0, odt=0, cap31=4, codepf2=1, single=0, margin=8, pollahead=72, defer=4, dflag=197, hfmask=7, gain=30, fixed=0, dget=-72, dlat=999, gdend=6, sdel=60, sleep=0, refc=-6.0, snake="qpgtPGT", codepf3=[], outf=" sc1",
           quota=[10, 10, 18, 18, 18, 18, 18, 18, 15, 15, 18, 18, 18, 18, 18])

def snake(n, i, key):
    return list(range(n))[::-1] if i % 2 and key in OPT["snake"] else list(range(n))

def xn(ks, rt):
    return ar(16 * ks + 4 * rt) if ks < 16 else vr(VXN + 16 * (ks - 16) + 4 * rt)
def qf(t, ks):
    return vr((VG, VG + 16, VU, VU + 32)[ks] + 4 * t)
def oacc(dt, t): return ar(16 * dt + 4 * t)
def lacc(t): return ar(128 + 4 * t)

def dma(srd_, voff, sbase, sconst, lbase, lconst, tag, tmp=S_T0):
    return (["s_add_u32 m0, s%d, 0x%x" % (lbase, lconst), "s_add_u32 s%d, s%d, 0x%x" % (tmp, sbase, sconst)],
            "buffer_load_dwordx4 v%d, %s, s%d offen lds ;@%s" % (voff, sr(srd_), tmp, tag))

def chunk_slot(c): return 3 * SLOT if c == 11 else ((c + 1) % 3) * SLOT
TS = []
for c in range(12):
    TS.append(dict(kind="gugugguuqqqq"[c], unit=(c // 4) if c < 8 else (c - 8) // 2, half=(c >> 1 if c < 4 else c & 1), off=chunk_slot(c), tag="c%d" % c))
TS.insert(8, dict(kind="h", unit=0, half=0, off=3 * SLOT, tag="h"))

def chunk_dmas(ts):
    out = []
    for i in range(9):
        if ts["kind"] == "h":
            pre, x = dma(S_WS, V_FR, S_HB, i * 1024, S_HL, 3 * SLOT + i * 1024, "h")
            out.append((pre, x.replace(" offen lds", " offen sc1 lds")))
        else:
            q = ts["kind"] == "q"
            const = ts["half"] * 288 * (8192 if q else 9216) + (ts["unit"] * 128 if q else 0)
            pre = ["s_add_u32 m0, s%d, 0x%x" % (S_RT[i], ts["off"]), "s_mul_i32 s%d, s%d, %d" % (S_T0, S_RT[i], 64 if q else 72),
                   "s_add_u32 s%d, s%d, s%d" % (S_T0, S_T0, S_QB if q else (S_GB, S_GB1)[ts["unit"]])]
            if const: pre.append("s_add_u32 s%d, s%d, 0x%x" % (S_T0, S_T0, const))
            out.append((pre, "buffer_load_dwordx4 v%d, %s, s%d offen lds ;@%s" %
                        (V_DQ if q else V_DG, sr(S_WQ if q else (S_WG if ts["kind"] == "g" else S_WU)), S_T0, ts["tag"])))
    return out

def kv_dmas(which, j, tag):
    out = []
    for n in range(4):
        if which == "k":
            out.append(dma(S_K, V_DK, S_KV0, j * 16384 + n * 4096, S_L1K, KOFF(j) + n * 4096, tag))
        else:
            out.append(dma(S_V, V_DV, S_KV0, j * 16384 + n * 4096, S_L1K, 65536 + VOFF(j) + n * 4096, tag))
    return out

def xn_load(ks, rt):
    so = (S_T1, S_T2)[ks & 1]
    pre = ["s_add_u32 s%d, s%d, 0x%x" % (so, S_XN, ks * 4096)] if rt == 0 else []
    return (pre, "buffer_load_dwordx4 %s, v%d, %s, s%d offen offset:%d ;@x%d" % (xn(ks, rt), V_FR, sr(S_WS), so, rt * 1024, ks // 3))

def unit_line(r, u):
    if not OPT.get("perm", True):
        return ["s_lshl_b32 s%d, s%d, 1" % (r, S_SL), "s_add_u32 s%d, s%d, %d" % (r, r, u)]
    return ["s_add_u32 s%d, s%d, %d" % (r, S_SL, u + 1), "s_and_b32 s%d, s%d, 3" % (r, r), "s_and_b32 s%d, s%d, 28" % (r + 1, S_SL),
            "s_add_u32 s%d, s%d, s%d" % (r, r, r + 1), "s_lshl_b32 s%d, s%d, 1" % (r, r), "s_add_u32 s%d, s%d, %d" % (r, r, u)]

def setup(st):
    P = []
    A = P.append
    A("s_cmp_ge_u32 s2, 256")
    A("s_cbranch_scc1 L_k2_end")
    P += st("start")
    A("s_load_dwordx2 s[60:61], s[0:1], %d" % ARG["ws"])
    A("s_load_dwordx4 s[64:67], s[0:1], %d" % ARG["wg"])
    A("s_load_dwordx2 s[68:69], s[0:1], %d" % ARG["k"])
    A("s_load_dwordx4 s[72:75], s[0:1], %d" % ARG["v"])
    A("s_load_dwordx2 s[70:71], s[0:1], %d" % ARG["wo"])
    A("s_load_dwordx4 s[76:79], s[0:1], %d" % ARG["wd"])
    A("s_load_dwordx2 s[80:81], s[0:1], %d" % ARG["x"])
    A("v_lshrrev_b32 v15, 6, v0")
    A("v_and_b32 v0, 63, v0")
    A("v_readfirstlane_b32 s%d, v15" % S_WAVE)
    A("v_lshlrev_b32 v%d, 4, v0" % V_FR)
    A("s_and_b32 s54, s2, 7")
    A("s_lshl_b32 s54, s54, 2")
    A("s_bfe_u32 s55, s2, 0x20003")
    A("s_add_u32 s%d, s54, s55" % S_SL)
    A("s_lshr_b32 s54, s2, 5")
    A("s_lshl_b32 s54, s54, 2")
    A("s_add_u32 s%d, s54, s%d" % (S_RB, S_WAVE))
    A("s_lshl_b32 s%d, s%d, 10" % (S_L1K, S_WAVE))
    A("s_mul_i32 s%d, s%d, %d" % (S_XN, S_RB, 18 * 4096))
    A("s_lshl_b32 s%d, s%d, 8" % (S_QB, S_SL))
    for u_, r_ in ((0, S_GB), (1, S_GB1)):
        P += unit_line(56, u_)
        A("s_lshl_b32 s%d, s56, 7" % r_)
    A("s_lshr_b32 s54, s2, 5")
    A("s_lshl_b32 s54, s54, 12")
    A("s_and_b32 s55, s2, %d" % OPT["hfmask"])
    A("s_bcnt1_i32_b32 s55, s55")
    A("s_and_b32 s%d, s55, 1" % S_HF)
    A("s_mul_i32 s54, s54, %d" % OPT["rotw"])
    A("s_add_u32 s%d, s54, s%d" % (S_RT[0], S_L1K))
    for i in range(1, 9):
        A("s_add_u32 s54, s%d, %d" % (S_RT[0], i * 4096))
        A("s_sub_u32 s55, s54, %d" % SLOT)
        A("s_min_u32 s%d, s54, s55" % S_RT[i])
    A("v_lshrrev_b32 v15, 3, v0")
    A("v_bfe_u32 v%d, v0, 4, 1" % V_TMP)
    A("s_and_b32 s54, s%d, 1" % S_WAVE)
    A("s_lshl_b32 s54, s54, 1")
    A("v_or_b32 v%d, s54, v%d" % (V_TMP, V_TMP))
    A("v_lshlrev_b32 v%d, 1, v%d" % (V_TMP, V_TMP))
    A("v_and_b32 v%d, 7, v0" % (V_TMP + 1))
    A("v_xor_b32 v%d, v%d, v%d" % (V_TMP, V_TMP, V_TMP + 1))
    A("v_lshlrev_b32 v%d, 4, v%d" % (V_TMP, V_TMP))
    A("v_mul_u32_u24 v%d, 9216, v15" % V_DG)
    A("v_add_u32 v%d, v%d, v%d" % (V_DG, V_DG, V_TMP))
    A("v_lshl_add_u32 v%d, v15, 13, v%d" % (V_DQ, V_TMP))
    if OPT["pf0"]: A("CODEPF")
    A("s_waitcnt lgkmcnt(0)")
    P += srd(S_WS, 60, WS_BYTES) + srd(S_WG, 64, WG_BYTES)
    return P

def setup2():
    P = []
    A = P.append
    P += srd(S_WQ, 74, WQ_BYTES) + srd(S_K, 68, KV_BYTES) + srd(S_V, 72, KV_BYTES)
    t0, t1, t2, t3 = V_TMP, V_TMP + 1, V_TMP + 2, V_TMP + 3
    A("v_lshrrev_b32 v%d, 4, v0" % t0)
    A("v_bfe_u32 v%d, v0, 2, 2" % t1)
    A("v_lshl_add_u32 v15, v%d, 3, v%d" % (t0, t1))
    A("v_lshlrev_b32 v15, 7, v15")
    A("v_add_u32 v15, %d, v15" % TS[0]["off"])
    A("v_bfe_u32 v%d, v0, 3, 2" % t2)
    A("v_and_b32 v%d, 3, v0" % t3)
    for j in range(4):
        A("v_xor_b32 v%d, %d, v%d" % (V_TU + j, j, t2))
        A("v_lshl_add_u32 v%d, v%d, 5, v15" % (V_TU + j, V_TU + j))
        A("v_lshl_add_u32 v%d, v%d, 3, v%d" % (V_TU + j, t3, V_TU + j))
    A("v_add_u32 v15, %d, v15" % ((TS[9]["off"] - TS[0]["off"]) & 0xffffffff))
    A("v_lshlrev_b32 v%d, 1, v%d" % (t2, t2))
    for m in range(2):
        A("v_or_b32 v%d, %d, v%d" % (V_TQ + m, 4 * m, t3))
        A("v_xor_b32 v%d, v%d, v%d" % (V_TQ + m, V_TQ + m, t2))
        A("v_lshl_add_u32 v%d, v%d, 4, v15" % (V_TQ + m, V_TQ + m))
    A("v_lshlrev_b32 v%d, 3, v0" % V_TH)
    A("v_add_u32 v%d, %d, v%d" % (V_TH, 3 * SLOT, V_TH))
    A("s_mul_i32 s%d, s%d, 9216" % (S_HL, S_WAVE))
    A("s_mul_i32 s54, s%d, %d" % (S_SL, SLOT))
    A("s_add_u32 s54, s54, s%d" % S_HL)
    A("s_add_u32 s%d, s54, 0x%x" % (S_HB, HW_OFF))
    A("s_lshl_b32 s54, s%d, 19" % S_RB)
    A("s_add_u32 s%d, s54, 0x%x" % (S_HST, H_OFF))
    A("s_lshl_b32 s55, s%d, 14" % S_SL)
    A("s_add_u32 s54, s54, s55")
    A("s_add_u32 s%d, s54, 0x%x" % (S_OST, O_OFF))
    A("s_lshr_b32 s54, s54, 3")
    A("s_add_u32 s%d, s54, 0x%x" % (S_HHST, H2_OFF - 3 * SLOT))
    A("s_mov_b32 s%d, %s" % (S_NL2E, f32(-LOG2E * 2.0 ** SCALE["XE"])))
    A("s_mov_b32 s%d, %s" % (S_QC, f32(LOG2E * 128 ** -0.5 * 2.0 ** SCALE["XE"])))
    A("s_mov_b32 s%d, 0" % S_REDO)
    A("s_mov_b32 s0, 0x07060302")
    A("s_lshl_b32 s54, s%d, 19" % S_SL)
    A("s_add_u32 s%d, s54, s%d" % (S_KV0, S_L1K))
    A("s_lshl_b32 s54, s%d, 2" % S_WAVE)
    A("v_add_u32 v15, s54, v%d" % t0)
    A("v_and_b32 v%d, 15, v0" % t2)
    A("v_xor_b32 v%d, v%d, v15" % (V_DK, t2))
    A("v_lshlrev_b32 v%d, 4, v%d" % (V_DK, V_DK))
    A("v_lshl_add_u32 v%d, v%d, 8, v%d" % (V_DK, t0, V_DK))
    A("v_and_b32 v15, 7, v15")
    A("v_lshlrev_b32 v15, 1, v15")
    A("v_xor_b32 v%d, v%d, v15" % (V_DV, t2))
    A("v_lshlrev_b32 v%d, 4, v%d" % (V_DV, V_DV))
    A("v_lshl_add_u32 v%d, v%d, 8, v%d" % (V_DV, t0, V_DV))
    for ks in range(4):
        A("v_or_b32 v15, %d, v%d" % (4 * ks, t0))
        A("v_xor_b32 v15, v15, v%d" % t2)
        A("v_lshlrev_b32 v15, 4, v15")
        A("v_lshl_add_u32 v%d, v%d, 8, v15" % (V_KA + ks, t2))
    A("v_lshrrev_b32 v%d, 2, v0" % t1)
    A("v_and_b32 v%d, 7, v%d" % (t2, t1))
    A("v_lshlrev_b32 v%d, 8, v%d" % (t1, t1))
    A("v_lshl_add_u32 v%d, v%d, 3, v%d" % (t1, t3, t1))
    A("v_add_u32 v%d, 0x10000, v%d" % (t1, t1))
    for dt in range(8):
        A("v_xor_b32 v15, %d, v%d" % (dt, t2))
        A("v_lshl_add_u32 v%d, v15, 5, v%d" % (V_VA + dt, t1))
    for r in range(4):
        A("v_mov_b32 v%d, 0x%x" % (V_ONE + r, (0x3f80 - 0x80 * SCALE["XE"]) * 0x10001))
    A("s_add_u32 s%d, s60, 0x%x" % (S_WF, WF_OFF))
    A("s_addc_u32 s%d, s61, 0" % (S_WF + 1))
    A("s_and_b32 s%d, s%d, 0xffff" % (S_WF + 1, S_WF + 1))
    A("s_mov_b32 s%d, 0x%x" % (S_WF + 2, 272 * SLOT))
    A("s_mov_b32 s%d, 0x20000" % (S_WF + 3))
    A("v_lshrrev_b32 v%d, 3, v0" % t0)
    A("v_mul_u32_u24 v%d, 1152, v%d" % (t0, t0))
    A("v_and_b32 v%d, 7, v0" % t1)
    A("v_lshl_add_u32 v%d, v%d, 4, v%d" % (V_DS, t1, t0))
    A("s_lshl_b32 s54, s%d, 12" % S_WAVE)
    A("s_add_u32 s54, s54, %d" % SCR)
    A("v_lshrrev_b32 v%d, 2, v0" % t0)
    A("v_lshlrev_b32 v%d, 7, v%d" % (t0, t0))
    A("v_lshl_add_u32 v%d, v%d, 3, v%d" % (t0, t3, t0))
    A("v_add_u32 v%d, s54, v%d" % (V_TS, t0))
    P += slab_base(54) + rot(55)
    A("s_bfe_u32 s56, s2, 0x20001")
    A("s_mul_i32 s56, s56, %d" % (18 * 1024))
    A("s_add_u32 s54, s54, s56")
    for c in range(2, 9):
        A("s_add_u32 s56, s55, %d" % c)
        A("s_sub_u32 s57, s56, 9")
        A("s_min_u32 s56, s56, s57")
        A("s_lshl_b32 s56, s56, 11")
        A("s_add_u32 s%d, s54, s56" % (S_PUB + c))
    return P

def slab_base(r):
    return ["s_lshr_b32 s%d, s2, 3" % r, "s_lshl_b32 s%d, s%d, 1" % (r, r),
            "s_add_u32 s%d, s%d, s%d" % (r, r, S_HF), "s_lshl_b32 s%d, s%d, 2" % (r, r), "s_add_u32 s%d, s%d, s%d" % (r, r, S_WAVE),
            "s_mul_i32 s%d, s%d, %d" % (r, r, 72 * 1024), "s_add_u32 s%d, s%d, 0x%x" % (r, r, PART_OFF)]

def rot(r):
    return ["s_bfe_u32 s%d, s2, 0x20001" % r, "s_min_u32 s%d, s%d, 1" % (r + 1, r), "s_lshl_b32 s%d, s%d, 1" % (r, r),
            "s_add_u32 s%d, s%d, s%d" % (r, r, r + 1)]

def relayout():
    sc = [["s_mul_i32 s55, s%d, 7282" % S_U], ["s_lshr_b32 s55, s55, 16"],
          ["s_lshl_b32 s%d, s%d, 12" % (S_SHD, S_U)], ["s_mul_i32 s%d, s55, 9" % S_SHS], ["s_sub_u32 s54, s%d, s%d" % (S_U, S_SHS)],
          ["s_lshl_b32 s54, s54, 7"],
          ["s_cmp_lt_u32 s55, 144", "s_cselect_b32 s%d, s76, s70" % S_SRC, "s_cselect_b32 s%d, s77, s71" % (S_SRC + 1)],
          ["s_cmp_lt_u32 s55, 144", "s_cselect_b32 s%d, 0, 144" % S_SHS, "s_cselect_b32 s%d, 9, 8" % (S_SRC + 2)],
          ["s_mul_i32 s%d, s%d, %d" % (S_SRC + 2, S_SRC + 2, 512 * 1152)],
          ["s_and_b32 s%d, s%d, 0xffff" % (S_SRC + 1, S_SRC + 1)],
          ["s_sub_u32 s55, s55, s%d" % S_SHS], ["s_mul_i32 s55, s55, %d" % SLOT], ["s_add_u32 s%d, s55, s54" % S_SHS],
          ["s_add_u32 s%d, s%d, 1024" % (S_U, S_U)],
          ["s_cmp_gt_u32 s%d, 4" % S_CNT, "s_cselect_b32 s%d, s%d, 0" % (S_SEN + 2, S_SEN + 2)],
          ["s_lshl_b32 s54, s%d, 3" % S_WAVE], ["s_add_u32 s54, s54, s%d" % S_CNT],
          ["s_cmp_eq_u32 s54, 4", "s_cselect_b32 s%d, s%d, 0x40000000" % (S_T2, S_AFL)]]
    dm = [dma(S_SRC, V_DS, S_SHS, n * 9216, S_SCR, n * 1024, "sh") for n in range(4)]
    rd = [["ds_read_b64_tr_b16 %s, v%d offset:%d" % (vr(V_SH + 4 * q + 2 * h, 2), V_TS, q * 32 + h * 2048) for h in range(2)] for q in range(4)]
    stv = ["buffer_store_dwordx4 %s, v%d, %s, s%d offen offset:%d%s" % (vr(V_SH + 4 * q), V_FR, sr(S_WF), S_SHD, q * 1024, SC) for q in range(4)]
    mk = ["buffer_store_dwordx4 %s, v%d, %s, s%d offen offset:%d%s" % (vr(V_M1), v, sr(S_SEN), S_SO, o, SC) for v, o in ((V_FR, 1024), (V_FR, 3072), (V_F4, 1024))]
    return sc, dm, rd, stv, mk

def groups(tau):
    ts = TS[tau]
    if ts["kind"] == "h":
        return [(t, 3 * kg) for t in range(2) for kg in snake(6, t, "G")]
    if tau in (0, 2):
        return [(t, 9 * ts["half"] + 3 * kg) for kg in range(3) for t in snake(4, kg, "G")]
    return [(t, 9 * ts["half"] + 3 * kg) for t in range(4) for kg in snake(3, t, "G")]

BLK = {("g", 0): [VG, VG + 16, VG + 32, VG + 48], ("g", 1): [VH, VH + 16, VG, VG + 16], ("h", 0): [VG + 32, VG + 48],
       ("q", 0): [VG, VH, VG + 16, VH + 16]}
for key in (("u", 0), ("u", 1), ("q", 1)): BLK[key] = [VU, VU + 16, VU + 32, VU + 48]

def treads(tau, grp, buf):
    ts = TS[tau]
    t, k0 = groups(tau)[grp]
    out = []
    for kk in range(3):
        for h in range(2):
            d = vr(VA + 12 * buf + 4 * kk + 2 * h, 2)
            if ts["kind"] == "h":
                out.append("ds_read_b64_tr_b16 %s, v%d offset:%d" % (d, V_TH, t * 18432 + (k0 + kk) * 1024 + h * 512))
            else:
                o = (k0 + kk - 9 * ts["half"]) * 4096 + h * 512
                if ts["kind"] == "q":
                    out.append("ds_read_b64_tr_b16 %s, v%d offset:%d" % (d, V_TQ + t // 2, o + (t & 1) * 8))
                else:
                    out.append("ds_read_b64_tr_b16 %s, v%d offset:%d" % (d, V_TU + t, o))
    return out

def projection():
    mf, pin = [], {}
    done, first, blocked = {}, {}, set()
    XW = {(0, 3): 1, (0, 7): 2, (1, 11): 3, (2, 3): 4, (2, 7): 5}
    P = lambda g, x: pin.setdefault(g, []).append(x)
    for tau in range(13):
        blk = BLK[(TS[tau]["kind"], TS[tau]["unit"])]
        for gi, (t, k0) in enumerate(groups(tau)):
            buf = (12 * tau + gi) & 1
            g0 = len(mf)
            for c, rt in enumerate(snake(4, gi, "G")):
                d = vr(blk[t] + 4 * rt)
                key = (TS[tau]["kind"], TS[tau]["unit"], t, rt)
                for kk in snake(3, c, "g"):
                    if key not in done: first.setdefault(blk[t] + 4 * rt, []).append(len(mf))
                    mf.append(mfma(d, vr(VA + 12 * buf + 4 * kk), xn(k0 + kk, rt), d if key in done else "0"))
                    done[key] = len(mf) - 1
            nt, ng = (tau, gi + 1) if gi < 11 else (tau + 1, 0)
            if nt < 13:
                for i, x in enumerate(treads(nt, ng, buf ^ 1)): P(g0 + i, x)
            w = "s_waitcnt lgkmcnt(0)"
            if (tau, gi) in XW: w = "WAITVM x%d lgkmcnt(0)" % XW[(tau, gi)]
            if gi == 10 and tau < 12:
                tags = TS[tau + 1]["tag"] + (",k0" if tau == 11 else "")
                P(g0 + 11, "WAITVM %s lgkmcnt(0)" % tags)
                P(g0 + 11, "s_barrier")
            elif nt < 13:
                P(g0 + 11, w)
        ts = TS[tau]
        nxt = [x for x in TS[tau + 1:] if (x["kind"] == "q") == (ts["kind"] == "q") and x["kind"] != "h"]
        if ts["kind"] != "h" and nxt:
            delta = (nxt[0]["off"] - ts["off"]) & 0xffffffff
            regs = {}
            for gi, (t, k0) in enumerate(groups(tau)):
                regs[V_TQ + t // 2 if ts["kind"] == "q" else V_TU + t] = gi
            for r, gi in regs.items():
                P(144 * tau + 12 * (gi - 1) + 6, "v_add_u32 v%d, 0x%x, v%d" % (r, delta, r))
    plan = {t: [] for t in range(13)}
    order = [0, 1, 2, 3, 4, 5, 6, 7, 9, 10, 11, 12]
    hd = chunk_dmas(TS[8])
    kg = lambda n: [xn_load(ks, rt) for ks in range(3 * n, 3 * n + 3) for rt in range(4)]
    plan[0] = kg(1)[OPT["k1n"]:] + kg(2) + chunk_dmas(TS[1]) + kg(3)[:OPT["k3"]]
    plan[1] = chunk_dmas(TS[2]) + kg(3)[OPT["k3"]:] + kg(4) + kg(5)[:OPT["k5"]]
    plan[2] = kg(5)[OPT["k5"]:] + chunk_dmas(TS[3]) + chunk_dmas(TS[4])
    for tau in range(3, 10): plan[tau] = chunk_dmas(TS[tau + 2 if tau < 7 else tau + 3])
    plan[5] += chunk_dmas(TS[8])[:3]
    plan[6] = chunk_dmas(TS[8])[3:] + chunk_dmas(TS[9])[:6]
    plan[7] = chunk_dmas(TS[9])[6:] + plan[7]
    plan[10] = kv_dmas("k", 1, "s0") + kv_dmas("k", 2, "s0")
    plan[11] = kv_dmas("k", 0, "k0")
    plan[12] = kv_dmas("v", 0, "s0") + kv_dmas("v", 1, "s0")
    for tau in range(13):
        ops = plan[tau]
        if tau < 3:
            free = [g for g in range(144 * tau, 144 * tau + 144) if g % 12 in OPT["sgaps"][tau] and not pin.get(g)]
            for g, (pre, x) in zip(free, ops):
                for y in pre: P(g, y)
                P(g, x)
            assert len(ops) <= len(free)
        else:
            for i, (pre, x) in enumerate(ops):
                g = 144 * tau + 12 * i + 8 - OPT["lead"]
                assert i < 12
                for k, y in enumerate(pre): P(g - 7 + k, y)
                P(g, x)
    sc, va = tail_setup()
    g = 144 * 10
    for x in sc:
        while g % 12 > 5 or any(cost(I(y)) == 0 for y in pin.get(g, [])): g += 1
        P(g, x)
    assert g < 144 * 13 - 12, g
    for k, x in enumerate(va): P(144 * 12 + 72 + 12 * k, x)
    P(144 * 12 + 60, "v_lshrrev_b32 v%d, 4, v0" % V_TMP)
    P(144 * 12 + 61, "v_lshlrev_b32 v%d, 4, v%d" % (V_TMP, V_TMP))
    for ks in range(4):
        P(144 * 12 + 102 + ks, "ds_read_b128 %s, v%d offset:%d" % (vr(VVF + 4 * ks), V_TMP, KOFF(0) + 64 * ks))
    for r in range(16):
        P(144 * 12 + (114, 115, 116, 117, 118, 126, 127, 128)[r // 2], "v_xor_b32 v%d, 0x80008000, v%d" % (VVF + r, VVF + r))
    for r in range(4): P(144 * 12 + 129 + r // 2, "v_mov_b32 v%d, %s" % (V_TMP + r, f32(OPT["refc"])))
    for ks in range(4):
        P(144 * 12 + 132 + ks, "ds_read_b128 %s, v%d offset:%d" % (vr(VKF + 4 * ks), V_KA + ks, KOFF(0)))
    fl = []
    LAT = 6
    END = 144 * 12
    def reuse(reg, after):
        return min([g for g in first[reg] if g > after] + [END + 4]) - 4
    def add(text, lo, hi): fl.append(Flt(text, lo, hi))
    def glu(gkey, gt, ukey, ut, rt, dst):
        gb, ub = BLK[gkey][gt] + 4 * rt, BLK[ukey][ut] + 4 * rt
        lo, lu = done[gkey + (gt, rt)] + LAT, done[ukey + (ut, rt)] + LAT
        hu = min(reuse(ub, lu), reuse(dst & ~3, lu))
        hi = min(reuse(gb, lo), hu)
        for op in ("v_mul_f32 v%%d, s%d, v%%d" % S_NL2E, "v_exp_f32 v%d, v%d", "v_add_f32 v%d, 1.0, v%d", "v_rcp_f32 v%d, v%d"):
            for r in range(4): add(op % (gb + r, gb + r), lo, hi)
        for r in range(4): add("v_mul_f32 v%d, v%d, v%d" % (ub + r, ub + r, gb + r), lu, hi)
        for h in range(2): add("v_cvt_pk_bf16_f32 v%d, v%d, v%d" % (dst + h, ub + 2 * h, ub + 2 * h + 1), lu, hu)
        return lu
    for unit in range(2):
        for t in range(4):
            for rt in range(4):
                d = VU + 16 * (t & 2) + 4 * rt if unit or t < 2 or not OPT["park"] else VG + 32 + 4 * rt
                lu = glu(("g", unit), t, ("u", unit), t, rt, d + 2 * (t & 1))
                if t & 1:
                    t0_, dt_ = OPT["hspread"][unit]
                    add("buffer_store_dwordx4 %s, v%d, %s, s%d offen offset:%d" % (vr(d), V_FR, sr(S_WS), 56 + 2 * unit + t // 2, rt * 1024) + SC,
                        max(lu, int(144 * t0_) + (2 * (t & 2) + rt) * dt_), reuse(d, lu))
    for rt in range(4):
        d = BLK[("h", 0)][0] + 4 * rt
        lu = glu(("h", 0), 0, ("h", 0), 1, rt, d)
        add("buffer_store_dwordx2 %s, v%d, %s, s%d offen offset:%d" % (vr(d, 2), V_TH, sr(S_WS), S_HHST, rt * 512) + SC, max(lu, 144 * 11 + 30 * rt), END)
    for unit in range(2):
        blk = BLK[("q", unit)]
        for t in range(4):
            for rt in range(4):
                lo = done[("q", unit, t, rt)] + LAT
                hi = END + 96 if unit == 0 else None
                r0 = blk[t] + 4 * rt
                for r in range(4): add("v_mul_f32 v%d, s%d, v%d" % (r0 + r, S_QC, r0 + r), lo, hi)
                d = blk[t & 2] + 4 * rt + 2 * (t & 1)
                for h in range(2): add("v_cvt_pk_bf16_f32 v%d, v%d, v%d" % (d + h, r0 + 2 * h, r0 + 2 * h + 1), lo, hi)
    fl.sort(key=lambda f: f.hi if f.hi is not None else 1 << 30)
    out, left = schedule(mf, pin, fl, window=64, blocked=blocked)
    out.append("s_nop 7")
    out += [f.i.text for f in left]
    if OPT.get("hflag") is not None: out = [x.replace(SC, OPT["hflag"]) if x.startswith("buffer_store") else x for x in out]
    if OPT.get("nost"): out = [x for x in out if not x.startswith("buffer_store")]
    idx = [i for i, x in enumerate(out) if x.startswith("v_mfma")]
    for q in range(38, 0, -1):
        out[idx[48 * q]:idx[48 * q]] = OPT["st"]("q%d" % q) + (OPT["st"]("t%d" % (q // 3)) if q % 3 == 0 else [])
    return out

def kread(buf, j, kt):
    return ["ds_read_b128 %s, v%d offset:%d" % (vr(buf + 4 * ks), V_KA + ks, KOFF(j) + kt * 4096) for ks in range(4)]
def vread(buf, j, u):
    return ["ds_read_b64_tr_b16 %s, v%d offset:%d" % (vr(buf + 8 * d + 4 * b + 2 * h, 2), V_VA + 2 * u + d, VOFF(j) + b * 8192 + h * 4096)
            for d in range(2) for b in range(2) for h in range(2)]
def E(t, r): return "v_exp_f32 v%d, v%d" % (VS + 4 * t + r, VS + 4 * t + r)
def C(par, kt, t, h):
    if OPT["perm16"]:
        return "v_perm_b32 v%d, v%d, v%d, s0" % (VP[par][kt >> 1] + 4 * t + 2 * (kt & 1) + h, VS + 4 * t + 2 * h + 1, VS + 4 * t + 2 * h)
    return "v_cvt_pk_bf16_f32 v%d, v%d, v%d" % (VP[par][kt >> 1] + 4 * t + 2 * (kt & 1) + h, VS + 4 * t + 2 * h, VS + 4 * t + 2 * h + 1)
def qk(kbuf, t, c0):
    d = vr(VS + 4 * t)
    return [mfma(d, vr(kbuf + 4 * ks), qf(t, ks), c0 if n == 0 else d) for n, ks in enumerate(snake(4, t, "q"))]
def pv(vbuf, par, u, init):
    ts = [(u + k) % 4 for k in range(4)] if "P" in OPT["snake"] else list(range(4))
    return [mfma(oacc(2 * u + d, ts[k]), vr(vbuf + 8 * d + 4 * b), vr(VP[par][b] + 4 * ts[k]), "0" if init and n == 0 else oacc(2 * u + d, ts[k]))
            for d in range(2) for c, k in enumerate(snake(4, d, "P")) for n, b in enumerate(snake(2, c + 1, "p"))]
def psum(par, t, init):
    return [mfma(lacc(t), vr(V_ONE), vr(VP[par][b] + 4 * t), "0" if init and n == 0 else lacc(t)) for n, b in enumerate(snake(2, 1, "P"))]

def rowmax(src):
    P = []
    A = P.append
    for t in range(4):
        A("v_max3_f32 v%d, v%d, v%d, v%d" % (V_TMP + t, src + 4 * t, src + 4 * t + 1, src + 4 * t + 2))
    for t in range(4):
        A("v_max_f32 v%d, v%d, v%d" % (V_TMP + t, V_TMP + t, src + 4 * t + 3))
    for op in ("v_permlane32_swap_b32", "v_permlane16_swap_b32"):
        for t in range(4): A("v_mov_b32 v%d, v%d" % (32 + t, V_TMP + t))
        A("s_nop 1")
        for t in range(4): A("%s v%d, v%d" % (op, V_TMP + t, 32 + t))
        for t in range(4): A("v_max_f32 v%d, v%d, v%d" % (V_TMP + t, V_TMP + t, 32 + t))
    for t in range(4):
        for r in range(4): A("v_sub_f32 v%d, 0, v%d" % (VNEG + 4 * t + r, V_TMP + t))
    return P

def first_ref():
    P = ["s_waitcnt lgkmcnt(0)", "s_nop 1"]
    xl = ["buffer_load_dwordx2 %s, v%d, %s, s%d offen offset:%d" % (ar(AX + 4 * c + 2 * rt, 2), V_XO + rt, sr(S_X), S_XO, c * 32)
          for rt in range(2) for c in range(3)]
    for t in range(4):
        d = vr(VNEG + 4 * t)
        for ks in range(4):
            P.append(mfma(d, vr(VVF + 4 * ks), qf(t, ks), vr(V_TMP) if ks == 0 else d))
            if ks % 2 == 0 and xl: P.append(xl.pop(0))
    return P

def step_pre():
    P = ["s_add_u32 s%d, s%d, %d" % (S_KO, S_KV0, 3 * 16384), "s_add_u32 s%d, s%d, %d" % (S_VO, S_KV0, 2 * 16384)]
    for n in range(16):
        kt, t = n >> 2, n & 3
        kbuf = VKF if kt % 2 == 0 else VVF
        ms = qk(kbuf, t, vr(VNEG + 4 * t))
        rd = []
        if t == 0:
            if kt > 0: P.append("s_waitcnt lgkmcnt(0)")
            if kt == 3: P += ["WAITVM s0", "s_barrier"]
            rd = kread(VVF if kt % 2 == 0 else VKF, 0, kt + 1) if kt < 3 else kread(VKF, 1, 0)
        for i, m in enumerate(ms):
            P.append(m)
            if rd: P.append(rd[i])
            if n >= 2: P.append(E((n - 2) & 3, i))
            if n == 1: P.append("s_nop 0")
        if n >= 2:
            P += [C(0, (n - 2) >> 2, (n - 2) & 3, 0), C(0, (n - 2) >> 2, (n - 2) & 3, 1)]
    P += [E(2, r) for r in range(4)] + [C(0, 3, 2, 0), C(0, 3, 2, 1), "s_nop 1", E(3, 0), E(3, 1), "s_waitcnt lgkmcnt(0)"]
    return P

def step(i, tail_scalars=()):
    par = i & 1
    mf, pin, fl = [], {}, []
    P = lambda g, x: pin.setdefault(g, []).append(x)
    for u in range(4):
        g0 = 34 * u
        for t in range(4): mf += qk(VKF, t, vr(VNEG + 4 * t))
        mf += pv(VVF, par, u, i == 0) + psum(par, u, i == 0)
        ppar, pkt = (par, 3) if u == 0 else (par ^ 1, u - 1)
        tr = vread(VVF, i, u)
        for g, k in zip(OPT.get('tpos', (0, 2, 2, 4, 6, 6, 8, 8)), range(8)): P(g0 + g, tr[k])
        P(g0 + 0, C(ppar, pkt, 3, 0)); P(g0 + 1, E(3, 2)); P(g0 + 3, E(3, 3)); P(g0 + 4, C(ppar, pkt, 3, 1))
        for e in range(14): P(g0 + 7 + 2 * e, E(e >> 2, e & 3))
        for c in range(6): P(g0 + 10 + 4 * c, C(par ^ 1, u, c >> 1, c & 1))
        if u == 3 and par == 1:
            P(g0 + 15, "s_waitcnt vmcnt(%d) lgkmcnt(0)" % ({} if OPT.get('norel') else {1: 8, 3: 10, 29: 17}).get(i, 0)); P(g0 + 15, "s_barrier")
        elif u == 3 and i == 30:
            P(g0 + 15, "s_waitcnt lgkmcnt(0)"); P(g0 + 15, "s_barrier")
        else:
            P(g0 + 15, "s_waitcnt lgkmcnt(0)")
        if i == 30 and u == 3:
            tr = vread(VKF, 31, 0)
            for g, k in zip((16, 16, 18, 20, 20, 22, 24, 24), range(8)): P(g0 + g, tr[k])
        else:
            rd = kread(VKF, i + 1, u + 1) if u < 3 else kread(VKF, i + 2, 0)
            for g, k in zip((16, 18, 20, 22), range(4)): P(g0 + g, rd[k])
        P(g0 + 33, "s_waitcnt lgkmcnt(0)")
        if par == 0 and i < 30:
            for n, g in enumerate(OPT.get('gpos', (5, 12, 24, 28))):
                k = 4 * u + n
                isk, pc = (k % 2 == 0, k // 2) if OPT["kvmix"] else (k < 8, k & 7)
                so = S_KO if isk else S_VO
                P(g0 + g - 2, "s_add_u32 m0, s%d, 0x%x" % (S_L1K, (KOFF(i + 3) if isk else 65536 + VOFF(i + 2)) + pc * 4096))
                P(g0 + g - 1, "s_add_u32 s%d, s%d, %d" % (S_T0, so, pc * 4096))
                P(g0 + g, "buffer_load_dwordx4 v%d, %s, s%d offen lds" % (V_DK if isk else V_DV, sr(S_K if isk else S_V), S_T0))
            if u == 3:
                P(g0 + 29, "s_add_u32 s%d, s%d, 32768" % (S_KO, S_KO)); P(g0 + 30, "s_add_u32 s%d, s%d, 32768" % (S_VO, S_VO))
    for k, x in enumerate(tail_scalars): P(102 + 31 + k, x)
    if i == 0:
        sc, va = loop_setup()
        fl = [Flt(x) for x in va]
        g = 0
        for x in sc:
            while any(cost(I(y)) == 0 or I(y).kind == "vmem" for y in pin.get(g, [])): g += 1
            P(g, x)
        assert g < 136
    if i == 1 and not OPT.get('norel'):
        sc, dm, rd, stv, mk = relayout()
        g = 0
        for grp in sc:
            while (pin.get(g) if len(grp) > 1 else any(cost(I(y)) == 0 for y in pin.get(g, []))): g += 1
            for x in grp: P(g, x)
            g += 1
        assert g <= 42, g
        for g, (pre, x) in zip((34 + 12, 34 + 24, 34 + 28, 34 + 32), dm):
            P(g - 2, pre[0]); P(g - 1, pre[1]); P(g, x.split(";@")[0].rstrip())
        for g, x in zip((68 + 12, 68 + 28, 102 + 12), mk): P(g, x)
        P(102 + 13, "s_add_u32 s%d, s%d, 6144" % (S_SO, S_SO))
        P(102 + 24, "buffer_store_dword v%d, v%d, %s, s%d offen%s" % (V_1, V_L0, sr(S_WS), S_T2, SC))
    if i == 3 and not OPT.get('norel'):
        sc, dm, rd, stv, mk = relayout()
        P(23, "s_waitcnt vmcnt(23)")
        for g, xs in zip((24, 28, 34 + 24, 34 + 28), rd):
            for x in xs: P(g, x)
        for g, x in zip((34 + 5, 34 + 32, 68 + 5, 68 + 24), stv): P(g, x)
    if 1 <= i <= 4:
        P(68 + 32, "buffer_atomic_add v%d, v%d, %s, s%d offen%s" % (V_1, V_L0, sr(S_WS), S_PG, SC))
    if i == 3:
        P(102 + 5, "global_load_dword v%d, %s, off" % (V_TMP + 6, vr(V_TMP + 4, 2)))
        for u in range(4): P(34 * u + 12, "buffer_load_dword v%d, v%d, %s, s%d offen%s" % (V_TMP + u, V_B8, sr(S_WS), S_PS, SC))
    if i == 3:
        P(102 + 24, "s_cmp_eq_u32 s%d, 1" % S_CNT); P(102 + 24, "s_cselect_b32 s%d, 0, 0x40000000" % S_T2)
        P(102 + 25, "s_add_u32 s%d, s%d, 0x%x" % (S_T2, S_T2, FLAG_OFF + 4096))
        P(102 + 28, poll_a()[0])
    if i in (29, 30):
        gaps = [34 * u + g for u in range(4) for g in (5, 12, 24, 28, 32) if i == 29 or (u, g) not in ((0, 24), (3, 24))]
        ops = preload(i)
        assert len(ops) == len(gaps)
        for g, f in zip(gaps, ops):
            m, so, x = f(S_T0)
            if m: P(g - 2, m)
            P(g - 1, so); P(g, x)
        def scalars(g, xs):
            for x in xs:
                while any(cost(I(y)) == 0 or I(y).kind == "vmem" for y in pin.get(g, [])): g += 1
                P(g, x)
            return g
    if i == 29:
        t = V_TMP
        free = [34 * u + g for u in range(4) for g in (10, 14, 16, 20, 26, 30)]
        S1, V, S2, R, S3 = proposal()
        g = scalars(0, S1)
        free = [x for x in free if x > g]
        for x in V:
            g = free.pop(0)
            P(g, x)
        g = scalars(g + 1, S2)
        free = [x for x in free if x > g]
        for x in R: P(free.pop(0), x)
    if i == 30:
        assert scalars(0, proposal()[4]) < 20
        P(16, "v_mov_b32 v33, 0"); P(20, "v_mov_b32 v32, s%d" % S_REM)
        P(24, "buffer_atomic_cmpswap v[32:33], v%d, %s, s%d offen offset:16 sc0 sc1 ;@cas" % (V_L0, sr(S_WS), S_PS))
    if i == 30:
        P(68 + 13, "WAITVM cas"); P(68 + 14, "v_readfirstlane_b32 s54, v32")
        g = scalars(68 + 16, ["s_min_u32 s55, s54, 1", "s_sub_u32 s55, s55, 1", "s_and_b32 s55, s55, s%d" % S_REM, "s_or_b32 s54, s54, s55",
                              "s_lshl_b32 s55, s%d, 2" % S_WAVE, "s_add_u32 s55, s55, %d" % (FLAG_LDS + 16)])
        assert g < 68 + 26
        P(68 + 26, "v_mov_b32 v32, s54"); P(68 + 30, "v_mov_b32 v33, s55")
        P(102 + 10, "ds_write_b32 v33, v32"); P(102 + 14, "v_mov_b32 v33, %d" % (FLAG_LDS + 16))
        P(102 + 26, "ds_read_b32 v32, v33")
        assert scalars(25, late_setup()) < 68
    out, left = schedule(mf, pin, fl)
    assert not left
    if 1 <= i <= 4:
        for pat in OPT.get("drop", []):
            out = [x for x in out if not x.startswith(pat)]
        for pat, a_, b_ in OPT.get("sub", []):
            out = [x.replace(a_, b_) if x.startswith(pat) else x for x in out]
    return out

def proposal():
    mm, t = OPT["mmin"], V_TMP
    S1 = ["s_add_u32 s54, s56, s57", "s_add_u32 s55, s58, s59", "s_add_u32 s54, s54, s55", "s_mul_i32 s54, s54, %d" % OPT["gain"], "s_sub_u32 s54, %d, s54" % (1280 - 768)]
    for n in range(4):
        S1 += ["s_mul_i32 s%d, s%d, %d" % (56 + n, 56 + n, 4 * OPT["gain"]), "s_add_u32 s%d, s%d, s54" % (56 + n, 56 + n), "s_add_u32 s54, s54, %d" % OPT["tie"][n]]
    V = ["v_lshl_add_u32 v%d, v0, 4, s%d" % (t + n, 56 + n) for n in range(4)] + ["v_ashrrev_i32 v%d, 8, v%d" % (t + n, t + n) for n in range(4)] + \
        ["v_med3_i32 v%d, v%d, %d, 20" % (t + n, t + n, mm) for n in range(4)] + \
        ["v_add3_u32 v32, v%d, v%d, v%d" % (t, t + 1, t + 2), "v_add_u32 v32, v32, v%d" % (t + 3), "v_cmp_le_i32 vcc, 20, v32"]
    S2 = ["s_ff1_i32_b64 s54, vcc", "s_and_b32 s54, s54, 63"]
    R = ["v_readlane_b32 s%d, v%d, s54" % (56 + n, t + n) for n in (0, 1, 3)]
    S3 = ["s_add_u32 s57, s57, s56", "s_sub_u32 s59, 20, s59", "s_min_u32 s56, s56, %d" % (20 - 3 * mm), "s_min_u32 s57, s57, %d" % (20 - 2 * mm),
          "s_add_u32 s54, s57, %d" % mm, "s_max_i32 s59, s59, s54", "s_lshl_b32 s57, s57, 8", "s_lshl_b32 s59, s59, 16", "s_or_b32 s56, s56, s57",
          "s_or_b32 s59, s59, 0x14000000", "s_or_b32 s%d, s56, s59" % S_REM]
    if OPT["fixed"]: S3.append("s_mov_b32 s%d, 0x%x" % (S_REM, OPT["fixed"]))
    return S1[:-1], V, S2, R, S3

def poll_a():
    a = V_PA
    return ("buffer_load_dwordx4 %s, v%d, %s, s%d offen%s" % (vr(a), V_FR, sr(S_WS), S_T2, SC),
            ["v_and_b32 v%d, v%d, v%d" % (a, a, a + 1), "v_and_b32 v%d, v%d, v%d" % (a + 2, a + 2, a + 3),
             "v_and_b32 v%d, v%d, v%d" % (a, a, a + 2), "v_cmp_eq_u32 vcc, 0, v%d" % a])

def poll_b():
    return ("buffer_load_dword v%d, v%d, %s, s%d offen%s" % (V_PL, V_B8, sr(S_WS), S_BC, SC), ["v_cmp_eq_u32 vcc, 0, v%d" % V_PL])

def poll_d():
    return ("buffer_load_dword v%d, v%d, %s, s%d offen%s" % (V_PL, V_B8, sr(S_WS), S_DF, SC), ["v_cmp_eq_u32 vcc, 0, v%d" % V_PL])

def spin(name, loads, check):
    return ["L_%s_spin:" % name, "s_mov_b32 s55, 0x%x" % OPT.get("spin", 0x100000), "L_%s_loop:" % name] + (["s_sleep %d" % OPT["sleep"]] if OPT["sleep"] and name == "s" else []) + loads + ["s_sub_u32 s55, s55, 1", "s_waitcnt vmcnt(0)"] + check + \
           ["s_cmp_eq_u32 s55, 0", "s_cbranch_scc1 L_%s_ret" % name, "s_cbranch_vccnz L_%s_loop" % name, "s_branch L_%s_ret" % name]

def guard(name):
    return ["s_cbranch_vccnz L_%s_spin" % name, "L_%s_ret:" % name]

def tail_setup():
    P = srd(S_X, 80, X_BYTES) + srd(S_AUX, 60, 0)
    A = P.append
    j, a, b, c, r = 42, 54, 55, 53, 46
    A("s_bfe_u32 s%d, s2, 0x20001" % j)
    A("s_min_u32 s%d, s%d, 1" % (a, j))
    A("s_sub_u32 s%d, 1, s%d" % (a, a))
    A("s_lshl_b32 s%d, s%d, 28" % (S_AUX + 2, a))
    A("s_lshr_b32 s%d, s2, 5" % a)
    A("s_lshl_b32 s%d, s%d, 1" % (a, a))
    A("s_add_u32 s%d, s%d, s%d" % (a, a, S_HF))
    A("s_lshl_b32 s%d, s%d, 2" % (b, a))
    A("s_add_u32 s%d, s%d, s%d" % (b, b, S_WAVE))
    A("s_mul_i32 s%d, s%d, %d" % (S_XO, b, 32 * 1152))
    A("s_lshr_b32 s%d, s%d, 1" % (a, b))
    A("s_and_b32 s%d, s%d, 1" % (b, b))
    A("s_lshl_b32 s%d, s%d, 2" % (c, a))
    A("s_add_u32 s%d, s%d, s%d" % (c, c, j))
    A("s_lshl_b32 s%d, s%d, 5" % (S_BC, c))
    A("s_add_u32 s%d, s%d, 0x%x" % (S_BC, S_BC, FLAG_OFF))
    A("s_lshl_b32 s%d, s%d, 17" % (S_HA, c))
    A("s_lshl_b32 s%d, s%d, 14" % (S_H2, c))
    A("s_lshl_b32 s%d, s%d, 11" % (c, b))
    A("s_add_u32 s%d, s%d, s%d" % (S_HA, S_HA, c))
    A("s_lshl_b32 s%d, s%d, 10" % (c, b))
    A("s_add_u32 s%d, s%d, s%d" % (S_H2, S_H2, c))
    A("s_lshl_b32 s%d, s%d, 5" % (c, S_RB))
    A("s_add_u32 s%d, s%d, s%d" % (c, c, S_SL))
    A("s_lshl_b32 s%d, s%d, 2" % (c, c))
    A("s_add_u32 s%d, s%d, 0x%x" % (S_BP, c, FLAG_OFF))
    A("s_bfe_u32 s%d, s2, 0x20003" % a)
    A("s_mul_i32 s%d, s%d, 288" % (b, a))
    A("s_add_u32 s%d, s%d, s%d" % (S_XO, S_XO, b))
    A("s_mul_i32 s%d, s%d, 9216" % (a, a))
    A("s_lshl_b32 s%d, s%d, 5" % (b, j))
    A("s_add_u32 s%d, s%d, s%d" % (b, b, S_WAVE))
    A("s_mul_i32 s%d, s%d, %d" % (b, b, SLOT))
    A("s_add_u32 s%d, s%d, s%d" % (c, a, b))
    A("s_mul_i32 s%d, s%d, 28" % (a, j))
    A("s_sub_u32 s%d, 128, s%d" % (a, a))
    A("s_mul_i32 s%d, s%d, %d" % (S_W8, a, SLOT))
    P += rot(r)
    for n in range(9):
        P += ["s_add_u32 s%d, s%d, %d" % (a, r, n), "s_sub_u32 s%d, s%d, 9" % (b, a), "s_min_u32 s%d, s%d, s%d" % (a, a, b),
              "s_lshl_b32 s%d, s%d, 10" % (a, a), "s_add_u32 s%d, s%d, s%d" % (S_TO[n], a, c)]
    A("s_lshl_b32 s%d, s%d, 5" % (a, r))
    A("s_add_u32 s%d, s%d, s%d" % (S_XO, S_XO, a))
    P += slab_base(47)
    A("s_lshl_b32 s%d, s%d, 11" % (a, r))
    A("s_add_u32 s47, s47, s%d" % a)
    for n in range(3):
        A("s_add_u32 s%d, s%d, %d" % (a, j, n + 1))
        A("s_and_b32 s%d, s%d, 3" % (a, a))
        A("s_mul_i32 s%d, s%d, %d" % (a, a, 18 * 1024))
        A("s_add_u32 s%d, s%d, s47" % (S_IN + n, a))
    A("s_lshl_b32 s%d, s%d, 2" % (c, S_WAVE))
    for q in range(4):
        A("s_lshr_b32 s%d, 0x%x, s%d" % (a, sum(v << (4 * k) for k, v in enumerate(SUB[q])), c))
        A("s_and_b32 s%d, s%d, 15" % (a, a))
        A("s_add_u32 s%d, s%d, 4" % (b, a))
        A("s_lshr_b32 s%d, s%d, 4" % (b, b))
        A("s_mul_i32 s%d, s%d, 16320" % (b, b))
        A("s_mul_i32 s%d, s%d, 9216" % (a, a))
        A("s_add_u32 s%d, s%d, s%d" % (S_LB[q], a, b))
    V = ["v_and_b32 v%d, 15, v0" % V_XO, "v_mul_u32_u24 v%d, 1152, v%d" % (V_XO, V_XO), "v_lshrrev_b32 v%d, 4, v0" % (V_XO + 1),
         "v_lshl_add_u32 v%d, v%d, 3, v%d" % (V_XO, V_XO + 1, V_XO), "v_add_u32 v%d, %d, v%d" % (V_XO + 1, 16 * 1152, V_XO)]
    return P, V

def late_setup():
    return srd(S_OUT, 78, X_BYTES) + ["s_lshr_b32 s54, s2, 3", "s_lshl_b32 s54, s54, 1", "s_add_u32 s54, s54, s%d" % S_HF,
            "s_lshl_b32 s54, s54, 2", "s_add_u32 s54, s54, s%d" % S_WAVE, "s_lshl_b32 s54, s54, 4",
            "s_add_u32 s%d, s54, 0x%x" % (S_DF, FLAG_OFF + 8192), "s_bfe_u32 s54, s2, 0x20001", "s_lshl_b32 s54, s54, 2",
            "s_add_u32 s%d, s54, s%d" % (S_DO, S_DF)]

def loop_setup():
    P = srd(S_SEN, 60, WS_BYTES) + slab_base(54)
    A = P.append
    A("s_mov_b32 s%d, 0x20000" % (S_SRC + 3))
    A("s_bfe_u32 s55, s2, 0x20001")
    A("s_mul_i32 s55, s55, %d" % (18 * 1024))
    A("s_add_u32 s%d, s55, s54" % S_SO)
    A("s_lshl_b32 s%d, s2, 2" % S_U)
    A("s_add_u32 s%d, s%d, 0x%x" % (S_AFL, S_U, FLAG_OFF + 4096))
    A("s_add_u32 s%d, s%d, s%d" % (S_U, S_U, S_WAVE))
    A("s_lshl_b32 s%d, s%d, 12" % (S_SCR, S_WAVE))
    A("s_add_u32 s%d, s%d, %d" % (S_SCR, S_SCR, SCR))
    A("s_lshr_b32 s54, s2, 3")
    A("s_lshl_b32 s54, s54, 1")
    A("s_add_u32 s54, s54, s%d" % S_HF)
    A("s_lshl_b32 s54, s54, 6")
    A("s_min_u32 s55, s%d, 1" % S_WAVE)
    A("s_lshl_b32 s55, s55, 30")
    A("s_add_u32 s54, s54, s55")
    A("s_add_u32 s%d, s54, 0x%x" % (S_PS, FLAG_OFF + 12288))
    A("s_bfe_u32 s55, s2, 0x20001")
    A("s_lshl_b32 s55, s55, 2")
    A("s_add_u32 s%d, s%d, s55" % (S_PG, S_PS))
    V = ["v_mov_b32 v%d, -1" % (V_M1 + r) for r in range(4)]
    V += ["v_mov_b32 v%d, 1" % V_1, "v_min_u32 v%d, 1, v0" % V_L0, "v_lshlrev_b32 v%d, 30, v%d" % (V_L0, V_L0),
         "v_add_u32 v%d, 0x10000, v%d" % (V_RD, V_FR), "v_add_u32 v%d, 0x20000, v%d" % (V_RD2, V_FR), "v_lshlrev_b32 v%d, 3, v0" % V_H2,
         "v_add_u32 v%d, 0x1000, v%d" % (V_F4, V_FR), "v_and_b32 v%d, 7, v0" % V_B8, "v_lshlrev_b32 v%d, 2, v%d" % (V_B8, V_B8)]
    return P, V

def accr(job, c, rt): return (VD if job == 0 else VSA) + 8 * c + 4 * rt
RING = [SUBOFF(6), SUBOFF(0), SUBOFF(12)]
V_RA = 12
S_KAP, S_WD, S_AD, S_REM = 47, 48, 42, 53
def stage(name, ring=None):
    k, n = name[0], int(name[1])
    if k == "p": return dict(name=name, job=0, ab=(144, 176, 208, 0)[n], sub=n, lb=S_LB[n], src=n if n < 3 else "h2", init=n == 0)
    if k == "f": return dict(name=name, job=0, ab=(144, 176, 208)[n], ring=n, lb=S_LB[n], src="dyn", init=False)
    r = n % 3 if ring is None else ring
    return dict(name=name, job=1, ab=(32, 64, 96, 0, 144, 176, 208, 32)[n], ring=r, lb=S_LB[r], src=9 + n, init=n == 0)
def act(st, k, rt, n=4, o=0): return ar(st["ab"] + 8 * k + 4 * rt + o, n)

def stage_loads(st):
    w, a = [], []
    src, nm = st["src"], st["name"]
    for c in range(9):
        def f(t, c=c):
            so = "s_add_u32 s%d, s%d, s%d" % (t, S_TO[c], S_W8 if src == "h2" else S_WD) if src in ("h2", "dyn") else \
                 "s_add_u32 s%d, s%d, 0x%x" % (t, S_TO[c], (4 * src if src < 8 else 144 + 4 * (src - 9)) * SLOT)
            return ("s_add_u32 m0, s%d, 0x%x" % (st["lb"], (c + st.get("sp", 0)) * 1024), so,
                    "buffer_load_dwordx4 v%d, %s, s%d offen%s lds ;@w%s" % (V_FR, sr(S_WF), t, SC, nm))
        w.append(f)
    for k in range(4):
        for hf in range(2 if src == "h2" else 1):
            for rt in range(2):
                def f(t, k=k, hf=hf, rt=rt):
                    if src == "h2":
                        return (None, "s_add_u32 s%d, s%d, 0x%x" % (t, S_H2, H2_OFF + k * 4096),
                                "buffer_load_dwordx2 %s, v%d, %s, s%d offen offset:%d%s ;@a%s" %
                                (act(st, k, rt, 2, 2 * hf), V_H2, sr(S_WS), t, hf * 2048 + rt * 512, SC, nm))
                    r, o = (S_AD, H_OFF + k * 4096) if src == "dyn" else \
                           (S_HA, H_OFF + (4 * src + k) * 4096 if src < 8 else O_OFF + (4 * (src - 9) + k) * 4096)
                    return (None, "s_add_u32 s%d, s%d, 0x%x" % (t, r, o),
                            "buffer_load_dwordx4 %s, v%d, %s, s%d offen offset:%d%s ;@a%s" % (act(st, k, rt), V_FR, sr(S_WS), t, rt * 1024, SC, nm))
                a.append(f)
    return w, a

def preload(i):
    w, a = zip(*[stage_loads(stage("p%d" % n)) for n in range(3)])
    return {29: a[0] + a[1] + a[2][:1] + w[0][:3], 30: w[0][3:] + w[1] + a[2][1:4], 31: w[2] + a[2][4:]}[i]

def wread(st, c, buf):
    out = []
    for k in range(4):
        if "sub" in st:
            off = SUBOFF(SUB[st["sub"]][k]) + (c + st.get("sp", 0)) * 1024
            adr, off = (V_FR, V_RD, V_RD2)[off >> 16], off & 0xffff
        else:
            adr, off = V_RA + st["ring"], k * 9216 + c * 1024
        out.append("ds_read_b128 %s, v%d offset:%d" % (vr(WBUF[buf] + 4 * k), adr, off))
    return out[::2] if OPT.get("emu8") else out

def inreg(job, c, n): return (VD if job == 0 else VSA) + 24 + 12 * c + 4 * n
def fetch(job):
    return ["buffer_load_dwordx4 %s, v%d, %s, s%d offen offset:%d%s ;@in%d" %
            (vr(inreg(job, c, n)), V_FR if c < 2 else V_F4, sr(S_WS if c < 2 else S_AUX), S_IN + n, (c & 1) * 2048 + job * 1024, SC, job)
            for c in range(3) for n in range(3)] + \
           ["buffer_load_dwordx4 %s, v4, %s, s%d offen offset:%d%s ;@in%d" % (ar(144 + 12 * c + 4 * n), sr(S_WS), S_IN + n, (c & 1) * 2048 + job * 1024, SC, job)
            for c in range(2) for n in range(3) if OPT.get("emux")]
def arrived(job):
    b = inreg(job, 0, 0)
    P = ["v_max3_u32 v%d, v%d, v%d, v%d" % (VT + q, b + 9 * q, b + 9 * q + 1, b + 9 * q + 2) for q in range(4)]
    for k in range(3):
        P += ["v_max3_u32 v%d, v%d, v%d, v%d" % (VT + q, VT + q, b + 9 * q + 3 + 2 * k, b + 9 * q + 4 + 2 * k) for q in range(4)]
    return P + ["v_max3_u32 v%d, v%d, v%d, v%d" % (VT, VT, VT + 1, VT + 2), "v_max_u32 v%d, v%d, v%d" % (VT, VT, VT + 3), "v_cmp_eq_u32 vcc, -1, v%d" % VT]
def gather(job, c):
    return [mfma(vr(accr(job, c, rt)), vr(VSEL + 2 - 2 * rt), vr(inreg(job, c, n)), vr(accr(job, c, rt))) for rt in range(2) for n in range(3)]
def sel_setup():
    z, t = VSEL, VT
    return ["v_mov_b32 v%d, 0" % (z + r) for r in (0, 1, 4, 5)] + \
           ["v_bfe_u32 v%d, v0, 2, 2" % t, "v_lshrrev_b32 v%d, 4, v0" % (t + 1), "v_xor_b32 v%d, v%d, v%d" % (t, t, t + 1), "v_min_u32 v%d, 1, v%d" % (t, t),
            "v_sub_u32 v%d, 1, v%d" % (t, t), "v_mul_u32_u24 v%d, 0x3f80, v%d" % (t, t), "v_and_b32 v%d, 1, v0" % (t + 1), "v_lshlrev_b32 v%d, 4, v%d" % (t + 1, t + 1),
            "v_lshlrev_b32 v%d, v%d, v%d" % (t, t + 1, t), "v_bfe_i32 v%d, v0, 1, 1" % (t + 1), "v_and_b32 v%d, v%d, v%d" % (z + 3, t, t + 1),
            "v_xor_b32 v%d, v%d, v%d" % (z + 2, t, z + 3)]

class Seg:
    def __init__(self, seq, nxt=None):
        self.mf, self.pin, self.fl, self.done, self.ins = [], {}, [], {}, {}
        ext = seq + ([(nxt, c) for c in range(3)] if nxt else [])
        self.start = {}
        for n, (st, c) in enumerate(ext): self.start.setdefault(st["name"], 8 * n)
        for n, (st, c) in enumerate(seq):
            g0 = len(self.mf)
            for e, rt in enumerate(snake(2, n, "T")):
                d = vr(accr(st["job"], c, rt))
                for q, k in enumerate(snake(4, e, "t")):
                    self.mf.append(mfma(d, vr(WBUF[n % 3] + 4 * k), act(st, k, rt), "0" if st["init"] and q == 0 else d))
            self.done[(st["job"], c)] = len(self.mf) - 1
            if n + 2 < len(ext):
                for i, x in enumerate(wread(ext[n + 2][0], ext[n + 2][1], (n + 2) % 3)): self.P(g0 + i, x)
            lw = "lgkmcnt(%d)" % ((2 if OPT.get("emu8") else 4) if n + 2 < len(ext) else 0)
            nxw = [q for q, g in self.start.items() if g == g0 + 24]
            nxa = [q for q, g in self.start.items() if g == g0 + 8 and q != "own"]
            if nxw:
                self.P(g0 + 7, "WAITVM w%s %s" % (nxw[0], lw)); self.P(g0 + 7, "s_barrier")
            elif nxa:
                self.P(g0 + 7, "WAITVM a%s %s" % (nxa[0], lw))
            elif n + 1 < len(ext):
                self.P(g0 + 7, "s_waitcnt " + lw)
    def P(self, g, x): self.pin.setdefault(g, []).append(x)
    def put(self, g, f):
        m, so, x = f({4: S_T0, 5: S_AD, 6: S_T3}[g % 8])
        if m: self.P(g - 3 if g % 8 == 4 else g - 1, m)
        self.P(g - 2 if g % 8 == 5 else g - 4, so); self.P(g, x)
    def issue(self, g0, st, poll):
        w, a = stage_loads(st)
        for n, f in enumerate(w[:8] + a[:6] + w[8:] + a[6:]):
            if not (OPT.get("emu8") and n < 8 and n % 2): self.put(g0 + 8 * (n // 2) + 4 + 2 * (n % 2), f)
        if poll and not OPT["latepoll"]: self.P(g0 + 70, poll_b()[0] + " ;@pb")
    def advance(self, g0):
        for k, x in enumerate(["s_add_u32 s%d, s%d, 4" % (S_KAP, S_KAP), "s_and_b32 s54, s%d, 31" % S_KAP, "s_sub_u32 s54, s54, 1", "s_lshr_b32 s54, s54, 31",
                               "s_mul_i32 s54, s54, 12", "s_add_u32 s%d, s%d, s54" % (S_KAP, S_KAP), "s_lshl_b32 s54, s%d, 12" % S_KAP,
                               "s_mul_i32 s%d, s%d, %d" % (S_WD, S_KAP, SLOT), "s_add_u32 s%d, s%d, s54" % (S_AD, S_HA)]):
            self.P(g0 + 8 * k + 3, x)
    def spot(self, g):
        while self.pin.get(g) or g % 8 < 4: g += 1
        return g
    def flag(self, g, tag, soff):
        if tag in OPT.get("wb", ()):
            self.P(g - 44, "WAITVM " + tag)
            self.P(self.spot(g - 40), "buffer_wbl2 sc1 ;@" + tag)
        self.P(g - 4, "WAITVM " + tag)
        self.P(self.spot(g), "buffer_store_dword v%d, v%d, %s, s%d offen%s" % (V_1, V_L0, sr(S_WS), soff, SC))
    def code(self, cap=2, head=None):
        mf, pin, fl, o = self.mf, self.pin, self.fl, 0
        if head:
            mf0, pin0, fl0 = head
            o = len(mf0)
            for g, xs in pin.items(): pin0[g + o] = xs
            for f in fl:
                f.lo += o
                if f.hi is not None: f.hi += o
            mf, pin, fl = mf0 + mf, pin0, fl0 + fl
        out, left = schedule(mf, pin, fl, cap=cap)
        for tag in OPT.get("plain", ()):
            out = [x.replace(SC, OPT.get("plainf", "")) if x.startswith("buffer_store") and x.endswith(";@" + tag) else x for x in out]
        idx = [i for i, x in enumerate(out) if x.startswith("v_mfma")][o:]
        for g in sorted(self.ins, reverse=True): out[idx[g]:idx[g]] = self.ins[g]
        return out, [f.i.text for f in left]

def full(names, **kw): return [(stage(n, **kw), c) for n in names for c in range(9)]
def count_down(S, g0):
    S.P(g0 + 69, "s_sub_u32 s%d, s%d, 1" % (S_REM, S_REM)); S.P(g0 + 71, "s_cmp_le_i32 s%d, 2" % S_REM)

def seg_prefix():
    st = OPT["st"]
    S = Seg(full(["p0", "p1", "p2"]), stage("p3"))
    w, a = stage_loads(stage("p3"))
    pos = [8 * (n // 2) + 4 + 2 * (n % 2) for n in range(36)]
    slots = [pos[(n * 36) // 25] for n in range(25)]
    assert slots[9] >= OPT["a3"]
    for g, f in zip(slots, w + a): S.put(g, f)
    S.issue(144, stage("f0"), True); S.advance(144)
    S.P(144 + 71, "s_cmp_le_i32 s%d, 1" % S_REM)
    S.flag(OPT["ogap"], "o", S_BP)
    sc = ["s_mul_i32 s%d, s%d, 9216" % (S_LB[1], S_WAVE), "s_add_u32 s%d, s%d, %d" % (S_LB[2], S_LB[1], RING[2]),
          "s_bfe_u32 s54, s2, 0x20001", "s_lshl_b32 s55, s54, 3", "s_lshl_b32 s%d, s%d, 8" % (S_KAP, S_REM), "s_lshr_b32 s%d, s%d, s55" % (S_KAP, S_KAP),
          "s_and_b32 s%d, s%d, 31" % (S_KAP, S_KAP), "s_lshr_b32 s%d, s%d, s55" % (S_REM, S_REM), "s_and_b32 s%d, s%d, 31" % (S_REM, S_REM),
          "s_sub_u32 s%d, s%d, s%d" % (S_REM, S_REM, S_KAP), "s_mul_i32 s55, s%d, 52" % S_KAP, "s_lshr_b32 s55, s55, 8", "s_mul_i32 s55, s55, 3",
          "s_add_u32 s%d, s%d, s55" % (S_KAP, S_KAP), "s_add_u32 s%d, s%d, 3" % (S_KAP, S_KAP), "s_lshl_b32 s54, s54, 3", "s_sub_u32 s%d, s%d, s54" % (S_KAP, S_KAP),
          "s_lshl_b32 s%d, s%d, 2" % (S_KAP, S_KAP), "s_lshl_b32 s54, s%d, 12" % S_KAP, "s_mul_i32 s%d, s%d, %d" % (S_WD, S_KAP, SLOT),
          "s_add_u32 s%d, s%d, s54" % (S_AD, S_HA)]
    g = 0
    for x in sc:
        while g % 8 > 3 or any(cost(I(y)) == 0 for y in S.pin.get(g, [])): g += 1
        S.P(g, x)
    assert g < 140
    for r in range(3): S.P(144 + r, "v_add_u32 v%d, %d, v%d" % (V_RA + r, RING[r], V_FR))
    S.ins = {0: st("tail0"), 144: st("g2")}
    out, left = S.code(cap=lambda g: OPT["cap31"] if g < 72 else OPT["ocap"], head=step_last())
    assert not left
    if OPT.get("verbose"):
        n = 0
        for x in out:
            n += x.startswith("v_mfma")
            if ";@o" in x: print("O store at", n - 72)
    return out

def seg_p3():
    S = Seg(full(["p3"]), stage("f0"))
    S.issue(0, stage("f1"), True); S.advance(0)
    S.P(71, "s_cmp_le_i32 s%d, 2" % S_REM)
    return S.code()[0] + OPT["st"]("g4")

def seg_flex(ph):
    S = Seg(full(["f%d" % ph]), stage("f%d" % ((ph + 1) % 3)))
    S.issue(0, stage("f%d" % ((ph + 2) % 3)), True); S.advance(0); count_down(S, 0)
    return S.code()[0]

def seg_bridge(v):
    ph = min(v, 2)
    b0, b1 = stage("b0", (ph + 2) % 3), stage("b1", ph)
    S = Seg(full(["f%d" % ph if v < 3 else "p3", "f%d" % ((ph + 1) % 3)]), b0)
    S.issue(0, b0, False); S.issue(72, b1, False)
    if OPT["latepoll"]: S.P(7, poll_b()[0] + " ;@pb")
    S.P(27, "WAITVM pb"); S.P(27, poll_b()[1][0])
    S.ins = {0: OPT["st"]("br"), 32: OPT["st"]("preb") + guard("b%d" % v) + OPT["st"]("postb")}
    if ph != 1:
        o = (0, 1, 2) if ph == 2 else (2, 1, 0)
        for k, (d, a_) in enumerate(((None, o[0]), (o[0], o[1]), (o[1], o[2]), (o[2], None))):
            S.P(72 + (65, 66, 67, 69)[k], "s_mov_b32 s%d, s%d" % (54 if d is None else S_LB[d], 54 if a_ is None else S_LB[a_]))
            S.P(72 + (69, 69, 70, 70)[k], "v_mov_b32 v%d, v%d" % (15 if d is None else V_RA + d, 15 if a_ is None else V_RA + a_))
    return S.code()[0]

def seg_rest():
    st, D = OPT["st"], OPT["defer"]
    B = [stage("b%d" % n) for n in range(8)]
    own = {n: dict(B[n], name="own") for n in range(8 - D, 8)}
    for n in range(8 - D, 5): own[n].update(sub=4, sp=2 * (n - 2), lb=S_LB[3])
    S = Seg([(B[n], c) for n in range(8) for c in range(9) if n < 8 - D or c > 1] + [(own[n], c) for c in range(2) for n in range(8 - D, 8)])
    for k, x in enumerate(["s_and_b32 s54, s%d, 1" % S_WAVE, "s_mul_i32 s54, s54, 9216", "s_lshr_b32 s55, s%d, 1" % S_WAVE, "s_mul_i32 s55, s55, %d" % (6 * 9216),
                           "s_add_u32 s54, s54, s55", "s_add_u32 s%d, s54, %d" % (S_LB[3], 4 * 9216)]):
        S.P(8 * k + 11, x)
    for n in range(6):
        g0 = S.start["b%d" % n]
        if n + 2 < 8 - D:
            S.issue(g0, B[n + 2], False)
        else:
            w, a = stage_loads(B[n + 2])
            pa, p8 = ((28, 30, 36, 38, 44, 52, 62, 68), 60) if n < 8 - D else ((28, 29, 30, 36, 38, 46, 52, 54), 44)
            for g, f in list(zip((4, 6, 12, 14, 20, 22, p8), w[2:])) + list(zip(pa, a)): S.put(g0 + g, f)
    late = [stage_loads(own[n])[0][c] for c in range(2) for n in range(8 - D, 8)]
    for k, f in enumerate(late): S.put(S.start["b6"] + 8 * (k // 2) + 4 + 2 * (k % 2), f)
    S.P(3, "v_and_b32 v%d, 12, v%d" % (V_B8, V_B8))
    if OPT.get("emux"): S.P(2, "v_add_u32 v4, 0x1400000, v1")
    if OPT["pf3"]:
        g = 72
        for k, x in enumerate(["s_lshr_b32 s47, s2, 3", "s_lshl_b32 s47, s47, 2", "s_add_u32 s47, s47, s%d" % S_WAVE, "s_lshl_b32 s47, s47, 6",
                               "s_add_u32 s47, s47, %d" % OPT["pf3o"], "s_min_u32 s47, s47, L_k2_last-L_k2_pc3", "s_getpc_b64 s[54:55]\nL_k2_pc3:"]):
            S.P(g + 8 * k + 3, x)
        g = OPT["pf3"]
        S.P(g, "v_mov_b32 v84, s47"); S.P(g + 1, "v_mov_b32 v85, s55"); S.P(g + 2, "v_add_co_u32 v84, vcc, s54, v84")
        S.P(g + 8, "v_addc_co_u32 v85, vcc, 0, v85, vcc")
        S.P(S.spot(g + 10), "global_load_dword v86, v[84:85], off")
    S.flag(OPT["dflag"], "p0", S_DO)
    g = S.start["own"] + OPT["dget"]
    S.P(S.spot(g - OPT["pollahead"]), poll_d()[0] + " ;@pd")
    S.P(g - 5, "WAITVM pd"); S.P(g - 5, poll_d()[1][0])
    S.ins = {0: st("rest"), g: st("pred") + guard("d") + st("postd")}
    for x in fetch(0):
        g = S.spot(g)
        S.P(g, x)
    gd = len(S.mf) - 8 * OPT["gdend"]
    assert gd - 5 > g
    S.P(gd - 5, "WAITVM in0")
    S.ins[gd] = st("gd") + gather(0, 0) + gather(0, 1) + gather(0, 2)
    for q in ("b4", "b6", "b7", "own"): S.ins.setdefault(S.start[q], st(q))
    fl = S.fl
    for job in range(2):
        for c in range(2, 9):
            lo = S.done[(1, c)] + 6 if job else 6 + (c - 2) * OPT["dsp"]
            hi = OPT["dflag"] - 12 if job == 0 else None
            b = VPK[c - 2]
            for rt in range(2):
                for h in range(2):
                    r = accr(job, c, rt) + 2 * h
                    fl.append(Flt("v_cvt_pk_bf16_f32 v%d, v%d, v%d" % (b + 2 * rt + h, r, r + 1), lo, hi))
            if job == 1:
                for q in range(4): fl.append(Flt("v_min_u32 v%d, -2, v%d" % (b + q, b + q), lo, hi))
            fl.append(Flt("buffer_store_dwordx4 %s, v%d, %s, s%d offen offset:%d%s" % (vr(b), V_FR, sr(S_WS), S_PUB + c, job * 1024, SC) + " ;@p%d" % job, lo, hi))
            if OPT.get("emux"):
                fl.append(Flt("buffer_store_dwordx4 %s, v4, %s, s%d offen offset:%d%s" % (vr(b), sr(S_WS), S_PUB + c, job * 1024, SC) + " ;@p%d" % job, lo, hi))
        if job == 0:
            fl += [Flt(x, 6, gd - 4) for x in sel_setup()]
            fl += [Flt(x, 6) for x in ("v_and_b32 v5, 15, v0", "v_mul_u32_u24 v5, 1152, v5", "v_lshrrev_b32 v6, 5, v0", "v_lshl_add_u32 v5, v6, 4, v5",
                                       "v_bfe_u32 v6, v0, 4, 1", "v_mul_u32_u24 v15, %d, v6" % (16 * 1152), "v_add3_u32 v15, v15, v5, 64",
                                       "v_lshl_add_u32 v5, v6, 5, v5", "v_add_u32 v6, %d, v5" % (16 * 1152))]
            fl += [Flt("v_accvgpr_read_b32 v%d, a%d" % (VXX + r, AX + r), 6) for r in range(12)]
    fl += [Flt(x, S.done[(1, 8)] + 6 + OPT["sdel"]) for x in fetch(1)]
    for c in range(3):
        d, t = accr(0, c, 0), (VT, 64, VT)[c]
        for op in ("v_mul_f32 v%%d, s%d, v%%d" % S_NL2E, "v_exp_f32 v%d, v%d", "v_add_f32 v%d, 1.0, v%d", "v_rcp_f32 v%d, v%d"):
            fl += [Flt(op % (t + r, d + r if "mul" in op else t + r), gd + 5) for r in range(8)]
        fl += [Flt("v_mul_f32 v%d, v%d, v%d" % (d + r, d + r, t + r), gd + 5) for r in range(8)]
        for q in range(4):
            fl.append(Flt("v_lshlrev_b32 v%d, 16, v%d" % (XF + 8 * c + 2 * q, VXX + 4 * c + q), gd + 5))
            fl.append(Flt("v_and_b32 v%d, 0xffff0000, v%d" % (XF + 8 * c + 2 * q + 1, VXX + 4 * c + q), gd + 5))
    out, left = S.code()
    return out + st("mlast") + left

def combine(st):
    P = st("dmath") + ["s_waitcnt vmcnt(0)"] + arrived(1) + guard("s") + st("sarr")
    def wide(q, adr, parts):
        o = []
        for n, (c, rt) in enumerate(parts):
            f = XF + 8 * c + 4 * rt
            o += ["v_fmac_f32 v%d, v%d, v%d" % (f + r, accr(1, c, rt) + r, accr(0, c, rt) + r) for r in range(4)]
        for n, (c, rt) in enumerate(parts):
            f = XF + 8 * c + 4 * rt
            o += ["v_cvt_pk_bf16_f32 v%d, v%d, v%d" % (q + 2 * n + h, f + 2 * h, f + 2 * h + 1) for h in range(2)]
        return o + ["s_nop 0", "v_permlane16_swap_b32 v%d, v%d" % (q, q + 2), "v_permlane16_swap_b32 v%d, v%d" % (q + 1, q + 3),
                    "buffer_store_dwordx4 %s, v%d, %s, s%d offen" % (vr(q), adr, sr(S_OUT), S_XO) + OPT["outf"]]
    g0, g1, g2 = gather(1, 0), gather(1, 1), gather(1, 2)
    w0 = wide(VXX, 5, ((0, 0), (1, 0)))
    P += g0[:3] + g1[:3] + g0[3:] + g1[3:]
    for m in g2:
        P += [m] + w0[:2]
        w0 = w0[2:]
    P += w0 + wide(VXX + 4, 6, ((0, 1), (1, 1)))
    P += st("u2") + ["s_cmp_lg_u32 s%d, 0" % (S_AUX + 2), "s_cbranch_scc0 L_k2_done"]
    return P + wide(VXX + 8, 15, ((2, 0), (2, 1)))

def step_last():
    par = 1
    mf, pin, fl = [], {}, []
    P = lambda g, x: pin.setdefault(g, []).append(x)
    P(0, C(par, 3, 3, 0)); P(1, E(3, 2)); P(3, E(3, 3)); P(4, C(par, 3, 3, 1))
    P(2, "v_readfirstlane_b32 s%d, v32" % S_REM)
    ends = {}
    for u in range(4):
        g0 = len(mf)
        mf += pv(VKF if u % 2 == 0 else VVF, par, u, False)
        ends[u] = len(mf) - 1
        if u < 3:
            tr = vread(VVF if u % 2 == 0 else VKF, 31, u + 1)
            gs = (0, 2, 4, 5, 6, 7, 8, 9) if u == 0 else range(8)
            for g, k in zip(gs, range(8)): P(g0 + g, tr[k])
        if u == 0:
            for t in range(4): mf += psum(par, t, False)
            lsum = len(mf) - 1
        if u < 2: P(len(mf) - 1, "s_waitcnt lgkmcnt(0)")
    RL = V_TMP
    for t in range(4):
        P(24 + 2 * t, "v_accvgpr_read_b32 v%d, a%d" % (RL + 4 + t, 128 + 4 * t))
        P(32 + t, "v_rcp_f32 v%d, v%d" % (RL + t, RL + 4 + t))
    P(36, "v_add_f32 v33, v%d, v%d" % (RL + 4, RL + 5)); P(36, "v_add_f32 v34, v%d, v%d" % (RL + 6, RL + 7))
    P(36, "s_lshl_b32 s55, s%d, 2" % S_WAVE); P(37, "s_add_u32 s55, s55, %d" % FLAG_LDS)
    P(37, "v_add_f32 v33, v33, v34"); P(37, "v_mov_b32 v32, %d" % FLAG_LDS)
    P(38, "v_cmp_nge_f32 vcc, %s, v33" % f32(2.0 ** 40)); P(38, "v_mov_b32 v34, s55")
    P(41, "s_or_b32 s54, vcc_lo, vcc_hi")
    P(42, "v_mov_b32 v33, s54")
    P(48, "ds_write_b32 v34, v33")
    P(55, "WAITVM wp0 lgkmcnt(0)"); P(55, "s_barrier")
    P(56, "ds_read_b128 v[36:39], v32")
    for k, x in enumerate(wread(stage("p0"), 0, 0)): P(57 + k, x)
    P(60, "s_waitcnt lgkmcnt(3)"); P(60, "v_or3_b32 v36, v36, v37, v38")
    P(61, "v_or_b32 v36, v36, v39")
    P(62, "v_readfirstlane_b32 s54, v36")
    P(63, "s_andn2_b32 s54, s54, s%d" % S_REDO); P(63, "s_cbranch_scc1 L_k2_redo")
    for k, x in enumerate(wread(stage("p0"), 1, 1)): P(64 + k, x)
    P(71, "WAITVM ap0 lgkmcnt(4)")
    tmp = [VP[0][0], VP[0][0] + 8, VP[0][1], VP[0][1] + 8]
    k = 0
    for u in range(4):
        for t in range(4):
            b = tmp[k % 4]; k += 1
            lo = max(ends[u] + 6, 37)
            for d in range(2):
                for r in range(4):
                    fl.append(Flt("v_accvgpr_read_b32 v%d, a%d" % (b + 4 * d + r, 16 * (2 * u + d) + 4 * t + r), ends[u] + 6, 72 + OPT["a3"] - 2 if u == 0 else None))
            for r in range(8): fl.append(Flt("v_mul_f32 v%d, v%d, v%d" % (b + r, b + r, RL + t), lo))
            for r in range(4): fl.append(Flt("v_cvt_pk_bf16_f32 v%d, v%d, v%d" % (b + r, b + 2 * r, b + 2 * r + 1), lo))
            fl.append(Flt("buffer_store_dwordx4 %s, v%d, %s, s%d offen offset:%d" % (vr(b), V_FR, sr(S_WS), 56 + u, t * 1024) + SC + " ;@o", max(lo, OPT["o0"] + (k - 1) * OPT["odt"]),
                          72 + OPT["ogap"] - 8))
    for u in range(4): P(4 + u, "s_add_u32 s%d, s%d, %d" % (56 + u, S_OST, u * 4096))
    free = [g for g in range(10, 70) if not pin.get(g)]
    ops = preload(31)
    for n, f in enumerate(ops):
        g = free[(n * len(free)) // len(ops)]
        for y in f(S_T0):
            if y: P(g, y)
    return mf, pin, fl

def redo():
    P = []
    A = P.append
    A("L_k2_redo:")
    A("s_mov_b32 s%d, -1" % S_REDO)
    A("s_waitcnt vmcnt(0) lgkmcnt(0)")
    A("s_barrier")
    for pre, x in kv_dmas("k", 0, "k0") + kv_dmas("k", 1, "s0") + kv_dmas("k", 2, "s0") + kv_dmas("v", 0, "s0") + kv_dmas("v", 1, "s0"):
        P += pre + [x]
    A("v_and_b32 v32, 15, v0")
    A("v_lshlrev_b32 v32, 8, v32")
    A("v_lshrrev_b32 v%d, 4, v0" % V_TMP)
    A("v_lshl_add_u32 v32, v%d, 4, v32" % V_TMP)
    A("s_lshl_b32 s54, s%d, 19" % S_SL)
    A("s_mov_b32 s55, 128")
    for r in range(16): A("v_mov_b32 v%d, 0xff800000" % (56 + r))
    B = []
    A = B.append
    for ks in range(4):
        A("buffer_load_dwordx4 %s, v32, %s, s54 offen offset:%d" % (vr(VKF + 4 * ks), sr(S_K), ks * 64))
    A("s_waitcnt vmcnt(0)")
    for t in range(4): B += qk(VKF, t, "0")
    A("s_nop 7")
    for r in range(16): A("v_max_f32 v%d, v%d, v%d" % (56 + r, 56 + r, VS + r))
    A("s_add_u32 s54, s54, 4096")
    A("s_sub_u32 s55, s55, 1")
    A("s_cmp_lg_u32 s55, 0")
    A("s_cbranch_scc1 L_k2_maxloop")
    T = rowmax(56) + ["s_getpc_b64 s[54:55]", "v_mov_b32 v%d, s54" % (V_TMP + 4), "v_mov_b32 v%d, s55" % (V_TMP + 5), "s_barrier"] + kread(VKF, 0, 0) + ["s_waitcnt lgkmcnt(0)", "s_branch L_k2_attn"]
    return P, B, T

def isize(i):
    lit = any(re.match(r"^(0x[0-9a-f]+|-?\d+|L_.*)$", o) and not (re.match(r"^-?\d+$", o) and -16 <= int(o) <= 64) and
              not (o.startswith("0x") and int(o, 16) <= 64) for o in i.ops)
    if i.kind in ("mfma", "lds", "vmem", "smem"): return 8
    if i.kind == "wait" or i.op.startswith("s_cbranch") or i.op in ("s_branch", "s_nop", "s_barrier", "s_endpgm", "s_sleep"): return 4
    if i.kind == "salu": return 8 if lit else 4
    call = i.op.replace("_e64", "")
    if call != i.op: return 8
    short = ("v_exp_f32", "v_rcp_f32", "v_mov_b32", "v_mul_f32", "v_add_f32", "v_sub_f32", "v_max_f32", "v_min_u32", "v_max_u32", "v_and_b32", "v_or_b32", "v_xor_b32",
             "v_lshlrev_b32", "v_lshrrev_b32", "v_ashrrev_i32", "v_add_u32", "v_sub_u32", "v_mul_u32_u24", "v_fmac_f32", "v_readfirstlane_b32", "v_permlane16_swap_b32",
             "v_permlane32_swap_b32", "v_add_co_u32", "v_addc_co_u32")
    if call in short or call.startswith("v_cmp"): return 8 if lit else 4
    return 8

def align8(lines, mode):
    flat = [x for l in lines for x in l.split("\n")]
    ins = [I(x) for x in flat]
    out, pos = [], 0
    wide = ("v_exp_f32", "v_rcp_f32", "v_mov_b32", "v_mul_f32", "v_add_f32", "v_min_u32", "v_lshlrev_b32")
    for n, (x, i) in enumerate(zip(flat, ins)):
        if i.kind == "none":
            if x.startswith(".p2align"): pos = 0
            out.append(x); continue
        sz = isize(i)
        if sz == 4 and i.op in wide:
            k, p = n + 1, pos + 4
            while k < len(ins) and (ins[k].kind == "none" or (isize(ins[k]) == 4 and ins[k].op not in wide)):
                p += 0 if ins[k].kind == "none" else 4
                k += 1
            if k < len(ins) and isize(ins[k]) == 8 and p % 8 == (4 if mode == 1 else 0):
                x, sz = x.replace(i.op, i.op + "_e64", 1), 8
        out.append(x); pos += sz
    return out

def gen(stamp=False):
    clk = OPT.get("clk", "s_memrealtime")
    st = lambda n: ["%s s[100:101]" % clk, "s_waitcnt lgkmcnt(0)", "s_mov_b32 s%d, s100" % (92 + n)] if stamp else []
    names = OPT.get("stamps", ["start", "gemm0", "gemm1", "tail0", "tail1", "dmath", "sarr", "end"])
    st0 = st
    OPT["st"] = st = lambda nm: st0(names.index(nm)) if nm in names else []
    S = setup(st)
    S += st("p0")
    S += srd(S_WU, 66, WG_BYTES)
    alu = (["CODEPF"] if not OPT["pf0"] else []) + setup2()
    for unit in range(2):
        r = 56 + 2 * unit
        alu += unit_line(r, unit) + ["s_lshl_b32 s%d, s%d, 13" % (r, r), "s_add_u32 s%d, s%d, s%d" % (r, r, S_HST), "s_add_u32 s%d, s%d, 4096" % (r + 1, r)]
    kg = lambda n: [xn_load(ks, rt) for ks in range(3 * n, 3 * n + 3) for rt in range(4)]
    ld = (kg(0) + chunk_dmas(TS[0]) if OPT["xfirst"] else chunk_dmas(TS[0]) + kg(0)) + kg(1)[:OPT["k1n"]]
    for n, (pre, x) in enumerate(ld):
        S += pre + [x]
        if n >= OPT["mix0"]:
            k = OPT["mix"] + (len(alu) > OPT["mix"] and alu[OPT["mix"]].startswith("s_addc"))
            S += alu[:k]; alu = alu[k:]
    S += alu + st("p2")
    S += ["WAITVM c0 lgkmcnt(0)"] + st("p3") + ["s_barrier"] + treads(0, 0, 0) + ["WAITVM x0 lgkmcnt(0)"]
    G = ["; ---- projections: h = sigmoid(xn Wg) * (xn Wu) for 144 columns, q = xn Wq * log2(e) / sqrt(128) for one head (xn resident in registers)"] + \
        st("gemm0") + projection() + st("gemm1") + ["; ---- exponent reference per row: score of key 0 plus a constant (checked at the end, true maximum on the fallback path)"] + first_ref() + st("max")
    if OPT.get("cut"): G += ["v_min_u32 v%d, 1, v0" % V_L0, "v_lshlrev_b32 v%d, 30, v%d" % (V_L0, V_L0), "s_branch L_k2_done"]
    PRE = step_pre()
    S0 = st("pre") + step(0) + st("s0") + ["s_mov_b32 s%d, 7" % S_CNT]
    BODY = step(1) + step(2) + step(3) + step(4, ["s_sub_u32 s%d, s%d, 1" % (S_CNT, S_CNT), "s_cmp_lg_u32 s%d, 0" % S_CNT])
    br = ["s_cbranch_scc1 L_k2_loop"]
    T0 = resolve_waits(st("loop") + ["s_waitcnt vmcnt(17)", "v_add_u32 v%d, v%d, v%d" % (V_TMP, V_TMP, V_TMP + 1),
                        "v_add3_u32 v%d, v%d, v%d, v%d" % (V_TMP, V_TMP, V_TMP + 2, V_TMP + 3)] + poll_a()[1] +
                       ["v_readlane_b32 s%d, v%d, %d" % (56 + n, V_TMP, n) for n in range(4)] + guard("a") + step(29) + st("s29") + step(30) + st("s30") + seg_prefix())
    def after(prev, cur):
        pv_ = [x for x in prev if I(x).kind == "vmem"]
        return resolve_waits(pv_ + cur)[len(pv_):]
    FX = [after(seg_flex((ph + 2) % 3), seg_flex(ph)) for ph in range(3)]
    BR = [after(seg_flex((min(v, 2) + 2) % 3), seg_bridge(v)) for v in range(4)]
    T1 = T0 + ["s_cbranch_scc1 L_k2_br3"]
    T0 = T1 + after(seg_flex(1), seg_p3())
    RS = after(seg_bridge(1), seg_rest() + st("tail1") + combine(st))
    jb = lambda ph: ["s_cbranch_scc1 L_k2_br%d" % ph]
    TAIL = T0 + jb(0) + ["L_k2_flex:", "; ---- stages of d assigned by progress among the four workgroups of a tile"] + FX[0] + jb(1) + FX[1] + jb(2) + FX[2] + ["s_cbranch_scc0 L_k2_flex", "L_k2_br0:"] + BR[0] + ["L_k2_rest:", "; ---- s = O W_o, exchange of the partial tiles, out = x + s * silu(d)"] + RS
    SIDE = ["L_k2_br1:"] + BR[1] + ["s_branch L_k2_rest", "L_k2_br2:"] + BR[2] + ["s_branch L_k2_rest", "L_k2_br3:"] + BR[3] + ["s_branch L_k2_rest"]
    D = ["L_k2_done:"]
    if stamp:
        D += st("done") + ["s_waitcnt vmcnt(0)"] + st("end") + ["v_mov_b32 v%d, s%d" % (16 + n, 92 + n) for n in range(8)] + \
             ["s_lshl_b32 s54, s2, 2", "s_add_u32 s54, s54, s%d" % S_WAVE, "s_lshl_b32 s54, s54, 5", "s_add_u32 s54, s54, 0x%x" % STAMP_OFF,
              "buffer_store_dwordx4 v[16:19], v%d, %s, s54 offen" % (V_L0, sr(S_WS)), "buffer_store_dwordx4 v[20:23], v%d, %s, s54 offen offset:16" % (V_L0, sr(S_WS))]
    D += ["L_k2_end:", "s_endpgm"]
    R0, RB, RT = redo()
    R0 = resolve_waits(R0)
    strip = lambda xs: [x.split(";@")[0].rstrip() for x in xs]
    SP = spin("a", [poll_a()[0]], poll_a()[1]) + sum([spin("b%d" % ph, [poll_b()[0]], poll_b()[1]) for ph in range(4)], []) + spin("d", [poll_d()[0]], poll_d()[1]) + spin("s", strip(fetch(1)), arrived(1))
    rest = ["; ---- attention steps: P V of 64 keys beside the scores and exponentials of the next 64"] + S0 + [".p2align 6", "L_k2_loop:"] + BODY + br + \
           ["L_k2_exit:", "; ---- last attention steps, O epilogue, first stages of d = h W_down"] + TAIL + D + \
           ["; ---- bounded re-polls of the hand-off words"] + SP + ["; ---- other exits of the assigned-stage loop"] + SIDE + \
           ["; ---- fallback: true row maxima over all keys, then the attention pass is repeated"] + R0 + ["L_k2_maxloop:"] + RB + RT
    pf = []
    if OPT["codepf"]:
        pf = ["s_getpc_b64 s[54:55]", "L_k2_pc:", "s_lshr_b32 s56, s2, 3", "s_lshl_b32 s56, s56, 2", "s_add_u32 s56, s56, s%d" % S_WAVE,
              "s_mul_i32 s56, s56, %d" % (6 * 128), "v_min_u32 v2, 5, v0", "v_lshlrev_b32 v2, 7, v2", "v_add_u32 v2, s56, v2",
              "v_min_u32 v2, L_k2_last-L_k2_pc, v2", "v_mov_b32 v3, s55", "v_add_co_u32 v2, vcc, s54, v2", "s_nop 1",
              "v_addc_co_u32 v3, vcc, 0, v3, vcc", "global_load_dword v%d, v[2:3], off" % VG]
        a = V_TMP + 4
        pf += ["s_lshr_b32 s56, s56, 1", "s_add_u32 s56, s56, L_k2_exit-L_k2_pc", "v_min_u32 v%d, 2, v0" % a, "v_lshlrev_b32 v%d, 7, v%d" % (a, a),
               "v_add_u32 v%d, s56, v%d" % (a, a), "v_min_u32 v%d, L_k2_last-L_k2_pc, v%d" % (a, a), "v_mov_b32 v%d, s55" % (a + 1),
               "v_add_co_u32 v%d, vcc, s54, v%d" % (a, a), "s_nop 1", "v_addc_co_u32 v%d, vcc, 0, v%d, vcc" % (a + 1, a + 1)]
    rest = rest[:-1] + ["L_k2_last:"] + rest[-1:]
    k = S.index("CODEPF")
    S = S[:k] + pf + S[k + 1:]
    head = resolve_waits(["; ---- set-up and first loads"] + S + G + ["L_k2_attn:", "; ---- attention: scores and probabilities of the first 64 keys"] + PRE)
    pre_only = head[head.index("L_k2_attn:"):]
    traces = [head + S0 + BODY + br + BODY + br + TAIL + D,
              TAIL[:TAIL.index("s_cbranch_scc1 L_k2_redo") + 1] + R0 + RB + RB + RT + pre_only + S0, SP,
              T1 + BR[3] + jb(0) + RS, T0 + jb(0) + BR[0] + RS, T0 + jb(0) + FX[0] + jb(1) + BR[1] + jb(0) + RS, T0 + jb(0) + FX[0] + jb(1) + FX[1] + jb(2) + BR[2] + jb(0) + RS,
              T0 + jb(0) + FX[0] + jb(1) + FX[1] + jb(2) + FX[2] + jb(0) + FX[0] + jb(1) + BR[1] + jb(0) + RS]
    lines = head + rest
    if OPT.get("align"): lines = align8(lines, OPT["align"])
    for v in OPT.get("nt", []):
        lines = [x.replace(" offen lds", " offen%s lds" % OPT.get("ntf", " nt")) if x.startswith("buffer_load_dwordx4 v%d," % v) else x for x in lines]
    return dict(name="attn_kernel", lines=lines, traces=traces, grid=256, block=256, lds=163840, vgpr=512, acc=256, sgpr=102)
```

```python
import re

TRANS = ("v_exp_f32", "v_log_f32", "v_rcp_f32", "v_rsq_f32", "v_sqrt_f32")
_REG = re.compile(r"^(-|abs\()?([vas])(\d+)\)?$|^([vas])\[(\d+):(\d+)\]$")


def regs_of(op):
    op = op.strip()
    if op in ("vcc", "exec", "m0", "scc"):
        return [op]
    if op in ("vcc_lo", "vcc_hi"):
        return ["vcc"]
    m = _REG.match(op)
    if not m:
        return []
    if m.group(2):
        return [m.group(2) + m.group(3)]
    return [m.group(4) + str(i) for i in range(int(m.group(5)), int(m.group(6)) + 1)]


class I:
    def __init__(self, text):
        self.text = text
        t = text.split("\n")[0].split(";")[0].strip()
        self.label = t.endswith(":")
        self.directive = t.startswith(".") or t == ""
        self.op = t.split()[0] if t else ""
        rest = t[len(self.op):].strip()
        toks = [x.strip() for x in rest.split(",")] if rest else []
        self.mods = []
        if toks:
            last = toks[-1].split()
            toks[-1] = last[0] if last else ""
            self.mods = last[1:]
        self.ops = toks
        self.r, self.w = set(), set()
        self.srcc = set()
        self.ab = set()
        op = self.op
        R = lambda xs: set(r for x in xs for r in regs_of(x))
        if self.label or self.directive:
            self.kind = "none"
        elif op.startswith("v_mfma"):
            self.kind = "mfma"
            self.w = R(toks[:1]); self.ab = R(toks[1:3]); self.srcc = R(toks[3:4]); self.r = self.ab | self.srcc
            self.passes = 4 if "16x16x32" in op else 8
            self.dst = toks[0]; self.c = toks[3]
        elif op.startswith("ds_"):
            self.kind = "lds"
            if op.startswith("ds_read"):
                self.w = R(toks[:1]); self.r = R(toks[1:])
            else:
                self.r = R(toks)
        elif op.startswith("buffer_") or op.startswith("global_"):
            self.kind = "vmem"
            self.dma = "lds" in self.mods
            if op in ("buffer_inv", "buffer_wbl2"):
                pass
            elif self.dma:
                self.r = R(toks) | {"m0"}
            elif "load" in op:
                self.w = R(toks[:1]); self.r = R(toks[1:])
            elif "atomic" in op:
                self.r = R(toks)
                if "sc0" in self.mods: self.w = R(toks[:1])
                if "cmpswap" in op: self.w = set(sorted(self.w)[:1])
            else:
                self.r = R(toks)
                self.data = R(toks[:1])
        elif op.startswith("v_"):
            self.kind = "trans" if op.replace("_e32", "").replace("_e64", "") in TRANS else "valu"
            if op.startswith("v_cmp"):
                self.w = R(toks[:1]); self.r = R(toks[1:])
            elif op.startswith("v_permlane"):
                self.w = R(toks[:2]); self.r = R(toks[:2])
            elif op.startswith("v_fmac") or op.startswith("v_pk_fmac"):
                self.w = R(toks[:1]); self.r = R(toks)
            elif op.startswith("v_add_co") or op.startswith("v_addc_co"):
                self.w = R(toks[:2]); self.r = R(toks[2:])
            else:
                self.w = R(toks[:1]); self.r = R(toks[1:])
        elif op in ("WAITVM", "CODEPF"):
            self.kind = "salu"
        elif op == "s_waitcnt":
            self.kind = "wait"
            self.vm = self.lgkm = None
            for k, v in re.findall(r"(vmcnt|lgkmcnt)\((\d+)\)", t):
                if k == "vmcnt": self.vm = int(v)
                else: self.lgkm = int(v)
        elif op.startswith("s_load") or op.startswith("s_memtime") or op.startswith("s_memrealtime"):
            self.kind = "smem"
            self.w = R(toks[:1]); self.r = R(toks[1:])
        elif op.startswith("s_"):
            self.kind = "salu"
            if op in ("s_nop", "s_barrier", "s_endpgm", "s_sleep", "s_setprio") or op.startswith("s_cbranch") or op == "s_branch":
                pass
            elif op.startswith("s_cmp") or op.startswith("s_bitcmp"):
                self.r = R(toks)
            else:
                self.w = R(toks[:1]); self.r = R(toks[1:])
                if "saveexec" in op: self.w |= {"exec"}
        else:
            raise ValueError("cannot parse: " + text)

    @property
    def states(self):
        if self.kind == "none": return 0
        if self.op == "s_nop": return int(self.ops[0]) + 1
        return 1

    @property
    def is_valu(self):
        return self.kind in ("valu", "trans")


def need_states(p, c):
    n = 0
    vreg = lambda s: set(x for x in s if x[0] in "va" and x != "vcc")
    sreg = lambda s: set(x for x in s if x[0] == "s" or x == "vcc")
    if p.is_valu:
        pv = vreg(p.w); ps = sreg(p.w)
        if c.kind == "mfma" and pv & c.r: n = max(n, 2)
        if c.op.startswith("v_permlane") and pv & c.r: n = max(n, 2)
        if (c.op.startswith("v_readfirstlane") or c.op.startswith("v_readlane")) and pv & c.r: n = max(n, 1)
        if p.kind == "trans" and c.kind == "valu" and pv & c.r: n = max(n, 1)
        if c.is_valu and ps & c.r: n = max(n, 2)
        if c.kind == "vmem" and ps & c.r: n = max(n, 5)
    if p.kind == "mfma":
        big = p.passes == 8
        if c.kind == "mfma":
            if p.w & c.srcc and not (c.c == p.dst and c.passes == p.passes): n = max(n, 10 if big else 6)
            if p.w & c.ab: n = max(n, 12 if big else 8)
        elif c.is_valu or c.kind in ("vmem", "lds"):
            if p.w & (c.r | c.w): n = max(n, 12 if big else 8)
        if c.is_valu and p.srcc & c.w: n = max(n, 7 if big else 3)
    if p.kind == "salu" and "m0" in p.w and c.kind == "vmem" and getattr(c, "dma", False): n = max(n, 1)
    if p.kind == "vmem" and hasattr(p, "data") and len(p.data) >= 3 and p.data & c.w:
        n = max(n, 2)
    return n


def check_trace(lines, name=""):
    ins = [I(x) for l in lines for x in l.split("\n")]
    ins = [x for x in ins if x.kind != "none"]
    errs = []
    for j, c in enumerate(ins):
        d = 0
        for i in range(j - 1, max(-1, j - 24), -1):
            p = ins[i]
            n = need_states(p, c)
            if d < n:
                errs.append("%s: hazard need %d have %d:\n   %s\n   %s" % (name, n, d, p.text, c.text))
            d += p.states
            if d >= 20: break
    lg, vm = [], []
    for c in ins:
        if c.kind == "wait":
            if c.lgkm is not None:
                if any(k == "smem" for k, _ in lg) and c.lgkm != 0:
                    errs.append("%s: counted lgkm wait with smem pending: %s" % (name, c.text))
                lg = lg[len(lg) - c.lgkm:] if c.lgkm < len(lg) and c.lgkm > 0 else ([] if c.lgkm == 0 else lg)
            if c.vm is not None:
                vm = vm[len(vm) - c.vm:] if c.vm < len(vm) and c.vm > 0 else ([] if c.vm == 0 else vm)
            continue
        for q, nm in ((lg, "lgkm"), (vm, "vm")):
            for k, p in q:
                if p.w & (c.r | c.w) and p.text != c.text:
                    errs.append("%s: %s result not waited:\n   %s\n   %s" % (name, nm, p.text, c.text))
        if c.kind in ("lds", "smem"): lg.append((c.kind, c))
        if c.kind == "vmem": vm.append((c.kind, c))
    return errs


def cost(i):
    if i.kind == "trans": return 2
    if i.kind == "vmem": return 2
    if i.kind in ("valu", "lds"): return 1
    return 0


class Flt:
    def __init__(self, text, lo=0, hi=None, pre=None):
        self.i = I(text); self.lo = lo; self.hi = hi; self.pre = pre or []
        for x in text.split("\n")[1:]:
            j = I(x)
            self.i.r |= j.r; self.i.w |= j.w
            if hasattr(j, "data"): self.i.data |= j.data
        self.gap = None


def schedule(mfmas, pinned, floats, cap=2, window=48, blocked=()):
    out = []
    pend = list(floats)
    capf = cap
    recent = []
    for g, m in enumerate(mfmas):
        cap = capf(g) if callable(capf) else capf
        out.append(m)
        here = [I(t) for t in pinned.get(g, [])]
        used = sum(cost(x) for x in here)
        nscalar = sum(1 for x in here if cost(x) == 0)
        placed = []
        k = seen = 0
        while k < len(pend) and seen < window and used < cap and g not in blocked:
            f = pend[k]
            if f.lo > g:
                k += 1
                continue
            seen += 1
            c = cost(f.i)
            ok = f.lo <= g and used + c <= cap
            if ok and f.i.kind in ("vmem", "lds") and used > 0: ok = False
            if ok and f.i.kind == "vmem" and nscalar > 0: ok = False
            if ok:
                for e in pend[:k]:
                    if (e.i.w & (f.i.r | f.i.w)) or (e.i.r & f.i.w):
                        ok = False; break
            if ok:
                for e in placed:
                    if e.i.w & f.i.r: ok = False; break
            if ok and any(g - sg < 2 and data & f.i.w for sg, data in recent): ok = False
            if ok:
                f.gap = g; placed.append(f); used += c; pend.pop(k)
                if hasattr(f.i, "data"): recent.append((g, f.i.data))
            else:
                k += 1
        pre = [t for f in placed for t in f.pre]
        here.sort(key=lambda x: 0 if cost(x) == 0 else (1 if x.kind in ("lds", "vmem") else 2))
        out += pre + [x.text for x in here] + [y for f in placed for y in f.i.text.split("\n")]
        for f in pend:
            assert f.hi is None or f.hi > g, "deadline missed at gap %d: %s" % (g, f.i.text)
    return out, pend


def resolve_waits(lines, once=False):
    out = []
    n = 0
    last = {}
    waited = set()
    for l in lines:
        if l.startswith("WAITVM"):
            p = l.split()
            idx = max(last[t] for t in p[1].split(","))
            waited.update(p[1].split(","))
            out.append(("s_waitcnt vmcnt(%d) " % min(63, n - idx) + " ".join(p[2:])).strip())
            continue
        i = I(l)
        if i.kind == "vmem":
            n += 1
            if ";@" in l:
                tag = l.split(";@")[1].strip()
                assert not (once and tag in waited), "issued after its wait: " + l
                last[tag] = n
        out.append(l.split(";@")[0].rstrip())
    return out


def vr(b, n=4): return "v[%d:%d]" % (b, b + n - 1)
def ar(b, n=4): return "a[%d:%d]" % (b, b + n - 1)
def sr(b, n=4): return "s[%d:%d]" % (b, b + n - 1)
def mfma(d, a, b, c): return "v_mfma_f32_16x16x32_bf16 %s, %s, %s, %s" % (d, a, b, c)


def srd(s, base, size):
    return ["s_mov_b32 s%d, s%d" % (s, base), "s_and_b32 s%d, s%d, 0xffff" % (s + 1, base + 1),
            "s_mov_b32 s%d, 0x%x" % (s + 2, size), "s_mov_b32 s%d, 0x20000" % (s + 3)]


def descriptor(name, vgpr, acc_off, sgpr=102):
    return [".amdhsa_kernel %s" % name,
            "  .amdhsa_next_free_vgpr %d" % vgpr, "  .amdhsa_next_free_sgpr %d" % sgpr,
            "  .amdhsa_accum_offset %d" % acc_off, "  .amdhsa_group_segment_fixed_size 0",
            "  .amdhsa_kernarg_size 96", "  .amdhsa_user_sgpr_count 2",
            "  .amdhsa_user_sgpr_kernarg_segment_ptr 1", "  .amdhsa_system_sgpr_workgroup_id_x 1",
            ".end_amdhsa_kernel"]
```

```python
from asmlib import *
from layout import *

OPT = dict(code=True, stf=" sc1", wpf=4, both=0, stamp=0, bar=1, tlb=0)

def gen():
    L = []
    A = L.append
    sep = HOP["waves"] == 9
    A("s_cmp_ge_u32 s2, 256")
    A("s_cbranch_scc1 %s" % ("L_ln_hop" if sep else "L_ln_end"))
    st = lambda n: L.extend(["s_memrealtime s[%d:%d]" % (40 + 2 * n, 41 + 2 * n)] if OPT.get("stamp") else [])
    st(0)
    if HOP["waves"] and not sep:
        A("v_readfirstlane_b32 s3, v0")
        A("s_cmp_ge_u32 s3, 576")
        A("s_cbranch_scc1 L_ln_hop")
    A("s_load_dwordx2 s[4:5], s[0:1], %d" % ARG["x"])
    A("s_load_dwordx2 s[6:7], s[0:1], %d" % ARG["ws"])
    A("s_load_dwordx4 s[20:23], s[0:1], %d" % ARG["wg"])
    n = 0
    if OPT["code"]:
        A("; ---- code lines of both kernels are requested early")
        A("s_getpc_b64 s[26:27]")
        A("L_ln_pc:")
        A("s_lshr_b32 s16, s2, 3")
        A("v_lshl_add_u32 v30, v0, 5, s16")
        A("v_lshlrev_b32 v30, 7, v30")
        A("v_min_u32 v30, L_k2_last-L_ln_pc, v30")
        A("v_mov_b32 v31, s27")
        A("v_add_co_u32 v30, vcc, s26, v30")
        A("v_and_b32 v3, 7, v0")
        A("v_lshrrev_b32 v4, 3, v0")
        A("v_addc_co_u32 v31, vcc, 0, v31, vcc")
        A("global_load_dword v32, v[30:31], off")
    else:
        A("v_and_b32 v3, 7, v0")
        A("v_lshrrev_b32 v4, 3, v0")
    A("v_mul_u32_u24 v5, 1152, v3")
    A("v_lshl_add_u32 v5, v4, 4, v5")
    A("s_mul_i32 s3, s2, %d" % (8 * 1152))
    A("v_lshrrev_b32 v2, 6, v0")
    A("v_and_b32 v1, 63, v0")
    A("v_readfirstlane_b32 s16, v2")
    A("s_waitcnt lgkmcnt(0)")
    st(1)
    L += srd(8, 4, X_BYTES)
    A("buffer_load_dwordx4 v[8:11], v5, s[8:11], s3 offen")
    L += srd(12, 6, WS_BYTES)
    A("s_mul_i32 s17, s2, 9")
    A("s_add_u32 s33, s16, s17")
    A("s_lshl_b32 s17, s2, 2")
    A("s_add_u32 s17, s17, s16")
    A("s_lshl_b32 s18, s16, 8")
    A("s_add_u32 s18, s18, s2")
    A("s_cmp_lt_u32 s16, 4")
    A("s_cselect_b32 s16, s17, s18")
    A("s_and_b32 s17, s16, 31")
    A("s_lshr_b32 s16, s16, 5")
    A("s_mul_i32 s19, s17, 36")
    A("s_add_u32 s19, s19, s16")
    A("s_lshl_b32 s19, s19, 10")
    A("s_add_u32 s19, s19, 0x%x" % HW_OFF)
    A("s_cmp_lt_u32 s16, 36")
    A("s_cselect_b32 s19, s19, 0x40000000")
    A("s_cmp_lt_u32 s16, 18")
    A("s_cselect_b32 s24, s20, s22")
    A("s_cselect_b32 s25, s21, s23")
    A("s_cselect_b32 s18, 0, 18")
    A("s_sub_u32 s16, s16, s18")
    L += srd(28, 24, WG_BYTES)
    A("s_mul_i32 s16, s16, %d" % (32 * 9216))
    A("s_lshl_b32 s17, s17, 5")
    A("s_add_u32 s16, s16, s17")
    A("s_add_u32 s16, s16, 8192")
    A("v_bfe_u32 v16, v1, 3, 2")
    A("v_lshlrev_b32 v16, 3, v16")
    A("v_lshrrev_b32 v17, 5, v1")
    A("v_lshl_add_u32 v16, v17, 2, v16")
    A("v_bfe_u32 v17, v1, 1, 2")
    A("v_add_u32 v16, v16, v17")
    A("v_mul_u32_u24 v16, 9216, v16")
    A("v_and_b32 v17, 1, v1")
    A("v_lshl_add_u32 v16, v17, 4, v16")
    if OPT["bar"] == 1: A("s_barrier")
    if OPT["bar"] == 2: A("s_waitcnt vmcnt(0)")
    A("buffer_load_dwordx4 v[36:39], v16, s[28:31], s16 offen")
    n += 1
    if OPT["wpf"]:
        A("s_lshr_b32 s16, s2, 3")
        A("s_mul_i32 s16, s16, 9")
        A("v_add_u32 v16, s16, v2")
        A("v_mul_u32_u24 v16, 9216, v16")
        A("v_and_b32 v17, %d, v1" % (7 if OPT["both"] else 3))
        A("v_lshl_add_u32 v16, v17, %d, v16" % (7 if OPT["both"] else 8))
        A("s_and_b32 s16, s2, 7")
        A("s_lshl_b32 s16, s16, 10")
        for k in range(OPT["wpf"]):
            L += srd(28, 20 + 2 * (k & 1), WG_BYTES)
            if k == 2: A("s_add_u32 s16, s16, %d" % (288 * 9216))
            A("buffer_load_dword v%d, v16, s[28:31], s16 offen" % (33 + k % 3))
            n += 1
    A("v_mov_b32 v6, 0")
    A("v_lshrrev_b32 v7, 4, v0")
    A("v_min_u32 v7, 1, v7")
    A("v_lshlrev_b32 v7, 30, v7")
    A("v_lshl_add_u32 v7, v0, 2, v7")
    A("s_lshl_b32 s16, s2, 6")
    A("s_add_u32 s16, s16, 0x%x" % FLAG_OFF)
    A("buffer_store_dword v6, v7, s[12:15], s16 offen" + OPT["stf"])
    A("v_mul_u32_u24 v6, 48, v3")
    A("v_lshl_add_u32 v7, v2, 2, v6")
    A("v_lshrrev_b32 v5, 2, v4")
    A("v_lshlrev_b32 v5, 12, v5")
    A("v_and_b32 v4, 3, v4")
    A("v_lshl_add_u32 v5, v4, 8, v5")
    A("v_lshl_add_u32 v5, v3, 4, v5")
    A("s_lshr_b32 s16, s2, 3")
    A("s_mul_i32 s16, s16, %d" % (18 * 4096))
    A("s_bfe_u32 s17, s2, 0x20001")
    A("s_lshl_b32 s17, s17, 10")
    A("s_add_u32 s16, s16, s17")
    A("s_and_b32 s17, s2, 1")
    A("s_lshl_b32 s17, s17, 7")
    A("s_add_u32 s16, s16, s17")
    A("v_lshlrev_b32 v1, 4, v1")
    if OPT["tlb"]:
        A("v_mov_b32 v26, 0")
        A("s_and_b32 s17, s16, 0xffe00000")
        A("s_add_u32 s17, s17, 0x%x" % OPT["tlb"])
        A("buffer_load_dword v27, v26, s[12:15], s17 offen")
        n += 1
    st(2)
    A("s_waitcnt vmcnt(%d)" % (n + 1))
    st(3)
    for i in range(4):
        A("v_lshlrev_b32 v%d, 16, v%d" % (16 + 2 * i, 8 + i))
        A("v_and_b32 v%d, 0xffff0000, v%d" % (17 + 2 * i, 8 + i))
    def reduce(off, dst):
        A("s_nop 1")
        A("v_add_f32_dpp v40, v40, v40 row_ror:8 row_mask:0xf bank_mask:0xf")
        for op in ("v_permlane16_swap_b32", "v_permlane32_swap_b32"):
            A("v_mov_b32 v41, v40")
            A("s_nop 1")
            A("%s v40, v41" % op)
            A("v_add_f32 v40, v40, v41")
        A("ds_write_b32 v7, v40 offset:%d" % off)
        A("s_waitcnt lgkmcnt(0)")
        A("s_barrier")
        A("ds_read_b128 v[40:43], v6 offset:%d" % off)
        A("ds_read_b128 v[44:47], v6 offset:%d" % (off + 16))
        A("ds_read_b32 v48, v6 offset:%d" % (off + 32))
        A("s_waitcnt lgkmcnt(1)")
        for i in range(4): A("v_add_f32 v%d, v%d, v%d" % (40 + i, 40 + i, 44 + i))
        A("v_add_f32 v40, v40, v42")
        A("v_add_f32 v41, v41, v43")
        A("s_waitcnt lgkmcnt(0)")
        A("v_add_f32 v40, v40, v48")
        A("v_add_f32 v40, v40, v41")
        A("v_mul_f32 v%d, %s, v40" % (dst, f32(1.0 / 576)))
    for i in range(4): A("v_add_f32 v%d, v%d, v%d" % (40 + i, 16 + i, 20 + i))
    A("v_add_f32 v40, v40, v42")
    A("v_add_f32 v41, v41, v43")
    A("v_add_f32 v40, v40, v41")
    reduce(0, 24)
    for i in range(8): A("v_sub_f32 v%d, v%d, v24" % (48 + i, 16 + i))
    A("v_mul_f32 v40, v48, v48")
    A("v_mul_f32 v41, v49, v49")
    for i in range(2, 8): A("v_fmac_f32 v%d, v%d, v%d" % (40 + i % 2, 48 + i, 48 + i))
    A("v_add_f32 v40, v40, v41")
    A("v_cvt_pk_bf16_f32 v24, v24, v24")
    A("v_lshlrev_b32 v24, 16, v24")
    for i in range(8): A("v_sub_f32 v%d, v%d, v24" % (16 + i, 16 + i))
    for i in range(4): A("v_cvt_pk_bf16_f32 v%d, v%d, v%d" % (8 + i, 16 + 2 * i, 17 + 2 * i))
    reduce(384, 25)
    A("v_cvt_pk_bf16_f32 v25, v25, v25")
    A("v_lshlrev_b32 v25, 16, v25")
    A("v_add_f32 v25, %s, v25" % f32(1e-5))
    A("v_cvt_pk_bf16_f32 v25, v25, v25")
    A("v_lshlrev_b32 v25, 16, v25")
    A("v_sqrt_f32 v25, v25")
    for i in range(4):
        A("v_lshlrev_b32 v%d, 16, v%d" % (16 + 2 * i, 8 + i))
        A("v_and_b32 v%d, 0xffff0000, v%d" % (17 + 2 * i, 8 + i))
    A("v_cvt_pk_bf16_f32 v25, v25, v25")
    A("v_lshlrev_b32 v25, 16, v25")
    A("v_rcp_f32 v25, v25")
    A("s_nop 0")
    if SCALE["XE"]: A("v_mul_f32 v25, %s, v25" % f32(2.0 ** -SCALE["XE"]))
    for i in range(8): A("v_mul_f32 v%d, v%d, v25" % (16 + i, 16 + i))
    for i in range(4): A("v_cvt_pk_bf16_f32 v%d, v%d, v%d" % (8 + i, 16 + 2 * i, 17 + 2 * i))
    A("buffer_store_dwordx4 v[8:11], v5, s[12:15], s16 offen" + OPT["stf"])
    A("s_waitcnt vmcnt(%d)" % (n + 1))
    A("buffer_store_dwordx4 v[36:39], v1, s[12:15], s19 offen" + OPT["stf"])
    if OPT.get("stamp"):
        st(4); A("s_waitcnt vmcnt(0)"); st(5); A("s_waitcnt lgkmcnt(0)")
        for q in range(6): A("v_mov_b32 v%d, s%d" % (16 + q, 40 + 2 * q))
        A("s_lshl_b32 s16, s33, 5"); A("s_add_u32 s16, s16, 0x%x" % (STAMP_OFF + 0x20000)); A("v_mov_b32 v1, 0"); A("s_mov_b64 exec, 1")
        A("buffer_store_dwordx4 v[16:19], v1, s[12:15], s16 offen"); A("buffer_store_dwordx2 v[20:21], v1, s[12:15], s16 offen offset:16")
    A("L_ln_end:")
    A("s_endpgm")
    H = []
    if HOP["waves"]:
        H = ["; ---- workgroups 256..511: with EXEC = 0 each wave branches through landing points placed after the 4 KiB boundaries of",
             "; ---- attn_kernel, which loads those lines into the instruction cache (its fetch does not run ahead across a page)", "L_ln_hop:"] + (["s_cmp_ge_u32 s2, 512", "s_cbranch_scc1 L_hop0_ret", "v_readfirstlane_b32 s3, v0"] if sep else []) + ["s_mov_b64 exec, 0"]
        for w in range(1, HOP["waves"]): H += ["s_cmp_eq_u32 s3, %d" % ((0 if sep else 576) + 64 * w), "s_cbranch_scc1 L_hop0_%d" % w]
        H += ["s_branch L_hop0_0", "L_hop0_ret:", "s_endpgm"]
    return dict(name="ln_kernel", lines=L + H, traces=[L], grid=512 if sep else 256, block=576 if sep else 576 + 64 * HOP["waves"], lds=768, vgpr=56, acc=56, sgpr=56 if OPT.get("stamp") else 40)
```

```python
import re
from asmlib import *
from layout import *

SLOT = 36864
V_FR, V_TU, V_TQ, V_TH = 1, 2, 6, 8
V_DG, V_DQ, V_DH, V_DK, V_DV, V_DS, V_TS = 9, 10, 11, 12, 13, 14, 15
VA, VXN, VG, VU, VH = 16, 40, 72, 136, 200
V_KA, V_VA, V_ONE, V_TMP = 232, 236, 244, 248
VS, VNEG, VVF, VKF = 16, 40, 200, 216
VP = [[VG + 32, VG + 48], [VU + 16, VU + 48]]
S_WS, S_WG, S_WU, S_WQ, S_K, S_V, S_WH = 4, 8, 12, 16, 20, 24, 72
S_WAVE, S_SL, S_RB = 32, 33, 34
S_L1K, S_GB, S_QB, S_HB, S_HL, S_XN = 35, 36, 37, 38, 39, 40
S_T0, S_T1, S_HST, S_HHST, S_OST = 41, 42, 43, 44, 45
S_KO, S_VO, S_CNT, S_NL2E, S_QC, S_REDO, S_KV0 = 46, 47, 48, 49, 50, 51, 52
S_T2 = 53
S_GB1 = 83
S_T3 = 46
S_RT = [28, 29, 30, 31, 46, 47, 48, 82, 84]
S_HF = 3
KOFF = lambda j: (((j - 1) // 2) & 1) * 32768 + ((j - 1) & 1) * 16384
VOFF = lambda j: ((j // 2) & 1) * 32768 + (j & 1) * 16384
FLAG_LDS = 163776
SCR = 131072
V_SH, V_M1, V_FL = 56, 36, 8
S_SRC, S_SEN, S_WF = 8, 12, 88
S_PUB = 60
S_SHS, S_SHD, S_SCR, S_SO = 56, 57, 58, 59
S_U, S_AFL, S_DF = 42, 75, 50
SC = " sc1"
SUB = [[6, 7, 8, 9], [0, 1, 2, 13], [14, 15, 3, 4], [5, 10, 11, 12], [4, 5, 10, 11]]
SUBOFF = lambda i: i * 9216 + (16320 if i >= 12 else 0)
AX = 240
S_PG, S_PS = 50, 44
VD, VSA, VXX, VT, XF, VSEL = 16, 88, 232, 248, 40, 76
VPK = [160, 164, 184, 188, 192, 196, 244]
WBUF = [216, 168, 200]
V_RD, V_RD2, V_H2, V_XO, V_L0, V_PL, V_F4, V_B8, V_1 = 2, 3, 4, 5, 7, 8, 9, 10, 11
V_PA = 32
S_X, S_OUT, S_AUX = 8, 12, 16
S_TO = [28, 29, 30, 31, 36, 37, 38, 39, 40]
S_LB = [69, 72, 73, 74]
S_HA, S_H2, S_XO, S_W8, S_BP, S_BC, S_DO = 43, 82, 83, 84, 80, 81, 44
S_IN = 85
OPT = dict(codepf=True, nt=[9, 10, 12, 13, 14], ogap=133, latepoll=0, ogrp=1, pgrp=(range(9), range(9)), outpf=0, pads="cond", hops=(None,), hopg=(), rounds=(18, 99), hopt=176, padl=("L_k2_body", "L_k2_br0", "L_k2_br1", "L_k2_br2", "L_k2_br3", "L_k2_rest", "L_r_spin"), lead=0, tie=(40, 16, 16, 0), mmin=1, dsp=28, pf3=240, pf3o=4096, perm16=0, ocap=4, k3=4, k5=0, rotw=1, rotkv=0, kvmix=0, early=0, sgaps=((6, 8, 10),) * 3, xfirst=0, k1n=12, mix=12, mix0=8, pf0=0,
           hspread=((4.3, 66), (8.0, 54)), park=1, a3=48, o0=0, odt=0, cap31=4, codepf2=1, single=0, margin=8, pollahead=96, defer=4, dflag=261, hfmask=7, gain=30, fixed=0, dget=-72, dlat=999, gdend=6, fstep=0, sdel=(60, 30, 16), blocks=((2, 3, 4), (5, 6), (7, 8)), sleep=0, refc=-6.0, snake="qpgtPGT", codepf3=[], outf=" sc1",
           quota=[10, 10, 18, 18, 18, 18, 18, 18, 15, 15, 18, 18, 18, 18, 18])

def snake(n, i, key):
    return list(range(n))[::-1] if i % 2 and key in OPT["snake"] else list(range(n))

def xn(ks, rt):
    return ar(16 * ks + 4 * rt) if ks < 16 else vr(VXN + 16 * (ks - 16) + 4 * rt)
def qf(t, ks):
    return vr((VG, VG + 16, VU, VU + 32)[ks] + 4 * t)
def oacc(dt, t): return ar(16 * dt + 4 * t)
def lacc(t): return ar(128 + 4 * t)

def dma(srd_, voff, sbase, sconst, lbase, lconst, tag, tmp=S_T0):
    return (["s_add_u32 m0, s%d, 0x%x" % (lbase, lconst), "s_add_u32 s%d, s%d, 0x%x" % (tmp, sbase, sconst)],
            "buffer_load_dwordx4 v%d, %s, s%d offen lds ;@%s" % (voff, sr(srd_), tmp, tag))

def chunk_slot(c): return 3 * SLOT if c == 11 else ((c + 1) % 3) * SLOT
TS = []
for c in range(12):
    TS.append(dict(kind="gugugguuqqqq"[c], unit=(c // 4) if c < 8 else (c - 8) // 2, half=(c >> 1 if c < 4 else c & 1), off=chunk_slot(c), tag="c%d" % c))
TS.insert(8, dict(kind="h", unit=0, half=0, off=3 * SLOT, tag="h"))

def chunk_dmas(ts):
    out = []
    for i in range(9):
        if ts["kind"] == "h":
            pre, x = dma(S_WS, V_FR, S_HB, i * 1024, S_HL, 3 * SLOT + i * 1024, "h")
            out.append((pre, x.replace(" offen lds", " offen sc1 lds")))
        else:
            q = ts["kind"] == "q"
            const = ts["half"] * 288 * (8192 if q else 9216) + (ts["unit"] * 128 if q else 0)
            pre = ["s_add_u32 m0, s%d, 0x%x" % (S_RT[i], ts["off"]), "s_mul_i32 s%d, s%d, %d" % (S_T0, S_RT[i], 64 if q else 72),
                   "s_add_u32 s%d, s%d, s%d" % (S_T0, S_T0, S_QB if q else (S_GB, S_GB1)[ts["unit"]])]
            if const: pre.append("s_add_u32 s%d, s%d, 0x%x" % (S_T0, S_T0, const))
            out.append((pre, "buffer_load_dwordx4 v%d, %s, s%d offen lds ;@%s" %
                        (V_DQ if q else V_DG, sr(S_WQ if q else (S_WG if ts["kind"] == "g" else S_WU)), S_T0, ts["tag"])))
    return out

def kv_dmas(which, j, tag):
    out = []
    for n in range(4):
        if which == "k":
            out.append(dma(S_K, V_DK, S_KV0, j * 16384 + n * 4096, S_L1K, KOFF(j) + n * 4096, tag))
        else:
            out.append(dma(S_V, V_DV, S_KV0, j * 16384 + n * 4096, S_L1K, 65536 + VOFF(j) + n * 4096, tag))
    return out

def xn_load(ks, rt):
    so = (S_T1, S_T2)[ks & 1]
    pre = ["s_add_u32 s%d, s%d, 0x%x" % (so, S_XN, ks * 4096)] if rt == 0 else []
    return (pre, "buffer_load_dwordx4 %s, v%d, %s, s%d offen offset:%d ;@x%d" % (xn(ks, rt), V_FR, sr(S_WS), so, rt * 1024, ks // 3))

def unit_line(r, u):
    if not OPT.get("perm", True):
        return ["s_lshl_b32 s%d, s%d, 1" % (r, S_SL), "s_add_u32 s%d, s%d, %d" % (r, r, u)]
    return ["s_add_u32 s%d, s%d, %d" % (r, S_SL, u + 1), "s_and_b32 s%d, s%d, 3" % (r, r), "s_and_b32 s%d, s%d, 28" % (r + 1, S_SL),
            "s_add_u32 s%d, s%d, s%d" % (r, r, r + 1), "s_lshl_b32 s%d, s%d, 1" % (r, r), "s_add_u32 s%d, s%d, %d" % (r, r, u)]

def setup(st):
    P = []
    A = P.append
    A("s_cmp_ge_u32 s2, 256")
    A("s_cbranch_scc1 L_k2_end")
    A("L_k2_entry:")
    P += st("start")
    A("s_load_dwordx2 s[60:61], s[0:1], %d" % ARG["ws"])
    A("s_load_dwordx4 s[64:67], s[0:1], %d" % ARG["wg"])
    A("s_load_dwordx2 s[68:69], s[0:1], %d" % ARG["k"])
    A("s_load_dwordx4 s[72:75], s[0:1], %d" % ARG["v"])
    A("s_load_dwordx2 s[70:71], s[0:1], %d" % ARG["wo"])
    A("s_load_dwordx4 s[76:79], s[0:1], %d" % ARG["wd"])
    A("s_load_dwordx2 s[80:81], s[0:1], %d" % ARG["x"])
    if OPT["pads"]: P += ["s_branch L_k2_body", ".p2align 12", "L_k2_body:"]
    A("v_lshrrev_b32 v15, 6, v0")
    A("v_and_b32 v0, 63, v0")
    A("v_readfirstlane_b32 s%d, v15" % S_WAVE)
    A("v_lshlrev_b32 v%d, 4, v0" % V_FR)
    A("s_and_b32 s54, s2, 7")
    A("s_lshl_b32 s54, s54, 2")
    A("s_bfe_u32 s55, s2, 0x20003")
    A("s_add_u32 s%d, s54, s55" % S_SL)
    A("s_lshr_b32 s54, s2, 5")
    A("s_lshl_b32 s54, s54, 2")
    A("s_add_u32 s%d, s54, s%d" % (S_RB, S_WAVE))
    A("s_lshl_b32 s%d, s%d, 10" % (S_L1K, S_WAVE))
    A("s_mul_i32 s%d, s%d, %d" % (S_XN, S_RB, 18 * 4096))
    A("s_lshl_b32 s%d, s%d, 8" % (S_QB, S_SL))
    for u_, r_ in ((0, S_GB), (1, S_GB1)):
        P += unit_line(56, u_)
        A("s_lshl_b32 s%d, s56, 7" % r_)
    A("s_lshr_b32 s54, s2, 5")
    A("s_lshl_b32 s54, s54, 12")
    A("s_and_b32 s55, s2, %d" % OPT["hfmask"])
    A("s_bcnt1_i32_b32 s55, s55")
    A("s_and_b32 s%d, s55, 1" % S_HF)
    A("s_mul_i32 s54, s54, %d" % OPT["rotw"])
    A("s_add_u32 s%d, s54, s%d" % (S_RT[0], S_L1K))
    for i in range(1, 9):
        A("s_add_u32 s54, s%d, %d" % (S_RT[0], i * 4096))
        A("s_sub_u32 s55, s54, %d" % SLOT)
        A("s_min_u32 s%d, s54, s55" % S_RT[i])
    A("v_lshrrev_b32 v15, 3, v0")
    A("v_bfe_u32 v%d, v0, 4, 1" % V_TMP)
    A("s_and_b32 s54, s%d, 1" % S_WAVE)
    A("s_lshl_b32 s54, s54, 1")
    A("v_or_b32 v%d, s54, v%d" % (V_TMP, V_TMP))
    A("v_lshlrev_b32 v%d, 1, v%d" % (V_TMP, V_TMP))
    A("v_and_b32 v%d, 7, v0" % (V_TMP + 1))
    A("v_xor_b32 v%d, v%d, v%d" % (V_TMP, V_TMP, V_TMP + 1))
    A("v_lshlrev_b32 v%d, 4, v%d" % (V_TMP, V_TMP))
    A("v_mul_u32_u24 v%d, 9216, v15" % V_DG)
    A("v_add_u32 v%d, v%d, v%d" % (V_DG, V_DG, V_TMP))
    A("v_lshl_add_u32 v%d, v15, 13, v%d" % (V_DQ, V_TMP))
    if OPT["pf0"]: A("CODEPF")
    if OPT["pads"] and -1 in OPT["hops"]: P += hop_round(0)
    A("s_waitcnt lgkmcnt(0)")
    P += srd(S_WS, 60, WS_BYTES) + srd(S_WG, 64, WG_BYTES)
    return P

def setup2():
    P = []
    A = P.append
    P += srd(S_WQ, 74, WQ_BYTES) + srd(S_K, 68, KV_BYTES) + srd(S_V, 72, KV_BYTES)
    t0, t1, t2, t3 = V_TMP, V_TMP + 1, V_TMP + 2, V_TMP + 3
    A("v_lshrrev_b32 v%d, 4, v0" % t0)
    A("v_bfe_u32 v%d, v0, 2, 2" % t1)
    A("v_lshl_add_u32 v15, v%d, 3, v%d" % (t0, t1))
    A("v_lshlrev_b32 v15, 7, v15")
    A("v_add_u32 v15, %d, v15" % TS[0]["off"])
    A("v_bfe_u32 v%d, v0, 3, 2" % t2)
    A("v_and_b32 v%d, 3, v0" % t3)
    for j in range(4):
        A("v_xor_b32 v%d, %d, v%d" % (V_TU + j, j, t2))
        A("v_lshl_add_u32 v%d, v%d, 5, v15" % (V_TU + j, V_TU + j))
        A("v_lshl_add_u32 v%d, v%d, 3, v%d" % (V_TU + j, t3, V_TU + j))
    A("v_add_u32 v15, %d, v15" % ((TS[9]["off"] - TS[0]["off"]) & 0xffffffff))
    A("v_lshlrev_b32 v%d, 1, v%d" % (t2, t2))
    for m in range(2):
        A("v_or_b32 v%d, %d, v%d" % (V_TQ + m, 4 * m, t3))
        A("v_xor_b32 v%d, v%d, v%d" % (V_TQ + m, V_TQ + m, t2))
        A("v_lshl_add_u32 v%d, v%d, 4, v15" % (V_TQ + m, V_TQ + m))
    A("v_lshlrev_b32 v%d, 3, v0" % V_TH)
    A("v_add_u32 v%d, %d, v%d" % (V_TH, 3 * SLOT, V_TH))
    A("s_mul_i32 s%d, s%d, 9216" % (S_HL, S_WAVE))
    A("s_mul_i32 s54, s%d, %d" % (S_SL, SLOT))
    A("s_add_u32 s54, s54, s%d" % S_HL)
    A("s_add_u32 s%d, s54, 0x%x" % (S_HB, HW_OFF))
    A("s_lshl_b32 s54, s%d, 19" % S_RB)
    A("s_add_u32 s%d, s54, 0x%x" % (S_HST, H_OFF))
    A("s_lshl_b32 s55, s%d, 14" % S_SL)
    A("s_add_u32 s54, s54, s55")
    A("s_add_u32 s%d, s54, 0x%x" % (S_OST, O_OFF))
    A("s_lshr_b32 s54, s54, 3")
    A("s_add_u32 s%d, s54, 0x%x" % (S_HHST, H2_OFF - 3 * SLOT))
    A("s_mov_b32 s%d, %s" % (S_NL2E, f32(-LOG2E * 2.0 ** SCALE["XE"])))
    A("s_mov_b32 s%d, %s" % (S_QC, f32(LOG2E * 128 ** -0.5 * 2.0 ** SCALE["XE"])))
    A("s_mov_b32 s%d, 0" % S_REDO)
    A("s_mov_b32 s0, 0x07060302")
    A("s_lshl_b32 s54, s%d, 19" % S_SL)
    A("s_add_u32 s%d, s54, s%d" % (S_KV0, S_L1K))
    A("s_lshl_b32 s54, s%d, 2" % S_WAVE)
    A("v_add_u32 v15, s54, v%d" % t0)
    A("v_and_b32 v%d, 15, v0" % t2)
    A("v_xor_b32 v%d, v%d, v15" % (V_DK, t2))
    A("v_lshlrev_b32 v%d, 4, v%d" % (V_DK, V_DK))
    A("v_lshl_add_u32 v%d, v%d, 8, v%d" % (V_DK, t0, V_DK))
    A("v_and_b32 v15, 7, v15")
    A("v_lshlrev_b32 v15, 1, v15")
    A("v_xor_b32 v%d, v%d, v15" % (V_DV, t2))
    A("v_lshlrev_b32 v%d, 4, v%d" % (V_DV, V_DV))
    A("v_lshl_add_u32 v%d, v%d, 8, v%d" % (V_DV, t0, V_DV))
    for ks in range(4):
        A("v_or_b32 v15, %d, v%d" % (4 * ks, t0))
        A("v_xor_b32 v15, v15, v%d" % t2)
        A("v_lshlrev_b32 v15, 4, v15")
        A("v_lshl_add_u32 v%d, v%d, 8, v15" % (V_KA + ks, t2))
    A("v_lshrrev_b32 v%d, 2, v0" % t1)
    A("v_and_b32 v%d, 7, v%d" % (t2, t1))
    A("v_lshlrev_b32 v%d, 8, v%d" % (t1, t1))
    A("v_lshl_add_u32 v%d, v%d, 3, v%d" % (t1, t3, t1))
    A("v_add_u32 v%d, 0x10000, v%d" % (t1, t1))
    for dt in range(8):
        A("v_xor_b32 v15, %d, v%d" % (dt, t2))
        A("v_lshl_add_u32 v%d, v15, 5, v%d" % (V_VA + dt, t1))
    for r in range(4):
        A("v_mov_b32 v%d, 0x%x" % (V_ONE + r, (0x3f80 - 0x80 * SCALE["XE"]) * 0x10001))
    A("s_add_u32 s%d, s60, 0x%x" % (S_WF, WF_OFF))
    A("s_addc_u32 s%d, s61, 0" % (S_WF + 1))
    A("s_and_b32 s%d, s%d, 0xffff" % (S_WF + 1, S_WF + 1))
    A("s_mov_b32 s%d, 0x%x" % (S_WF + 2, 272 * SLOT))
    A("s_mov_b32 s%d, 0x20000" % (S_WF + 3))
    A("v_lshrrev_b32 v%d, 3, v0" % t0)
    A("v_mul_u32_u24 v%d, 1152, v%d" % (t0, t0))
    A("v_and_b32 v%d, 7, v0" % t1)
    A("v_lshl_add_u32 v%d, v%d, 4, v%d" % (V_DS, t1, t0))
    A("s_lshl_b32 s54, s%d, 12" % S_WAVE)
    A("s_add_u32 s54, s54, %d" % SCR)
    A("v_lshrrev_b32 v%d, 2, v0" % t0)
    A("v_lshlrev_b32 v%d, 7, v%d" % (t0, t0))
    A("v_lshl_add_u32 v%d, v%d, 3, v%d" % (t0, t3, t0))
    A("v_add_u32 v%d, s54, v%d" % (V_TS, t0))
    P += slab_base(54) + rot(55)
    A("s_bfe_u32 s56, s2, 0x20001")
    A("s_mul_i32 s56, s56, %d" % (18 * 1024))
    A("s_add_u32 s54, s54, s56")
    for c in range(2, 9):
        A("s_add_u32 s56, s55, %d" % c)
        A("s_sub_u32 s57, s56, 9")
        A("s_min_u32 s56, s56, s57")
        A("s_lshl_b32 s56, s56, 11")
        A("s_add_u32 s%d, s54, s56" % (S_PUB + c))
    return P

def slab_base(r):
    return ["s_lshr_b32 s%d, s2, 3" % r, "s_lshl_b32 s%d, s%d, 1" % (r, r),
            "s_add_u32 s%d, s%d, s%d" % (r, r, S_HF), "s_lshl_b32 s%d, s%d, 2" % (r, r), "s_add_u32 s%d, s%d, s%d" % (r, r, S_WAVE),
            "s_mul_i32 s%d, s%d, %d" % (r, r, 72 * 1024), "s_add_u32 s%d, s%d, 0x%x" % (r, r, PART_OFF)]

def rot(r):
    return ["s_bfe_u32 s%d, s2, 0x20001" % r, "s_min_u32 s%d, s%d, 1" % (r + 1, r), "s_lshl_b32 s%d, s%d, 1" % (r, r),
            "s_add_u32 s%d, s%d, s%d" % (r, r, r + 1)]

def relayout():
    sc = [["s_mul_i32 s55, s%d, 7282" % S_U], ["s_lshr_b32 s55, s55, 16"],
          ["s_lshl_b32 s%d, s%d, 12" % (S_SHD, S_U)], ["s_mul_i32 s%d, s55, 9" % S_SHS], ["s_sub_u32 s54, s%d, s%d" % (S_U, S_SHS)],
          ["s_lshl_b32 s54, s54, 7"],
          ["s_cmp_lt_u32 s55, 144", "s_cselect_b32 s%d, s76, s70" % S_SRC, "s_cselect_b32 s%d, s77, s71" % (S_SRC + 1)],
          ["s_cmp_lt_u32 s55, 144", "s_cselect_b32 s%d, 0, 144" % S_SHS, "s_cselect_b32 s%d, 9, 8" % (S_SRC + 2)],
          ["s_mul_i32 s%d, s%d, %d" % (S_SRC + 2, S_SRC + 2, 512 * 1152)],
          ["s_and_b32 s%d, s%d, 0xffff" % (S_SRC + 1, S_SRC + 1)],
          ["s_sub_u32 s55, s55, s%d" % S_SHS], ["s_mul_i32 s55, s55, %d" % SLOT], ["s_add_u32 s%d, s55, s54" % S_SHS],
          ["s_add_u32 s%d, s%d, 1024" % (S_U, S_U)]]
    dm = [dma(S_SRC, V_DS, S_SHS, n * 9216, S_SCR, n * 1024, "sh") for n in range(4)]
    rd = [["ds_read_b64_tr_b16 %s, v%d offset:%d" % (vr(V_SH + 4 * q + 2 * h, 2), V_TS, q * 32 + h * 2048) for h in range(2)] for q in range(4)]
    stv = ["buffer_store_dwordx4 %s, v%d, %s, s%d offen offset:%d%s" % (vr(V_SH + 4 * q), V_FR, sr(S_WF), S_SHD, q * 1024, SC) for q in range(4)]
    mk = ["buffer_store_dwordx4 %s, v%d, %s, s%d offen offset:%d%s" % (vr(V_M1), v, sr(S_WS), S_SO, o, SC) for v, o in ((V_FR, 1024), (V_FR, 3072), (V_F4, 1024))]
    return sc, dm, rd, stv, mk

def groups(tau):
    ts = TS[tau]
    if ts["kind"] == "h":
        return [(t, 3 * kg) for t in range(2) for kg in snake(6, t, "G")]
    if tau in (0, 2):
        return [(t, 9 * ts["half"] + 3 * kg) for kg in range(3) for t in snake(4, kg, "G")]
    return [(t, 9 * ts["half"] + 3 * kg) for t in range(4) for kg in snake(3, t, "G")]

BLK = {("g", 0): [VG, VG + 16, VG + 32, VG + 48], ("g", 1): [VH, VH + 16, VG, VG + 16], ("h", 0): [VG + 32, VG + 48],
       ("q", 0): [VG, VH, VG + 16, VH + 16]}
for key in (("u", 0), ("u", 1), ("q", 1)): BLK[key] = [VU, VU + 16, VU + 32, VU + 48]

def treads(tau, grp, buf):
    ts = TS[tau]
    t, k0 = groups(tau)[grp]
    out = []
    for kk in range(3):
        for h in range(2):
            d = vr(VA + 12 * buf + 4 * kk + 2 * h, 2)
            if ts["kind"] == "h":
                out.append("ds_read_b64_tr_b16 %s, v%d offset:%d" % (d, V_TH, t * 18432 + (k0 + kk) * 1024 + h * 512))
            else:
                o = (k0 + kk - 9 * ts["half"]) * 4096 + h * 512
                if ts["kind"] == "q":
                    out.append("ds_read_b64_tr_b16 %s, v%d offset:%d" % (d, V_TQ + t // 2, o + (t & 1) * 8))
                else:
                    out.append("ds_read_b64_tr_b16 %s, v%d offset:%d" % (d, V_TU + t, o))
    return out

def projection():
    mf, pin = [], {}
    done, first, blocked = {}, {}, set()
    XW = {(0, 3): 1, (0, 7): 2, (1, 11): 3, (2, 3): 4, (2, 7): 5}
    P = lambda g, x: pin.setdefault(g, []).append(x)
    for tau in range(13):
        blk = BLK[(TS[tau]["kind"], TS[tau]["unit"])]
        for gi, (t, k0) in enumerate(groups(tau)):
            buf = (12 * tau + gi) & 1
            g0 = len(mf)
            for c, rt in enumerate(snake(4, gi, "G")):
                d = vr(blk[t] + 4 * rt)
                key = (TS[tau]["kind"], TS[tau]["unit"], t, rt)
                for kk in snake(3, c, "g"):
                    if key not in done: first.setdefault(blk[t] + 4 * rt, []).append(len(mf))
                    mf.append(mfma(d, vr(VA + 12 * buf + 4 * kk), xn(k0 + kk, rt), d if key in done else "0"))
                    done[key] = len(mf) - 1
            nt, ng = (tau, gi + 1) if gi < 11 else (tau + 1, 0)
            if nt < 13:
                for i, x in enumerate(treads(nt, ng, buf ^ 1)): P(g0 + i, x)
            w = "s_waitcnt lgkmcnt(0)"
            if (tau, gi) in XW: w = "WAITVM x%d lgkmcnt(0)" % XW[(tau, gi)]
            if gi == 10 and tau < 12:
                tags = TS[tau + 1]["tag"] + (",k0" if tau == 11 else "")
                P(g0 + 11, "WAITVM %s lgkmcnt(0)" % tags)
                P(g0 + 11, "s_barrier")
            elif nt < 13:
                P(g0 + 11, w)
        ts = TS[tau]
        nxt = [x for x in TS[tau + 1:] if (x["kind"] == "q") == (ts["kind"] == "q") and x["kind"] != "h"]
        if ts["kind"] != "h" and nxt:
            delta = (nxt[0]["off"] - ts["off"]) & 0xffffffff
            regs = {}
            for gi, (t, k0) in enumerate(groups(tau)):
                regs[V_TQ + t // 2 if ts["kind"] == "q" else V_TU + t] = gi
            for r, gi in regs.items():
                P(144 * tau + 12 * (gi - 1) + 6, "v_add_u32 v%d, 0x%x, v%d" % (r, delta, r))
    plan = {t: [] for t in range(13)}
    order = [0, 1, 2, 3, 4, 5, 6, 7, 9, 10, 11, 12]
    hd = chunk_dmas(TS[8])
    kg = lambda n: [xn_load(ks, rt) for ks in range(3 * n, 3 * n + 3) for rt in range(4)]
    plan[0] = kg(1)[OPT["k1n"]:] + kg(2) + chunk_dmas(TS[1]) + kg(3)[:OPT["k3"]]
    plan[1] = chunk_dmas(TS[2]) + kg(3)[OPT["k3"]:] + kg(4) + kg(5)[:OPT["k5"]]
    plan[2] = kg(5)[OPT["k5"]:] + chunk_dmas(TS[3]) + chunk_dmas(TS[4])
    for tau in range(3, 10): plan[tau] = chunk_dmas(TS[tau + 2 if tau < 7 else tau + 3])
    plan[5] += chunk_dmas(TS[8])[:3]
    plan[6] = chunk_dmas(TS[8])[3:] + chunk_dmas(TS[9])[:6]
    plan[7] = chunk_dmas(TS[9])[6:] + plan[7]
    plan[10] = kv_dmas("k", 1, "s0") + kv_dmas("k", 2, "s0")
    plan[11] = kv_dmas("k", 0, "k0")
    plan[12] = kv_dmas("v", 0, "s0") + kv_dmas("v", 1, "s0")
    for tau in range(13):
        ops = plan[tau]
        if tau < 3:
            free = [g for g in range(144 * tau, 144 * tau + 144) if g % 12 in OPT["sgaps"][tau] and not pin.get(g)]
            for g, (pre, x) in zip(free, ops):
                for y in pre: P(g, y)
                P(g, x)
            assert len(ops) <= len(free)
        else:
            for i, (pre, x) in enumerate(ops):
                g = 144 * tau + 12 * i + 8 - OPT["lead"]
                assert i < 12
                for k, y in enumerate(pre): P(g - 7 + k, y)
                P(g, x)
    sc, va = tail_setup()
    g = 144 * 10
    for x in sc:
        while g % 12 > 5 or any(cost(I(y)) == 0 for y in pin.get(g, [])): g += 1
        P(g, x)
    assert g < 144 * 13 - 12, g
    for k, x in enumerate(va): P(144 * 12 + 72 + 12 * k, x)
    P(144 * 12 + 60, "v_lshrrev_b32 v%d, 4, v0" % V_TMP)
    P(144 * 12 + 61, "v_lshlrev_b32 v%d, 4, v%d" % (V_TMP, V_TMP))
    for ks in range(4):
        P(144 * 12 + 102 + ks, "ds_read_b128 %s, v%d offset:%d" % (vr(VVF + 4 * ks), V_TMP, KOFF(0) + 64 * ks))
    for r in range(16):
        P(144 * 12 + (114, 115, 116, 117, 118, 126, 127, 128)[r // 2], "v_xor_b32 v%d, 0x80008000, v%d" % (VVF + r, VVF + r))
    for r in range(4): P(144 * 12 + 129 + r // 2, "v_mov_b32 v%d, %s" % (V_TMP + r, f32(OPT["refc"])))
    for ks in range(4):
        P(144 * 12 + 132 + ks, "ds_read_b128 %s, v%d offset:%d" % (vr(VKF + 4 * ks), V_KA + ks, KOFF(0)))
    fl = []
    LAT = 6
    END = 144 * 12
    def reuse(reg, after):
        return min([g for g in first[reg] if g > after] + [END + 4]) - 4
    def add(text, lo, hi): fl.append(Flt(text, lo, hi))
    def glu(gkey, gt, ukey, ut, rt, dst):
        gb, ub = BLK[gkey][gt] + 4 * rt, BLK[ukey][ut] + 4 * rt
        lo, lu = done[gkey + (gt, rt)] + LAT, done[ukey + (ut, rt)] + LAT
        hu = min(reuse(ub, lu), reuse(dst & ~3, lu))
        hi = min(reuse(gb, lo), hu)
        for op in ("v_mul_f32 v%%d, s%d, v%%d" % S_NL2E, "v_exp_f32 v%d, v%d", "v_add_f32 v%d, 1.0, v%d", "v_rcp_f32 v%d, v%d"):
            for r in range(4): add(op % (gb + r, gb + r), lo, hi)
        for r in range(4): add("v_mul_f32 v%d, v%d, v%d" % (ub + r, ub + r, gb + r), lu, hi)
        for h in range(2): add("v_cvt_pk_bf16_f32 v%d, v%d, v%d" % (dst + h, ub + 2 * h, ub + 2 * h + 1), lu, hu)
        return lu
    for unit in range(2):
        for t in range(4):
            for rt in range(4):
                d = VU + 16 * (t & 2) + 4 * rt if unit or t < 2 or not OPT["park"] else VG + 32 + 4 * rt
                lu = glu(("g", unit), t, ("u", unit), t, rt, d + 2 * (t & 1))
                if t & 1:
                    t0_, dt_ = OPT["hspread"][unit]
                    add("buffer_store_dwordx4 %s, v%d, %s, s%d offen offset:%d" % (vr(d), V_FR, sr(S_WS), 56 + 2 * unit + t // 2, rt * 1024) + SC,
                        max(lu, int(144 * t0_) + (2 * (t & 2) + rt) * dt_), reuse(d, lu))
    for rt in range(4):
        d = BLK[("h", 0)][0] + 4 * rt
        lu = glu(("h", 0), 0, ("h", 0), 1, rt, d)
        add("buffer_store_dwordx2 %s, v%d, %s, s%d offen offset:%d" % (vr(d, 2), V_TH, sr(S_WS), S_HHST, rt * 512) + SC, max(lu, 144 * 11 + 30 * rt), END)
    for unit in range(2):
        blk = BLK[("q", unit)]
        for t in range(4):
            for rt in range(4):
                lo = done[("q", unit, t, rt)] + LAT
                hi = END + 96 if unit == 0 else (END + 140 if t < 2 else None)
                r0 = blk[t] + 4 * rt
                for r in range(4): add("v_mul_f32 v%d, s%d, v%d" % (r0 + r, S_QC, r0 + r), lo, hi)
                d = blk[t & 2] + 4 * rt + 2 * (t & 1)
                for h in range(2): add("v_cvt_pk_bf16_f32 v%d, v%d, v%d" % (d + h, r0 + 2 * h, r0 + 2 * h + 1), lo, hi)
    fl.sort(key=lambda f: f.hi if f.hi is not None else 1 << 30)
    head, xl, _ = first_ref()
    P(len(mf), xl[0]); P(len(mf) + 1, xl[1])
    mf += head
    out, left = schedule(mf, pin, fl, window=64, blocked=blocked)
    out += [f.i.text for f in left]
    if OPT.get("hflag") is not None: out = [x.replace(SC, OPT["hflag"]) if x.startswith("buffer_store") else x for x in out]
    for pat in OPT.get("gdrop", []): out = [x for x in out if not x.startswith(pat)]
    idx = [i for i, x in enumerate(out) if x.startswith("v_mfma")]
    for g in range(len(idx) - 1, 0, -1):
        ins = OPT["st"]("t%d" % (g // 144)) if g % 144 == 0 else []
        if OPT["pads"] and g in OPT["hopg"]: ins = ins + hop_round(len(OPT["hops"]) + OPT["hopg"].index(g))
        out[idx[g]:idx[g]] = ins
    return out

def kread(buf, j, kt):
    return ["ds_read_b128 %s, v%d offset:%d" % (vr(buf + 4 * ks), V_KA + ks, KOFF(j) + kt * 4096) for ks in range(4)]
def vread(buf, j, u):
    return ["ds_read_b64_tr_b16 %s, v%d offset:%d" % (vr(buf + 8 * d + 4 * b + 2 * h, 2), V_VA + 2 * u + d, VOFF(j) + b * 8192 + h * 4096)
            for d in range(2) for b in range(2) for h in range(2)]
def E(t, r): return "v_exp_f32 v%d, v%d" % (VS + 4 * t + r, VS + 4 * t + r)
def C(par, kt, t, h):
    if OPT["perm16"]:
        return "v_perm_b32 v%d, v%d, v%d, s0" % (VP[par][kt >> 1] + 4 * t + 2 * (kt & 1) + h, VS + 4 * t + 2 * h + 1, VS + 4 * t + 2 * h)
    return "v_cvt_pk_bf16_f32 v%d, v%d, v%d" % (VP[par][kt >> 1] + 4 * t + 2 * (kt & 1) + h, VS + 4 * t + 2 * h, VS + 4 * t + 2 * h + 1)
def qk(kbuf, t, c0):
    d = vr(VS + 4 * t)
    return [mfma(d, vr(kbuf + 4 * ks), qf(t, ks), c0 if n == 0 else d) for n, ks in enumerate(snake(4, t, "q"))]
def pv(vbuf, par, u, init):
    ts = [(u + k) % 4 for k in range(4)] if "P" in OPT["snake"] else list(range(4))
    return [mfma(oacc(2 * u + d, ts[k]), vr(vbuf + 8 * d + 4 * b), vr(VP[par][b] + 4 * ts[k]), "0" if init and n == 0 else oacc(2 * u + d, ts[k]))
            for d in range(2) for c, k in enumerate(snake(4, d, "P")) for n, b in enumerate(snake(2, c + 1, "p"))]
def psum(par, t, init):
    return [mfma(lacc(t), vr(V_ONE), vr(VP[par][b] + 4 * t), "0" if init and n == 0 else lacc(t)) for n, b in enumerate(snake(2, 1, "P"))]

def rowmax(src):
    P = []
    A = P.append
    for t in range(4):
        A("v_max3_f32 v%d, v%d, v%d, v%d" % (V_TMP + t, src + 4 * t, src + 4 * t + 1, src + 4 * t + 2))
    for t in range(4):
        A("v_max_f32 v%d, v%d, v%d" % (V_TMP + t, V_TMP + t, src + 4 * t + 3))
    for op in ("v_permlane32_swap_b32", "v_permlane16_swap_b32"):
        for t in range(4): A("v_mov_b32 v%d, v%d" % (32 + t, V_TMP + t))
        A("s_nop 1")
        for t in range(4): A("%s v%d, v%d" % (op, V_TMP + t, 32 + t))
        for t in range(4): A("v_max_f32 v%d, v%d, v%d" % (V_TMP + t, V_TMP + t, 32 + t))
    for t in range(4):
        for r in range(4): A("v_sub_f32 v%d, 0, v%d" % (VNEG + 4 * t + r, V_TMP + t))
    return P

def first_ref():
    xl = ["buffer_load_dwordx2 %s, v%d, %s, s%d offen offset:%d" % (ar(AX + 4 * c + 2 * rt, 2), V_XO + rt, sr(S_X), S_XO, c * 32)
          for rt in range(2) for c in range(3)]
    m = lambda t, ks, c: mfma(vr(VNEG + 4 * t), vr(VVF + 4 * ks), qf(t, ks), c or vr(VNEG + 4 * t))
    head = [m(t, ks, vr(V_TMP) if n == 0 else None) for t in range(4) for n, ks in enumerate(snake(3, t, "q"))]
    P = ["s_waitcnt lgkmcnt(0)", "s_nop 0"]
    for t in range(4): P += [m(t, 3, None), xl[2 + t]]
    return head, xl[:2], P

def step_pre():
    P = ["s_add_u32 s%d, s%d, %d" % (S_KO, S_KV0, 3 * 16384), "s_add_u32 s%d, s%d, %d" % (S_VO, S_KV0, 2 * 16384)]
    for n in range(16):
        kt, t = n >> 2, n & 3
        kbuf = VKF if kt % 2 == 0 else VVF
        ms = qk(kbuf, t, vr(VNEG + 4 * t))
        rd = []
        if t == 0:
            if kt > 0: P.append("s_waitcnt lgkmcnt(0)")
            if kt == 3: P += ["WAITVM s0", "s_barrier"]
            rd = kread(VVF if kt % 2 == 0 else VKF, 0, kt + 1) if kt < 3 else kread(VKF, 1, 0)
        for i, m in enumerate(ms):
            P.append(m)
            if rd: P.append(rd[i])
            if n >= 2: P.append(E((n - 2) & 3, i))
            if n == 1: P.append("s_nop 0")
        if n >= 2:
            P += [C(0, (n - 2) >> 2, (n - 2) & 3, 0), C(0, (n - 2) >> 2, (n - 2) & 3, 1)]
    P += [E(2, r) for r in range(4)] + [C(0, 3, 2, 0), C(0, 3, 2, 1), "s_nop 1", E(3, 0), E(3, 1), "s_waitcnt lgkmcnt(0)"]
    return P

def step(i, tail_scalars=(), part=""):
    par = i & 1
    mf, pin, fl = [], {}, []
    P = lambda g, x: pin.setdefault(g, []).append(x)
    for u in range(4):
        g0 = 34 * u
        for t in range(4): mf += qk(VKF, t, vr(VNEG + 4 * t))
        mf += pv(VVF, par, u, i == 0) + psum(par, u, i == 0)
        ppar, pkt = (par, 3) if u == 0 else (par ^ 1, u - 1)
        tr = vread(VVF, i, u)
        for g, k in zip(OPT.get('tpos', (0, 2, 2, 4, 6, 6, 8, 8)), range(8)): P(g0 + g, tr[k])
        P(g0 + 0, C(ppar, pkt, 3, 0)); P(g0 + 1, E(3, 2)); P(g0 + 3, E(3, 3)); P(g0 + 4, C(ppar, pkt, 3, 1))
        for e in range(14): P(g0 + 7 + 2 * e, E(e >> 2, e & 3))
        for c in range(6): P(g0 + 10 + 4 * c, C(par ^ 1, u, c >> 1, c & 1))
        if u == 3 and par == 1:
            P(g0 + 15, "s_waitcnt vmcnt(%d) lgkmcnt(0)" % {(1, 'a'): 7, (3, 'a'): 4, (1, 'b'): 1, (3, 'b'): 6, (29, ''): 17}[(i, part)]); P(g0 + 15, "s_barrier")
        elif u == 3 and i == 30:
            P(g0 + 15, "s_waitcnt lgkmcnt(0)"); P(g0 + 15, "s_barrier")
        else:
            P(g0 + 15, "s_waitcnt lgkmcnt(0)")
        if i == 30 and u == 3:
            tr = vread(VKF, 31, 0)
            for g, k in zip((16, 16, 18, 20, 20, 22, 24, 24), range(8)): P(g0 + g, tr[k])
        else:
            rd = kread(VKF, i + 1, u + 1) if u < 3 else kread(VKF, i + 2, 0)
            for g, k in zip((16, 18, 20, 22), range(4)): P(g0 + g, rd[k])
        P(g0 + 33, "s_waitcnt lgkmcnt(0)")
        if par == 0 and i < 30:
            for n, g in enumerate(OPT.get('gpos', (5, 12, 24, 28))):
                k = 4 * u + n
                isk, pc = (k % 2 == 0, k // 2) if OPT["kvmix"] else (k < 8, k & 7)
                so = S_KO if isk else S_VO
                P(g0 + g - 2, "s_add_u32 m0, s%d, 0x%x" % (S_L1K, (KOFF(i + 3) if isk else 65536 + VOFF(i + 2)) + pc * 4096))
                P(g0 + g - 1, "s_add_u32 s%d, s%d, %d" % (S_T0, so, pc * 4096))
                P(g0 + g, "buffer_load_dwordx4 v%d, %s, s%d offen lds" % (V_DK if isk else V_DV, sr(S_K if isk else S_V), S_T0))
            if u == 3:
                P(g0 + 29, "s_add_u32 s%d, s%d, 32768" % (S_KO, S_KO)); P(g0 + 30, "s_add_u32 s%d, s%d, 32768" % (S_VO, S_VO))
    for k, x in enumerate(tail_scalars): P(102 + 31 + k, x)
    if i == 0:
        sc, va = loop_setup()
        fl = [Flt(x) for x in va]
        g = 0
        for x in sc:
            while any(cost(I(y)) == 0 or I(y).kind == "vmem" for y in pin.get(g, [])): g += 1
            P(g, x)
        assert g < 136
    if i == 1 and part == 'a':
        sc, dm, rd, stv, mk = relayout()
        g = 0
        for grp in sc:
            while (pin.get(g) if len(grp) > 1 else any(cost(I(y)) == 0 for y in pin.get(g, []))): g += 1
            for x in grp: P(g, x)
            g += 1
        assert g <= 42, g
        for g, (pre, x) in zip((34 + 12, 34 + 24, 34 + 28, 34 + 32), dm):
            P(g - 2, pre[0]); P(g - 1, pre[1]); P(g, x.split(";@")[0].rstrip())
        for g, x in zip((68 + 12, 68 + 28, 102 + 12), mk): P(g, x)
        P(102 + 13, "s_add_u32 s%d, s%d, 6144" % (S_SO, S_SO))
    if i == 1 and part == 'b':
        P(0, "s_lshl_b32 s54, s%d, 3" % S_WAVE); P(1, "s_add_u32 s54, s54, s%d" % S_CNT)
        P(5, "s_cmp_eq_u32 s54, 4"); P(5, "s_cselect_b32 s%d, s%d, 0x40000000" % (S_T2, S_AFL))
        P(102 + 24, "buffer_store_dword v%d, v%d, %s, s%d offen%s" % (V_1, V_L0, sr(S_WS), S_T2, SC))
    if i == 3 and part == 'a':
        sc, dm, rd, stv, mk = relayout()
        P(23, "s_waitcnt vmcnt(19)")
        for g, xs in zip((24, 28, 34 + 24, 34 + 28), rd):
            for x in xs: P(g, x)
        for g, x in zip((34 + 5, 34 + 32, 68 + 5, 68 + 24), stv): P(g, x)
    if part == 'b':
        P(68 + 32, "buffer_atomic_add v%d, v%d, %s, s%d offen%s" % (V_1, V_L0, sr(S_WS), S_PG, SC))
    if i == 3 and part == 'b':
        P(102 + 5, "global_load_dword v%d, %s, off" % (V_TMP + 6, vr(V_TMP + 4, 2)))
        for u in range(4): P(34 * u + 12, "buffer_load_dword v%d, v%d, %s, s%d offen%s" % (V_TMP + u, V_B8, sr(S_WS), S_PS, SC))
    if i == 3 and part == 'b':
        P(102 + 24, "s_cmp_eq_u32 s%d, 1" % S_CNT); P(102 + 24, "s_cselect_b32 s%d, 0, 0x40000000" % S_T2)
        P(102 + 25, "s_add_u32 s%d, s%d, 0x%x" % (S_T2, S_T2, FLAG_OFF + 4096))
        P(102 + 28, poll_a()[0])
    if i in (29, 30):
        gaps = [34 * u + g for u in range(4) for g in (5, 12, 24, 28, 32) if i == 29 or (u, g) not in ((0, 24), (3, 24))]
        ops = preload(i)
        assert len(ops) == len(gaps)
        for g, f in zip(gaps, ops):
            m, so, x = f(S_T0)
            if m: P(g - 2, m)
            P(g - 1, so); P(g, x)
        def scalars(g, xs):
            for x in xs:
                while any(cost(I(y)) == 0 or I(y).kind == "vmem" for y in pin.get(g, [])): g += 1
                P(g, x)
            return g
    if i == 29:
        t = V_TMP
        free = [34 * u + g for u in range(4) for g in (10, 14, 16, 20, 26, 30)]
        S1, V, S2, R, S3 = proposal()
        g = scalars(0, S1)
        free = [x for x in free if x > g]
        for x in V:
            g = free.pop(0)
            P(g, x)
        g = scalars(g + 1, S2)
        free = [x for x in free if x > g]
        for x in R: P(free.pop(0), x)
    if i == 30:
        assert scalars(0, proposal()[4]) < 20
        P(16, "v_mov_b32 v33, 0"); P(20, "v_mov_b32 v32, s%d" % S_REM)
        P(24, "buffer_atomic_cmpswap v[32:33], v%d, %s, s%d offen offset:16 sc0 sc1 ;@cas" % (V_L0, sr(S_WS), S_PS))
    if i == 30:
        P(68 + 13, "WAITVM cas"); P(68 + 14, "v_readfirstlane_b32 s54, v32")
        g = scalars(68 + 16, ["s_min_u32 s55, s54, 1", "s_sub_u32 s55, s55, 1", "s_and_b32 s55, s55, s%d" % S_REM, "s_or_b32 s54, s54, s55",
                              "s_lshl_b32 s55, s%d, 2" % S_WAVE, "s_add_u32 s55, s55, %d" % (FLAG_LDS + 16)])
        assert g < 68 + 26
        P(68 + 26, "v_mov_b32 v32, s54"); P(68 + 30, "v_mov_b32 v33, s55")
        P(102 + 10, "ds_write_b32 v33, v32"); P(102 + 14, "v_mov_b32 v33, %d" % (FLAG_LDS + 16))
        P(102 + 26, "ds_read_b32 v32, v33")
        assert scalars(25, late_setup()) < 68
    out, left = schedule(mf, pin, fl)
    assert not left
    if 1 <= i <= 4:
        for pat in OPT.get("drop", []):
            out = [x for x in out if not x.startswith(pat)]
        for pat, a_, b_ in OPT.get("sub", []):
            out = [x.replace(a_, b_) if x.startswith(pat) else x for x in out]
    return out

def proposal():
    mm, t = OPT["mmin"], V_TMP
    S1 = ["s_add_u32 s54, s56, s57", "s_add_u32 s55, s58, s59", "s_add_u32 s54, s54, s55", "s_mul_i32 s54, s54, %d" % OPT["gain"], "s_sub_u32 s54, %d, s54" % (1280 - 768)]
    for n in range(4):
        S1 += ["s_mul_i32 s%d, s%d, %d" % (56 + n, 56 + n, 4 * OPT["gain"]), "s_add_u32 s%d, s%d, s54" % (56 + n, 56 + n), "s_add_u32 s54, s54, %d" % OPT["tie"][n]]
    V = ["v_lshl_add_u32 v%d, v0, 4, s%d" % (t + n, 56 + n) for n in range(4)] + ["v_ashrrev_i32 v%d, 8, v%d" % (t + n, t + n) for n in range(4)] + \
        ["v_med3_i32 v%d, v%d, %d, 20" % (t + n, t + n, mm) for n in range(4)] + \
        ["v_add3_u32 v32, v%d, v%d, v%d" % (t, t + 1, t + 2), "v_add_u32 v32, v32, v%d" % (t + 3), "v_cmp_le_i32 vcc, 20, v32"]
    S2 = ["s_ff1_i32_b64 s54, vcc", "s_and_b32 s54, s54, 63"]
    R = ["v_readlane_b32 s%d, v%d, s54" % (56 + n, t + n) for n in (0, 1, 3)]
    S3 = ["s_add_u32 s57, s57, s56", "s_sub_u32 s59, 20, s59", "s_min_u32 s56, s56, %d" % (20 - 3 * mm), "s_min_u32 s57, s57, %d" % (20 - 2 * mm),
          "s_add_u32 s54, s57, %d" % mm, "s_max_i32 s59, s59, s54", "s_lshl_b32 s57, s57, 8", "s_lshl_b32 s59, s59, 16", "s_or_b32 s56, s56, s57",
          "s_or_b32 s59, s59, 0x14000000", "s_or_b32 s%d, s56, s59" % S_REM]
    if OPT["fixed"]: S3.append("s_mov_b32 s%d, 0x%x" % (S_REM, OPT["fixed"]))
    return S1[:-1], V, S2, R, S3

def poll_a():
    a = V_PA
    return ("buffer_load_dwordx4 %s, v%d, %s, s%d offen%s" % (vr(a), V_FR, sr(S_WS), S_T2, SC),
            ["v_and_b32 v%d, v%d, v%d" % (a, a, a + 1), "v_and_b32 v%d, v%d, v%d" % (a + 2, a + 2, a + 3),
             "v_and_b32 v%d, v%d, v%d" % (a, a, a + 2), "v_cmp_eq_u32 vcc, 0, v%d" % a])

def poll_b():
    return ("buffer_load_dword v%d, v%d, %s, s%d offen%s" % (V_PL, V_B8, sr(S_WS), S_BC, SC), ["v_cmp_eq_u32 vcc, 0, v%d" % V_PL])

def poll_d():
    return ("buffer_load_dword v%d, v%d, %s, s%d offen%s" % (V_PL, V_B8, sr(S_WS), S_DF, SC), ["v_cmp_eq_u32 vcc, 0, v%d" % V_PL])

def spin(name, loads, check):
    return ["L_%s_spin:" % name, "s_mov_b32 s55, 0x%x" % OPT.get("spin", 0x100000), "L_%s_loop:" % name] + (["s_sleep %d" % OPT["sleep"]] if OPT["sleep"] and name == "s" else []) + loads + ["s_sub_u32 s55, s55, 1", "s_waitcnt vmcnt(0)"] + check + \
           ["s_cmp_eq_u32 s55, 0", "s_cbranch_scc1 L_%s_ret" % name, "s_cbranch_vccnz L_%s_loop" % name, "s_branch L_%s_ret" % name]

def guard(name):
    return ["s_cbranch_vccnz L_%s_spin" % name, "L_%s_ret:" % name]

def tail_setup():
    P = srd(S_X, 80, X_BYTES) + srd(S_AUX, 60, 0)
    A = P.append
    j, a, b, c, r = 42, 54, 55, 53, 46
    A("s_bfe_u32 s%d, s2, 0x20001" % j)
    A("s_min_u32 s%d, s%d, 1" % (a, j))
    A("s_sub_u32 s%d, 1, s%d" % (a, a))
    A("s_lshl_b32 s%d, s%d, 28" % (S_AUX + 2, a))
    A("s_lshr_b32 s%d, s2, 5" % a)
    A("s_lshl_b32 s%d, s%d, 1" % (a, a))
    A("s_add_u32 s%d, s%d, s%d" % (a, a, S_HF))
    A("s_lshl_b32 s%d, s%d, 2" % (b, a))
    A("s_add_u32 s%d, s%d, s%d" % (b, b, S_WAVE))
    A("s_mul_i32 s%d, s%d, %d" % (S_XO, b, 32 * 1152))
    A("s_lshr_b32 s%d, s%d, 1" % (a, b))
    A("s_and_b32 s%d, s%d, 1" % (b, b))
    A("s_lshl_b32 s%d, s%d, 2" % (c, a))
    A("s_add_u32 s%d, s%d, s%d" % (c, c, j))
    A("s_lshl_b32 s%d, s%d, 5" % (S_BC, c))
    A("s_add_u32 s%d, s%d, 0x%x" % (S_BC, S_BC, FLAG_OFF))
    A("s_lshl_b32 s%d, s%d, 17" % (S_HA, c))
    A("s_lshl_b32 s%d, s%d, 14" % (S_H2, c))
    A("s_lshl_b32 s%d, s%d, 11" % (c, b))
    A("s_add_u32 s%d, s%d, s%d" % (S_HA, S_HA, c))
    A("s_lshl_b32 s%d, s%d, 10" % (c, b))
    A("s_add_u32 s%d, s%d, s%d" % (S_H2, S_H2, c))
    A("s_lshl_b32 s%d, s%d, 5" % (c, S_RB))
    A("s_add_u32 s%d, s%d, s%d" % (c, c, S_SL))
    A("s_lshl_b32 s%d, s%d, 2" % (c, c))
    A("s_add_u32 s%d, s%d, 0x%x" % (S_BP, c, FLAG_OFF))
    A("s_bfe_u32 s%d, s2, 0x20003" % a)
    A("s_mul_i32 s%d, s%d, 288" % (b, a))
    A("s_add_u32 s%d, s%d, s%d" % (S_XO, S_XO, b))
    A("s_mul_i32 s%d, s%d, 9216" % (a, a))
    A("s_lshl_b32 s%d, s%d, 5" % (b, j))
    A("s_add_u32 s%d, s%d, s%d" % (b, b, S_WAVE))
    A("s_mul_i32 s%d, s%d, %d" % (b, b, SLOT))
    A("s_add_u32 s%d, s%d, s%d" % (c, a, b))
    A("s_mul_i32 s%d, s%d, 28" % (a, j))
    A("s_sub_u32 s%d, 128, s%d" % (a, a))
    A("s_mul_i32 s%d, s%d, %d" % (S_W8, a, SLOT))
    P += rot(r)
    for n in range(9):
        P += ["s_add_u32 s%d, s%d, %d" % (a, r, n), "s_sub_u32 s%d, s%d, 9" % (b, a), "s_min_u32 s%d, s%d, s%d" % (a, a, b),
              "s_lshl_b32 s%d, s%d, 10" % (a, a), "s_add_u32 s%d, s%d, s%d" % (S_TO[n], a, c)]
    A("s_lshl_b32 s%d, s%d, 5" % (a, r))
    A("s_add_u32 s%d, s%d, s%d" % (S_XO, S_XO, a))
    P += slab_base(47)
    A("s_lshl_b32 s%d, s%d, 11" % (a, r))
    A("s_add_u32 s47, s47, s%d" % a)
    for n in range(3):
        A("s_add_u32 s%d, s%d, %d" % (a, j, n + 1))
        A("s_and_b32 s%d, s%d, 3" % (a, a))
        A("s_mul_i32 s%d, s%d, %d" % (a, a, 18 * 1024))
        A("s_add_u32 s%d, s%d, s47" % (S_IN + n, a))
    A("s_lshl_b32 s%d, s%d, 2" % (c, S_WAVE))
    for q in range(4):
        A("s_lshr_b32 s%d, 0x%x, s%d" % (a, sum(v << (4 * k) for k, v in enumerate(SUB[q])), c))
        A("s_and_b32 s%d, s%d, 15" % (a, a))
        A("s_add_u32 s%d, s%d, 4" % (b, a))
        A("s_lshr_b32 s%d, s%d, 4" % (b, b))
        A("s_mul_i32 s%d, s%d, 16320" % (b, b))
        A("s_mul_i32 s%d, s%d, 9216" % (a, a))
        A("s_add_u32 s%d, s%d, s%d" % (S_LB[q], a, b))
    V = ["v_and_b32 v%d, 15, v0" % V_XO, "v_mul_u32_u24 v%d, 1152, v%d" % (V_XO, V_XO), "v_lshrrev_b32 v%d, 4, v0" % (V_XO + 1),
         "v_lshl_add_u32 v%d, v%d, 3, v%d" % (V_XO, V_XO + 1, V_XO), "v_add_u32 v%d, %d, v%d" % (V_XO + 1, 16 * 1152, V_XO)]
    return P, V

def late_setup():
    return srd(S_OUT, 78, X_BYTES) + ["s_lshr_b32 s54, s2, 3", "s_lshl_b32 s54, s54, 1", "s_add_u32 s54, s54, s%d" % S_HF,
            "s_lshl_b32 s54, s54, 2", "s_add_u32 s54, s54, s%d" % S_WAVE, "s_lshl_b32 s54, s54, 4",
            "s_add_u32 s%d, s54, 0x%x" % (S_DF, FLAG_OFF + 8192), "s_bfe_u32 s54, s2, 0x20001", "s_lshl_b32 s54, s54, 2",
            "s_add_u32 s%d, s54, s%d" % (S_DO, S_DF)]

def loop_setup():
    P = slab_base(54)
    A = P.append
    A("s_mov_b32 s%d, 0x20000" % (S_SRC + 3))
    A("s_bfe_u32 s55, s2, 0x20001")
    A("s_mul_i32 s55, s55, %d" % (18 * 1024))
    A("s_add_u32 s%d, s55, s54" % S_SO)
    A("s_lshl_b32 s%d, s2, 2" % S_U)
    A("s_add_u32 s%d, s%d, 0x%x" % (S_AFL, S_U, FLAG_OFF + 4096))
    A("s_add_u32 s%d, s%d, s%d" % (S_U, S_U, S_WAVE))
    A("s_lshl_b32 s%d, s%d, 12" % (S_SCR, S_WAVE))
    A("s_add_u32 s%d, s%d, %d" % (S_SCR, S_SCR, SCR))
    A("s_lshr_b32 s54, s2, 3")
    A("s_lshl_b32 s54, s54, 1")
    A("s_add_u32 s54, s54, s%d" % S_HF)
    A("s_lshl_b32 s54, s54, 6")
    A("s_min_u32 s55, s%d, 1" % S_WAVE)
    A("s_lshl_b32 s55, s55, 30")
    A("s_add_u32 s54, s54, s55")
    A("s_add_u32 s%d, s54, 0x%x" % (S_PS, FLAG_OFF + 12288))
    A("s_bfe_u32 s55, s2, 0x20001")
    A("s_lshl_b32 s55, s55, 2")
    A("s_add_u32 s%d, s%d, s55" % (S_PG, S_PS))
    V = ["v_mov_b32 v%d, -1" % (V_M1 + r) for r in range(4)]
    V += ["v_mov_b32 v%d, 1" % V_1, "v_min_u32 v%d, 1, v0" % V_L0, "v_lshlrev_b32 v%d, 30, v%d" % (V_L0, V_L0),
         "v_add_u32 v%d, 0x10000, v%d" % (V_RD, V_FR), "v_add_u32 v%d, 0x20000, v%d" % (V_RD2, V_FR), "v_lshlrev_b32 v%d, 3, v0" % V_H2,
         "v_add_u32 v%d, 0x1000, v%d" % (V_F4, V_FR), "v_and_b32 v%d, 7, v0" % V_B8, "v_lshlrev_b32 v%d, 2, v%d" % (V_B8, V_B8)]
    return P, V

def accr(job, c, rt): return (VD if job == 0 else VSA) + 8 * c + 4 * rt
RING = [SUBOFF(6), SUBOFF(0), SUBOFF(12)]
V_RA = 12
S_KAP, S_WD, S_AD, S_REM = 47, 48, 42, 53
def stage(name, ring=None):
    k, n = name[0], int(name[1])
    if k == "p": return dict(name=name, job=0, ab=(144, 176, 208, 0)[n], sub=n, lb=S_LB[n], src=n if n < 3 else "h2", init=n == 0)
    if k == "f": return dict(name=name, job=0, ab=(144, 176, 208)[n], ring=n, lb=S_LB[n], src="dyn", init=False)
    r = n % 3 if ring is None else ring
    return dict(name=name, job=1, ab=(32, 64, 96, 0, 144, 176, 208, 32)[n], ring=r, lb=S_LB[r], src=9 + n, init=n == 0)
def act(st, k, rt, n=4, o=0): return ar(st["ab"] + 8 * k + 4 * rt + o, n)

def stage_loads(st):
    w, a = [], []
    src, nm = st["src"], st["name"]
    for c in range(9):
        def f(t, c=c):
            so = "s_add_u32 s%d, s%d, s%d" % (t, S_TO[c], S_W8 if src == "h2" else S_WD) if src in ("h2", "dyn") else \
                 "s_add_u32 s%d, s%d, 0x%x" % (t, S_TO[c], (4 * src if src < 8 else 144 + 4 * (src - 9)) * SLOT)
            return ("s_add_u32 m0, s%d, 0x%x" % (st["lb"], (c + st.get("sp", 0)) * 1024), so,
                    "buffer_load_dwordx4 v%d, %s, s%d offen%s lds ;@w%s" % (V_FR, sr(S_WF), t, SC, st.get("wn", nm)))
        w.append(f)
    for k in range(4):
        for hf in range(2 if src == "h2" else 1):
            for rt in range(2):
                def f(t, k=k, hf=hf, rt=rt):
                    if src == "h2":
                        return (None, "s_add_u32 s%d, s%d, 0x%x" % (t, S_H2, H2_OFF + k * 4096),
                                "buffer_load_dwordx2 %s, v%d, %s, s%d offen offset:%d%s ;@a%s" %
                                (act(st, k, rt, 2, 2 * hf), V_H2, sr(S_WS), t, hf * 2048 + rt * 512, SC, nm))
                    r, o = (S_AD, H_OFF + k * 4096) if src == "dyn" else \
                           (S_HA, H_OFF + (4 * src + k) * 4096 if src < 8 else O_OFF + (4 * (src - 9) + k) * 4096)
                    return (None, "s_add_u32 s%d, s%d, 0x%x" % (t, r, o),
                            "buffer_load_dwordx4 %s, v%d, %s, s%d offen offset:%d%s ;@a%s" % (act(st, k, rt), V_FR, sr(S_WS), t, rt * 1024, SC, nm))
                a.append(f)
    return w, a

def preload(i):
    w, a = zip(*[stage_loads(stage("p%d" % n)) for n in range(3)])
    return {29: a[0] + a[1] + a[2][:1] + w[0][:3], 30: w[0][3:] + w[1] + a[2][1:4], 31: w[2] + a[2][4:]}[i]

def wread(st, c, buf):
    out = []
    for k in range(4):
        if "sub" in st:
            off = SUBOFF(SUB[st["sub"]][k]) + (c + st.get("sp", 0)) * 1024
            adr, off = (V_FR, V_RD, V_RD2)[off >> 16], off & 0xffff
        else:
            adr, off = V_RA + st["ring"], k * 9216 + c * 1024
        out.append("ds_read_b128 %s, v%d offset:%d" % (vr(WBUF[buf] + 4 * k), adr, off))
    return out[::2] if OPT.get("emu8") else out

def inreg(job, c, n): return (VD if job == 0 else VSA) + 24 + 12 * (2 - n) + 4 * c
def fetch(job, ns=(2, 1, 0)):
    return ["buffer_load_dwordx4 %s, v%d, %s, s%d offen offset:%d%s ;@in%d" %
            (vr(inreg(job, c, n)), V_FR if c < 2 else V_F4, sr(S_WS if c < 2 else S_AUX), S_IN + n, (c & 1) * 2048 + job * 1024, SC, job)
            for n in ns for c in range(3)]
def arrived(ns):
    r = [inreg(1, 0, n) + k for n in ns for k in range(12)]
    P = ["v_max3_u32 v%d, v%d, v%d, v%d" % (VT + q, r[3 * q], r[3 * q + 1], r[3 * q + 2]) for q in range(4)]
    P += ["v_max3_u32 v%d, v%d, v%d, v%d" % (VT + k % 4, VT + k % 4, r[12 + 2 * k], r[13 + 2 * k]) for k in range((len(r) - 12) // 2)]
    return P + ["v_max3_u32 v%d, v%d, v%d, v%d" % (VT, VT, VT + 1, VT + 2), "v_max_u32 v%d, v%d, v%d" % (VT, VT, VT + 3), "v_cmp_eq_u32 vcc, -1, v%d" % VT]
def gather(job, c):
    return [mfma(vr(accr(job, c, rt)), vr(VSEL + 2 - 2 * rt), vr(inreg(job, c, n)), vr(accr(job, c, rt))) for rt in range(2) for n in range(3)]
def sel_setup():
    z, t = VSEL, VT
    return ["v_mov_b32 v%d, 0" % (z + r) for r in (0, 1, 4, 5)] + \
           ["v_bfe_u32 v%d, v0, 2, 2" % t, "v_lshrrev_b32 v%d, 4, v0" % (t + 1), "v_xor_b32 v%d, v%d, v%d" % (t, t, t + 1), "v_min_u32 v%d, 1, v%d" % (t, t),
            "v_sub_u32 v%d, 1, v%d" % (t, t), "v_mul_u32_u24 v%d, 0x3f80, v%d" % (t, t), "v_and_b32 v%d, 1, v0" % (t + 1), "v_lshlrev_b32 v%d, 4, v%d" % (t + 1, t + 1),
            "v_lshlrev_b32 v%d, v%d, v%d" % (t, t + 1, t), "v_bfe_i32 v%d, v0, 1, 1" % (t + 1), "v_and_b32 v%d, v%d, v%d" % (z + 3, t, t + 1),
            "v_xor_b32 v%d, v%d, v%d" % (z + 2, t, z + 3)]

class Seg:
    def __init__(self, seq, nxt=None):
        self.mf, self.pin, self.fl, self.done, self.ins = [], {}, [], {}, {}
        ext = seq + ([(nxt, c) for c in range(3)] if nxt else [])
        self.start = {}
        self.wstart = {}
        for n, (st, c) in enumerate(ext):
            self.start.setdefault(st["name"], 8 * n)
            self.wstart.setdefault(st.get("wn", st["name"]), 8 * n)
        for n, (st, c) in enumerate(seq):
            g0 = len(self.mf)
            for e, rt in enumerate(snake(2, n, "T")):
                d = vr(accr(st["job"], c, rt))
                for q, k in enumerate(snake(4, e, "t")):
                    self.mf.append(mfma(d, vr(WBUF[n % 3] + 4 * k), act(st, k, rt), "0" if st["init"] and q == 0 else d))
            self.done[(st["job"], c)] = len(self.mf) - 1
            if n + 2 < len(ext):
                for i, x in enumerate(wread(ext[n + 2][0], ext[n + 2][1], (n + 2) % 3)): self.P(g0 + i, x)
            lw = "lgkmcnt(%d)" % ((2 if OPT.get("emu8") else 4) if n + 2 < len(ext) else 0)
            nxw = ["w" + q for q, g in self.wstart.items() if g == g0 + 24]
            nxa = ["a" + q for q, g in self.start.items() if g == g0 + 8]
            if nxw or nxa:
                self.P(g0 + 7, "WAITVM %s %s" % (",".join(nxw + nxa), lw))
                if nxw: self.P(g0 + 7, "s_barrier")
            elif n + 1 < len(ext):
                self.P(g0 + 7, "s_waitcnt " + lw)
    def P(self, g, x): self.pin.setdefault(g, []).append(x)
    def put(self, g, f):
        m, so, x = f({4: S_T0, 5: S_AD, 6: S_T3}[g % 8])
        if m: self.P(g - 3 if g % 8 == 4 else g - 1, m)
        self.P(g - 2 if g % 8 == 5 else g - 4, so); self.P(g, x)
    def issue(self, g0, st, poll):
        w, a = stage_loads(st)
        for n, f in enumerate(w[:8] + a[:6] + w[8:] + a[6:]):
            if not (OPT.get("emu8") and n < 8 and n % 2): self.put(g0 + 8 * (n // 2) + 4 + 2 * (n % 2), f)
        if poll and not OPT["latepoll"]: self.P(g0 + 70, poll_b()[0] + " ;@pb")
    def advance(self, g0):
        for k, x in enumerate(["s_add_u32 s%d, s%d, 4" % (S_KAP, S_KAP), "s_and_b32 s54, s%d, 31" % S_KAP, "s_sub_u32 s54, s54, 1", "s_lshr_b32 s54, s54, 31",
                               "s_mul_i32 s54, s54, 12", "s_add_u32 s%d, s%d, s54" % (S_KAP, S_KAP), "s_lshl_b32 s54, s%d, 12" % S_KAP,
                               "s_mul_i32 s%d, s%d, %d" % (S_WD, S_KAP, SLOT), "s_add_u32 s%d, s%d, s54" % (S_AD, S_HA)]):
            self.P(g0 + 8 * k + 3, x)
    def spot(self, g):
        while self.pin.get(g) or g % 8 < 4: g += 1
        return g
    def flag(self, g, tag, soff):
        if tag in OPT.get("wb", ()):
            self.P(g - 44, "WAITVM " + tag)
            self.P(self.spot(g - 40), "buffer_wbl2 sc1 ;@" + tag)
        self.P(g - 4, "WAITVM " + tag)
        self.P(self.spot(g), "buffer_store_dword v%d, v%d, %s, s%d offen%s" % (V_1, V_L0, sr(S_WS), soff, SC))
    def code(self, cap=2, head=None):
        mf, pin, fl, o = self.mf, self.pin, self.fl, 0
        if head:
            mf0, pin0, fl0 = head
            o = len(mf0)
            for g, xs in pin.items(): pin0[g + o] = xs
            for f in fl:
                f.lo += o
                if f.hi is not None: f.hi += o
            mf, pin, fl = mf0 + mf, pin0, fl0 + fl
        out, left = schedule(mf, pin, fl, cap=cap)
        for tag in OPT.get("plain", ()):
            out = [x.replace(SC, OPT.get("plainf", "")) if x.startswith("buffer_store") and x.endswith(";@" + tag) else x for x in out]
        idx = [i for i, x in enumerate(out) if x.startswith("v_mfma")][o:]
        for g in sorted(self.ins, reverse=True): out[idx[g]:idx[g]] = self.ins[g]
        return out, [y for f in left for y in f.i.text.split("\n")]

def full(names, **kw): return [(stage(n, **kw), c) for n in names for c in range(9)]
def count_down(S, g0):
    S.P(g0 + 69, "s_sub_u32 s%d, s%d, 1" % (S_REM, S_REM)); S.P(g0 + 71, "s_cmp_le_i32 s%d, 2" % S_REM)

def seg_prefix():
    st = OPT["st"]
    S = Seg(full(["p0", "p1", "p2"]), stage("p3"))
    w, a = stage_loads(stage("p3"))
    pos = [8 * (n // 2) + 4 + 2 * (n % 2) for n in range(36)]
    slots = [pos[(n * 36) // 25] for n in range(25)]
    assert slots[9] >= OPT["a3"]
    for g, f in zip(slots, w + a): S.put(g, f)
    S.issue(144, stage("f0"), True); S.advance(144)
    S.P(144 + 71, "s_cmp_le_i32 s%d, 1" % S_REM)
    S.flag(OPT["ogap"], "o", S_BP)
    sc = ["s_mul_i32 s%d, s%d, 9216" % (S_LB[1], S_WAVE), "s_add_u32 s%d, s%d, %d" % (S_LB[2], S_LB[1], RING[2]),
          "s_bfe_u32 s54, s2, 0x20001", "s_lshl_b32 s55, s54, 3", "s_lshl_b32 s%d, s%d, 8" % (S_KAP, S_REM), "s_lshr_b32 s%d, s%d, s55" % (S_KAP, S_KAP),
          "s_and_b32 s%d, s%d, 31" % (S_KAP, S_KAP), "s_lshr_b32 s%d, s%d, s55" % (S_REM, S_REM), "s_and_b32 s%d, s%d, 31" % (S_REM, S_REM),
          "s_sub_u32 s%d, s%d, s%d" % (S_REM, S_REM, S_KAP), "s_mul_i32 s55, s%d, 52" % S_KAP, "s_lshr_b32 s55, s55, 8", "s_mul_i32 s55, s55, 3",
          "s_add_u32 s%d, s%d, s55" % (S_KAP, S_KAP), "s_add_u32 s%d, s%d, 3" % (S_KAP, S_KAP), "s_lshl_b32 s54, s54, 3", "s_sub_u32 s%d, s%d, s54" % (S_KAP, S_KAP),
          "s_lshl_b32 s%d, s%d, 2" % (S_KAP, S_KAP), "s_lshl_b32 s54, s%d, 12" % S_KAP, "s_mul_i32 s%d, s%d, %d" % (S_WD, S_KAP, SLOT),
          "s_add_u32 s%d, s%d, s54" % (S_AD, S_HA)]
    g = 0
    for x in sc:
        while g % 8 > 3 or any(cost(I(y)) == 0 for y in S.pin.get(g, [])): g += 1
        S.P(g, x)
    assert g < 140
    for r in range(3): S.P(144 + r, "v_add_u32 v%d, %d, v%d" % (V_RA + r, RING[r], V_FR))
    S.ins = {0: st("tail0"), 144: st("g2")}
    if OPT["pads"] and OPT["hopt"]: S.ins[OPT["hopt"]] = hop_round(len(OPT["hops"]) + len(OPT["hopg"]))
    out, left = S.code(cap=lambda g: OPT["cap31"] if g < 72 else OPT["ocap"], head=step_last())
    assert not left
    if OPT.get("verbose"):
        n = 0
        for x in out:
            n += x.startswith("v_mfma")
            if ";@o" in x: print("O store at", n - 72)
    return out

def seg_p3():
    S = Seg(full(["p3"]), stage("f0"))
    S.issue(0, stage("f1"), True); S.advance(0)
    S.P(71, "s_cmp_le_i32 s%d, 2" % S_REM)
    return S.code()[0] + OPT["st"]("g4")

def seg_flex(ph):
    S = Seg(full(["f%d" % ph]), stage("f%d" % ((ph + 1) % 3)))
    S.issue(0, stage("f%d" % ((ph + 2) % 3)), True); S.advance(0); count_down(S, 0)
    return S.code()[0]

def seg_bridge(v):
    ph = min(v, 2)
    b0, b1 = stage("b0", (ph + 2) % 3), stage("b1", ph)
    S = Seg(full(["f%d" % ph if v < 3 else "p3", "f%d" % ((ph + 1) % 3)]), b0)
    S.issue(0, b0, False); S.issue(72, b1, False)
    if OPT["latepoll"]: S.P(7, poll_b()[0] + " ;@pb")
    S.P(27, "WAITVM pb"); S.P(27, poll_b()[1][0])
    S.ins = {0: OPT["st"]("br"), 32: OPT["st"]("preb") + guard("b%d" % v) + OPT["st"]("postb")}
    if ph != 1:
        o = (0, 1, 2) if ph == 2 else (2, 1, 0)
        for k, (d, a_) in enumerate(((None, o[0]), (o[0], o[1]), (o[1], o[2]), (o[2], None))):
            S.P(72 + (65, 66, 67, 69)[k], "s_mov_b32 s%d, s%d" % (54 if d is None else S_LB[d], 54 if a_ is None else S_LB[a_]))
            S.P(72 + (69, 69, 70, 70)[k], "v_mov_b32 v%d, v%d" % (15 if d is None else V_RA + d, 15 if a_ is None else V_RA + a_))
    return S.code()[0]

def seg_rest():
    st, D = OPT["st"], OPT["defer"]
    B = [stage("b%d" % n) for n in range(8)]
    B[7].update(sub=4, lb=S_LB[3])
    blocks = [("k%d" % q, cs) for q, cs in enumerate(OPT["blocks"])] + [("own", (0, 1))]
    blk = lambda n, nm: dict(B[n], wn=nm)
    S = Seg([(B[n], c) for n in range(5) for c in range(9)] + [(blk(n, nm), c) for nm, cs in blocks for n in (5, 6, 7) for c in cs])
    for k, x in enumerate(["s_and_b32 s54, s%d, 1" % S_WAVE, "s_mul_i32 s54, s54, 9216", "s_lshr_b32 s55, s%d, 1" % S_WAVE, "s_mul_i32 s55, s55, %d" % (6 * 9216),
                           "s_add_u32 s54, s54, s55", "s_add_u32 s%d, s54, %d" % (S_LB[3], 4 * 9216)]):
        S.P(8 * k + 11, x)
    for n in range(3): S.issue(72 * n, B[n + 2], False)
    wl = lambda q, ns: [stage_loads(blk(n, blocks[q][0]))[0][c] for n in ns for c in blocks[q][1]]
    al = lambda n: stage_loads(B[n])[1]
    first = wl(0, (5, 7)) + al(5)
    ops = first + [None] * (14 - len(first)) + wl(0, (6,)) + al(6) + al(7)
    for q in range(1, len(blocks)): ops += wl(q, (5, 6, 7))
    for k, f in enumerate(ops):
        last = 216 + 8 * (k // 2) + 4 + 2 * (k % 2)
        if f: S.put(last, f)
    S.P(3, "v_and_b32 v%d, 12, v%d" % (V_B8, V_B8))
    if OPT["pf3"]:
        g = 72
        for k, x in enumerate(["s_lshr_b32 s47, s2, 3", "s_lshl_b32 s47, s47, 2", "s_add_u32 s47, s47, s%d" % S_WAVE, "s_lshl_b32 s47, s47, 6",
                               "s_add_u32 s47, s47, %d" % OPT["pf3o"], "s_min_u32 s47, s47, L_k2_last-L_k2_pc3", "s_getpc_b64 s[54:55]\nL_k2_pc3:"]):
            S.P(g + 8 * k + 3, x)
        g = OPT["pf3"]
        S.P(g, "v_mov_b32 v84, s47"); S.P(g + 1, "v_mov_b32 v85, s55"); S.P(g + 2, "v_add_co_u32 v84, vcc, s54, v84")
        S.P(g + 8, "v_addc_co_u32 v85, vcc, 0, v85, vcc")
        S.P(S.spot(g + 10), "global_load_dword v86, v[84:85], off")
    for k, (v, o) in enumerate(((5, 0), (6, 0), (5, 64), (6, 64))[:OPT["outpf"]]):
        S.P(S.spot(296 + 8 * k), "buffer_load_dword v87, v%d, %s, s%d offen offset:%d" % (v, sr(S_OUT), S_XO, o))
    S.flag(OPT["dflag"], "p0", S_DO)
    g = last // 8 * 8 + 8
    S.P((g - OPT["pollahead"]) // 8 * 8 + 5, poll_d()[0] + " ;@pd")
    S.P(g - 5, "WAITVM pd"); S.P(g - 5, poll_d()[1][0])
    S.ins = {0: st("rest"), g: st("pred") + guard("d") + st("postd")}
    for x in fetch(0):
        g = S.spot(g)
        S.P(g, x)
        g += OPT["fstep"]
    gd = len(S.mf) - 8 * OPT["gdend"]
    assert gd - 5 > g
    S.P(gd - 5, "WAITVM in0")
    S.ins[gd] = st("gd") + gather(0, 0) + gather(0, 1) + gather(0, 2)
    for q in S.wstart: S.ins.setdefault(S.wstart[q], st(q))
    fl, grp = S.fl, []
    for job in range(2):
        for c in range(2, 9):
            lo = S.done[(1, c)] + 6 if job else 6 + (c - 2) * OPT["dsp"]
            hi = min(OPT["dflag"] - 12, (OPT["pf3"] or 999) - 4) if job == 0 else None
            b = VPK[c - 2]
            for rt in range(2):
                for h in range(2):
                    r = accr(job, c, rt) + 2 * h
                    fl.append(Flt("v_cvt_pk_bf16_f32 v%d, v%d, v%d" % (b + 2 * rt + h, r, r + 1), lo, hi))
            if job == 1:
                for q in range(4): fl.append(Flt("v_min_u32 v%d, -2, v%d" % (b + q, b + q), lo, hi))
            grp.append("buffer_store_dwordx4 %s, v%d, %s, s%d offen offset:%d%s" % (vr(b), V_FR, sr(S_WS), S_PUB + c, job * 1024, SC) + " ;@p%d" % job)
            if c in OPT["pgrp"][job]:
                fl.append(Flt("\n".join(grp), lo, hi))
                grp = []
        if job == 0:
            fl += [Flt(x, 6, gd - 4) for x in sel_setup()]
            fl += [Flt(x, 6, 290) for x in ("v_and_b32 v5, 15, v0", "v_mul_u32_u24 v5, 1152, v5", "v_lshrrev_b32 v6, 5, v0", "v_lshl_add_u32 v5, v6, 4, v5",
                                       "v_bfe_u32 v6, v0, 4, 1", "v_mul_u32_u24 v15, %d, v6" % (16 * 1152), "v_add3_u32 v15, v15, v5, 64",
                                       "v_lshl_add_u32 v5, v6, 5, v5", "v_add_u32 v6, %d, v5" % (16 * 1152))]
            fl += [Flt("v_accvgpr_read_b32 v%d, a%d" % (VXX + r, AX + r), 6) for r in range(12)]
    for n in (2, 1, 0): fl += [Flt(x, S.done[(1, 8)] + 6 + OPT["sdel"][n]) for x in fetch(1, (n,))]
    for c in range(3):
        d, t = accr(0, c, 0), (VT, 64, VT)[c]
        for op in ("v_mul_f32 v%%d, s%d, v%%d" % S_NL2E, "v_exp_f32 v%d, v%d", "v_add_f32 v%d, 1.0, v%d", "v_rcp_f32 v%d, v%d"):
            fl += [Flt(op % (t + r, d + r if "mul" in op else t + r), gd + 5) for r in range(8)]
        fl += [Flt("v_mul_f32 v%d, v%d, v%d" % (d + r, d + r, t + r), gd + 5) for r in range(8)]
        for q in range(4):
            fl.append(Flt("v_lshlrev_b32 v%d, 16, v%d" % (XF + 8 * c + 2 * q, VXX + 4 * c + q), gd + 5))
            fl.append(Flt("v_and_b32 v%d, 0xffff0000, v%d" % (XF + 8 * c + 2 * q + 1, VXX + 4 * c + q), gd + 5))
    out, left = S.code()
    for tag in OPT.get("kill", ()):
        f = lambda xs: [x.replace(" v1,", " v7,").replace(" v9,", " v7,") if x.endswith(";@" + tag) else x for x in xs]
        out, left = f(out), f(left)
    return out + st("mlast") + left

def combine(st):
    P = st("dmath") + ["s_waitcnt vmcnt(3)"] + arrived((2, 1)) + guard("r") + ["s_waitcnt vmcnt(0)"] + arrived((0,)) + guard("s") + st("sarr")
    def wide(q, adr, parts):
        o = []
        for n, (c, rt) in enumerate(parts):
            f = XF + 8 * c + 4 * rt
            o += ["v_fmac_f32 v%d, v%d, v%d" % (f + r, accr(1, c, rt) + r, accr(0, c, rt) + r) for r in range(4)]
        for n, (c, rt) in enumerate(parts):
            f = XF + 8 * c + 4 * rt
            o += ["v_cvt_pk_bf16_f32 v%d, v%d, v%d" % (q + 2 * n + h, f + 2 * h, f + 2 * h + 1) for h in range(2)]
        return o + ["s_nop 0", "v_permlane16_swap_b32 v%d, v%d" % (q, q + 2), "v_permlane16_swap_b32 v%d, v%d" % (q + 1, q + 3),
                    "buffer_store_dwordx4 %s, v%d, %s, s%d offen" % (vr(q), adr, sr(S_OUT), S_XO) + OPT["outf"]]
    g0, g1, g2 = gather(1, 0), gather(1, 1), gather(1, 2)
    w0 = wide(VXX, 5, ((0, 0), (1, 0)))
    P += g0[:3] + g1[:3] + g0[3:] + g1[3:]
    for m in g2:
        P += [m] + w0[:2]
        w0 = w0[2:]
    P += w0 + wide(VXX + 4, 6, ((0, 1), (1, 1)))
    P += st("u2") + ["s_cmp_lg_u32 s%d, 0" % (S_AUX + 2), "s_cbranch_scc0 L_k2_done"]
    return P + wide(VXX + 8, 15, ((2, 0), (2, 1)))

def step_last():
    par = 1
    mf, pin, fl = [], {}, []
    P = lambda g, x: pin.setdefault(g, []).append(x)
    P(0, C(par, 3, 3, 0)); P(1, E(3, 2)); P(3, E(3, 3)); P(4, C(par, 3, 3, 1))
    P(2, "v_readfirstlane_b32 s%d, v32" % S_REM)
    ends = {}
    for u in range(4):
        g0 = len(mf)
        mf += pv(VKF if u % 2 == 0 else VVF, par, u, False)
        ends[u] = len(mf) - 1
        if u < 3:
            tr = vread(VVF if u % 2 == 0 else VKF, 31, u + 1)
            gs = (0, 2, 4, 5, 6, 7, 8, 9) if u == 0 else range(8)
            for g, k in zip(gs, range(8)): P(g0 + g, tr[k])
        if u == 0:
            for t in range(4): mf += psum(par, t, False)
            lsum = len(mf) - 1
        if u < 2: P(len(mf) - 1, "s_waitcnt lgkmcnt(0)")
    RL = V_TMP
    for t in range(4):
        P(24 + 2 * t, "v_accvgpr_read_b32 v%d, a%d" % (RL + 4 + t, 128 + 4 * t))
        P(32 + t, "v_rcp_f32 v%d, v%d" % (RL + t, RL + 4 + t))
    P(36, "v_add_f32 v33, v%d, v%d" % (RL + 4, RL + 5)); P(36, "v_add_f32 v34, v%d, v%d" % (RL + 6, RL + 7))
    P(36, "s_lshl_b32 s55, s%d, 2" % S_WAVE); P(37, "s_add_u32 s55, s55, %d" % FLAG_LDS)
    P(37, "v_add_f32 v33, v33, v34"); P(37, "v_mov_b32 v32, %d" % FLAG_LDS)
    P(38, "v_add_f32 v34, v%d, v%d" % (RL, RL + 1)); P(38, "v_add_f32 v35, v%d, v%d" % (RL + 2, RL + 3))
    P(39, "v_add_f32 v33, v33, v34"); P(39, "v_mov_b32 v34, s55")
    P(40, "v_add_f32 v33, v33, v35")
    P(41, "v_cmp_nge_f32 vcc, %s, v33" % f32(2.0 ** 40))
    P(43, "s_or_b32 s54, vcc_lo, vcc_hi")
    P(44, "v_mov_b32 v33, s54")
    P(48, "ds_write_b32 v34, v33")
    P(55, "WAITVM wp0 lgkmcnt(0)"); P(55, "s_barrier")
    P(56, "ds_read_b128 v[36:39], v32")
    for k, x in enumerate(wread(stage("p0"), 0, 0)): P(57 + k, x)
    P(60, "s_waitcnt lgkmcnt(3)"); P(60, "v_or3_b32 v36, v36, v37, v38")
    P(61, "v_or_b32 v36, v36, v39")
    P(62, "v_readfirstlane_b32 s54, v36")
    P(63, "s_andn2_b32 s54, s54, s%d" % S_REDO); P(63, "s_cbranch_scc1 L_k2_redo")
    for k, x in enumerate(wread(stage("p0"), 1, 1)): P(64 + k, x)
    P(71, "WAITVM ap0 lgkmcnt(4)")
    tmp = [VP[0][0], VP[0][0] + 8, VP[0][1], VP[0][1] + 8] + ([VG + 16, VG + 24, VU, VU + 8] if OPT["ogrp"] > 1 else [])
    k, grp = 0, []
    for u in range(4):
        for t in range(4):
            b = tmp[k % len(tmp)]; k += 1
            l0 = max(ends[u] + 6, 0 if VP[0][0] <= b < VU else 64)
            lo = max(l0, 37)
            for d in range(2):
                for r in range(4):
                    fl.append(Flt("v_accvgpr_read_b32 v%d, a%d" % (b + 4 * d + r, 16 * (2 * u + d) + 4 * t + r), l0, 72 + OPT["a3"] - 2 if u == 0 else None))
            for r in range(8): fl.append(Flt("v_mul_f32 v%d, v%d, v%d" % (b + r, b + r, RL + t), lo))
            for r in range(4): fl.append(Flt("v_cvt_pk_bf16_f32 v%d, v%d, v%d" % (b + r, b + 2 * r, b + 2 * r + 1), lo))
            grp.append("buffer_store_dwordx4 %s, v%d, %s, s%d offen offset:%d" % (vr(b), V_FR, sr(S_WS), 56 + u, t * 1024) + SC + " ;@o")
            if len(grp) == OPT["ogrp"]:
                fl.append(Flt("\n".join(grp), lo, 72 + OPT["ogap"] - 8))
                grp = []
    for u in range(4): P(4 + u, "s_add_u32 s%d, s%d, %d" % (56 + u, S_OST, u * 4096))
    free = [g for g in range(10, 70) if not pin.get(g)]
    ops = preload(31)
    for n, f in enumerate(ops):
        g = free[(n * len(free)) // len(ops)]
        for y in f(S_T0):
            if y: P(g, y)
    return mf, pin, fl

def redo():
    P = []
    A = P.append
    A("L_k2_redo:")
    A("s_mov_b32 s%d, -1" % S_REDO)
    A("s_waitcnt vmcnt(0) lgkmcnt(0)")
    A("s_barrier")
    for pre, x in kv_dmas("k", 0, "k0") + kv_dmas("k", 1, "s0") + kv_dmas("k", 2, "s0") + kv_dmas("v", 0, "s0") + kv_dmas("v", 1, "s0"):
        P += pre + [x]
    A("v_and_b32 v32, 15, v0")
    A("v_lshlrev_b32 v32, 8, v32")
    A("v_lshrrev_b32 v%d, 4, v0" % V_TMP)
    A("v_lshl_add_u32 v32, v%d, 4, v32" % V_TMP)
    A("s_lshl_b32 s54, s%d, 19" % S_SL)
    A("s_mov_b32 s55, 128")
    for r in range(16): A("v_mov_b32 v%d, 0xff800000" % (56 + r))
    B = []
    A = B.append
    for ks in range(4):
        A("buffer_load_dwordx4 %s, v32, %s, s54 offen offset:%d" % (vr(VKF + 4 * ks), sr(S_K), ks * 64))
    A("s_waitcnt vmcnt(0)")
    for t in range(4): B += qk(VKF, t, "0")
    A("s_nop 7")
    for r in range(16): A("v_max_f32 v%d, v%d, v%d" % (56 + r, 56 + r, VS + r))
    A("s_add_u32 s54, s54, 4096")
    A("s_sub_u32 s55, s55, 1")
    A("s_cmp_lg_u32 s55, 0")
    A("s_cbranch_scc1 L_k2_maxloop")
    T = rowmax(56) + ["s_getpc_b64 s[54:55]", "v_mov_b32 v%d, s54" % (V_TMP + 4), "v_mov_b32 v%d, s55" % (V_TMP + 5), "s_barrier"] + kread(VKF, 0, 0) + ["s_waitcnt lgkmcnt(0)", "s_branch L_k2_attn"]
    return P, B, T

def isize(i):
    lit = any(re.match(r"^(0x[0-9a-f]+|-?\d+|L_.*)$", o) and not (re.match(r"^-?\d+$", o) and -16 <= int(o) <= 64) and
              not (o.startswith("0x") and (int(o, 16) <= 64 or int(o, 16) & 0x7fffffff in (0x3f000000, 0x3f800000, 0x40000000, 0x40800000))) for o in i.ops)
    if i.kind in ("mfma", "lds", "vmem", "smem"): return 8
    if i.kind == "wait" or i.op.startswith("s_cbranch") or i.op in ("s_branch", "s_nop", "s_barrier", "s_endpgm", "s_sleep"): return 4
    if i.kind == "salu": return 8 if lit else 4
    call = i.op.replace("_e64", "")
    if call != i.op: return 8
    short = ("v_exp_f32", "v_rcp_f32", "v_mov_b32", "v_mul_f32", "v_add_f32", "v_sub_f32", "v_max_f32", "v_min_u32", "v_max_u32", "v_and_b32", "v_or_b32", "v_xor_b32",
             "v_lshlrev_b32", "v_lshrrev_b32", "v_ashrrev_i32", "v_add_u32", "v_sub_u32", "v_mul_u32_u24", "v_fmac_f32", "v_readfirstlane_b32", "v_permlane16_swap_b32",
             "v_permlane32_swap_b32", "v_add_co_u32", "v_addc_co_u32")
    if call in short or call.startswith("v_cmp"): return 8 if lit else 4
    return 8

def hop_round(r):
    P = ["s_mov_b64 exec, 0"] if OPT["pads"] == "cond" else []
    for w in range(1, 4): P += ["s_cmp_eq_u32 s%d, %d" % (S_WAVE, w), "s_cbranch_scc1 L_hop%d_%d" % (r, w)]
    P += ["s_branch L_hop%d_0" % r, "L_hop%d_ret:" % r]
    return P + (["s_mov_b64 exec, -1"] if OPT["pads"] == "cond" else [])

def add_pads(lines, rounds, extra):
    flat = [x for l in lines for x in l.split("\n")]
    ins = [I(x) for x in flat]
    size = 4 if OPT["pads"] == "cond" else 8
    out, where, pos, want, stop = [], [], None, False, False
    for n, (x, i) in enumerate(zip(flat, ins)):
        out.append(x)
        if i.kind == "none":
            if x.startswith(".p2align"):
                al = 1 << int(x.split()[1])
                old, pos = pos, (0 if al == 4096 else -(-pos // al) * al)
                if old is not None and old >> 12 != pos >> 12: want, since = True, pos & ~4095
            if x == "L_k2_redo:": stop = True
            if x[:-1] in extra:
                where.append(len(out)); out.append(None)
                if pos is not None:
                    old, pos = pos, pos + size
                    if old >> 12 != pos >> 12: want, since = True, pos & ~4095
            continue
        if pos is None: continue
        old, pos = pos, pos + isize(i)
        if old >> 12 != pos >> 12: want, since = True, pos & ~4095
        if want and not stop:
            nx = next(y for y in ins[n + 1:] if y.kind != "none")
            free = i.kind == "mfma" and cost(nx) > 0 and nx.kind != "vmem" or i.kind == "mfma" and nx.kind == "mfma"
            if (free or pos - since >= 40) and i.op != "s_getpc_b64" and not i.op.startswith("s_branch") and i.op != "s_endpgm":
                where.append(len(out)); out.append(None)
                pos += size; want = False
    k = 0
    for r, cnt in enumerate(rounds):
        mine = where[k:k + cnt] if r < len(rounds) - 1 else where[k:]
        k += cnt
        nw = HOP["waves"] if r == 0 and HOP["waves"] else 4
        assert len(mine) >= nw
        for q, o in enumerate(mine):
            nxt = "L_hop%d_%d" % (r, q + nw) if q + nw < len(mine) else "L_hop%d_ret" % r
            lab = "L_hop%d_%d" % (r, q)
            out[o] = [lab + ":", "s_cbranch_execz " + nxt] if OPT["pads"] == "cond" else ["s_branch %s_x" % lab, lab + ":", "s_branch " + nxt, lab + "_x:"]
    return [y for x in out for y in (x if isinstance(x, list) else [x])]

def gen(stamp=False):
    clk = OPT.get("clk", "s_memrealtime")
    st = lambda n: ["%s s[100:101]" % clk, "s_waitcnt lgkmcnt(0)", "s_mov_b32 s%d, s100" % (92 + n)] if stamp else []
    names = OPT.get("stamps", ["start", "gemm0", "gemm1", "tail0", "tail1", "dmath", "sarr", "end"])
    st0 = st
    OPT["st"] = st = lambda nm: st0(names.index(nm)) if nm in names else []
    S = setup(st)
    S += st("p0")
    S += srd(S_WU, 66, WG_BYTES)
    alu = (["CODEPF"] if not OPT["pf0"] else []) + setup2()
    for unit in range(2):
        r = 56 + 2 * unit
        alu += unit_line(r, unit) + ["s_lshl_b32 s%d, s%d, 13" % (r, r), "s_add_u32 s%d, s%d, s%d" % (r, r, S_HST), "s_add_u32 s%d, s%d, 4096" % (r + 1, r)]
    kg = lambda n: [xn_load(ks, rt) for ks in range(3 * n, 3 * n + 3) for rt in range(4)]
    ld = (kg(0) + chunk_dmas(TS[0]) if OPT["xfirst"] else chunk_dmas(TS[0]) + kg(0)) + kg(1)[:OPT["k1n"]]
    for n, (pre, x) in enumerate(ld):
        S += pre + [x]
        if OPT["pads"] and n in OPT["hops"]: S += hop_round(OPT["hops"].index(n))
        if n >= OPT["mix0"]:
            k = OPT["mix"] + (len(alu) > OPT["mix"] and alu[OPT["mix"]].startswith("s_addc"))
            S += alu[:k]; alu = alu[k:]
    S += alu + st("p2")
    S += ["WAITVM c0 lgkmcnt(0)"] + st("p3") + ["s_barrier"] + treads(0, 0, 0) + ["WAITVM x0 lgkmcnt(0)"]
    G = ["; ---- projections: h = sigmoid(xn Wg) * (xn Wu) for 144 columns, q = xn Wq * log2(e) / sqrt(128) for one head (xn resident in registers)"] + \
        st("gemm0") + projection() + st("gemm1") + ["; ---- exponent reference per row: score of key 0 plus a constant (checked at the end, true maximum on the fallback path)"] + first_ref()[2] + st("max")
    if OPT.get("cut"): G += ["v_min_u32 v%d, 1, v0" % V_L0, "v_lshlrev_b32 v%d, 30, v%d" % (V_L0, V_L0), "s_branch L_k2_done"]
    PRE = step_pre()
    S0 = st("pre") + step(0) + st("s0") + ["s_mov_b32 s%d, 7" % S_CNT]
    body = lambda part, end: step(1, part=part) + step(2, part=part) + step(3, part=part) + \
        step(4, ["s_sub_u32 s%d, s%d, 1" % (S_CNT, S_CNT), "s_cmp_lg_u32 s%d, %d" % (S_CNT, end)], part) + ["s_cbranch_scc1 L_k2_loop" + part]
    BA, BB = body("a", 4), body("b", 0)
    T0 = resolve_waits(st("loop") + ["s_waitcnt vmcnt(17)", "v_add_u32 v%d, v%d, v%d" % (V_TMP, V_TMP, V_TMP + 1),
                        "v_add3_u32 v%d, v%d, v%d, v%d" % (V_TMP, V_TMP, V_TMP + 2, V_TMP + 3)] + poll_a()[1] +
                       ["v_readlane_b32 s%d, v%d, %d" % (56 + n, V_TMP, n) for n in range(4)] + guard("a") + step(29) + st("s29") + step(30) + st("s30") + seg_prefix(), once=True)
    def after(prev, cur):
        pv_ = [x for x in prev if I(x).kind == "vmem"]
        return resolve_waits(pv_ + cur, once=True)[len(pv_):]
    FX = [after(seg_flex((ph + 2) % 3), seg_flex(ph)) for ph in range(3)]
    BR = [after(seg_flex((min(v, 2) + 2) % 3), seg_bridge(v)) for v in range(4)]
    T1 = T0 + ["s_cbranch_scc1 L_k2_br3"]
    T0 = T1 + after(seg_flex(1), seg_p3())
    RS = after(seg_bridge(1), seg_rest() + st("tail1") + combine(st))
    jb = lambda ph: ["s_cbranch_scc1 L_k2_br%d" % ph]
    TAIL = T0 + jb(0) + ["L_k2_flex:", "; ---- stages of d assigned by progress among the four workgroups of a tile"] + FX[0] + jb(1) + FX[1] + jb(2) + FX[2] + ["s_cbranch_scc0 L_k2_flex", "L_k2_br0:"] + BR[0] + ["L_k2_rest:", "; ---- s = O W_o, exchange of the partial tiles, out = x + s * silu(d)"] + RS
    SIDE = ["L_k2_br1:"] + BR[1] + ["s_branch L_k2_rest", "L_k2_br2:"] + BR[2] + ["s_branch L_k2_rest", "L_k2_br3:"] + BR[3] + ["s_branch L_k2_rest"]
    D = ["L_k2_done:"]
    if stamp:
        D += st("done") + ["s_waitcnt vmcnt(0)"] + st("end") + ["v_mov_b32 v%d, s%d" % (16 + n, 92 + n) for n in range(8)] + \
             ["s_lshl_b32 s54, s2, 2", "s_add_u32 s54, s54, s%d" % S_WAVE, "s_lshl_b32 s54, s54, 5", "s_add_u32 s54, s54, 0x%x" % STAMP_OFF,
              "buffer_store_dwordx4 v[16:19], v%d, %s, s54 offen" % (V_L0, sr(S_WS)), "buffer_store_dwordx4 v[20:23], v%d, %s, s54 offen offset:16" % (V_L0, sr(S_WS))]
    D += ["L_k2_end:", "s_endpgm"]
    R0, RB, RT = redo()
    R0 = resolve_waits(R0)
    strip = lambda xs: [(x.replace(" v1,", " v7,").replace(" v9,", " v7,") if "in1" in OPT.get("kill", ()) else x).split(";@")[0].rstrip() for x in xs]
    SP = spin("a", [poll_a()[0]], poll_a()[1]) + sum([spin("b%d" % ph, [poll_b()[0]], poll_b()[1]) for ph in range(4)], []) + spin("d", [poll_d()[0]], poll_d()[1]) + spin("r", strip(fetch(1, (2, 1))), arrived((2, 1))) + spin("s", strip(fetch(1, (0,))), arrived((0,)))
    rest = ["; ---- attention steps: P V of 64 keys beside the scores and exponentials of the next 64"] + S0 + ["L_k2_loopa:"] + BA + ["L_k2_loopb:"] + BB + \
           ["L_k2_exit:", "; ---- last attention steps, O epilogue, first stages of d = h W_down"] + TAIL + D + \
           ["; ---- bounded re-polls of the hand-off words"] + SP + ["; ---- other exits of the assigned-stage loop"] + SIDE + \
           ["; ---- fallback: true row maxima over all keys, then the attention pass is repeated"] + R0 + ["L_k2_maxloop:"] + RB + RT
    pf = []
    if OPT["codepf"]:
        pf = ["s_getpc_b64 s[54:55]", "L_k2_pc:", "s_lshr_b32 s56, s2, 3", "s_lshl_b32 s56, s56, 2", "s_add_u32 s56, s56, s%d" % S_WAVE,
              "s_mul_i32 s56, s56, %d" % (6 * 128), "v_min_u32 v2, 5, v0", "v_lshlrev_b32 v2, 7, v2", "v_add_u32 v2, s56, v2",
              "v_min_u32 v2, L_k2_last-L_k2_pc, v2", "v_mov_b32 v3, s55", "v_add_co_u32 v2, vcc, s54, v2", "s_nop 1",
              "v_addc_co_u32 v3, vcc, 0, v3, vcc", "global_load_dword v%d, v[2:3], off" % VG]
        a = V_TMP + 4
        pf += ["s_lshr_b32 s56, s56, 1", "s_add_u32 s56, s56, L_k2_exit-L_k2_pc", "v_min_u32 v%d, 2, v0" % a, "v_lshlrev_b32 v%d, 7, v%d" % (a, a),
               "v_add_u32 v%d, s56, v%d" % (a, a), "v_min_u32 v%d, L_k2_last-L_k2_pc, v%d" % (a, a), "v_mov_b32 v%d, s55" % (a + 1),
               "v_add_co_u32 v%d, vcc, s54, v%d" % (a, a), "s_nop 1", "v_addc_co_u32 v%d, vcc, 0, v%d, vcc" % (a + 1, a + 1)]
    rest = rest[:-1] + ["L_k2_last:"] + rest[-1:]
    k = S.index("CODEPF")
    S = S[:k] + pf + S[k + 1:]
    head = resolve_waits(["; ---- set-up and first loads"] + S + G + ["L_k2_attn:", "; ---- attention: scores and probabilities of the first 64 keys"] + PRE, once=True)
    pre_only = head[head.index("L_k2_attn:"):]
    traces = [head + S0 + BA + BA + BB + BB + TAIL + D,
              TAIL[:TAIL.index("s_cbranch_scc1 L_k2_redo") + 1] + R0 + RB + RB + RT + pre_only + S0, SP,
              T1 + BR[3] + jb(0) + RS, T0 + jb(0) + BR[0] + RS, T0 + jb(0) + FX[0] + jb(1) + BR[1] + jb(0) + RS, T0 + jb(0) + FX[0] + jb(1) + FX[1] + jb(2) + BR[2] + jb(0) + RS,
              T0 + jb(0) + FX[0] + jb(1) + FX[1] + jb(2) + FX[2] + jb(0) + FX[0] + jb(1) + BR[1] + jb(0) + RS]
    lines = head + rest
    if OPT["pads"]: lines = add_pads(lines, OPT["rounds"], OPT["padl"])
    for v in OPT.get("nt", []):
        lines = [x.replace(" offen lds", " offen%s lds" % OPT.get("ntf", " nt")) if x.startswith("buffer_load_dwordx4 v%d," % v) else x for x in lines]
    return dict(name="attn_kernel", lines=lines, traces=traces, grid=256, block=256, lds=163840, vgpr=512, acc=256, sgpr=102)
```

```python
import re
from asmlib import *
from layout import *

SLOT = 36864
V_FR, V_TU, V_TQ, V_TH = 1, 2, 6, 8
V_DG, V_DQ, V_DH, V_DK, V_DV, V_DS, V_TS = 9, 10, 11, 12, 13, 14, 15
VA, VXN, VG, VU, VH = 16, 40, 72, 136, 200
V_KA, V_VA, V_ONE, V_TMP = 232, 236, 244, 248
VS, VNEG, VVF, VKF = 16, 40, 200, 216
VP = [[VG + 32, VG + 48], [VU + 16, VU + 48]]
S_WS, S_WG, S_WU, S_WQ, S_K, S_V, S_WH = 4, 8, 12, 16, 20, 24, 72
S_WAVE, S_SL, S_RB = 32, 33, 34
S_L1K, S_GB, S_QB, S_HB, S_HL, S_XN = 35, 36, 37, 38, 39, 40
S_T0, S_T1, S_HST, S_HHST, S_OST = 41, 42, 43, 44, 45
S_KO, S_VO, S_CNT, S_NL2E, S_QC, S_REDO, S_KV0 = 46, 47, 48, 49, 50, 51, 52
S_T2 = 53
S_GB1 = 83
S_T3 = 46
S_RT = [28, 29, 30, 31, 46, 47, 48, 82, 84]
S_HF = 3
KOFF = lambda j: (((j - 1) // 2) & 1) * 32768 + ((j - 1) & 1) * 16384
VOFF = lambda j: ((j // 2) & 1) * 32768 + (j & 1) * 16384
FLAG_LDS = 163776
SCR = 131072
V_SH, V_M1, V_FL = 56, 36, 8
S_SRC, S_SEN, S_WF = 8, 12, 88
S_PUB = 60
S_SHS, S_SHD, S_SCR, S_SO = 56, 57, 58, 59
S_U, S_AFL, S_DF = 42, 75, 50
SC = " sc1"
SUB = [[6, 7, 8, 9], [0, 1, 2, 13], [14, 15, 3, 4], [5, 10, 11, 12], [4, 5, 10, 11]]
SUBOFF = lambda i: i * 9216 + (16320 if i >= 12 else 0)
AX = 240
S_PG, S_PS = 50, 44
VD, VSA, VXX, VT, XF, VSEL = 16, 88, 232, 248, 40, 76
VPK = [160, 164, 184, 188, 192, 196, 244]
WBUF = [216, 168, 200]
V_RD, V_RD2, V_H2, V_XO, V_L0, V_PL, V_F4, V_B8, V_1 = 2, 3, 4, 5, 7, 8, 9, 10, 11
V_PA = 32
S_X, S_OUT, S_AUX = 8, 12, 16
S_TO = [28, 29, 30, 31, 36, 37, 38, 39, 40]
S_LB = [69, 72, 73, 74]
S_HA, S_H2, S_XO, S_W8, S_BP, S_BC, S_DO = 43, 82, 83, 84, 80, 81, 44
S_IN = 85
OPT = dict(codepf=True, nt=[9, 10, 12, 13, 14], ogap=133, latepoll=0, gb=1.5, ob=5, obx=(), ogrp=1, pgrp=(range(9), range(9)), outpf=0, pads="cond", hops=(None,), hopg=(), rounds=(18, 99), hopt=176, padl=("L_k2_body", "L_k2_br0", "L_k2_br1", "L_k2_br2", "L_k2_br3", "L_k2_rest", "L_r_spin"), lead=0, tie=(40, 16, 16, 0), mmin=1, dsp=28, pf3=240, pf3o=4096, perm16=0, ocap=4, k3=4, k5=0, rotw=1, rotkv=0, kvmix=0, early=0, sgaps=((6, 8, 10),) * 3, xfirst=0, k1n=12, mix=12, mix0=8, pf0=0,
           hspread=((4.3, 66), (8.0, 54)), park=1, a3=48, o0=0, odt=0, cap31=4, codepf2=1, single=0, margin=8, pollahead=96, defer=4, dflag=261, hfmask=7, gain=30, fixed=0, dget=-72, dlat=999, gdend=6, fstep=0, sdel=(60, 30, 16), blocks=((2, 3, 4), (5, 6), (7, 8)), sleep=0, refc=-6.0, snake="qpgtPGT", codepf3=[], outf=" sc1",
           quota=[10, 10, 18, 18, 18, 18, 18, 18, 15, 15, 18, 18, 18, 18, 18])

def snake(n, i, key):
    return list(range(n))[::-1] if i % 2 and key in OPT["snake"] else list(range(n))

def xn(ks, rt):
    return ar(16 * ks + 4 * rt) if ks < 16 else vr(VXN + 16 * (ks - 16) + 4 * rt)
def qf(t, ks):
    return vr((VG, VG + 16, VU, VU + 32)[ks] + 4 * t)
def oacc(dt, t): return ar(16 * dt + 4 * t)
def lacc(t): return ar(128 + 4 * t)

def dma(srd_, voff, sbase, sconst, lbase, lconst, tag, tmp=S_T0):
    return (["s_add_u32 m0, s%d, 0x%x" % (lbase, lconst), "s_add_u32 s%d, s%d, 0x%x" % (tmp, sbase, sconst)],
            "buffer_load_dwordx4 v%d, %s, s%d offen lds ;@%s" % (voff, sr(srd_), tmp, tag))

def chunk_slot(c): return 3 * SLOT if c == 11 else ((c + 1) % 3) * SLOT
TS = []
for c in range(12):
    TS.append(dict(kind="gugugguuqqqq"[c], unit=(c // 4) if c < 8 else (c - 8) // 2, half=(c >> 1 if c < 4 else c & 1), off=chunk_slot(c), tag="c%d" % c))
TS.insert(8, dict(kind="h", unit=0, half=0, off=3 * SLOT, tag="h"))

def chunk_dmas(ts):
    out = []
    for i in range(9):
        if ts["kind"] == "h":
            pre, x = dma(S_WS, V_FR, S_HB, i * 1024, S_HL, 3 * SLOT + i * 1024, "h")
            out.append((pre, x.replace(" offen lds", " offen sc1 lds")))
        else:
            q = ts["kind"] == "q"
            const = ts["half"] * 288 * (8192 if q else 9216) + (ts["unit"] * 128 if q else 0)
            pre = ["s_add_u32 m0, s%d, 0x%x" % (S_RT[i], ts["off"]), "s_mul_i32 s%d, s%d, %d" % (S_T0, S_RT[i], 64 if q else 72),
                   "s_add_u32 s%d, s%d, s%d" % (S_T0, S_T0, S_QB if q else (S_GB, S_GB1)[ts["unit"]])]
            if const: pre.append("s_add_u32 s%d, s%d, 0x%x" % (S_T0, S_T0, const))
            out.append((pre, "buffer_load_dwordx4 v%d, %s, s%d offen lds ;@%s" %
                        (V_DQ if q else V_DG, sr(S_WQ if q else (S_WG if ts["kind"] == "g" else S_WU)), S_T0, ts["tag"])))
    return out

def kv_dmas(which, j, tag):
    out = []
    for n in range(4):
        if which == "k":
            out.append(dma(S_K, V_DK, S_KV0, j * 16384 + n * 4096, S_L1K, KOFF(j) + n * 4096, tag))
        else:
            out.append(dma(S_V, V_DV, S_KV0, j * 16384 + n * 4096, S_L1K, 65536 + VOFF(j) + n * 4096, tag))
    return out

def xn_load(ks, rt):
    so = (S_T1, S_T2)[ks & 1]
    pre = ["s_add_u32 s%d, s%d, 0x%x" % (so, S_XN, ks * 4096)] if rt == 0 else []
    return (pre, "buffer_load_dwordx4 %s, v%d, %s, s%d offen offset:%d ;@x%d" % (xn(ks, rt), V_FR, sr(S_WS), so, rt * 1024, ks // 3))

def unit_line(r, u):
    if not OPT.get("perm", True):
        return ["s_lshl_b32 s%d, s%d, 1" % (r, S_SL), "s_add_u32 s%d, s%d, %d" % (r, r, u)]
    return ["s_add_u32 s%d, s%d, %d" % (r, S_SL, u + 1), "s_and_b32 s%d, s%d, 3" % (r, r), "s_and_b32 s%d, s%d, 28" % (r + 1, S_SL),
            "s_add_u32 s%d, s%d, s%d" % (r, r, r + 1), "s_lshl_b32 s%d, s%d, 1" % (r, r), "s_add_u32 s%d, s%d, %d" % (r, r, u)]

def setup(st):
    P = []
    A = P.append
    A("s_cmp_ge_u32 s2, 256")
    A("s_cbranch_scc1 L_k2_end")
    A("L_k2_entry:")
    P += st("start")
    A("s_load_dwordx2 s[60:61], s[0:1], %d" % ARG["ws"])
    A("s_load_dwordx4 s[64:67], s[0:1], %d" % ARG["wg"])
    A("s_load_dwordx2 s[68:69], s[0:1], %d" % ARG["k"])
    A("s_load_dwordx4 s[72:75], s[0:1], %d" % ARG["v"])
    A("s_load_dwordx2 s[70:71], s[0:1], %d" % ARG["wo"])
    A("s_load_dwordx4 s[76:79], s[0:1], %d" % ARG["wd"])
    A("s_load_dwordx2 s[80:81], s[0:1], %d" % ARG["x"])
    if OPT["pads"]: P += ["s_branch L_k2_body", ".p2align 12", "L_k2_body:"]
    A("v_lshrrev_b32 v15, 6, v0")
    A("v_and_b32 v0, 63, v0")
    A("v_readfirstlane_b32 s%d, v15" % S_WAVE)
    A("v_lshlrev_b32 v%d, 4, v0" % V_FR)
    A("s_and_b32 s54, s2, 7")
    A("s_lshl_b32 s54, s54, 2")
    A("s_bfe_u32 s55, s2, 0x20003")
    A("s_add_u32 s%d, s54, s55" % S_SL)
    A("s_lshr_b32 s54, s2, 5")
    A("s_lshl_b32 s54, s54, 2")
    A("s_add_u32 s%d, s54, s%d" % (S_RB, S_WAVE))
    A("s_lshl_b32 s%d, s%d, 10" % (S_L1K, S_WAVE))
    A("s_mul_i32 s%d, s%d, %d" % (S_XN, S_RB, 18 * 4096))
    A("s_lshl_b32 s%d, s%d, 8" % (S_QB, S_SL))
    for u_, r_ in ((0, S_GB), (1, S_GB1)):
        P += unit_line(56, u_)
        A("s_lshl_b32 s%d, s56, 7" % r_)
    A("s_lshr_b32 s54, s2, 5")
    A("s_lshl_b32 s54, s54, 12")
    A("s_and_b32 s55, s2, %d" % OPT["hfmask"])
    A("s_bcnt1_i32_b32 s55, s55")
    A("s_and_b32 s%d, s55, 1" % S_HF)
    A("s_mul_i32 s54, s54, %d" % OPT["rotw"])
    A("s_add_u32 s%d, s54, s%d" % (S_RT[0], S_L1K))
    for i in range(1, 9):
        A("s_add_u32 s54, s%d, %d" % (S_RT[0], i * 4096))
        A("s_sub_u32 s55, s54, %d" % SLOT)
        A("s_min_u32 s%d, s54, s55" % S_RT[i])
    A("v_lshrrev_b32 v15, 3, v0")
    A("v_bfe_u32 v%d, v0, 4, 1" % V_TMP)
    A("s_and_b32 s54, s%d, 1" % S_WAVE)
    A("s_lshl_b32 s54, s54, 1")
    A("v_or_b32 v%d, s54, v%d" % (V_TMP, V_TMP))
    A("v_lshlrev_b32 v%d, 1, v%d" % (V_TMP, V_TMP))
    A("v_and_b32 v%d, 7, v0" % (V_TMP + 1))
    A("v_xor_b32 v%d, v%d, v%d" % (V_TMP, V_TMP, V_TMP + 1))
    A("v_lshlrev_b32 v%d, 4, v%d" % (V_TMP, V_TMP))
    A("v_mul_u32_u24 v%d, 9216, v15" % V_DG)
    A("v_add_u32 v%d, v%d, v%d" % (V_DG, V_DG, V_TMP))
    A("v_lshl_add_u32 v%d, v15, 13, v%d" % (V_DQ, V_TMP))
    if OPT["pf0"]: A("CODEPF")
    if OPT["pads"] and -1 in OPT["hops"]: P += hop_round(0)
    A("s_waitcnt lgkmcnt(0)")
    P += srd(S_WS, 60, WS_BYTES) + srd(S_WG, 64, WG_BYTES)
    return P

def setup2():
    P = []
    A = P.append
    P += srd(S_WQ, 74, WQ_BYTES) + srd(S_K, 68, KV_BYTES) + srd(S_V, 72, KV_BYTES)
    t0, t1, t2, t3 = V_TMP, V_TMP + 1, V_TMP + 2, V_TMP + 3
    A("v_lshrrev_b32 v%d, 4, v0" % t0)
    A("v_bfe_u32 v%d, v0, 2, 2" % t1)
    A("v_lshl_add_u32 v15, v%d, 3, v%d" % (t0, t1))
    A("v_lshlrev_b32 v15, 7, v15")
    A("v_add_u32 v15, %d, v15" % TS[0]["off"])
    A("v_bfe_u32 v%d, v0, 3, 2" % t2)
    A("v_and_b32 v%d, 3, v0" % t3)
    for j in range(4):
        A("v_xor_b32 v%d, %d, v%d" % (V_TU + j, j, t2))
        A("v_lshl_add_u32 v%d, v%d, 5, v15" % (V_TU + j, V_TU + j))
        A("v_lshl_add_u32 v%d, v%d, 3, v%d" % (V_TU + j, t3, V_TU + j))
    A("v_add_u32 v15, %d, v15" % ((TS[9]["off"] - TS[0]["off"]) & 0xffffffff))
    A("v_lshlrev_b32 v%d, 1, v%d" % (t2, t2))
    for m in range(2):
        A("v_or_b32 v%d, %d, v%d" % (V_TQ + m, 4 * m, t3))
        A("v_xor_b32 v%d, v%d, v%d" % (V_TQ + m, V_TQ + m, t2))
        A("v_lshl_add_u32 v%d, v%d, 4, v15" % (V_TQ + m, V_TQ + m))
    A("v_lshlrev_b32 v%d, 3, v0" % V_TH)
    A("v_add_u32 v%d, %d, v%d" % (V_TH, 3 * SLOT, V_TH))
    A("s_mul_i32 s%d, s%d, 9216" % (S_HL, S_WAVE))
    A("s_mul_i32 s54, s%d, %d" % (S_SL, SLOT))
    A("s_add_u32 s54, s54, s%d" % S_HL)
    A("s_add_u32 s%d, s54, 0x%x" % (S_HB, HW_OFF))
    A("s_lshl_b32 s54, s%d, 19" % S_RB)
    A("s_add_u32 s%d, s54, 0x%x" % (S_HST, H_OFF))
    A("s_lshl_b32 s55, s%d, 14" % S_SL)
    A("s_add_u32 s54, s54, s55")
    A("s_add_u32 s%d, s54, 0x%x" % (S_OST, O_OFF))
    A("s_lshr_b32 s54, s54, 3")
    A("s_add_u32 s%d, s54, 0x%x" % (S_HHST, H2_OFF - 3 * SLOT))
    A("s_mov_b32 s%d, %s" % (S_NL2E, f32(-LOG2E * 2.0 ** SCALE["XE"])))
    A("s_mov_b32 s%d, %s" % (S_QC, f32(LOG2E * 128 ** -0.5 * 2.0 ** SCALE["XE"])))
    A("s_mov_b32 s%d, 0" % S_REDO)
    A("s_mov_b32 s0, 0x07060302")
    A("s_lshl_b32 s54, s%d, 19" % S_SL)
    A("s_add_u32 s%d, s54, s%d" % (S_KV0, S_L1K))
    A("s_lshl_b32 s54, s%d, 2" % S_WAVE)
    A("v_add_u32 v15, s54, v%d" % t0)
    A("v_and_b32 v%d, 15, v0" % t2)
    A("v_xor_b32 v%d, v%d, v15" % (V_DK, t2))
    A("v_lshlrev_b32 v%d, 4, v%d" % (V_DK, V_DK))
    A("v_lshl_add_u32 v%d, v%d, 8, v%d" % (V_DK, t0, V_DK))
    A("v_and_b32 v15, 7, v15")
    A("v_lshlrev_b32 v15, 1, v15")
    A("v_xor_b32 v%d, v%d, v15" % (V_DV, t2))
    A("v_lshlrev_b32 v%d, 4, v%d" % (V_DV, V_DV))
    A("v_lshl_add_u32 v%d, v%d, 8, v%d" % (V_DV, t0, V_DV))
    for ks in range(4):
        A("v_or_b32 v15, %d, v%d" % (4 * ks, t0))
        A("v_xor_b32 v15, v15, v%d" % t2)
        A("v_lshlrev_b32 v15, 4, v15")
        A("v_lshl_add_u32 v%d, v%d, 8, v15" % (V_KA + ks, t2))
    A("v_lshrrev_b32 v%d, 2, v0" % t1)
    A("v_and_b32 v%d, 7, v%d" % (t2, t1))
    A("v_lshlrev_b32 v%d, 8, v%d" % (t1, t1))
    A("v_lshl_add_u32 v%d, v%d, 3, v%d" % (t1, t3, t1))
    A("v_add_u32 v%d, 0x10000, v%d" % (t1, t1))
    for dt in range(8):
        A("v_xor_b32 v15, %d, v%d" % (dt, t2))
        A("v_lshl_add_u32 v%d, v15, 5, v%d" % (V_VA + dt, t1))
    for r in range(4):
        A("v_mov_b32 v%d, 0x%x" % (V_ONE + r, (0x3f80 - 0x80 * SCALE["XE"]) * 0x10001))
    A("s_add_u32 s%d, s60, 0x%x" % (S_WF, WF_OFF))
    A("s_addc_u32 s%d, s61, 0" % (S_WF + 1))
    A("s_and_b32 s%d, s%d, 0xffff" % (S_WF + 1, S_WF + 1))
    A("s_mov_b32 s%d, 0x%x" % (S_WF + 2, 272 * SLOT))
    A("s_mov_b32 s%d, 0x20000" % (S_WF + 3))
    A("v_lshrrev_b32 v%d, 3, v0" % t0)
    A("v_mul_u32_u24 v%d, 1152, v%d" % (t0, t0))
    A("v_and_b32 v%d, 7, v0" % t1)
    A("v_lshl_add_u32 v%d, v%d, 4, v%d" % (V_DS, t1, t0))
    A("s_lshl_b32 s54, s%d, 12" % S_WAVE)
    A("s_add_u32 s54, s54, %d" % SCR)
    A("v_lshrrev_b32 v%d, 2, v0" % t0)
    A("v_lshlrev_b32 v%d, 7, v%d" % (t0, t0))
    A("v_lshl_add_u32 v%d, v%d, 3, v%d" % (t0, t3, t0))
    A("v_add_u32 v%d, s54, v%d" % (V_TS, t0))
    P += slab_base(54) + rot(55)
    A("s_bfe_u32 s56, s2, 0x20001")
    A("s_mul_i32 s56, s56, %d" % (18 * 1024))
    A("s_add_u32 s54, s54, s56")
    for c in range(2, 9):
        A("s_add_u32 s56, s55, %d" % c)
        A("s_sub_u32 s57, s56, 9")
        A("s_min_u32 s56, s56, s57")
        A("s_lshl_b32 s56, s56, 11")
        A("s_add_u32 s%d, s54, s56" % (S_PUB + c))
    return P

def slab_base(r):
    return ["s_lshr_b32 s%d, s2, 3" % r, "s_lshl_b32 s%d, s%d, 1" % (r, r),
            "s_add_u32 s%d, s%d, s%d" % (r, r, S_HF), "s_lshl_b32 s%d, s%d, 2" % (r, r), "s_add_u32 s%d, s%d, s%d" % (r, r, S_WAVE),
            "s_mul_i32 s%d, s%d, %d" % (r, r, 72 * 1024), "s_add_u32 s%d, s%d, 0x%x" % (r, r, PART_OFF)]

def rot(r):
    return ["s_bfe_u32 s%d, s2, 0x20001" % r, "s_min_u32 s%d, s%d, 1" % (r + 1, r), "s_lshl_b32 s%d, s%d, 1" % (r, r),
            "s_add_u32 s%d, s%d, s%d" % (r, r, r + 1)]

def relayout():
    sc = [["s_mul_i32 s55, s%d, 7282" % S_U], ["s_lshr_b32 s55, s55, 16"],
          ["s_lshl_b32 s%d, s%d, 12" % (S_SHD, S_U)], ["s_mul_i32 s%d, s55, 9" % S_SHS], ["s_sub_u32 s54, s%d, s%d" % (S_U, S_SHS)],
          ["s_lshl_b32 s54, s54, 7"],
          ["s_cmp_lt_u32 s55, 144", "s_cselect_b32 s%d, s76, s70" % S_SRC, "s_cselect_b32 s%d, s77, s71" % (S_SRC + 1)],
          ["s_cmp_lt_u32 s55, 144", "s_cselect_b32 s%d, 0, 144" % S_SHS, "s_cselect_b32 s%d, 9, 8" % (S_SRC + 2)],
          ["s_mul_i32 s%d, s%d, %d" % (S_SRC + 2, S_SRC + 2, 512 * 1152)],
          ["s_and_b32 s%d, s%d, 0xffff" % (S_SRC + 1, S_SRC + 1)],
          ["s_sub_u32 s55, s55, s%d" % S_SHS], ["s_mul_i32 s55, s55, %d" % SLOT], ["s_add_u32 s%d, s55, s54" % S_SHS],
          ["s_add_u32 s%d, s%d, 1024" % (S_U, S_U)]]
    dm = [dma(S_SRC, V_DS, S_SHS, n * 9216, S_SCR, n * 1024, "sh") for n in range(4)]
    rd = [["ds_read_b64_tr_b16 %s, v%d offset:%d" % (vr(V_SH + 4 * q + 2 * h, 2), V_TS, q * 32 + h * 2048) for h in range(2)] for q in range(4)]
    stv = ["buffer_store_dwordx4 %s, v%d, %s, s%d offen offset:%d%s" % (vr(V_SH + 4 * q), V_FR, sr(S_WF), S_SHD, q * 1024, SC) for q in range(4)]
    mk = ["buffer_store_dwordx4 %s, v%d, %s, s%d offen offset:%d%s" % (vr(V_M1), v, sr(S_WS), S_SO, o, SC) for v, o in ((V_FR, 1024), (V_FR, 3072), (V_F4, 1024))]
    return sc, dm, rd, stv, mk

def groups(tau):
    ts = TS[tau]
    if ts["kind"] == "h":
        return [(t, 3 * kg) for t in range(2) for kg in snake(6, t, "G")]
    if tau in (0, 2):
        return [(t, 9 * ts["half"] + 3 * kg) for kg in range(3) for t in snake(4, kg, "G")]
    return [(t, 9 * ts["half"] + 3 * kg) for t in range(4) for kg in snake(3, t, "G")]

BLK = {("g", 0): [VG, VG + 16, VG + 32, VG + 48], ("g", 1): [VH, VH + 16, VG, VG + 16], ("h", 0): [VG + 32, VG + 48],
       ("q", 0): [VG, VH, VG + 16, VH + 16]}
for key in (("u", 0), ("u", 1), ("q", 1)): BLK[key] = [VU, VU + 16, VU + 32, VU + 48]

def treads(tau, grp, buf):
    ts = TS[tau]
    t, k0 = groups(tau)[grp]
    out = []
    for kk in range(3):
        for h in range(2):
            d = vr(VA + 12 * buf + 4 * kk + 2 * h, 2)
            if ts["kind"] == "h":
                out.append("ds_read_b64_tr_b16 %s, v%d offset:%d" % (d, V_TH, t * 18432 + (k0 + kk) * 1024 + h * 512))
            else:
                o = (k0 + kk - 9 * ts["half"]) * 4096 + h * 512
                if ts["kind"] == "q":
                    out.append("ds_read_b64_tr_b16 %s, v%d offset:%d" % (d, V_TQ + t // 2, o + (t & 1) * 8))
                else:
                    out.append("ds_read_b64_tr_b16 %s, v%d offset:%d" % (d, V_TU + t, o))
    return out

def projection():
    mf, pin = [], {}
    done, first, blocked = {}, {}, set()
    XW = {(0, 3): 1, (0, 7): 2, (1, 11): 3, (2, 3): 4, (2, 7): 5}
    P = lambda g, x: pin.setdefault(g, []).append(x)
    for tau in range(13):
        blk = BLK[(TS[tau]["kind"], TS[tau]["unit"])]
        for gi, (t, k0) in enumerate(groups(tau)):
            buf = (12 * tau + gi) & 1
            g0 = len(mf)
            for c, rt in enumerate(snake(4, gi, "G")):
                d = vr(blk[t] + 4 * rt)
                key = (TS[tau]["kind"], TS[tau]["unit"], t, rt)
                for kk in snake(3, c, "g"):
                    if key not in done: first.setdefault(blk[t] + 4 * rt, []).append(len(mf))
                    mf.append(mfma(d, vr(VA + 12 * buf + 4 * kk), xn(k0 + kk, rt), d if key in done else (vr(V_TMP) if OPT["gb"] and (key[0] == "g" or key[0] == "h" and t == 0) else "0")))
                    done[key] = len(mf) - 1
            nt, ng = (tau, gi + 1) if gi < 11 else (tau + 1, 0)
            if nt < 13:
                for i, x in enumerate(treads(nt, ng, buf ^ 1)): P(g0 + i, x)
            w = "s_waitcnt lgkmcnt(0)"
            if (tau, gi) in XW: w = "WAITVM x%d lgkmcnt(0)" % XW[(tau, gi)]
            if gi == 10 and tau < 12:
                tags = TS[tau + 1]["tag"] + (",k0" if tau == 11 else "")
                P(g0 + 11, "WAITVM %s lgkmcnt(0)" % tags)
                P(g0 + 11, "s_barrier")
            elif nt < 13:
                P(g0 + 11, w)
        ts = TS[tau]
        nxt = [x for x in TS[tau + 1:] if (x["kind"] == "q") == (ts["kind"] == "q") and x["kind"] != "h"]
        if ts["kind"] != "h" and nxt:
            delta = (nxt[0]["off"] - ts["off"]) & 0xffffffff
            regs = {}
            for gi, (t, k0) in enumerate(groups(tau)):
                regs[V_TQ + t // 2 if ts["kind"] == "q" else V_TU + t] = gi
            for r, gi in regs.items():
                P(144 * tau + 12 * (gi - 1) + 6, "v_add_u32 v%d, 0x%x, v%d" % (r, delta, r))
    plan = {t: [] for t in range(13)}
    order = [0, 1, 2, 3, 4, 5, 6, 7, 9, 10, 11, 12]
    hd = chunk_dmas(TS[8])
    kg = lambda n: [xn_load(ks, rt) for ks in range(3 * n, 3 * n + 3) for rt in range(4)]
    plan[0] = kg(1)[OPT["k1n"]:] + kg(2) + chunk_dmas(TS[1]) + kg(3)[:OPT["k3"]]
    plan[1] = chunk_dmas(TS[2]) + kg(3)[OPT["k3"]:] + kg(4) + kg(5)[:OPT["k5"]]
    plan[2] = kg(5)[OPT["k5"]:] + chunk_dmas(TS[3]) + chunk_dmas(TS[4])
    for tau in range(3, 10): plan[tau] = chunk_dmas(TS[tau + 2 if tau < 7 else tau + 3])
    plan[5] += chunk_dmas(TS[8])[:3]
    plan[6] = chunk_dmas(TS[8])[3:] + chunk_dmas(TS[9])[:6]
    plan[7] = chunk_dmas(TS[9])[6:] + plan[7]
    plan[10] = kv_dmas("k", 1, "s0") + kv_dmas("k", 2, "s0")
    plan[11] = kv_dmas("k", 0, "k0")
    plan[12] = kv_dmas("v", 0, "s0") + kv_dmas("v", 1, "s0")
    for tau in range(13):
        ops = plan[tau]
        if tau < 3:
            free = [g for g in range(144 * tau, 144 * tau + 144) if g % 12 in OPT["sgaps"][tau] and not pin.get(g)]
            for g, (pre, x) in zip(free, ops):
                for y in pre: P(g, y)
                P(g, x)
            assert len(ops) <= len(free)
        else:
            for i, (pre, x) in enumerate(ops):
                g = 144 * tau + 12 * i + 8 - OPT["lead"]
                assert i < 12
                for k, y in enumerate(pre): P(g - 7 + k, y)
                P(g, x)
    sc, va = tail_setup()
    g = 144 * 10
    for x in sc:
        while g % 12 > 5 or any(cost(I(y)) == 0 for y in pin.get(g, [])): g += 1
        P(g, x)
    assert g < 144 * 13 - 12, g
    for k, x in enumerate(va): P(144 * 12 + 72 + 12 * k, x)
    P(144 * 12 + 60, "v_lshrrev_b32 v%d, 4, v0" % V_TMP)
    P(144 * 12 + 61, "v_lshlrev_b32 v%d, 4, v%d" % (V_TMP, V_TMP))
    for ks in range(4):
        P(144 * 12 + 102 + ks, "ds_read_b128 %s, v%d offset:%d" % (vr(VVF + 4 * ks), V_TMP, KOFF(0) + 64 * ks))
    for r in range(16):
        P(144 * 12 + (114, 115, 116, 117, 118, 126, 127, 128)[r // 2], ("v_xor_b32 v%d, 0x80008000, v%d" if not OPT.get("cref") else "v_and_b32 v%d, 0x80008000, v%d") % (VVF + r, VVF + r))
    for r in range(4): P(144 * 12 + 129 + r // 2, "v_mov_b32 v%d, %s" % (V_TMP + r, f32(OPT["refc"])))
    for ks in range(4):
        P(144 * 12 + 132 + ks, "ds_read_b128 %s, v%d offset:%d" % (vr(VKF + 4 * ks), V_KA + ks, KOFF(0)))
    fl = []
    LAT = 6
    END = 144 * 12
    def reuse(reg, after):
        return min([g for g in first[reg] if g > after] + [END + 4]) - 4
    def add(text, lo, hi): fl.append(Flt(text, lo, hi))
    def glu(gkey, gt, ukey, ut, rt, dst):
        gb, ub = BLK[gkey][gt] + 4 * rt, BLK[ukey][ut] + 4 * rt
        lo, lu = done[gkey + (gt, rt)] + LAT, done[ukey + (ut, rt)] + LAT
        hu = min(reuse(ub, lu), reuse(dst & ~3, lu))
        hi = min(reuse(gb, lo), hu)
        first_op = "v_fma_f32 v%%d, s%d, v%%d, -v%d" % (S_NL2E, V_TMP + 7) if OPT["gb"] else "v_mul_f32 v%%d, s%d, v%%d" % S_NL2E
        for op in (first_op, "v_exp_f32 v%d, v%d", "v_add_f32 v%d, 1.0, v%d", "v_rcp_f32 v%d, v%d"):
            for r in range(4): add(op % (gb + r, gb + r), lo, hi)
        for r in range(4): add("v_mul_f32 v%d, v%d, v%d" % (ub + r, ub + r, gb + r), lu, hi)
        for h in range(2): add("v_cvt_pk_bf16_f32 v%d, v%d, v%d" % (dst + h, ub + 2 * h, ub + 2 * h + 1), lu, hu)
        return lu
    for unit in range(2):
        for t in range(4):
            for rt in range(4):
                d = VU + 16 * (t & 2) + 4 * rt if unit or t < 2 or not OPT["park"] else VG + 32 + 4 * rt
                lu = glu(("g", unit), t, ("u", unit), t, rt, d + 2 * (t & 1))
                if t & 1:
                    t0_, dt_ = OPT["hspread"][unit]
                    add("buffer_store_dwordx4 %s, v%d, %s, s%d offen offset:%d" % (vr(d), V_FR, sr(S_WS), 56 + 2 * unit + t // 2, rt * 1024) + SC,
                        max(lu, int(144 * t0_) + (2 * (t & 2) + rt) * dt_), reuse(d, lu))
    for rt in range(4):
        d = BLK[("h", 0)][0] + 4 * rt
        lu = glu(("h", 0), 0, ("h", 0), 1, rt, d)
        add("buffer_store_dwordx2 %s, v%d, %s, s%d offen offset:%d" % (vr(d, 2), V_TH, sr(S_WS), S_HHST, rt * 512) + SC, max(lu, 144 * 11 + 30 * rt), END)
    for unit in range(2):
        blk = BLK[("q", unit)]
        for t in range(4):
            for rt in range(4):
                lo = done[("q", unit, t, rt)] + LAT
                hi = END + 96 if unit == 0 else (END + 140 if t < 2 else None)
                r0 = blk[t] + 4 * rt
                for r in range(4): add("v_mul_f32 v%d, s%d, v%d" % (r0 + r, S_QC, r0 + r), lo, hi)
                d = blk[t & 2] + 4 * rt + 2 * (t & 1)
                for h in range(2): add("v_cvt_pk_bf16_f32 v%d, v%d, v%d" % (d + h, r0 + 2 * h, r0 + 2 * h + 1), lo, hi)
    fl.sort(key=lambda f: f.hi if f.hi is not None else 1 << 30)
    head, xl, _ = first_ref()
    P(len(mf), xl[0]); P(len(mf) + 1, xl[1])
    mf += head
    out, left = schedule(mf, pin, fl, window=64, blocked=blocked)
    out += [f.i.text for f in left]
    if OPT.get("hflag") is not None: out = [x.replace(SC, OPT["hflag"]) if x.startswith("buffer_store") else x for x in out]
    for pat in OPT.get("gdrop", []): out = [x for x in out if not x.startswith(pat)]
    idx = [i for i, x in enumerate(out) if x.startswith("v_mfma")]
    for g in range(len(idx) - 1, 0, -1):
        ins = OPT["st"]("t%d" % (g // 144)) if g % 144 == 0 else []
        if OPT["pads"] and g in OPT["hopg"]: ins = ins + hop_round(len(OPT["hops"]) + OPT["hopg"].index(g))
        out[idx[g]:idx[g]] = ins
    return out

def kread(buf, j, kt):
    return ["ds_read_b128 %s, v%d offset:%d" % (vr(buf + 4 * ks), V_KA + ks, KOFF(j) + kt * 4096) for ks in range(4)]
def vread(buf, j, u):
    return ["ds_read_b64_tr_b16 %s, v%d offset:%d" % (vr(buf + 8 * d + 4 * b + 2 * h, 2), V_VA + 2 * u + d, VOFF(j) + b * 8192 + h * 4096)
            for d in range(2) for b in range(2) for h in range(2)]
def E(t, r): return "v_exp_f32 v%d, v%d" % (VS + 4 * t + r, VS + 4 * t + r)
def C(par, kt, t, h):
    if OPT["perm16"]:
        return "v_perm_b32 v%d, v%d, v%d, s0" % (VP[par][kt >> 1] + 4 * t + 2 * (kt & 1) + h, VS + 4 * t + 2 * h + 1, VS + 4 * t + 2 * h)
    return "v_cvt_pk_bf16_f32 v%d, v%d, v%d" % (VP[par][kt >> 1] + 4 * t + 2 * (kt & 1) + h, VS + 4 * t + 2 * h, VS + 4 * t + 2 * h + 1)
def qk(kbuf, t, c0):
    d = vr(VS + 4 * t)
    return [mfma(d, vr(kbuf + 4 * ks), qf(t, ks), c0 if n == 0 else d) for n, ks in enumerate(snake(4, t, "q"))]
def pv(vbuf, par, u, init):
    ts = [(u + k) % 4 for k in range(4)] if "P" in OPT["snake"] else list(range(4))
    return [mfma(oacc(2 * u + d, ts[k]), vr(vbuf + 8 * d + 4 * b), vr(VP[par][b] + 4 * ts[k]), (ar(252) if OPT["ob"] else "0") if init and n == 0 else oacc(2 * u + d, ts[k]))
            for d in range(2) for c, k in enumerate(snake(4, d, "P")) for n, b in enumerate(snake(2, c + 1, "p"))]
def psum(par, t, init):
    return [mfma(lacc(t), vr(V_ONE), vr(VP[par][b] + 4 * t), "0" if init and n == 0 else lacc(t)) for n, b in enumerate(snake(2, 1, "P"))]

def rowmax(src):
    P = []
    A = P.append
    for t in range(4):
        A("v_max3_f32 v%d, v%d, v%d, v%d" % (V_TMP + t, src + 4 * t, src + 4 * t + 1, src + 4 * t + 2))
    for t in range(4):
        A("v_max_f32 v%d, v%d, v%d" % (V_TMP + t, V_TMP + t, src + 4 * t + 3))
    for op in ("v_permlane32_swap_b32", "v_permlane16_swap_b32"):
        for t in range(4): A("v_mov_b32 v%d, v%d" % (32 + t, V_TMP + t))
        A("s_nop 1")
        for t in range(4): A("%s v%d, v%d" % (op, V_TMP + t, 32 + t))
        for t in range(4): A("v_max_f32 v%d, v%d, v%d" % (V_TMP + t, V_TMP + t, 32 + t))
    for t in range(4):
        for r in range(4): A("v_sub_f32 v%d, 0, v%d" % (VNEG + 4 * t + r, V_TMP + t))
    return P

def first_ref():
    xl = ["buffer_load_dwordx2 %s, v%d, %s, s%d offen offset:%d" % (ar(AX + 4 * c + 2 * rt, 2), V_XO + rt, sr(S_X), S_XO, c * 32)
          for rt in range(2) for c in range(3)]
    m = lambda t, ks, c: mfma(vr(VNEG + 4 * t), vr(VVF + 4 * ks), qf(t, ks), c or vr(VNEG + 4 * t))
    head = [m(t, ks, vr(V_TMP) if n == 0 else None) for t in range(4) for n, ks in enumerate(snake(3, t, "q"))]
    P = ["s_waitcnt lgkmcnt(0)", "s_nop 0"]
    for t in range(4): P += [m(t, 3, None), xl[2 + t]]
    return head, xl[:2], P

def step_pre():
    P = ["s_add_u32 s%d, s%d, %d" % (S_KO, S_KV0, 3 * 16384), "s_add_u32 s%d, s%d, %d" % (S_VO, S_KV0, 2 * 16384)]
    for n in range(16):
        kt, t = n >> 2, n & 3
        kbuf = VKF if kt % 2 == 0 else VVF
        ms = qk(kbuf, t, vr(VNEG + 4 * t))
        rd = []
        if t == 0:
            if kt > 0: P.append("s_waitcnt lgkmcnt(0)")
            if kt == 3: P += ["WAITVM s0", "s_barrier"] + (["ds_read_b128 v[32:35], v36"] if OPT["ob"] else [])
            rd = kread(VVF if kt % 2 == 0 else VKF, 0, kt + 1) if kt < 3 else kread(VKF, 1, 0)
        for i, m in enumerate(ms):
            P.append(m)
            if rd: P.append(rd[i])
            if n >= 2: P.append(E((n - 2) & 3, i))
            if n == 1: P.append(("v_lshrrev_b32 v36, 4, v0", "v_lshlrev_b32 v36, 4, v36", "v_add_u32 v36, 0x10000, v36", "s_nop 0")[i])
        if n >= 2:
            P += [C(0, (n - 2) >> 2, (n - 2) & 3, 0), C(0, (n - 2) >> 2, (n - 2) & 3, 1)]
    if not OPT["ob"]:
        return P + [E(2, r) for r in range(4)] + [C(0, 3, 2, 0), C(0, 3, 2, 1), "s_nop 1", E(3, 0), E(3, 1), "s_waitcnt lgkmcnt(0)"]
    P += ["s_waitcnt lgkmcnt(0)"] + ["v_and_b32 v%d, 0x7fff7fff, v%d" % (32 + r, 32 + r) for r in range(4)]
    P += ["v_add_u32 v%d, 0x%x, v%d" % (32 + r, OPT["ob"] * 0x800080, 32 + r) for r in range(4)] + [E(2, 0), E(2, 1)]
    rest = [[E(2, 2)], [E(2, 3)], [C(0, 3, 2, 0), C(0, 3, 2, 1)], [E(3, 0), E(3, 1)]]
    for t in range(4): P += [mfma(vr(V_SH + 4 * t), vr(32), vr(VP[0][0] + 4 * t), "0")] + rest[t]
    return P

def step(i, tail_scalars=(), part=""):
    par = i & 1
    mf, pin, fl = [], {}, []
    P = lambda g, x: pin.setdefault(g, []).append(x)
    for u in range(4):
        g0 = 34 * u
        for t in range(4): mf += qk(VKF, t, vr(VNEG + 4 * t))
        mf += pv(VVF, par, u, i == 0) + psum(par, u, i == 0)
        ppar, pkt = (par, 3) if u == 0 else (par ^ 1, u - 1)
        tr = vread(VVF, i, u)
        for g, k in zip(OPT.get('tpos', (0, 2, 2, 4, 6, 6, 8, 8)), range(8)): P(g0 + g, tr[k])
        P(g0 + 0, C(ppar, pkt, 3, 0)); P(g0 + 1, E(3, 2)); P(g0 + 3, E(3, 3)); P(g0 + 4, C(ppar, pkt, 3, 1))
        for e in range(14): P(g0 + 7 + 2 * e, E(e >> 2, e & 3))
        for c in range(6): P(g0 + 10 + 4 * c, C(par ^ 1, u, c >> 1, c & 1))
        if u == 3 and par == 1:
            P(g0 + 15, "s_waitcnt vmcnt(%d) lgkmcnt(0)" % {(1, 'a'): 7, (3, 'a'): 4, (1, 'b'): 1, (3, 'b'): 6, (29, ''): 17}[(i, part)]); P(g0 + 15, "s_barrier")
        elif u == 3 and i == 30:
            P(g0 + 15, "s_waitcnt lgkmcnt(0)"); P(g0 + 15, "s_barrier")
        else:
            P(g0 + 15, "s_waitcnt lgkmcnt(0)")
        if i == 30 and u == 3:
            tr = vread(VKF, 31, 0)
            for g, k in zip((16, 16, 18, 20, 20, 22, 24, 24), range(8)): P(g0 + g, tr[k])
        else:
            rd = kread(VKF, i + 1, u + 1) if u < 3 else kread(VKF, i + 2, 0)
            for g, k in zip((16, 18, 20, 22), range(4)): P(g0 + g, rd[k])
        P(g0 + 33, "s_waitcnt lgkmcnt(0)")
        if par == 0 and i < 30:
            for n, g in enumerate(OPT.get('gpos', (5, 12, 24, 28))):
                k = 4 * u + n
                isk, pc = (k % 2 == 0, k // 2) if OPT["kvmix"] else (k < 8, k & 7)
                so = S_KO if isk else S_VO
                P(g0 + g - 2, "s_add_u32 m0, s%d, 0x%x" % (S_L1K, (KOFF(i + 3) if isk else 65536 + VOFF(i + 2)) + pc * 4096))
                P(g0 + g - 1, "s_add_u32 s%d, s%d, %d" % (S_T0, so, pc * 4096))
                P(g0 + g, "buffer_load_dwordx4 v%d, %s, s%d offen lds" % (V_DK if isk else V_DV, sr(S_K if isk else S_V), S_T0))
            if u == 3:
                P(g0 + 29, "s_add_u32 s%d, s%d, 32768" % (S_KO, S_KO)); P(g0 + 30, "s_add_u32 s%d, s%d, 32768" % (S_VO, S_VO))
    for k, x in enumerate(tail_scalars): P(102 + 31 + k, x)
    if i == 0:
        sc, va = loop_setup()
        fl = [Flt(x) for x in va]
        if OPT["ob"]:
            z = V_SH
            ops = ["v_min3_f32 v%d, v%d, v%d, v%d" % (z, z, z + 4, z + 8), "v_min_f32 v%d, v%d, v%d" % (z, z, z + 12)]
            for sh in OPT["obx"]: ops += ["s_nop 1\nv_min_f32_dpp v%d, v%d, v%d row_ror:%d row_mask:0xf bank_mask:0xf" % (z, z, z, sh)]
            ops += ["v_and_b32 v%d, 0x7f800000, v%d" % (z, z), "v_mul_f32 v%d, %s, v%d" % (z, f32(1.5), z)] + ["v_accvgpr_write_b32 a%d, v%d" % (252 + r, z) for r in range(4)]
            for g, x in zip((3, 4, 6, 7, 8, 9, 10, 11, 13, 13, 14, 14)[-len(ops):], ops): P(g, x)
        g = 0
        for x in sc:
            while any(cost(I(y)) == 0 or I(y).kind == "vmem" for y in pin.get(g, [])): g += 1
            P(g, x)
        assert g < 136
    if i == 1 and part == 'a':
        sc, dm, rd, stv, mk = relayout()
        g = 0
        for grp in sc:
            while (pin.get(g) if len(grp) > 1 else any(cost(I(y)) == 0 for y in pin.get(g, []))): g += 1
            for x in grp: P(g, x)
            g += 1
        assert g <= 42, g
        for g, (pre, x) in zip((34 + 12, 34 + 24, 34 + 28, 34 + 32), dm):
            P(g - 2, pre[0]); P(g - 1, pre[1]); P(g, x.split(";@")[0].rstrip())
        for g, x in zip((68 + 12, 68 + 28, 102 + 12), mk): P(g, x)
        P(102 + 13, "s_add_u32 s%d, s%d, 6144" % (S_SO, S_SO))
    if i == 1 and part == 'b':
        P(0, "s_lshl_b32 s54, s%d, 3" % S_WAVE); P(1, "s_add_u32 s54, s54, s%d" % S_CNT)
        P(5, "s_cmp_eq_u32 s54, 4"); P(5, "s_cselect_b32 s%d, s%d, 0x40000000" % (S_T2, S_AFL))
        P(102 + 24, "buffer_store_dword v%d, v%d, %s, s%d offen%s" % (V_1, V_L0, sr(S_WS), S_T2, SC))
    if i == 3 and part == 'a':
        sc, dm, rd, stv, mk = relayout()
        P(23, "s_waitcnt vmcnt(19)")
        for g, xs in zip((24, 28, 34 + 24, 34 + 28), rd):
            for x in xs: P(g, x)
        for g, x in zip((34 + 5, 34 + 32, 68 + 5, 68 + 24), stv): P(g, x)
    if part == 'b':
        P(68 + 32, "buffer_atomic_add v%d, v%d, %s, s%d offen%s" % (V_1, V_L0, sr(S_WS), S_PG, SC))
    if i == 3 and part == 'b':
        P(102 + 5, "global_load_dword v%d, %s, off" % (V_TMP + 6, vr(V_TMP + 4, 2)))
        for u in range(4): P(34 * u + 12, "buffer_load_dword v%d, v%d, %s, s%d offen%s" % (V_TMP + u, V_B8, sr(S_WS), S_PS, SC))
    if i == 3 and part == 'b':
        P(102 + 24, "s_cmp_eq_u32 s%d, 1" % S_CNT); P(102 + 24, "s_cselect_b32 s%d, 0, 0x40000000" % S_T2)
        P(102 + 25, "s_add_u32 s%d, s%d, 0x%x" % (S_T2, S_T2, FLAG_OFF + 4096))
        P(102 + 28, poll_a()[0])
    if i in (29, 30):
        gaps = [34 * u + g for u in range(4) for g in (5, 12, 24, 28, 32) if i == 29 or (u, g) not in ((0, 24), (3, 24))]
        ops = preload(i)
        assert len(ops) == len(gaps)
        for g, f in zip(gaps, ops):
            m, so, x = f(S_T0)
            if m: P(g - 2, m)
            P(g - 1, so); P(g, x)
        def scalars(g, xs):
            for x in xs:
                while any(cost(I(y)) == 0 or I(y).kind == "vmem" for y in pin.get(g, [])): g += 1
                P(g, x)
            return g
    if i == 29:
        t = V_TMP
        free = [34 * u + g for u in range(4) for g in (10, 14, 16, 20, 26, 30)]
        S1, V, S2, R, S3 = proposal()
        g = scalars(0, S1)
        free = [x for x in free if x > g]
        for x in V:
            g = free.pop(0)
            P(g, x)
        g = scalars(g + 1, S2)
        free = [x for x in free if x > g]
        for x in R: P(free.pop(0), x)
    if i == 30:
        assert scalars(0, proposal()[4]) < 20
        P(16, "v_mov_b32 v33, 0"); P(20, "v_mov_b32 v32, s%d" % S_REM)
        P(24, "buffer_atomic_cmpswap v[32:33], v%d, %s, s%d offen offset:16 sc0 sc1 ;@cas" % (V_L0, sr(S_WS), S_PS))
    if i == 30:
        P(68 + 13, "WAITVM cas"); P(68 + 14, "v_readfirstlane_b32 s54, v32")
        g = scalars(68 + 16, ["s_min_u32 s55, s54, 1", "s_sub_u32 s55, s55, 1", "s_and_b32 s55, s55, s%d" % S_REM, "s_or_b32 s54, s54, s55",
                              "s_lshl_b32 s55, s%d, 2" % S_WAVE, "s_add_u32 s55, s55, %d" % (FLAG_LDS + 16)])
        assert g < 68 + 26
        P(68 + 26, "v_mov_b32 v32, s54"); P(68 + 30, "v_mov_b32 v33, s55")
        P(102 + 10, "ds_write_b32 v33, v32"); P(102 + 14, "v_mov_b32 v33, %d" % (FLAG_LDS + 16))
        P(102 + 26, "ds_read_b32 v32, v33")
        assert scalars(25, late_setup()) < 68
    out, left = schedule(mf, pin, fl)
    assert not left
    if 1 <= i <= 4:
        for pat in OPT.get("drop", []):
            out = [x for x in out if not x.startswith(pat)]
        for pat, a_, b_ in OPT.get("sub", []):
            out = [x.replace(a_, b_) if x.startswith(pat) else x for x in out]
    return out

def proposal():
    mm, t = OPT["mmin"], V_TMP
    S1 = ["s_add_u32 s54, s56, s57", "s_add_u32 s55, s58, s59", "s_add_u32 s54, s54, s55", "s_mul_i32 s54, s54, %d" % OPT["gain"], "s_sub_u32 s54, %d, s54" % (1280 - 768)]
    for n in range(4):
        S1 += ["s_mul_i32 s%d, s%d, %d" % (56 + n, 56 + n, 4 * OPT["gain"]), "s_add_u32 s%d, s%d, s54" % (56 + n, 56 + n), "s_add_u32 s54, s54, %d" % OPT["tie"][n]]
    V = ["v_lshl_add_u32 v%d, v0, 4, s%d" % (t + n, 56 + n) for n in range(4)] + ["v_ashrrev_i32 v%d, 8, v%d" % (t + n, t + n) for n in range(4)] + \
        ["v_med3_i32 v%d, v%d, %d, 20" % (t + n, t + n, mm) for n in range(4)] + \
        ["v_add3_u32 v32, v%d, v%d, v%d" % (t, t + 1, t + 2), "v_add_u32 v32, v32, v%d" % (t + 3), "v_cmp_le_i32 vcc, 20, v32"]
    S2 = ["s_ff1_i32_b64 s54, vcc", "s_and_b32 s54, s54, 63"]
    R = ["v_readlane_b32 s%d, v%d, s54" % (56 + n, t + n) for n in (0, 1, 3)]
    S3 = ["s_add_u32 s57, s57, s56", "s_sub_u32 s59, 20, s59", "s_min_u32 s56, s56, %d" % (20 - 3 * mm), "s_min_u32 s57, s57, %d" % (20 - 2 * mm),
          "s_add_u32 s54, s57, %d" % mm, "s_max_i32 s59, s59, s54", "s_lshl_b32 s57, s57, 8", "s_lshl_b32 s59, s59, 16", "s_or_b32 s56, s56, s57",
          "s_or_b32 s59, s59, 0x14000000", "s_or_b32 s%d, s56, s59" % S_REM]
    if OPT["fixed"]: S3.append("s_mov_b32 s%d, 0x%x" % (S_REM, OPT["fixed"]))
    return S1[:-1], V, S2, R, S3

def poll_a():
    a = V_PA
    return ("buffer_load_dwordx4 %s, v%d, %s, s%d offen%s" % (vr(a), V_FR, sr(S_WS), S_T2, SC),
            ["v_and_b32 v%d, v%d, v%d" % (a, a, a + 1), "v_and_b32 v%d, v%d, v%d" % (a + 2, a + 2, a + 3),
             "v_and_b32 v%d, v%d, v%d" % (a, a, a + 2), "v_cmp_eq_u32 vcc, 0, v%d" % a])

def poll_b():
    return ("buffer_load_dword v%d, v%d, %s, s%d offen%s" % (V_PL, V_B8, sr(S_WS), S_BC, SC), ["v_cmp_eq_u32 vcc, 0, v%d" % V_PL])

def poll_d():
    return ("buffer_load_dword v%d, v%d, %s, s%d offen%s" % (V_PL, V_B8, sr(S_WS), S_DF, SC), ["v_cmp_eq_u32 vcc, 0, v%d" % V_PL])

def spin(name, loads, check):
    return ["L_%s_spin:" % name, "s_mov_b32 s55, 0x%x" % OPT.get("spin", 0x100000), "L_%s_loop:" % name] + (["s_sleep %d" % OPT["sleep"]] if OPT["sleep"] and name == "s" else []) + loads + ["s_sub_u32 s55, s55, 1", "s_waitcnt vmcnt(0)"] + check + \
           ["s_cmp_eq_u32 s55, 0", "s_cbranch_scc1 L_%s_ret" % name, "s_cbranch_vccnz L_%s_loop" % name, "s_branch L_%s_ret" % name]

def guard(name):
    return ["s_cbranch_vccnz L_%s_spin" % name, "L_%s_ret:" % name]

def tail_setup():
    P = srd(S_X, 80, X_BYTES) + srd(S_AUX, 60, 0)
    A = P.append
    j, a, b, c, r = 42, 54, 55, 53, 46
    A("s_bfe_u32 s%d, s2, 0x20001" % j)
    A("s_min_u32 s%d, s%d, 1" % (a, j))
    A("s_sub_u32 s%d, 1, s%d" % (a, a))
    A("s_lshl_b32 s%d, s%d, 28" % (S_AUX + 2, a))
    A("s_lshr_b32 s%d, s2, 5" % a)
    A("s_lshl_b32 s%d, s%d, 1" % (a, a))
    A("s_add_u32 s%d, s%d, s%d" % (a, a, S_HF))
    A("s_lshl_b32 s%d, s%d, 2" % (b, a))
    A("s_add_u32 s%d, s%d, s%d" % (b, b, S_WAVE))
    A("s_mul_i32 s%d, s%d, %d" % (S_XO, b, 32 * 1152))
    A("s_lshr_b32 s%d, s%d, 1" % (a, b))
    A("s_and_b32 s%d, s%d, 1" % (b, b))
    A("s_lshl_b32 s%d, s%d, 2" % (c, a))
    A("s_add_u32 s%d, s%d, s%d" % (c, c, j))
    A("s_lshl_b32 s%d, s%d, 5" % (S_BC, c))
    A("s_add_u32 s%d, s%d, 0x%x" % (S_BC, S_BC, FLAG_OFF))
    A("s_lshl_b32 s%d, s%d, 17" % (S_HA, c))
    A("s_lshl_b32 s%d, s%d, 14" % (S_H2, c))
    A("s_lshl_b32 s%d, s%d, 11" % (c, b))
    A("s_add_u32 s%d, s%d, s%d" % (S_HA, S_HA, c))
    A("s_lshl_b32 s%d, s%d, 10" % (c, b))
    A("s_add_u32 s%d, s%d, s%d" % (S_H2, S_H2, c))
    A("s_lshl_b32 s%d, s%d, 5" % (c, S_RB))
    A("s_add_u32 s%d, s%d, s%d" % (c, c, S_SL))
    A("s_lshl_b32 s%d, s%d, 2" % (c, c))
    A("s_add_u32 s%d, s%d, 0x%x" % (S_BP, c, FLAG_OFF))
    A("s_bfe_u32 s%d, s2, 0x20003" % a)
    A("s_mul_i32 s%d, s%d, 288" % (b, a))
    A("s_add_u32 s%d, s%d, s%d" % (S_XO, S_XO, b))
    A("s_mul_i32 s%d, s%d, 9216" % (a, a))
    A("s_lshl_b32 s%d, s%d, 5" % (b, j))
    A("s_add_u32 s%d, s%d, s%d" % (b, b, S_WAVE))
    A("s_mul_i32 s%d, s%d, %d" % (b, b, SLOT))
    A("s_add_u32 s%d, s%d, s%d" % (c, a, b))
    A("s_mul_i32 s%d, s%d, 28" % (a, j))
    A("s_sub_u32 s%d, 128, s%d" % (a, a))
    A("s_mul_i32 s%d, s%d, %d" % (S_W8, a, SLOT))
    P += rot(r)
    for n in range(9):
        P += ["s_add_u32 s%d, s%d, %d" % (a, r, n), "s_sub_u32 s%d, s%d, 9" % (b, a), "s_min_u32 s%d, s%d, s%d" % (a, a, b),
              "s_lshl_b32 s%d, s%d, 10" % (a, a), "s_add_u32 s%d, s%d, s%d" % (S_TO[n], a, c)]
    A("s_lshl_b32 s%d, s%d, 5" % (a, r))
    A("s_add_u32 s%d, s%d, s%d" % (S_XO, S_XO, a))
    P += slab_base(47)
    A("s_lshl_b32 s%d, s%d, 11" % (a, r))
    A("s_add_u32 s47, s47, s%d" % a)
    for n in range(3):
        A("s_add_u32 s%d, s%d, %d" % (a, j, n + 1))
        A("s_and_b32 s%d, s%d, 3" % (a, a))
        A("s_mul_i32 s%d, s%d, %d" % (a, a, 18 * 1024))
        A("s_add_u32 s%d, s%d, s47" % (S_IN + n, a))
    A("s_lshl_b32 s%d, s%d, 2" % (c, S_WAVE))
    for q in range(4):
        A("s_lshr_b32 s%d, 0x%x, s%d" % (a, sum(v << (4 * k) for k, v in enumerate(SUB[q])), c))
        A("s_and_b32 s%d, s%d, 15" % (a, a))
        A("s_add_u32 s%d, s%d, 4" % (b, a))
        A("s_lshr_b32 s%d, s%d, 4" % (b, b))
        A("s_mul_i32 s%d, s%d, 16320" % (b, b))
        A("s_mul_i32 s%d, s%d, 9216" % (a, a))
        A("s_add_u32 s%d, s%d, s%d" % (S_LB[q], a, b))
    V = ["v_and_b32 v%d, 15, v0" % V_XO, "v_mul_u32_u24 v%d, 1152, v%d" % (V_XO, V_XO), "v_lshrrev_b32 v%d, 4, v0" % (V_XO + 1),
         "v_lshl_add_u32 v%d, v%d, 3, v%d" % (V_XO, V_XO + 1, V_XO), "v_add_u32 v%d, %d, v%d" % (V_XO + 1, 16 * 1152, V_XO)]
    return P, V

def late_setup():
    return srd(S_OUT, 78, X_BYTES) + ["s_lshr_b32 s54, s2, 3", "s_lshl_b32 s54, s54, 1", "s_add_u32 s54, s54, s%d" % S_HF,
            "s_lshl_b32 s54, s54, 2", "s_add_u32 s54, s54, s%d" % S_WAVE, "s_lshl_b32 s54, s54, 4",
            "s_add_u32 s%d, s54, 0x%x" % (S_DF, FLAG_OFF + 8192), "s_bfe_u32 s54, s2, 0x20001", "s_lshl_b32 s54, s54, 2",
            "s_add_u32 s%d, s54, s%d" % (S_DO, S_DF)]

def loop_setup():
    P = slab_base(54)
    A = P.append
    A("s_mov_b32 s%d, 0x20000" % (S_SRC + 3))
    A("s_bfe_u32 s55, s2, 0x20001")
    A("s_mul_i32 s55, s55, %d" % (18 * 1024))
    A("s_add_u32 s%d, s55, s54" % S_SO)
    A("s_lshl_b32 s%d, s2, 2" % S_U)
    A("s_add_u32 s%d, s%d, 0x%x" % (S_AFL, S_U, FLAG_OFF + 4096))
    A("s_add_u32 s%d, s%d, s%d" % (S_U, S_U, S_WAVE))
    A("s_lshl_b32 s%d, s%d, 12" % (S_SCR, S_WAVE))
    A("s_add_u32 s%d, s%d, %d" % (S_SCR, S_SCR, SCR))
    A("s_lshr_b32 s54, s2, 3")
    A("s_lshl_b32 s54, s54, 1")
    A("s_add_u32 s54, s54, s%d" % S_HF)
    A("s_lshl_b32 s54, s54, 6")
    A("s_min_u32 s55, s%d, 1" % S_WAVE)
    A("s_lshl_b32 s55, s55, 30")
    A("s_add_u32 s54, s54, s55")
    A("s_add_u32 s%d, s54, 0x%x" % (S_PS, FLAG_OFF + 12288))
    A("s_bfe_u32 s55, s2, 0x20001")
    A("s_lshl_b32 s55, s55, 2")
    A("s_add_u32 s%d, s%d, s55" % (S_PG, S_PS))
    V = ["v_mov_b32 v%d, -1" % (V_M1 + r) for r in range(4)]
    V += ["v_mov_b32 v%d, 1" % V_1, "v_min_u32 v%d, 1, v0" % V_L0, "v_lshlrev_b32 v%d, 30, v%d" % (V_L0, V_L0),
         "v_add_u32 v%d, 0x10000, v%d" % (V_RD, V_FR), "v_add_u32 v%d, 0x20000, v%d" % (V_RD2, V_FR), "v_lshlrev_b32 v%d, 3, v0" % V_H2,
         "v_add_u32 v%d, 0x1000, v%d" % (V_F4, V_FR), "v_and_b32 v%d, 7, v0" % V_B8, "v_lshlrev_b32 v%d, 2, v%d" % (V_B8, V_B8)]
    return P, V

def accr(job, c, rt): return (VD if job == 0 else VSA) + 8 * c + 4 * rt
RING = [SUBOFF(6), SUBOFF(0), SUBOFF(12)]
V_RA = 12
S_KAP, S_WD, S_AD, S_REM = 47, 48, 42, 53
def stage(name, ring=None):
    k, n = name[0], int(name[1])
    if k == "p": return dict(name=name, job=0, ab=(144, 176, 208, 0)[n], sub=n, lb=S_LB[n], src=n if n < 3 else "h2", init=n == 0)
    if k == "f": return dict(name=name, job=0, ab=(144, 176, 208)[n], ring=n, lb=S_LB[n], src="dyn", init=False)
    r = n % 3 if ring is None else ring
    return dict(name=name, job=1, ab=(32, 64, 96, 0, 144, 176, 208, 32)[n], ring=r, lb=S_LB[r], src=9 + n, init=n == 0)
def act(st, k, rt, n=4, o=0): return ar(st["ab"] + 8 * k + 4 * rt + o, n)

def stage_loads(st):
    w, a = [], []
    src, nm = st["src"], st["name"]
    for c in range(9):
        def f(t, c=c):
            so = "s_add_u32 s%d, s%d, s%d" % (t, S_TO[c], S_W8 if src == "h2" else S_WD) if src in ("h2", "dyn") else \
                 "s_add_u32 s%d, s%d, 0x%x" % (t, S_TO[c], (4 * src if src < 8 else 144 + 4 * (src - 9)) * SLOT)
            return ("s_add_u32 m0, s%d, 0x%x" % (st["lb"], (c + st.get("sp", 0)) * 1024), so,
                    "buffer_load_dwordx4 v%d, %s, s%d offen%s lds ;@w%s" % (V_FR, sr(S_WF), t, SC, st.get("wn", nm)))
        w.append(f)
    for k in range(4):
        for hf in range(2 if src == "h2" else 1):
            for rt in range(2):
                def f(t, k=k, hf=hf, rt=rt):
                    if src == "h2":
                        return (None, "s_add_u32 s%d, s%d, 0x%x" % (t, S_H2, H2_OFF + k * 4096),
                                "buffer_load_dwordx2 %s, v%d, %s, s%d offen offset:%d%s ;@a%s" %
                                (act(st, k, rt, 2, 2 * hf), V_H2, sr(S_WS), t, hf * 2048 + rt * 512, SC, nm))
                    r, o = (S_AD, H_OFF + k * 4096) if src == "dyn" else \
                           (S_HA, H_OFF + (4 * src + k) * 4096 if src < 8 else O_OFF + (4 * (src - 9) + k) * 4096)
                    return (None, "s_add_u32 s%d, s%d, 0x%x" % (t, r, o),
                            "buffer_load_dwordx4 %s, v%d, %s, s%d offen offset:%d%s ;@a%s" % (act(st, k, rt), V_FR, sr(S_WS), t, rt * 1024, SC, nm))
                a.append(f)
    return w, a

def preload(i):
    w, a = zip(*[stage_loads(stage("p%d" % n)) for n in range(3)])
    return {29: a[0] + a[1] + a[2][:1] + w[0][:3], 30: w[0][3:] + w[1] + a[2][1:4], 31: w[2] + a[2][4:]}[i]

def wread(st, c, buf):
    out = []
    for k in range(4):
        if "sub" in st:
            off = SUBOFF(SUB[st["sub"]][k]) + (c + st.get("sp", 0)) * 1024
            adr, off = (V_FR, V_RD, V_RD2)[off >> 16], off & 0xffff
        else:
            adr, off = V_RA + st["ring"], k * 9216 + c * 1024
        out.append("ds_read_b128 %s, v%d offset:%d" % (vr(WBUF[buf] + 4 * k), adr, off))
    return out[::2] if OPT.get("emu8") else out

def inreg(job, c, n): return (VD if job == 0 else VSA) + 24 + 12 * (2 - n) + 4 * c
def fetch(job, ns=(2, 1, 0)):
    return ["buffer_load_dwordx4 %s, v%d, %s, s%d offen offset:%d%s ;@in%d" %
            (vr(inreg(job, c, n)), V_FR if c < 2 else V_F4, sr(S_WS if c < 2 else S_AUX), S_IN + n, (c & 1) * 2048 + job * 1024, SC, job)
            for n in ns for c in range(3)]
def arrived(ns):
    r = [inreg(1, 0, n) + k for n in ns for k in range(12)]
    P = ["v_max3_u32 v%d, v%d, v%d, v%d" % (VT + q, r[3 * q], r[3 * q + 1], r[3 * q + 2]) for q in range(4)]
    P += ["v_max3_u32 v%d, v%d, v%d, v%d" % (VT + k % 4, VT + k % 4, r[12 + 2 * k], r[13 + 2 * k]) for k in range((len(r) - 12) // 2)]
    return P + ["v_max3_u32 v%d, v%d, v%d, v%d" % (VT, VT, VT + 1, VT + 2), "v_max_u32 v%d, v%d, v%d" % (VT, VT, VT + 3), "v_cmp_eq_u32 vcc, -1, v%d" % VT]
def gather(job, c):
    return [mfma(vr(accr(job, c, rt)), vr(VSEL + 2 - 2 * rt), vr(inreg(job, c, n)), vr(accr(job, c, rt))) for rt in range(2) for n in range(3)]
def sel_setup():
    z, t = VSEL, VT
    return ["v_mov_b32 v%d, 0" % (z + r) for r in (0, 1, 4, 5)] + \
           ["v_bfe_u32 v%d, v0, 2, 2" % t, "v_lshrrev_b32 v%d, 4, v0" % (t + 1), "v_xor_b32 v%d, v%d, v%d" % (t, t, t + 1), "v_min_u32 v%d, 1, v%d" % (t, t),
            "v_sub_u32 v%d, 1, v%d" % (t, t), "v_mul_u32_u24 v%d, 0x3f80, v%d" % (t, t), "v_and_b32 v%d, 1, v0" % (t + 1), "v_lshlrev_b32 v%d, 4, v%d" % (t + 1, t + 1),
            "v_lshlrev_b32 v%d, v%d, v%d" % (t, t + 1, t), "v_bfe_i32 v%d, v0, 1, 1" % (t + 1), "v_and_b32 v%d, v%d, v%d" % (z + 3, t, t + 1),
            "v_xor_b32 v%d, v%d, v%d" % (z + 2, t, z + 3)]

class Seg:
    def __init__(self, seq, nxt=None):
        self.mf, self.pin, self.fl, self.done, self.ins = [], {}, [], {}, {}
        ext = seq + ([(nxt, c) for c in range(3)] if nxt else [])
        self.start = {}
        self.wstart = {}
        for n, (st, c) in enumerate(ext):
            self.start.setdefault(st["name"], 8 * n)
            self.wstart.setdefault(st.get("wn", st["name"]), 8 * n)
        for n, (st, c) in enumerate(seq):
            g0 = len(self.mf)
            for e, rt in enumerate(snake(2, n, "T")):
                d = vr(accr(st["job"], c, rt))
                for q, k in enumerate(snake(4, e, "t")):
                    self.mf.append(mfma(d, vr(WBUF[n % 3] + 4 * k), act(st, k, rt), (vr(240) if OPT.get("tb") else "0") if st["init"] and q == 0 else d))
            self.done[(st["job"], c)] = len(self.mf) - 1
            if n + 2 < len(ext):
                for i, x in enumerate(wread(ext[n + 2][0], ext[n + 2][1], (n + 2) % 3)): self.P(g0 + i, x)
            lw = "lgkmcnt(%d)" % ((2 if OPT.get("emu8") else 4) if n + 2 < len(ext) else 0)
            nxw = ["w" + q for q, g in self.wstart.items() if g == g0 + 24]
            nxa = ["a" + q for q, g in self.start.items() if g == g0 + 8]
            if nxw or nxa:
                self.P(g0 + 7, "WAITVM %s %s" % (",".join(nxw + nxa), lw))
                if nxw: self.P(g0 + 7, "s_barrier")
            elif n + 1 < len(ext):
                self.P(g0 + 7, "s_waitcnt " + lw)
    def P(self, g, x): self.pin.setdefault(g, []).append(x)
    def put(self, g, f):
        m, so, x = f({4: S_T0, 5: S_AD, 6: S_T3}[g % 8])
        if m: self.P(g - 3 if g % 8 == 4 else g - 1, m)
        self.P(g - 2 if g % 8 == 5 else g - 4, so); self.P(g, x)
    def issue(self, g0, st, poll):
        w, a = stage_loads(st)
        for n, f in enumerate(w[:8] + a[:6] + w[8:] + a[6:]):
            if not (OPT.get("emu8") and n < 8 and n % 2): self.put(g0 + 8 * (n // 2) + 4 + 2 * (n % 2), f)
        if poll and not OPT["latepoll"]: self.P(g0 + 70, poll_b()[0] + " ;@pb")
    def advance(self, g0):
        for k, x in enumerate(["s_add_u32 s%d, s%d, 4" % (S_KAP, S_KAP), "s_and_b32 s54, s%d, 31" % S_KAP, "s_sub_u32 s54, s54, 1", "s_lshr_b32 s54, s54, 31",
                               "s_mul_i32 s54, s54, 12", "s_add_u32 s%d, s%d, s54" % (S_KAP, S_KAP), "s_lshl_b32 s54, s%d, 12" % S_KAP,
                               "s_mul_i32 s%d, s%d, %d" % (S_WD, S_KAP, SLOT), "s_add_u32 s%d, s%d, s54" % (S_AD, S_HA)]):
            self.P(g0 + 8 * k + 3, x)
    def spot(self, g):
        while self.pin.get(g) or g % 8 < 4: g += 1
        return g
    def flag(self, g, tag, soff):
        if tag in OPT.get("wb", ()):
            self.P(g - 44, "WAITVM " + tag)
            self.P(self.spot(g - 40), "buffer_wbl2 sc1 ;@" + tag)
        self.P(g - 4, "WAITVM " + tag)
        self.P(self.spot(g), "buffer_store_dword v%d, v%d, %s, s%d offen%s" % (V_1, V_L0, sr(S_WS), soff, SC))
    def code(self, cap=2, head=None):
        mf, pin, fl, o = self.mf, self.pin, self.fl, 0
        if head:
            mf0, pin0, fl0 = head
            o = len(mf0)
            for g, xs in pin.items(): pin0[g + o] = xs
            for f in fl:
                f.lo += o
                if f.hi is not None: f.hi += o
            mf, pin, fl = mf0 + mf, pin0, fl0 + fl
        out, left = schedule(mf, pin, fl, cap=cap)
        for tag in OPT.get("plain", ()):
            out = [x.replace(SC, OPT.get("plainf", "")) if x.startswith("buffer_store") and x.endswith(";@" + tag) else x for x in out]
        idx = [i for i, x in enumerate(out) if x.startswith("v_mfma")][o:]
        for g in sorted(self.ins, reverse=True): out[idx[g]:idx[g]] = self.ins[g]
        return out, [y for f in left for y in f.i.text.split("\n")]

def full(names, **kw): return [(stage(n, **kw), c) for n in names for c in range(9)]
def count_down(S, g0):
    S.P(g0 + 69, "s_sub_u32 s%d, s%d, 1" % (S_REM, S_REM)); S.P(g0 + 71, "s_cmp_le_i32 s%d, 2" % S_REM)

def seg_prefix():
    st = OPT["st"]
    S = Seg(full(["p0", "p1", "p2"]), stage("p3"))
    w, a = stage_loads(stage("p3"))
    pos = [8 * (n // 2) + 4 + 2 * (n % 2) for n in range(36)]
    slots = [pos[(n * 36) // 25] for n in range(25)]
    assert slots[9] >= OPT["a3"]
    for g, f in zip(slots, w + a): S.put(g, f)
    S.issue(144, stage("f0"), True); S.advance(144)
    S.P(144 + 71, "s_cmp_le_i32 s%d, 1" % S_REM)
    S.flag(OPT["ogap"], "o", S_BP)
    sc = ["s_mul_i32 s%d, s%d, 9216" % (S_LB[1], S_WAVE), "s_add_u32 s%d, s%d, %d" % (S_LB[2], S_LB[1], RING[2]),
          "s_bfe_u32 s54, s2, 0x20001", "s_lshl_b32 s55, s54, 3", "s_lshl_b32 s%d, s%d, 8" % (S_KAP, S_REM), "s_lshr_b32 s%d, s%d, s55" % (S_KAP, S_KAP),
          "s_and_b32 s%d, s%d, 31" % (S_KAP, S_KAP), "s_lshr_b32 s%d, s%d, s55" % (S_REM, S_REM), "s_and_b32 s%d, s%d, 31" % (S_REM, S_REM),
          "s_sub_u32 s%d, s%d, s%d" % (S_REM, S_REM, S_KAP), "s_mul_i32 s55, s%d, 52" % S_KAP, "s_lshr_b32 s55, s55, 8", "s_mul_i32 s55, s55, 3",
          "s_add_u32 s%d, s%d, s55" % (S_KAP, S_KAP), "s_add_u32 s%d, s%d, 3" % (S_KAP, S_KAP), "s_lshl_b32 s54, s54, 3", "s_sub_u32 s%d, s%d, s54" % (S_KAP, S_KAP),
          "s_lshl_b32 s%d, s%d, 2" % (S_KAP, S_KAP), "s_lshl_b32 s54, s%d, 12" % S_KAP, "s_mul_i32 s%d, s%d, %d" % (S_WD, S_KAP, SLOT),
          "s_add_u32 s%d, s%d, s54" % (S_AD, S_HA)]
    g = 0
    for x in sc:
        while g % 8 > 3 or any(cost(I(y)) == 0 for y in S.pin.get(g, [])): g += 1
        S.P(g, x)
    assert g < 140
    for r in range(3): S.P(144 + r, "v_add_u32 v%d, %d, v%d" % (V_RA + r, RING[r], V_FR))
    S.ins = {0: st("tail0"), 144: st("g2")}
    if OPT["pads"] and OPT["hopt"]: S.ins[OPT["hopt"]] = hop_round(len(OPT["hops"]) + len(OPT["hopg"]))
    out, left = S.code(cap=lambda g: OPT["cap31"] if g < 72 else OPT["ocap"], head=step_last())
    assert not left
    if OPT.get("verbose"):
        n = 0
        for x in out:
            n += x.startswith("v_mfma")
            if ";@o" in x: print("O store at", n - 72)
    return out

def seg_p3():
    S = Seg(full(["p3"]), stage("f0"))
    S.issue(0, stage("f1"), True); S.advance(0)
    S.P(71, "s_cmp_le_i32 s%d, 2" % S_REM)
    return S.code()[0] + OPT["st"]("g4")

def seg_flex(ph):
    S = Seg(full(["f%d" % ph]), stage("f%d" % ((ph + 1) % 3)))
    S.issue(0, stage("f%d" % ((ph + 2) % 3)), True); S.advance(0); count_down(S, 0)
    return S.code()[0]

def seg_bridge(v):
    ph = min(v, 2)
    b0, b1 = stage("b0", (ph + 2) % 3), stage("b1", ph)
    S = Seg(full(["f%d" % ph if v < 3 else "p3", "f%d" % ((ph + 1) % 3)]), b0)
    S.issue(0, b0, False); S.issue(72, b1, False)
    if OPT["latepoll"]: S.P(7, poll_b()[0] + " ;@pb")
    S.P(27, "WAITVM pb"); S.P(27, poll_b()[1][0])
    S.ins = {0: OPT["st"]("br"), 32: OPT["st"]("preb") + guard("b%d" % v) + OPT["st"]("postb")}
    if ph != 1:
        o = (0, 1, 2) if ph == 2 else (2, 1, 0)
        for k, (d, a_) in enumerate(((None, o[0]), (o[0], o[1]), (o[1], o[2]), (o[2], None))):
            S.P(72 + (65, 66, 67, 69)[k], "s_mov_b32 s%d, s%d" % (54 if d is None else S_LB[d], 54 if a_ is None else S_LB[a_]))
            S.P(72 + (69, 69, 70, 70)[k], "v_mov_b32 v%d, v%d" % (15 if d is None else V_RA + d, 15 if a_ is None else V_RA + a_))
    return S.code()[0]

def seg_rest():
    st, D = OPT["st"], OPT["defer"]
    B = [stage("b%d" % n) for n in range(8)]
    B[7].update(sub=4, lb=S_LB[3])
    blocks = [("k%d" % q, cs) for q, cs in enumerate(OPT["blocks"])] + [("own", (0, 1))]
    blk = lambda n, nm: dict(B[n], wn=nm)
    S = Seg([(B[n], c) for n in range(5) for c in range(9)] + [(blk(n, nm), c) for nm, cs in blocks for n in (5, 6, 7) for c in cs])
    for k, x in enumerate(["s_and_b32 s54, s%d, 1" % S_WAVE, "s_mul_i32 s54, s54, 9216", "s_lshr_b32 s55, s%d, 1" % S_WAVE, "s_mul_i32 s55, s55, %d" % (6 * 9216),
                           "s_add_u32 s54, s54, s55", "s_add_u32 s%d, s54, %d" % (S_LB[3], 4 * 9216)]):
        S.P(8 * k + 11, x)
    for n in range(3): S.issue(72 * n, B[n + 2], False)
    wl = lambda q, ns: [stage_loads(blk(n, blocks[q][0]))[0][c] for n in ns for c in blocks[q][1]]
    al = lambda n: stage_loads(B[n])[1]
    first = wl(0, (5, 7)) + al(5)
    ops = first + [None] * (14 - len(first)) + wl(0, (6,)) + al(6) + al(7)
    for q in range(1, len(blocks)): ops += wl(q, (5, 6, 7))
    for k, f in enumerate(ops):
        last = 216 + 8 * (k // 2) + 4 + 2 * (k % 2)
        if f: S.put(last, f)
    S.P(3, "v_and_b32 v%d, 12, v%d" % (V_B8, V_B8))
    if OPT["pf3"]:
        g = 72
        for k, x in enumerate(["s_lshr_b32 s47, s2, 3", "s_lshl_b32 s47, s47, 2", "s_add_u32 s47, s47, s%d" % S_WAVE, "s_lshl_b32 s47, s47, 6",
                               "s_add_u32 s47, s47, %d" % OPT["pf3o"], "s_min_u32 s47, s47, L_k2_last-L_k2_pc3", "s_getpc_b64 s[54:55]\nL_k2_pc3:"]):
            S.P(g + 8 * k + 3, x)
        g = OPT["pf3"]
        S.P(g, "v_mov_b32 v84, s47"); S.P(g + 1, "v_mov_b32 v85, s55"); S.P(g + 2, "v_add_co_u32 v84, vcc, s54, v84")
        S.P(g + 8, "v_addc_co_u32 v85, vcc, 0, v85, vcc")
        S.P(S.spot(g + 10), "global_load_dword v86, v[84:85], off")
    for k, (v, o) in enumerate(((5, 0), (6, 0), (5, 64), (6, 64))[:OPT["outpf"]]):
        S.P(S.spot(296 + 8 * k), "buffer_load_dword v87, v%d, %s, s%d offen offset:%d" % (v, sr(S_OUT), S_XO, o))
    S.flag(OPT["dflag"], "p0", S_DO)
    g = last // 8 * 8 + 8
    S.P((g - OPT["pollahead"]) // 8 * 8 + 5, poll_d()[0] + " ;@pd")
    S.P(g - 5, "WAITVM pd"); S.P(g - 5, poll_d()[1][0])
    S.ins = {0: st("rest"), g: st("pred") + guard("d") + st("postd")}
    for x in fetch(0):
        g = S.spot(g)
        S.P(g, x)
        g += OPT["fstep"]
    gd = len(S.mf) - 8 * OPT["gdend"]
    assert gd - 5 > g
    S.P(gd - 5, "WAITVM in0")
    S.ins[gd] = st("gd") + gather(0, 0) + gather(0, 1) + gather(0, 2)
    for q in S.wstart: S.ins.setdefault(S.wstart[q], st(q))
    fl, grp = S.fl, []
    for job in range(2):
        for c in range(2, 9):
            lo = S.done[(1, c)] + 6 if job else 6 + (c - 2) * OPT["dsp"]
            hi = min(OPT["dflag"] - 12, (OPT["pf3"] or 999) - 4) if job == 0 else None
            b = VPK[c - 2]
            for rt in range(2):
                for h in range(2):
                    r = accr(job, c, rt) + 2 * h
                    fl.append(Flt("v_cvt_pk_bf16_f32 v%d, v%d, v%d" % (b + 2 * rt + h, r, r + 1), lo, hi))
            if job == 1:
                for q in range(4): fl.append(Flt("v_min_u32 v%d, -2, v%d" % (b + q, b + q), lo, hi))
            grp.append("buffer_store_dwordx4 %s, v%d, %s, s%d offen offset:%d%s" % (vr(b), V_FR, sr(S_WS), S_PUB + c, job * 1024, SC) + " ;@p%d" % job)
            if c in OPT["pgrp"][job]:
                fl.append(Flt("\n".join(grp), lo, hi))
                grp = []
        if job == 0:
            fl += [Flt(x, 6, gd - 4) for x in sel_setup()]
            fl += [Flt(x, 6, 290) for x in ("v_and_b32 v5, 15, v0", "v_mul_u32_u24 v5, 1152, v5", "v_lshrrev_b32 v6, 5, v0", "v_lshl_add_u32 v5, v6, 4, v5",
                                       "v_bfe_u32 v6, v0, 4, 1", "v_mul_u32_u24 v15, %d, v6" % (16 * 1152), "v_add3_u32 v15, v15, v5, 64",
                                       "v_lshl_add_u32 v5, v6, 5, v5", "v_add_u32 v6, %d, v5" % (16 * 1152))]
            fl += [Flt("v_accvgpr_read_b32 v%d, a%d" % (VXX + r, AX + r), 80 if OPT.get("tb") else 6) for r in range(12)]
    for n in (2, 1, 0): fl += [Flt(x, S.done[(1, 8)] + 6 + OPT["sdel"][n]) for x in fetch(1, (n,))]
    for c in range(3):
        d, t = accr(0, c, 0), (VT, 64, VT)[c]
        for op in ("v_mul_f32 v%%d, s%d, v%%d" % S_NL2E, "v_exp_f32 v%d, v%d", "v_add_f32 v%d, 1.0, v%d", "v_rcp_f32 v%d, v%d"):
            fl += [Flt(op % (t + r, d + r if "mul" in op else t + r), gd + 5) for r in range(8)]
        fl += [Flt("v_mul_f32 v%d, v%d, v%d" % (d + r, d + r, t + r), gd + 5) for r in range(8)]
        for q in range(4):
            fl.append(Flt("v_lshlrev_b32 v%d, 16, v%d" % (XF + 8 * c + 2 * q, VXX + 4 * c + q), gd + 5))
            fl.append(Flt("v_and_b32 v%d, 0xffff0000, v%d" % (XF + 8 * c + 2 * q + 1, VXX + 4 * c + q), gd + 5))
    out, left = S.code()
    for tag in OPT.get("kill", ()):
        f = lambda xs: [x.replace(" v1,", " v7,").replace(" v9,", " v7,") if x.endswith(";@" + tag) else x for x in xs]
        out, left = f(out), f(left)
    return out + st("mlast") + left

def combine(st):
    P = st("dmath") + ["s_waitcnt vmcnt(3)"] + arrived((2, 1)) + guard("r") + ["s_waitcnt vmcnt(0)"] + arrived((0,)) + guard("s") + st("sarr")
    def wide(q, adr, parts):
        o = []
        for n, (c, rt) in enumerate(parts):
            f = XF + 8 * c + 4 * rt
            o += ["v_fmac_f32 v%d, v%d, v%d" % (f + r, accr(1, c, rt) + r, accr(0, c, rt) + r) for r in range(4)]
        for n, (c, rt) in enumerate(parts):
            f = XF + 8 * c + 4 * rt
            o += ["v_cvt_pk_bf16_f32 v%d, v%d, v%d" % (q + 2 * n + h, f + 2 * h, f + 2 * h + 1) for h in range(2)]
        return o + ["s_nop 0", "v_permlane16_swap_b32 v%d, v%d" % (q, q + 2), "v_permlane16_swap_b32 v%d, v%d" % (q + 1, q + 3),
                    "buffer_store_dwordx4 %s, v%d, %s, s%d offen" % (vr(q), adr, sr(S_OUT), S_XO) + OPT["outf"]]
    g0, g1, g2 = gather(1, 0), gather(1, 1), gather(1, 2)
    w0 = wide(VXX, 5, ((0, 0), (1, 0)))
    P += g0[:3] + g1[:3] + g0[3:] + g1[3:]
    for m in g2:
        P += [m] + w0[:2]
        w0 = w0[2:]
    P += w0 + wide(VXX + 4, 6, ((0, 1), (1, 1)))
    P += st("u2") + ["s_cmp_lg_u32 s%d, 0" % (S_AUX + 2), "s_cbranch_scc0 L_k2_done"]
    return P + wide(VXX + 8, 15, ((2, 0), (2, 1)))

def step_last():
    par = 1
    mf, pin, fl = [], {}, []
    P = lambda g, x: pin.setdefault(g, []).append(x)
    P(0, C(par, 3, 3, 0)); P(1, E(3, 2)); P(3, E(3, 3)); P(4, C(par, 3, 3, 1))
    P(2, "v_readfirstlane_b32 s%d, v32" % S_REM)
    ends = {}
    for u in range(4):
        g0 = len(mf)
        mf += pv(VKF if u % 2 == 0 else VVF, par, u, False)
        ends[u] = len(mf) - 1
        if u < 3:
            tr = vread(VVF if u % 2 == 0 else VKF, 31, u + 1)
            gs = (0, 2, 4, 5, 6, 7, 8, 9) if u == 0 else range(8)
            for g, k in zip(gs, range(8)): P(g0 + g, tr[k])
        if u == 0:
            for t in range(4): mf += psum(par, t, False)
            lsum = len(mf) - 1
        if u < 2: P(len(mf) - 1, "s_waitcnt lgkmcnt(0)")
    RL = V_TMP
    for t in range(4):
        P(24 + 2 * t, "v_accvgpr_read_b32 v%d, a%d" % (RL + 4 + t, 128 + 4 * t))
        P(32 + t, "v_rcp_f32 v%d, v%d" % (RL + t, RL + 4 + t))
    P(36, "v_add_f32 v33, v%d, v%d" % (RL + 4, RL + 5)); P(36, "v_add_f32 v34, v%d, v%d" % (RL + 6, RL + 7))
    P(36, "s_lshl_b32 s55, s%d, 2" % S_WAVE); P(37, "s_add_u32 s55, s55, %d" % FLAG_LDS)
    P(37, "v_add_f32 v33, v33, v34"); P(37, "v_mov_b32 v32, %d" % FLAG_LDS)
    P(38, "v_add_f32 v34, v%d, v%d" % (RL, RL + 1)); P(38, "v_add_f32 v35, v%d, v%d" % (RL + 2, RL + 3))
    P(39, "v_add_f32 v33, v33, v34"); P(39, "v_mov_b32 v34, s55")
    P(40, "v_add_f32 v33, v33, v35")
    P(41, "v_cmp_nge_f32 vcc, %s, v33" % f32(2.0 ** 40))
    P(43, "s_or_b32 s54, vcc_lo, vcc_hi")
    P(44, "v_mov_b32 v33, s54")
    P(48, "ds_write_b32 v34, v33")
    P(55, "WAITVM wp0 lgkmcnt(0)"); P(55, "s_barrier")
    P(56, "ds_read_b128 v[36:39], v32")
    for k, x in enumerate(wread(stage("p0"), 0, 0)): P(57 + k, x)
    P(60, "s_waitcnt lgkmcnt(3)"); P(60, "v_or3_b32 v36, v36, v37, v38")
    P(61, "v_or_b32 v36, v36, v39")
    P(62, "v_readfirstlane_b32 s54, v36")
    P(63, "s_andn2_b32 s54, s54, s%d" % S_REDO); P(63, "s_cbranch_scc1 L_k2_redo")
    for k, x in enumerate(wread(stage("p0"), 1, 1)): P(64 + k, x)
    P(71, "WAITVM ap0 lgkmcnt(4)")
    if OPT.get("tb"):
        for r in range(4): P(64 + r, "v_mov_b32 v%d, %s" % (240 + r, f32(OPT["tb"])))
    tmp = [VP[0][0], VP[0][0] + 8, VP[0][1], VP[0][1] + 8] + ([VG + 16, VG + 24, VU, VU + 8] if OPT["ogrp"] > 1 else [])
    if OPT["ob"]:
        fl += [Flt("v_accvgpr_read_b32 v%d, a%d" % (RL + 4 + t, 252 + t), 37) for t in range(4)]
        fl += [Flt("v_mul_f32 v%d, v%d, v%d" % (RL + 4 + t, RL + 4 + t, RL + t), 37) for t in range(4)]
    k, grp = 0, []
    for u in range(4):
        for t in range(4):
            b = tmp[k % len(tmp)]; k += 1
            l0 = max(ends[u] + 6, 0 if VP[0][0] <= b < VU else 64)
            lo = max(l0, 37)
            for d in range(2):
                for r in range(4):
                    fl.append(Flt("v_accvgpr_read_b32 v%d, a%d" % (b + 4 * d + r, 16 * (2 * u + d) + 4 * t + r), l0, 72 + OPT["a3"] - 2 if u == 0 else None))
            for r in range(8):
                fl.append(Flt("v_fma_f32 v%d, v%d, v%d, -v%d" % (b + r, b + r, RL + t, RL + 4 + t) if OPT["ob"] else "v_mul_f32 v%d, v%d, v%d" % (b + r, b + r, RL + t), lo))
            for r in range(4): fl.append(Flt("v_cvt_pk_bf16_f32 v%d, v%d, v%d" % (b + r, b + 2 * r, b + 2 * r + 1), lo))
            grp.append("buffer_store_dwordx4 %s, v%d, %s, s%d offen offset:%d" % (vr(b), V_FR, sr(S_WS), 56 + u, t * 1024) + SC + " ;@o")
            if len(grp) == OPT["ogrp"]:
                fl.append(Flt("\n".join(grp), lo, 72 + OPT["ogap"] - 8))
                grp = []
    for u in range(4): P(4 + u, "s_add_u32 s%d, s%d, %d" % (56 + u, S_OST, u * 4096))
    free = [g for g in range(10, 70) if not pin.get(g)]
    ops = preload(31)
    for n, f in enumerate(ops):
        g = free[(n * len(free)) // len(ops)]
        for y in f(S_T0):
            if y: P(g, y)
    return mf, pin, fl

def redo():
    P = []
    A = P.append
    A("L_k2_redo:")
    A("s_mov_b32 s%d, -1" % S_REDO)
    A("s_waitcnt vmcnt(0) lgkmcnt(0)")
    A("s_barrier")
    for pre, x in kv_dmas("k", 0, "k0") + kv_dmas("k", 1, "s0") + kv_dmas("k", 2, "s0") + kv_dmas("v", 0, "s0") + kv_dmas("v", 1, "s0"):
        P += pre + [x]
    A("v_and_b32 v32, 15, v0")
    A("v_lshlrev_b32 v32, 8, v32")
    A("v_lshrrev_b32 v%d, 4, v0" % V_TMP)
    A("v_lshl_add_u32 v32, v%d, 4, v32" % V_TMP)
    A("s_lshl_b32 s54, s%d, 19" % S_SL)
    A("s_mov_b32 s55, 128")
    for r in range(16): A("v_mov_b32 v%d, 0xff800000" % (56 + r))
    B = []
    A = B.append
    for ks in range(4):
        A("buffer_load_dwordx4 %s, v32, %s, s54 offen offset:%d" % (vr(VKF + 4 * ks), sr(S_K), ks * 64))
    A("s_waitcnt vmcnt(0)")
    for t in range(4): B += qk(VKF, t, "0")
    A("s_nop 7")
    for r in range(16): A("v_max_f32 v%d, v%d, v%d" % (56 + r, 56 + r, VS + r))
    A("s_add_u32 s54, s54, 4096")
    A("s_sub_u32 s55, s55, 1")
    A("s_cmp_lg_u32 s55, 0")
    A("s_cbranch_scc1 L_k2_maxloop")
    T = rowmax(56) + ["s_getpc_b64 s[54:55]", "v_mov_b32 v%d, s54" % (V_TMP + 4), "v_mov_b32 v%d, s55" % (V_TMP + 5), "s_barrier"] + kread(VKF, 0, 0) + ["s_waitcnt lgkmcnt(0)", "s_branch L_k2_attn"]
    return P, B, T

def isize(i):
    lit = any(re.match(r"^(0x[0-9a-f]+|-?\d+|L_.*)$", o) and not (re.match(r"^-?\d+$", o) and -16 <= int(o) <= 64) and
              not (o.startswith("0x") and (int(o, 16) <= 64 or int(o, 16) & 0x7fffffff in (0x3f000000, 0x3f800000, 0x40000000, 0x40800000))) for o in i.ops)
    if i.kind in ("mfma", "lds", "vmem", "smem"): return 8
    if i.kind == "wait" or i.op.startswith("s_cbranch") or i.op in ("s_branch", "s_nop", "s_barrier", "s_endpgm", "s_sleep"): return 4
    if i.kind == "salu": return 8 if lit else 4
    call = i.op.replace("_e64", "")
    if call != i.op: return 8
    short = ("v_exp_f32", "v_rcp_f32", "v_mov_b32", "v_mul_f32", "v_add_f32", "v_sub_f32", "v_max_f32", "v_min_u32", "v_max_u32", "v_and_b32", "v_or_b32", "v_xor_b32",
             "v_lshlrev_b32", "v_lshrrev_b32", "v_ashrrev_i32", "v_add_u32", "v_sub_u32", "v_mul_u32_u24", "v_fmac_f32", "v_readfirstlane_b32", "v_permlane16_swap_b32",
             "v_permlane32_swap_b32", "v_add_co_u32", "v_addc_co_u32", "v_accvgpr_mov_b32", "v_min_f32")
    if call in short or call.startswith("v_cmp"): return 8 if lit else 4
    return 8

def hop_round(r):
    P = ["s_mov_b64 exec, 0"] if OPT["pads"] == "cond" else []
    for w in range(1, 4): P += ["s_cmp_eq_u32 s%d, %d" % (S_WAVE, w), "s_cbranch_scc1 L_hop%d_%d" % (r, w)]
    P += ["s_branch L_hop%d_0" % r, "L_hop%d_ret:" % r]
    return P + (["s_mov_b64 exec, -1"] if OPT["pads"] == "cond" else [])

def add_pads(lines, rounds, extra):
    flat = [x for l in lines for x in l.split("\n")]
    ins = [I(x) for x in flat]
    size = 4 if OPT["pads"] == "cond" else 8
    out, where, pos, want, stop = [], [], None, False, False
    for n, (x, i) in enumerate(zip(flat, ins)):
        out.append(x)
        if i.kind == "none":
            if x.startswith(".p2align"):
                al = 1 << int(x.split()[1])
                old, pos = pos, (0 if al == 4096 else -(-pos // al) * al)
                if old is not None and old >> 12 != pos >> 12: want, since = True, pos & ~4095
            if x == "L_k2_redo:": stop = True
            if x[:-1] in extra:
                where.append(len(out)); out.append(None)
                if pos is not None:
                    old, pos = pos, pos + size
                    if old >> 12 != pos >> 12: want, since = True, pos & ~4095
            continue
        if pos is None: continue
        old, pos = pos, pos + isize(i)
        if old >> 12 != pos >> 12: want, since = True, pos & ~4095
        if want and not stop:
            nx = next(y for y in ins[n + 1:] if y.kind != "none")
            free = i.kind == "mfma" and cost(nx) > 0 and nx.kind != "vmem" or i.kind == "mfma" and nx.kind == "mfma"
            if (free or pos - since >= 40) and i.op != "s_getpc_b64" and not i.op.startswith("s_branch") and i.op != "s_endpgm":
                where.append(len(out)); out.append(None)
                pos += size; want = False
    k = 0
    for r, cnt in enumerate(rounds):
        mine = where[k:k + cnt] if r < len(rounds) - 1 else where[k:]
        k += cnt
        nw = HOP["waves"] if r == 0 and HOP["waves"] else 4
        assert len(mine) >= nw
        for q, o in enumerate(mine):
            nxt = "L_hop%d_%d" % (r, q + nw) if q + nw < len(mine) else "L_hop%d_ret" % r
            lab = "L_hop%d_%d" % (r, q)
            out[o] = [lab + ":", "s_cbranch_execz " + nxt] if OPT["pads"] == "cond" else ["s_branch %s_x" % lab, lab + ":", "s_branch " + nxt, lab + "_x:"]
    return [y for x in out for y in (x if isinstance(x, list) else [x])]

def gen(stamp=False):
    clk = OPT.get("clk", "s_memrealtime")
    st = lambda n: ["%s s[100:101]" % clk, "s_waitcnt lgkmcnt(0)", "s_mov_b32 s%d, s100" % (92 + n)] if stamp else []
    names = OPT.get("stamps", ["start", "gemm0", "gemm1", "tail0", "tail1", "dmath", "sarr", "end"])
    st0 = st
    OPT["st"] = st = lambda nm: st0(names.index(nm)) if nm in names else []
    S = setup(st)
    S += st("p0")
    S += srd(S_WU, 66, WG_BYTES)
    alu = (["CODEPF"] if not OPT["pf0"] else []) + setup2()
    for unit in range(2):
        r = 56 + 2 * unit
        alu += unit_line(r, unit) + ["s_lshl_b32 s%d, s%d, 13" % (r, r), "s_add_u32 s%d, s%d, s%d" % (r, r, S_HST), "s_add_u32 s%d, s%d, 4096" % (r + 1, r)]
    kg = lambda n: [xn_load(ks, rt) for ks in range(3 * n, 3 * n + 3) for rt in range(4)]
    ld = (kg(0) + chunk_dmas(TS[0]) if OPT["xfirst"] else chunk_dmas(TS[0]) + kg(0)) + kg(1)[:OPT["k1n"]]
    for n, (pre, x) in enumerate(ld):
        S += pre + [x]
        if OPT["pads"] and n in OPT["hops"]: S += hop_round(OPT["hops"].index(n))
        if n >= OPT["mix0"]:
            k = OPT["mix"] + (len(alu) > OPT["mix"] and alu[OPT["mix"]].startswith("s_addc"))
            S += alu[:k]; alu = alu[k:]
    S += alu + st("p2")
    if OPT["gb"]:
        S += ["v_mov_b32 v%d, %s" % (V_TMP + r, f32(OPT["gb"])) for r in range(4)] + ["v_mul_f32 v%d, s%d, v%d" % (V_TMP + 7, S_NL2E, V_TMP)]
    S += ["WAITVM c0 lgkmcnt(0)"] + st("p3") + ["s_barrier"] + treads(0, 0, 0) + ["WAITVM x0 lgkmcnt(0)"]
    G = ["; ---- projections: h = sigmoid(xn Wg) * (xn Wu) for 144 columns, q = xn Wq * log2(e) / sqrt(128) for one head (xn resident in registers)"] + \
        st("gemm0") + projection() + st("gemm1") + ["; ---- exponent reference per row: score of key 0 plus a constant (checked at the end, true maximum on the fallback path)"] + first_ref()[2] + st("max")
    if OPT.get("cut"): G += ["v_min_u32 v%d, 1, v0" % V_L0, "v_lshlrev_b32 v%d, 30, v%d" % (V_L0, V_L0), "s_branch L_k2_done"]
    PRE = step_pre()
    S0 = st("pre") + step(0) + st("s0") + ["s_mov_b32 s%d, 7" % S_CNT]
    body = lambda part, end: step(1, part=part) + step(2, part=part) + step(3, part=part) + \
        step(4, ["s_sub_u32 s%d, s%d, 1" % (S_CNT, S_CNT), "s_cmp_lg_u32 s%d, %d" % (S_CNT, end)], part) + ["s_cbranch_scc1 L_k2_loop" + part]
    BA, BB = body("a", 4), body("b", 0)
    T0 = resolve_waits(st("loop") + ["s_waitcnt vmcnt(17)", "v_add_u32 v%d, v%d, v%d" % (V_TMP, V_TMP, V_TMP + 1),
                        "v_add3_u32 v%d, v%d, v%d, v%d" % (V_TMP, V_TMP, V_TMP + 2, V_TMP + 3)] + poll_a()[1] +
                       ["v_readlane_b32 s%d, v%d, %d" % (56 + n, V_TMP, n) for n in range(4)] + guard("a") + step(29) + st("s29") + step(30) + st("s30") + seg_prefix(), once=True)
    def after(prev, cur):
        pv_ = [x for x in prev if I(x).kind == "vmem"]
        return resolve_waits(pv_ + cur, once=True)[len(pv_):]
    FX = [after(seg_flex((ph + 2) % 3), seg_flex(ph)) for ph in range(3)]
    BR = [after(seg_flex((min(v, 2) + 2) % 3), seg_bridge(v)) for v in range(4)]
    T1 = T0 + ["s_cbranch_scc1 L_k2_br3"]
    T0 = T1 + after(seg_flex(1), seg_p3())
    RS = after(seg_bridge(1), seg_rest() + st("tail1") + combine(st))
    jb = lambda ph: ["s_cbranch_scc1 L_k2_br%d" % ph]
    TAIL = T0 + jb(0) + ["L_k2_flex:", "; ---- stages of d assigned by progress among the four workgroups of a tile"] + FX[0] + jb(1) + FX[1] + jb(2) + FX[2] + ["s_cbranch_scc0 L_k2_flex", "L_k2_br0:"] + BR[0] + ["L_k2_rest:", "; ---- s = O W_o, exchange of the partial tiles, out = x + s * silu(d)"] + RS
    SIDE = ["L_k2_br1:"] + BR[1] + ["s_branch L_k2_rest", "L_k2_br2:"] + BR[2] + ["s_branch L_k2_rest", "L_k2_br3:"] + BR[3] + ["s_branch L_k2_rest"]
    D = ["L_k2_done:"]
    if stamp:
        D += st("done") + ["s_waitcnt vmcnt(0)"] + st("end") + ["v_mov_b32 v%d, s%d" % (16 + n, 92 + n) for n in range(8)] + \
             ["s_lshl_b32 s54, s2, 2", "s_add_u32 s54, s54, s%d" % S_WAVE, "s_lshl_b32 s54, s54, 5", "s_add_u32 s54, s54, 0x%x" % STAMP_OFF,
              "buffer_store_dwordx4 v[16:19], v%d, %s, s54 offen" % (V_L0, sr(S_WS)), "buffer_store_dwordx4 v[20:23], v%d, %s, s54 offen offset:16" % (V_L0, sr(S_WS))]
    D += ["L_k2_end:", "s_endpgm"]
    R0, RB, RT = redo()
    R0 = resolve_waits(R0)
    strip = lambda xs: [(x.replace(" v1,", " v7,").replace(" v9,", " v7,") if "in1" in OPT.get("kill", ()) else x).split(";@")[0].rstrip() for x in xs]
    SP = spin("a", [poll_a()[0]], poll_a()[1]) + sum([spin("b%d" % ph, [poll_b()[0]], poll_b()[1]) for ph in range(4)], []) + spin("d", [poll_d()[0]], poll_d()[1]) + spin("r", strip(fetch(1, (2, 1))), arrived((2, 1))) + spin("s", strip(fetch(1, (0,))), arrived((0,)))
    rest = ["; ---- attention steps: P V of 64 keys beside the scores and exponentials of the next 64"] + S0 + ["L_k2_loopa:"] + BA + ["L_k2_loopb:"] + BB + \
           ["L_k2_exit:", "; ---- last attention steps, O epilogue, first stages of d = h W_down"] + TAIL + D + \
           ["; ---- bounded re-polls of the hand-off words"] + SP + ["; ---- other exits of the assigned-stage loop"] + SIDE + \
           ["; ---- fallback: true row maxima over all keys, then the attention pass is repeated"] + R0 + ["L_k2_maxloop:"] + RB + RT
    pf = []
    if OPT["codepf"]:
        pf = ["s_getpc_b64 s[54:55]", "L_k2_pc:", "s_lshr_b32 s56, s2, 3", "s_lshl_b32 s56, s56, 2", "s_add_u32 s56, s56, s%d" % S_WAVE,
              "s_mul_i32 s56, s56, %d" % (6 * 128), "v_min_u32 v2, 5, v0", "v_lshlrev_b32 v2, 7, v2", "v_add_u32 v2, s56, v2",
              "v_min_u32 v2, L_k2_last-L_k2_pc, v2", "v_mov_b32 v3, s55", "v_add_co_u32 v2, vcc, s54, v2", "s_nop 1",
              "v_addc_co_u32 v3, vcc, 0, v3, vcc", "global_load_dword v%d, v[2:3], off" % VG]
        a = V_TMP + 4
        pf += ["s_lshr_b32 s56, s56, 1", "s_add_u32 s56, s56, L_k2_exit-L_k2_pc", "v_min_u32 v%d, 2, v0" % a, "v_lshlrev_b32 v%d, 7, v%d" % (a, a),
               "v_add_u32 v%d, s56, v%d" % (a, a), "v_min_u32 v%d, L_k2_last-L_k2_pc, v%d" % (a, a), "v_mov_b32 v%d, s55" % (a + 1),
               "v_add_co_u32 v%d, vcc, s54, v%d" % (a, a), "s_nop 1", "v_addc_co_u32 v%d, vcc, 0, v%d, vcc" % (a + 1, a + 1)]
    rest = rest[:-1] + ["L_k2_last:"] + rest[-1:]
    k = S.index("CODEPF")
    S = S[:k] + pf + S[k + 1:]
    head = resolve_waits(["; ---- set-up and first loads"] + S + G + ["L_k2_attn:", "; ---- attention: scores and probabilities of the first 64 keys"] + PRE, once=True)
    pre_only = head[head.index("L_k2_attn:"):]
    traces = [head + S0 + BA + BA + BB + BB + TAIL + D,
              TAIL[:TAIL.index("s_cbranch_scc1 L_k2_redo") + 1] + R0 + RB + RB + RT + pre_only + S0, SP,
              T1 + BR[3] + jb(0) + RS, T0 + jb(0) + BR[0] + RS, T0 + jb(0) + FX[0] + jb(1) + BR[1] + jb(0) + RS, T0 + jb(0) + FX[0] + jb(1) + FX[1] + jb(2) + BR[2] + jb(0) + RS,
              T0 + jb(0) + FX[0] + jb(1) + FX[1] + jb(2) + FX[2] + jb(0) + FX[0] + jb(1) + BR[1] + jb(0) + RS]
    lines = head + rest
    if OPT["pads"]: lines = add_pads(lines, OPT["rounds"], OPT["padl"])
    for v in OPT.get("nt", []):
        lines = [x.replace(" offen lds", " offen%s lds" % OPT.get("ntf", " nt")) if x.startswith("buffer_load_dwordx4 v%d," % v) else x for x in lines]
    return dict(name="attn_kernel", lines=lines, traces=traces, grid=256, block=256, lds=163840, vgpr=512, acc=256, sgpr=102)
```

```python
import re
from asmlib import *
from layout import *

SLOT = 36864
V_FR, V_TU, V_TQ, V_TH = 1, 2, 6, 8
V_DG, V_DQ, V_DH, V_DK, V_DV, V_DS, V_TS = 9, 10, 11, 12, 13, 14, 15
VA, VXN, VG, VU, VH = 16, 40, 72, 136, 200
V_KA, V_VA, V_ONE, V_TMP = 232, 236, 244, 248
VS, VNEG, VVF, VKF = 16, 40, 200, 216
VP = [[VG + 32, VG + 48], [VU + 16, VU + 48]]
S_WS, S_WG, S_WU, S_WQ, S_K, S_V, S_WH = 4, 8, 12, 16, 20, 24, 72
S_WAVE, S_SL, S_RB = 32, 33, 34
S_L1K, S_GB, S_QB, S_HB, S_HL, S_XN = 35, 36, 37, 38, 39, 40
S_T0, S_T1, S_HST, S_HHST, S_OST = 41, 42, 43, 44, 45
S_KO, S_VO, S_CNT, S_NL2E, S_QC, S_REDO, S_KV0 = 46, 47, 48, 49, 50, 51, 52
S_T2 = 53
S_GB1 = 83
S_T3 = 46
S_RT = [28, 29, 30, 31, 46, 47, 48, 82, 84]
S_HF = 3
KOFF = lambda j: (((j - 1) // 2) & 1) * 32768 + ((j - 1) & 1) * 16384
VOFF = lambda j: ((j // 2) & 1) * 32768 + (j & 1) * 16384
FLAG_LDS = 163776
SCR = 131072
V_SH, V_M1, V_FL = 56, 36, 8
S_SRC, S_SEN, S_WF = 8, 12, 88
S_PUB = 60
S_SHS, S_SHD, S_SCR, S_SO = 56, 57, 58, 59
S_U, S_AFL, S_DF = 42, 75, 50
SC = " sc1"
SUB = [[6, 7, 8, 9], [0, 1, 2, 13], [14, 15, 3, 4], [5, 10, 11, 12], [4, 5, 10, 11]]
SUBOFF = lambda i: i * 9216 + (16320 if i >= 12 else 0)
AX = 240
S_PG, S_PS = 50, 44
S_X8 = 1
VD, VSA, VXX, VT, XF, VSEL = 16, 88, 232, 248, 40, 76
VPK = [160, 164, 184, 188, 192, 196, 244]
WBUF = [216, 168, 200]
V_RD, V_RD2, V_H2, V_XO, V_L0, V_PL, V_F4, V_B8, V_1 = 2, 3, 4, 5, 7, 8, 9, 10, 11
V_PA = 32
S_X, S_OUT, S_AUX = 8, 12, 16
S_TO = [28, 29, 30, 31, 36, 37, 38, 39, 40]
S_LB = [69, 72, 73, 74]
S_HA, S_H2, S_XO, S_W8, S_BP, S_BC, S_DO = 43, 82, 83, 84, 80, 81, 44
S_IN = 85
OPT = dict(codepf=True, nt=[9, 10, 12, 13, 14], ogap=133, latepoll=0, gb=1.5, ob=5, obx=(), ogrp=1, pgrp=(range(9), range(9)), outpf=0, pads="cond", hops=(None,), hopg=(), rounds=(18, 99), hopt=176, padl=("L_k2_body", "L_k2_br0", "L_k2_br1", "L_k2_br2", "L_k2_br3", "L_k2_rest", "L_r_spin"), lead=0, tie=(16, 16, 16, 0), mmin=1, dsp=28, pf3=240, pf3o=4096, perm16=0, ocap=4, k3=4, k5=0, rotw=1, rotkv=0, kvmix=0, early=0, sgaps=((6, 8, 10),) * 3, xfirst=0, k1n=12, mix=12, mix0=8, pf0=0,
           hspread=((4.3, 66), (8.0, 54)), park=1, a3=48, o0=0, odt=0, cap31=4, codepf2=1, single=0, margin=8, pollahead=96, defer=4, dflag=261, hfmask=3, gain=30, fixed=0, dget=-72, dlat=999, gdend=6, fstep=0, sdel=(60, 30, 16), blocks=((2, 3, 4), (5, 6), (7, 8)), sleep=0, refc=-6.0, snake="qpgtPGT", codepf3=[], outf=" sc1",
           quota=[10, 10, 18, 18, 18, 18, 18, 18, 15, 15, 18, 18, 18, 18, 18])

def snake(n, i, key):
    return list(range(n))[::-1] if i % 2 and key in OPT["snake"] else list(range(n))

def xn(ks, rt):
    return ar(16 * ks + 4 * rt) if ks < 16 else vr(VXN + 16 * (ks - 16) + 4 * rt)
def qf(t, ks):
    return vr((VG, VG + 16, VU, VU + 32)[ks] + 4 * t)
def oacc(dt, t): return ar(16 * dt + 4 * t)
def lacc(t): return ar(128 + 4 * t)

def dma(srd_, voff, sbase, sconst, lbase, lconst, tag, tmp=S_T0):
    return (["s_add_u32 m0, s%d, 0x%x" % (lbase, lconst), "s_add_u32 s%d, s%d, 0x%x" % (tmp, sbase, sconst)],
            "buffer_load_dwordx4 v%d, %s, s%d offen lds ;@%s" % (voff, sr(srd_), tmp, tag))

def chunk_slot(c): return 3 * SLOT if c == 11 else ((c + 1) % 3) * SLOT
TS = []
for c in range(12):
    TS.append(dict(kind="gugugguuqqqq"[c], unit=(c // 4) if c < 8 else (c - 8) // 2, half=(c >> 1 if c < 4 else c & 1), off=chunk_slot(c), tag="c%d" % c))
TS.insert(8, dict(kind="h", unit=0, half=0, off=3 * SLOT, tag="h"))

def chunk_dmas(ts):
    out = []
    for i in range(9):
        if ts["kind"] == "h":
            pre, x = dma(S_WS, V_FR, S_HB, i * 1024, S_HL, 3 * SLOT + i * 1024, "h")
            out.append((pre, x.replace(" offen lds", " offen sc1 lds")))
        else:
            q = ts["kind"] == "q"
            const = ts["half"] * 288 * (8192 if q else 9216) + (ts["unit"] * 128 if q else 0)
            pre = ["s_add_u32 m0, s%d, 0x%x" % (S_RT[i], ts["off"]), "s_mul_i32 s%d, s%d, %d" % (S_T0, S_RT[i], 64 if q else 72),
                   "s_add_u32 s%d, s%d, s%d" % (S_T0, S_T0, S_QB if q else (S_GB, S_GB1)[ts["unit"]])]
            if const: pre.append("s_add_u32 s%d, s%d, 0x%x" % (S_T0, S_T0, const))
            out.append((pre, "buffer_load_dwordx4 v%d, %s, s%d offen lds ;@%s" %
                        (V_DQ if q else V_DG, sr(S_WQ if q else (S_WG if ts["kind"] == "g" else S_WU)), S_T0, ts["tag"])))
    return out

def kv_dmas(which, j, tag):
    out = []
    for n in range(4):
        if which == "k":
            out.append(dma(S_K, V_DK, S_KV0, j * 16384 + n * 4096, S_L1K, KOFF(j) + n * 4096, tag))
        else:
            out.append(dma(S_V, V_DV, S_KV0, j * 16384 + n * 4096, S_L1K, 65536 + VOFF(j) + n * 4096, tag))
    return out

def xn_load(ks, rt):
    so = (S_T1, S_T2)[ks & 1]
    pre = ["s_add_u32 s%d, s%d, 0x%x" % (so, S_XN, ks * 4096)] if rt == 0 else []
    return (pre, "buffer_load_dwordx4 %s, v%d, %s, s%d offen offset:%d ;@x%d" % (xn(ks, rt), V_FR, sr(S_WS), so, rt * 1024, ks // 3))

def unit_line(r, u):
    if not OPT.get("perm", True):
        return ["s_lshl_b32 s%d, s%d, 1" % (r, S_SL), "s_add_u32 s%d, s%d, %d" % (r, r, u)]
    return ["s_add_u32 s%d, s%d, %d" % (r, S_SL, u + 1), "s_and_b32 s%d, s%d, 3" % (r, r), "s_and_b32 s%d, s%d, 28" % (r + 1, S_SL),
            "s_add_u32 s%d, s%d, s%d" % (r, r, r + 1), "s_lshl_b32 s%d, s%d, 1" % (r, r), "s_add_u32 s%d, s%d, %d" % (r, r, u)]

def setup(st):
    P = []
    A = P.append
    A("s_cmp_ge_u32 s2, 256")
    A("s_cbranch_scc1 L_k2_end")
    A("L_k2_entry:")
    P += st("start")
    A("s_load_dwordx2 s[60:61], s[0:1], %d" % ARG["ws"])
    A("s_load_dwordx4 s[64:67], s[0:1], %d" % ARG["wg"])
    A("s_load_dwordx2 s[68:69], s[0:1], %d" % ARG["k"])
    A("s_load_dwordx4 s[72:75], s[0:1], %d" % ARG["v"])
    A("s_load_dwordx2 s[70:71], s[0:1], %d" % ARG["wo"])
    A("s_load_dwordx4 s[76:79], s[0:1], %d" % ARG["wd"])
    A("s_load_dwordx2 s[80:81], s[0:1], %d" % ARG["x"])
    if OPT["pads"]: P += ["s_branch L_k2_body", ".p2align 12", "L_k2_body:"]
    A("v_lshrrev_b32 v15, 6, v0")
    A("v_and_b32 v0, 63, v0")
    A("v_readfirstlane_b32 s%d, v15" % S_WAVE)
    A("v_lshlrev_b32 v%d, 4, v0" % V_FR)
    A("s_and_b32 s54, s2, 7")
    A("s_lshl_b32 s54, s54, 2")
    A("s_bfe_u32 s55, s2, 0x20003")
    A("s_add_u32 s%d, s54, s55" % S_SL)
    A("s_lshr_b32 s54, s2, 5")
    A("s_lshl_b32 s54, s54, 2")
    A("s_add_u32 s%d, s54, s%d" % (S_RB, S_WAVE))
    A("s_lshl_b32 s%d, s%d, 10" % (S_L1K, S_WAVE))
    A("s_mul_i32 s%d, s%d, %d" % (S_XN, S_RB, 18 * 4096))
    A("s_lshl_b32 s%d, s%d, 8" % (S_QB, S_SL))
    for u_, r_ in ((0, S_GB), (1, S_GB1)):
        P += unit_line(56, u_)
        A("s_lshl_b32 s%d, s56, 7" % r_)
    A("s_lshr_b32 s54, s2, 5")
    A("s_lshl_b32 s54, s54, 12")
    A("s_and_b32 s55, s2, %d" % OPT["hfmask"])
    A("s_bcnt1_i32_b32 s55, s55")
    A("s_and_b32 s%d, s55, 1" % S_HF)
    A("s_mul_i32 s54, s54, %d" % OPT["rotw"])
    A("s_add_u32 s%d, s54, s%d" % (S_RT[0], S_L1K))
    for i in range(1, 9):
        A("s_add_u32 s54, s%d, %d" % (S_RT[0], i * 4096))
        A("s_sub_u32 s55, s54, %d" % SLOT)
        A("s_min_u32 s%d, s54, s55" % S_RT[i])
    A("v_lshrrev_b32 v15, 3, v0")
    A("v_bfe_u32 v%d, v0, 4, 1" % V_TMP)
    A("s_and_b32 s54, s%d, 1" % S_WAVE)
    A("s_lshl_b32 s54, s54, 1")
    A("v_or_b32 v%d, s54, v%d" % (V_TMP, V_TMP))
    A("v_lshlrev_b32 v%d, 1, v%d" % (V_TMP, V_TMP))
    A("v_and_b32 v%d, 7, v0" % (V_TMP + 1))
    A("v_xor_b32 v%d, v%d, v%d" % (V_TMP, V_TMP, V_TMP + 1))
    A("v_lshlrev_b32 v%d, 4, v%d" % (V_TMP, V_TMP))
    A("v_mul_u32_u24 v%d, 9216, v15" % V_DG)
    A("v_add_u32 v%d, v%d, v%d" % (V_DG, V_DG, V_TMP))
    A("v_lshl_add_u32 v%d, v15, 13, v%d" % (V_DQ, V_TMP))
    if OPT["pf0"]: A("CODEPF")
    if OPT["pads"] and -1 in OPT["hops"]: P += hop_round(0)
    A("s_waitcnt lgkmcnt(0)")
    P += srd(S_WS, 60, WS_BYTES) + srd(S_WG, 64, WG_BYTES)
    return P

def setup2():
    P = []
    A = P.append
    P += srd(S_WQ, 74, WQ_BYTES) + srd(S_K, 68, KV_BYTES) + srd(S_V, 72, KV_BYTES)
    t0, t1, t2, t3 = V_TMP, V_TMP + 1, V_TMP + 2, V_TMP + 3
    A("v_lshrrev_b32 v%d, 4, v0" % t0)
    A("v_bfe_u32 v%d, v0, 2, 2" % t1)
    A("v_lshl_add_u32 v15, v%d, 3, v%d" % (t0, t1))
    A("v_lshlrev_b32 v15, 7, v15")
    A("v_add_u32 v15, %d, v15" % TS[0]["off"])
    A("v_bfe_u32 v%d, v0, 3, 2" % t2)
    A("v_and_b32 v%d, 3, v0" % t3)
    for j in range(4):
        A("v_xor_b32 v%d, %d, v%d" % (V_TU + j, j, t2))
        A("v_lshl_add_u32 v%d, v%d, 5, v15" % (V_TU + j, V_TU + j))
        A("v_lshl_add_u32 v%d, v%d, 3, v%d" % (V_TU + j, t3, V_TU + j))
    A("v_add_u32 v15, %d, v15" % ((TS[9]["off"] - TS[0]["off"]) & 0xffffffff))
    A("v_lshlrev_b32 v%d, 1, v%d" % (t2, t2))
    for m in range(2):
        A("v_or_b32 v%d, %d, v%d" % (V_TQ + m, 4 * m, t3))
        A("v_xor_b32 v%d, v%d, v%d" % (V_TQ + m, V_TQ + m, t2))
        A("v_lshl_add_u32 v%d, v%d, 4, v15" % (V_TQ + m, V_TQ + m))
    A("v_lshlrev_b32 v%d, 3, v0" % V_TH)
    A("v_add_u32 v%d, %d, v%d" % (V_TH, 3 * SLOT, V_TH))
    A("s_mul_i32 s%d, s%d, 9216" % (S_HL, S_WAVE))
    A("s_mul_i32 s54, s%d, %d" % (S_SL, SLOT))
    A("s_add_u32 s54, s54, s%d" % S_HL)
    A("s_add_u32 s%d, s54, 0x%x" % (S_HB, HW_OFF))
    A("s_lshl_b32 s54, s%d, 19" % S_RB)
    A("s_add_u32 s%d, s54, 0x%x" % (S_HST, H_OFF))
    A("s_lshl_b32 s55, s%d, 14" % S_SL)
    A("s_add_u32 s54, s54, s55")
    A("s_add_u32 s%d, s54, 0x%x" % (S_OST, O_OFF))
    A("s_lshr_b32 s54, s54, 3")
    A("s_add_u32 s%d, s54, 0x%x" % (S_HHST, H2_OFF - 3 * SLOT))
    A("s_mov_b32 s%d, %s" % (S_NL2E, f32(-LOG2E * 2.0 ** SCALE["XE"])))
    A("s_mov_b32 s%d, %s" % (S_QC, f32(LOG2E * 128 ** -0.5 * 2.0 ** SCALE["XE"])))
    A("s_mov_b32 s%d, 0" % S_REDO)
    A("s_mov_b32 s0, 0x07060302")
    A("s_lshl_b32 s54, s%d, 19" % S_SL)
    A("s_add_u32 s%d, s54, s%d" % (S_KV0, S_L1K))
    A("s_lshl_b32 s54, s%d, 2" % S_WAVE)
    A("v_add_u32 v15, s54, v%d" % t0)
    A("v_and_b32 v%d, 15, v0" % t2)
    A("v_xor_b32 v%d, v%d, v15" % (V_DK, t2))
    A("v_lshlrev_b32 v%d, 4, v%d" % (V_DK, V_DK))
    A("v_lshl_add_u32 v%d, v%d, 8, v%d" % (V_DK, t0, V_DK))
    A("v_and_b32 v15, 7, v15")
    A("v_lshlrev_b32 v15, 1, v15")
    A("v_xor_b32 v%d, v%d, v15" % (V_DV, t2))
    A("v_lshlrev_b32 v%d, 4, v%d" % (V_DV, V_DV))
    A("v_lshl_add_u32 v%d, v%d, 8, v%d" % (V_DV, t0, V_DV))
    for ks in range(4):
        A("v_or_b32 v15, %d, v%d" % (4 * ks, t0))
        A("v_xor_b32 v15, v15, v%d" % t2)
        A("v_lshlrev_b32 v15, 4, v15")
        A("v_lshl_add_u32 v%d, v%d, 8, v15" % (V_KA + ks, t2))
    A("v_lshrrev_b32 v%d, 2, v0" % t1)
    A("v_and_b32 v%d, 7, v%d" % (t2, t1))
    A("v_lshlrev_b32 v%d, 8, v%d" % (t1, t1))
    A("v_lshl_add_u32 v%d, v%d, 3, v%d" % (t1, t3, t1))
    A("v_add_u32 v%d, 0x10000, v%d" % (t1, t1))
    for dt in range(8):
        A("v_xor_b32 v15, %d, v%d" % (dt, t2))
        A("v_lshl_add_u32 v%d, v15, 5, v%d" % (V_VA + dt, t1))
    for r in range(4):
        A("v_mov_b32 v%d, 0x%x" % (V_ONE + r, (0x3f80 - 0x80 * SCALE["XE"]) * 0x10001))
    A("s_add_u32 s%d, s60, 0x%x" % (S_WF, WF_OFF))
    A("s_addc_u32 s%d, s61, 0" % (S_WF + 1))
    A("s_and_b32 s%d, s%d, 0xffff" % (S_WF + 1, S_WF + 1))
    A("s_mov_b32 s%d, 0x%x" % (S_WF + 2, 272 * SLOT))
    A("s_mov_b32 s%d, 0x20000" % (S_WF + 3))
    A("v_lshrrev_b32 v%d, 3, v0" % t0)
    A("v_mul_u32_u24 v%d, 1152, v%d" % (t0, t0))
    A("v_and_b32 v%d, 7, v0" % t1)
    A("v_lshl_add_u32 v%d, v%d, 4, v%d" % (V_DS, t1, t0))
    A("s_lshl_b32 s54, s%d, 12" % S_WAVE)
    A("s_add_u32 s54, s54, %d" % SCR)
    A("v_lshrrev_b32 v%d, 2, v0" % t0)
    A("v_lshlrev_b32 v%d, 7, v%d" % (t0, t0))
    A("v_lshl_add_u32 v%d, v%d, 3, v%d" % (t0, t3, t0))
    A("v_add_u32 v%d, s54, v%d" % (V_TS, t0))
    P += slab_base(54) + rot(55)
    A("s_bfe_u32 s56, s2, 0x20001")
    A("s_mul_i32 s56, s56, %d" % (18 * 1024))
    A("s_add_u32 s54, s54, s56")
    for c in range(2, 9):
        P += slot_tile(56, 55, c)
        A("s_lshl_b32 s56, s56, 11")
        A("s_add_u32 s%d, s54, s56" % (S_PUB + c))
    return P

def slab_base(r):
    return ["s_lshr_b32 s%d, s2, 3" % r, "s_lshl_b32 s%d, s%d, 1" % (r, r),
            "s_add_u32 s%d, s%d, s%d" % (r, r, S_HF), "s_lshl_b32 s%d, s%d, 2" % (r, r), "s_add_u32 s%d, s%d, s%d" % (r, r, S_WAVE),
            "s_mul_i32 s%d, s%d, %d" % (r, r, 72 * 1024), "s_add_u32 s%d, s%d, 0x%x" % (r, r, PART_OFF)]

def rot(r):
    return ["s_and_b32 s%d, s2, 6" % r]

def slot_tile(d, r, c):
    if c == 2: return ["s_mov_b32 s%d, 8" % d]
    return ["s_add_u32 s%d, s%d, %d" % (d, r, c if c < 2 else c - 1), "s_and_b32 s%d, s%d, 7" % (d, d)]

def relayout():
    sc = [["s_mul_i32 s55, s%d, 7282" % S_U], ["s_lshr_b32 s55, s55, 16"],
          ["s_lshl_b32 s%d, s%d, 12" % (S_SHD, S_U)], ["s_mul_i32 s%d, s55, 9" % S_SHS], ["s_sub_u32 s54, s%d, s%d" % (S_U, S_SHS)],
          ["s_lshl_b32 s54, s54, 7"],
          ["s_cmp_lt_u32 s55, 144", "s_cselect_b32 s%d, s76, s70" % S_SRC, "s_cselect_b32 s%d, s77, s71" % (S_SRC + 1)],
          ["s_cmp_lt_u32 s55, 144", "s_cselect_b32 s%d, 0, 144" % S_SHS, "s_cselect_b32 s%d, 9, 8" % (S_SRC + 2)],
          ["s_mul_i32 s%d, s%d, %d" % (S_SRC + 2, S_SRC + 2, 512 * 1152)],
          ["s_and_b32 s%d, s%d, 0xffff" % (S_SRC + 1, S_SRC + 1)],
          ["s_sub_u32 s55, s55, s%d" % S_SHS], ["s_mul_i32 s55, s55, %d" % SLOT], ["s_add_u32 s%d, s55, s54" % S_SHS],
          ["s_add_u32 s%d, s%d, 1024" % (S_U, S_U)]]
    dm = [dma(S_SRC, V_DS, S_SHS, n * 9216, S_SCR, n * 1024, "sh") for n in range(4)]
    rd = [["ds_read_b64_tr_b16 %s, v%d offset:%d" % (vr(V_SH + 4 * q + 2 * h, 2), V_TS, q * 32 + h * 2048) for h in range(2)] for q in range(4)]
    stv = ["buffer_store_dwordx4 %s, v%d, %s, s%d offen offset:%d%s" % (vr(V_SH + 4 * q), V_FR, sr(S_WF), S_SHD, q * 1024, SC) for q in range(4)]
    mk = ["buffer_store_dwordx4 %s, v%d, %s, s%d offen offset:%d%s" % (vr(V_M1), v, sr(S_WS), S_SO, o, SC) for v, o in ((V_FR, 1024), (V_FR, 3072), (V_F4, 1024))]
    return sc, dm, rd, stv, mk

def groups(tau):
    ts = TS[tau]
    if ts["kind"] == "h":
        return [(t, 3 * kg) for t in range(2) for kg in snake(6, t, "G")]
    if tau in (0, 2):
        return [(t, 9 * ts["half"] + 3 * kg) for kg in range(3) for t in snake(4, kg, "G")]
    return [(t, 9 * ts["half"] + 3 * kg) for t in range(4) for kg in snake(3, t, "G")]

BLK = {("g", 0): [VG, VG + 16, VG + 32, VG + 48], ("g", 1): [VH, VH + 16, VG, VG + 16], ("h", 0): [VG + 32, VG + 48],
       ("q", 0): [VG, VH, VG + 16, VH + 16]}
for key in (("u", 0), ("u", 1), ("q", 1)): BLK[key] = [VU, VU + 16, VU + 32, VU + 48]

def treads(tau, grp, buf):
    ts = TS[tau]
    t, k0 = groups(tau)[grp]
    out = []
    for kk in range(3):
        for h in range(2):
            d = vr(VA + 12 * buf + 4 * kk + 2 * h, 2)
            if ts["kind"] == "h":
                out.append("ds_read_b64_tr_b16 %s, v%d offset:%d" % (d, V_TH, t * 18432 + (k0 + kk) * 1024 + h * 512))
            else:
                o = (k0 + kk - 9 * ts["half"]) * 4096 + h * 512
                if ts["kind"] == "q":
                    out.append("ds_read_b64_tr_b16 %s, v%d offset:%d" % (d, V_TQ + t // 2, o + (t & 1) * 8))
                else:
                    out.append("ds_read_b64_tr_b16 %s, v%d offset:%d" % (d, V_TU + t, o))
    return out

def projection():
    mf, pin = [], {}
    done, first, blocked = {}, {}, set()
    XW = {(0, 3): 1, (0, 7): 2, (1, 11): 3, (2, 3): 4, (2, 7): 5}
    P = lambda g, x: pin.setdefault(g, []).append(x)
    for tau in range(13):
        blk = BLK[(TS[tau]["kind"], TS[tau]["unit"])]
        for gi, (t, k0) in enumerate(groups(tau)):
            buf = (12 * tau + gi) & 1
            g0 = len(mf)
            for c, rt in enumerate(snake(4, gi, "G")):
                d = vr(blk[t] + 4 * rt)
                key = (TS[tau]["kind"], TS[tau]["unit"], t, rt)
                for kk in snake(3, c, "g"):
                    if key not in done: first.setdefault(blk[t] + 4 * rt, []).append(len(mf))
                    mf.append(mfma(d, vr(VA + 12 * buf + 4 * kk), xn(k0 + kk, rt), d if key in done else (vr(V_TMP) if OPT["gb"] and (key[0] == "g" or key[0] == "h" and t == 0) else "0")))
                    done[key] = len(mf) - 1
            nt, ng = (tau, gi + 1) if gi < 11 else (tau + 1, 0)
            if nt < 13:
                for i, x in enumerate(treads(nt, ng, buf ^ 1)): P(g0 + i, x)
            w = "s_waitcnt lgkmcnt(0)"
            if (tau, gi) in XW: w = "WAITVM x%d lgkmcnt(0)" % XW[(tau, gi)]
            if gi == 10 and tau < 12:
                tags = TS[tau + 1]["tag"] + (",k0" if tau == 11 else "")
                P(g0 + 11, "WAITVM %s lgkmcnt(0)" % tags)
                P(g0 + 11, "s_barrier")
            elif nt < 13:
                P(g0 + 11, w)
        ts = TS[tau]
        nxt = [x for x in TS[tau + 1:] if (x["kind"] == "q") == (ts["kind"] == "q") and x["kind"] != "h"]
        if ts["kind"] != "h" and nxt:
            delta = (nxt[0]["off"] - ts["off"]) & 0xffffffff
            regs = {}
            for gi, (t, k0) in enumerate(groups(tau)):
                regs[V_TQ + t // 2 if ts["kind"] == "q" else V_TU + t] = gi
            for r, gi in regs.items():
                P(144 * tau + 12 * (gi - 1) + 6, "v_add_u32 v%d, 0x%x, v%d" % (r, delta, r))
    plan = {t: [] for t in range(13)}
    order = [0, 1, 2, 3, 4, 5, 6, 7, 9, 10, 11, 12]
    hd = chunk_dmas(TS[8])
    kg = lambda n: [xn_load(ks, rt) for ks in range(3 * n, 3 * n + 3) for rt in range(4)]
    plan[0] = kg(1)[OPT["k1n"]:] + kg(2) + chunk_dmas(TS[1]) + kg(3)[:OPT["k3"]]
    plan[1] = chunk_dmas(TS[2]) + kg(3)[OPT["k3"]:] + kg(4) + kg(5)[:OPT["k5"]]
    plan[2] = kg(5)[OPT["k5"]:] + chunk_dmas(TS[3]) + chunk_dmas(TS[4])
    for tau in range(3, 10): plan[tau] = chunk_dmas(TS[tau + 2 if tau < 7 else tau + 3])
    plan[5] += chunk_dmas(TS[8])[:3]
    plan[6] = chunk_dmas(TS[8])[3:] + chunk_dmas(TS[9])[:6]
    plan[7] = chunk_dmas(TS[9])[6:] + plan[7]
    plan[10] = kv_dmas("k", 1, "s0") + kv_dmas("k", 2, "s0")
    plan[11] = kv_dmas("k", 0, "k0")
    plan[12] = kv_dmas("v", 0, "s0") + kv_dmas("v", 1, "s0")
    for tau in range(13):
        ops = plan[tau]
        if tau < 3:
            free = [g for g in range(144 * tau, 144 * tau + 144) if g % 12 in OPT["sgaps"][tau] and not pin.get(g)]
            for g, (pre, x) in zip(free, ops):
                for y in pre: P(g, y)
                P(g, x)
            assert len(ops) <= len(free)
        else:
            for i, (pre, x) in enumerate(ops):
                g = 144 * tau + 12 * i + 8 - OPT["lead"]
                assert i < 12
                for k, y in enumerate(pre): P(g - 7 + k, y)
                P(g, x)
    sc, va = tail_setup()
    g = 144 * 10
    for x in sc:
        while g % 12 > 5 or any(cost(I(y)) == 0 for y in pin.get(g, [])): g += 1
        P(g, x)
    assert g < 144 * 13 - 12, g
    for k, x in enumerate(va): P(144 * 12 + 72 + 12 * k, x)
    P(144 * 12 + 60, "v_lshrrev_b32 v%d, 4, v0" % V_TMP)
    P(144 * 12 + 61, "v_lshlrev_b32 v%d, 4, v%d" % (V_TMP, V_TMP))
    for ks in range(4):
        P(144 * 12 + 102 + ks, "ds_read_b128 %s, v%d offset:%d" % (vr(VVF + 4 * ks), V_TMP, KOFF(0) + 64 * ks))
    for r in range(16):
        P(144 * 12 + (114, 115, 116, 117, 118, 126, 127, 128)[r // 2], ("v_xor_b32 v%d, 0x80008000, v%d" if not OPT.get("cref") else "v_and_b32 v%d, 0x80008000, v%d") % (VVF + r, VVF + r))
    for r in range(4): P(144 * 12 + 129 + r // 2, "v_mov_b32 v%d, %s" % (V_TMP + r, f32(OPT["refc"])))
    for ks in range(4):
        P(144 * 12 + 132 + ks, "ds_read_b128 %s, v%d offset:%d" % (vr(VKF + 4 * ks), V_KA + ks, KOFF(0)))
    fl = []
    LAT = 6
    END = 144 * 12
    def reuse(reg, after):
        return min([g for g in first[reg] if g > after] + [END + 4]) - 4
    def add(text, lo, hi): fl.append(Flt(text, lo, hi))
    def glu(gkey, gt, ukey, ut, rt, dst):
        gb, ub = BLK[gkey][gt] + 4 * rt, BLK[ukey][ut] + 4 * rt
        lo, lu = done[gkey + (gt, rt)] + LAT, done[ukey + (ut, rt)] + LAT
        hu = min(reuse(ub, lu), reuse(dst & ~3, lu))
        hi = min(reuse(gb, lo), hu)
        first_op = "v_fma_f32 v%%d, s%d, v%%d, -v%d" % (S_NL2E, V_TMP + 7) if OPT["gb"] else "v_mul_f32 v%%d, s%d, v%%d" % S_NL2E
        for op in (first_op, "v_exp_f32 v%d, v%d", "v_add_f32 v%d, 1.0, v%d", "v_rcp_f32 v%d, v%d"):
            for r in range(4): add(op % (gb + r, gb + r), lo, hi)
        for r in range(4): add("v_mul_f32 v%d, v%d, v%d" % (ub + r, ub + r, gb + r), lu, hi)
        for h in range(2): add("v_cvt_pk_bf16_f32 v%d, v%d, v%d" % (dst + h, ub + 2 * h, ub + 2 * h + 1), lu, hu)
        return lu
    for unit in range(2):
        for t in range(4):
            for rt in range(4):
                d = VU + 16 * (t & 2) + 4 * rt if unit or t < 2 or not OPT["park"] else VG + 32 + 4 * rt
                lu = glu(("g", unit), t, ("u", unit), t, rt, d + 2 * (t & 1))
                if t & 1:
                    t0_, dt_ = OPT["hspread"][unit]
                    add("buffer_store_dwordx4 %s, v%d, %s, s%d offen offset:%d" % (vr(d), V_FR, sr(S_WS), 56 + 2 * unit + t // 2, rt * 1024) + SC,
                        max(lu, int(144 * t0_) + (2 * (t & 2) + rt) * dt_), reuse(d, lu))
    for rt in range(4):
        d = BLK[("h", 0)][0] + 4 * rt
        lu = glu(("h", 0), 0, ("h", 0), 1, rt, d)
        add("buffer_store_dwordx2 %s, v%d, %s, s%d offen offset:%d" % (vr(d, 2), V_TH, sr(S_WS), S_HHST, rt * 512) + SC, max(lu, 144 * 11 + 30 * rt), END)
    for unit in range(2):
        blk = BLK[("q", unit)]
        for t in range(4):
            for rt in range(4):
                lo = done[("q", unit, t, rt)] + LAT
                hi = END + 96 if unit == 0 else (END + 140 if t < 2 else None)
                r0 = blk[t] + 4 * rt
                for r in range(4): add("v_mul_f32 v%d, s%d, v%d" % (r0 + r, S_QC, r0 + r), lo, hi)
                d = blk[t & 2] + 4 * rt + 2 * (t & 1)
                for h in range(2): add("v_cvt_pk_bf16_f32 v%d, v%d, v%d" % (d + h, r0 + 2 * h, r0 + 2 * h + 1), lo, hi)
    fl.sort(key=lambda f: f.hi if f.hi is not None else 1 << 30)
    head, xl, _ = first_ref()
    P(len(mf), xl[0]); P(len(mf) + 1, xl[1])
    mf += head
    out, left = schedule(mf, pin, fl, window=64, blocked=blocked)
    out += [f.i.text for f in left]
    if OPT.get("hflag") is not None: out = [x.replace(SC, OPT["hflag"]) if x.startswith("buffer_store") else x for x in out]
    for pat in OPT.get("gdrop", []): out = [x for x in out if not x.startswith(pat)]
    idx = [i for i, x in enumerate(out) if x.startswith("v_mfma")]
    for g in range(len(idx) - 1, 0, -1):
        ins = OPT["st"]("t%d" % (g // 144)) if g % 144 == 0 else []
        if OPT["pads"] and g in OPT["hopg"]: ins = ins + hop_round(len(OPT["hops"]) + OPT["hopg"].index(g))
        out[idx[g]:idx[g]] = ins
    return out

def kread(buf, j, kt):
    return ["ds_read_b128 %s, v%d offset:%d" % (vr(buf + 4 * ks), V_KA + ks, KOFF(j) + kt * 4096) for ks in range(4)]
def vread(buf, j, u):
    return ["ds_read_b64_tr_b16 %s, v%d offset:%d" % (vr(buf + 8 * d + 4 * b + 2 * h, 2), V_VA + 2 * u + d, VOFF(j) + b * 8192 + h * 4096)
            for d in range(2) for b in range(2) for h in range(2)]
def E(t, r): return "v_exp_f32 v%d, v%d" % (VS + 4 * t + r, VS + 4 * t + r)
def C(par, kt, t, h):
    if OPT["perm16"]:
        return "v_perm_b32 v%d, v%d, v%d, s0" % (VP[par][kt >> 1] + 4 * t + 2 * (kt & 1) + h, VS + 4 * t + 2 * h + 1, VS + 4 * t + 2 * h)
    return "v_cvt_pk_bf16_f32 v%d, v%d, v%d" % (VP[par][kt >> 1] + 4 * t + 2 * (kt & 1) + h, VS + 4 * t + 2 * h, VS + 4 * t + 2 * h + 1)
def qk(kbuf, t, c0):
    d = vr(VS + 4 * t)
    return [mfma(d, vr(kbuf + 4 * ks), qf(t, ks), c0 if n == 0 else d) for n, ks in enumerate(snake(4, t, "q"))]
def pv(vbuf, par, u, init):
    ts = [(u + k) % 4 for k in range(4)] if "P" in OPT["snake"] else list(range(4))
    return [mfma(oacc(2 * u + d, ts[k]), vr(vbuf + 8 * d + 4 * b), vr(VP[par][b] + 4 * ts[k]), (ar(252) if OPT["ob"] else "0") if init and n == 0 else oacc(2 * u + d, ts[k]))
            for d in range(2) for c, k in enumerate(snake(4, d, "P")) for n, b in enumerate(snake(2, c + 1, "p"))]
def psum(par, t, init):
    return [mfma(lacc(t), vr(V_ONE), vr(VP[par][b] + 4 * t), "0" if init and n == 0 else lacc(t)) for n, b in enumerate(snake(2, 1, "P"))]

def rowmax(src):
    P = []
    A = P.append
    for t in range(4):
        A("v_max3_f32 v%d, v%d, v%d, v%d" % (V_TMP + t, src + 4 * t, src + 4 * t + 1, src + 4 * t + 2))
    for t in range(4):
        A("v_max_f32 v%d, v%d, v%d" % (V_TMP + t, V_TMP + t, src + 4 * t + 3))
    for op in ("v_permlane32_swap_b32", "v_permlane16_swap_b32"):
        for t in range(4): A("v_mov_b32 v%d, v%d" % (32 + t, V_TMP + t))
        A("s_nop 1")
        for t in range(4): A("%s v%d, v%d" % (op, V_TMP + t, 32 + t))
        for t in range(4): A("v_max_f32 v%d, v%d, v%d" % (V_TMP + t, V_TMP + t, 32 + t))
    for t in range(4):
        for r in range(4): A("v_sub_f32 v%d, 0, v%d" % (VNEG + 4 * t + r, V_TMP + t))
    return P

def first_ref():
    xl = ["buffer_load_dwordx2 %s, v%d, %s, s%d offen offset:%d" % (ar(AX + 4 * c + 2 * rt, 2), V_XO + rt, sr(S_X), S_XO if c < 2 else S_X8, (c & 1) * 32)
          for rt in range(2) for c in range(3)]
    m = lambda t, ks, c: mfma(vr(VNEG + 4 * t), vr(VVF + 4 * ks), qf(t, ks), c or vr(VNEG + 4 * t))
    head = [m(t, ks, vr(V_TMP) if n == 0 else None) for t in range(4) for n, ks in enumerate(snake(3, t, "q"))]
    P = ["s_waitcnt lgkmcnt(0)", "s_nop 0"]
    for t in range(4): P += [m(t, 3, None), xl[2 + t]]
    return head, xl[:2], P

def step_pre():
    P = ["s_add_u32 s%d, s%d, %d" % (S_KO, S_KV0, 3 * 16384), "s_add_u32 s%d, s%d, %d" % (S_VO, S_KV0, 2 * 16384)]
    for n in range(16):
        kt, t = n >> 2, n & 3
        kbuf = VKF if kt % 2 == 0 else VVF
        ms = qk(kbuf, t, vr(VNEG + 4 * t))
        rd = []
        if t == 0:
            if kt > 0: P.append("s_waitcnt lgkmcnt(0)")
            if kt == 3: P += ["WAITVM s0", "s_barrier"] + (["ds_read_b128 v[32:35], v36"] if OPT["ob"] else [])
            rd = kread(VVF if kt % 2 == 0 else VKF, 0, kt + 1) if kt < 3 else kread(VKF, 1, 0)
        for i, m in enumerate(ms):
            P.append(m)
            if rd: P.append(rd[i])
            if n >= 2: P.append(E((n - 2) & 3, i))
            if n == 1: P.append(("v_lshrrev_b32 v36, 4, v0", "v_lshlrev_b32 v36, 4, v36", "v_add_u32 v36, 0x10000, v36", "s_nop 0")[i])
        if n >= 2:
            P += [C(0, (n - 2) >> 2, (n - 2) & 3, 0), C(0, (n - 2) >> 2, (n - 2) & 3, 1)]
    if not OPT["ob"]:
        return P + [E(2, r) for r in range(4)] + [C(0, 3, 2, 0), C(0, 3, 2, 1), "s_nop 1", E(3, 0), E(3, 1), "s_waitcnt lgkmcnt(0)"]
    P += ["s_waitcnt lgkmcnt(0)"] + ["v_and_b32 v%d, 0x7fff7fff, v%d" % (32 + r, 32 + r) for r in range(4)]
    P += ["v_add_u32 v%d, 0x%x, v%d" % (32 + r, OPT["ob"] * 0x800080, 32 + r) for r in range(4)] + [E(2, 0), E(2, 1)]
    rest = [[E(2, 2)], [E(2, 3)], [C(0, 3, 2, 0), C(0, 3, 2, 1)], [E(3, 0), E(3, 1)]]
    for t in range(4): P += [mfma(vr(V_SH + 4 * t), vr(32), vr(VP[0][0] + 4 * t), "0")] + rest[t]
    return P

def step(i, tail_scalars=(), part=""):
    par = i & 1
    mf, pin, fl = [], {}, []
    P = lambda g, x: pin.setdefault(g, []).append(x)
    for u in range(4):
        g0 = 34 * u
        for t in range(4): mf += qk(VKF, t, vr(VNEG + 4 * t))
        mf += pv(VVF, par, u, i == 0) + psum(par, u, i == 0)
        ppar, pkt = (par, 3) if u == 0 else (par ^ 1, u - 1)
        tr = vread(VVF, i, u)
        for g, k in zip(OPT.get('tpos', (0, 2, 2, 4, 6, 6, 8, 8)), range(8)): P(g0 + g, tr[k])
        P(g0 + 0, C(ppar, pkt, 3, 0)); P(g0 + 1, E(3, 2)); P(g0 + 3, E(3, 3)); P(g0 + 4, C(ppar, pkt, 3, 1))
        for e in range(14): P(g0 + 7 + 2 * e, E(e >> 2, e & 3))
        for c in range(6): P(g0 + 10 + 4 * c, C(par ^ 1, u, c >> 1, c & 1))
        if u == 3 and par == 1:
            P(g0 + 15, "s_waitcnt vmcnt(%d) lgkmcnt(0)" % {(1, 'a'): 7, (3, 'a'): 4, (1, 'b'): 1, (3, 'b'): 6, (29, ''): 17}[(i, part)]); P(g0 + 15, "s_barrier")
        elif u == 3 and i == 30:
            P(g0 + 15, "s_waitcnt lgkmcnt(0)"); P(g0 + 15, "s_barrier")
        else:
            P(g0 + 15, "s_waitcnt lgkmcnt(0)")
        if i == 30 and u == 3:
            tr = vread(VKF, 31, 0)
            for g, k in zip((16, 16, 18, 20, 20, 22, 24, 24), range(8)): P(g0 + g, tr[k])
        else:
            rd = kread(VKF, i + 1, u + 1) if u < 3 else kread(VKF, i + 2, 0)
            for g, k in zip((16, 18, 20, 22), range(4)): P(g0 + g, rd[k])
        P(g0 + 33, "s_waitcnt lgkmcnt(0)")
        if par == 0 and i < 30:
            for n, g in enumerate(OPT.get('gpos', (5, 12, 24, 28))):
                k = 4 * u + n
                isk, pc = (k % 2 == 0, k // 2) if OPT["kvmix"] else (k < 8, k & 7)
                so = S_KO if isk else S_VO
                P(g0 + g - 2, "s_add_u32 m0, s%d, 0x%x" % (S_L1K, (KOFF(i + 3) if isk else 65536 + VOFF(i + 2)) + pc * 4096))
                P(g0 + g - 1, "s_add_u32 s%d, s%d, %d" % (S_T0, so, pc * 4096))
                P(g0 + g, "buffer_load_dwordx4 v%d, %s, s%d offen lds" % (V_DK if isk else V_DV, sr(S_K if isk else S_V), S_T0))
            if u == 3:
                P(g0 + 29, "s_add_u32 s%d, s%d, 32768" % (S_KO, S_KO)); P(g0 + 30, "s_add_u32 s%d, s%d, 32768" % (S_VO, S_VO))
    for k, x in enumerate(tail_scalars): P(102 + 31 + k, x)
    if i == 0:
        sc, va = loop_setup()
        fl = [Flt(x) for x in va]
        if OPT["ob"]:
            z = V_SH
            ops = ["v_min3_f32 v%d, v%d, v%d, v%d" % (z, z, z + 4, z + 8), "v_min_f32 v%d, v%d, v%d" % (z, z, z + 12)]
            for sh in OPT["obx"]: ops += ["s_nop 1\nv_min_f32_dpp v%d, v%d, v%d row_ror:%d row_mask:0xf bank_mask:0xf" % (z, z, z, sh)]
            ops += ["v_and_b32 v%d, 0x7f800000, v%d" % (z, z), "v_mul_f32 v%d, %s, v%d" % (z, f32(1.5), z)] + ["v_accvgpr_write_b32 a%d, v%d" % (252 + r, z) for r in range(4)]
            for g, x in zip((3, 4, 6, 7, 8, 9, 10, 11, 13, 13, 14, 14)[-len(ops):], ops): P(g, x)
        g = 0
        for x in sc:
            while any(cost(I(y)) == 0 or I(y).kind == "vmem" for y in pin.get(g, [])): g += 1
            P(g, x)
        assert g < 136
    if i == 1 and part == 'a':
        sc, dm, rd, stv, mk = relayout()
        g = 0
        for grp in sc:
            while (pin.get(g) if len(grp) > 1 else any(cost(I(y)) == 0 for y in pin.get(g, []))): g += 1
            for x in grp: P(g, x)
            g += 1
        assert g <= 42, g
        for g, (pre, x) in zip((34 + 12, 34 + 24, 34 + 28, 34 + 32), dm):
            P(g - 2, pre[0]); P(g - 1, pre[1]); P(g, x.split(";@")[0].rstrip())
        for g, x in zip((68 + 12, 68 + 28, 102 + 12), mk): P(g, x)
        P(102 + 13, "s_add_u32 s%d, s%d, 6144" % (S_SO, S_SO))
    if i == 1 and part == 'b':
        P(0, "s_lshl_b32 s54, s%d, 3" % S_WAVE); P(1, "s_add_u32 s54, s54, s%d" % S_CNT)
        P(5, "s_cmp_eq_u32 s54, 4"); P(5, "s_cselect_b32 s%d, s%d, 0x40000000" % (S_T2, S_AFL))
        P(102 + 24, "buffer_store_dword v%d, v%d, %s, s%d offen%s" % (V_1, V_L0, sr(S_WS), S_T2, SC))
    if i == 3 and part == 'a':
        sc, dm, rd, stv, mk = relayout()
        P(23, "s_waitcnt vmcnt(19)")
        for g, xs in zip((24, 28, 34 + 24, 34 + 28), rd):
            for x in xs: P(g, x)
        for g, x in zip((34 + 5, 34 + 32, 68 + 5, 68 + 24), stv): P(g, x)
    if part == 'b':
        P(68 + 32, "buffer_atomic_add v%d, v%d, %s, s%d offen%s" % (V_1, V_L0, sr(S_WS), S_PG, SC))
    if i == 3 and part == 'b':
        P(102 + 5, "global_load_dword v%d, %s, off" % (V_TMP + 6, vr(V_TMP + 4, 2)))
        for u in range(4): P(34 * u + 12, "buffer_load_dword v%d, v%d, %s, s%d offen%s" % (V_TMP + u, V_B8, sr(S_WS), S_PS, SC))
    if i == 3 and part == 'b':
        P(102 + 24, "s_cmp_eq_u32 s%d, 1" % S_CNT); P(102 + 24, "s_cselect_b32 s%d, 0, 0x40000000" % S_T2)
        P(102 + 25, "s_add_u32 s%d, s%d, 0x%x" % (S_T2, S_T2, FLAG_OFF + 4096))
        P(102 + 28, poll_a()[0])
    if i in (29, 30):
        gaps = [34 * u + g for u in range(4) for g in (5, 12, 24, 28, 32) if i == 29 or (u, g) not in ((0, 24), (3, 24))]
        ops = preload(i)
        assert len(ops) == len(gaps)
        for g, f in zip(gaps, ops):
            m, so, x = f(S_T0)
            if m: P(g - 2, m)
            P(g - 1, so); P(g, x)
        def scalars(g, xs):
            for x in xs:
                while any(cost(I(y)) == 0 or I(y).kind == "vmem" for y in pin.get(g, [])): g += 1
                P(g, x)
            return g
    if i == 29:
        t = V_TMP
        free = [34 * u + g for u in range(4) for g in (10, 14, 16, 20, 26, 30)]
        S1, V, S2, R, S3 = proposal()
        g = scalars(0, S1)
        free = [x for x in free if x > g]
        for x in V:
            g = free.pop(0)
            P(g, x)
        g = scalars(g + 1, S2)
        free = [x for x in free if x > g]
        for x in R: P(free.pop(0), x)
    if i == 30:
        assert scalars(0, proposal()[4]) < 20
        P(16, "v_mov_b32 v33, 0"); P(20, "v_mov_b32 v32, s%d" % S_REM)
        P(24, "buffer_atomic_cmpswap v[32:33], v%d, %s, s%d offen offset:16 sc0 sc1 ;@cas" % (V_L0, sr(S_WS), S_PS))
    if i == 30:
        P(68 + 13, "WAITVM cas"); P(68 + 14, "v_readfirstlane_b32 s54, v32")
        g = scalars(68 + 16, ["s_min_u32 s55, s54, 1", "s_sub_u32 s55, s55, 1", "s_and_b32 s55, s55, s%d" % S_REM, "s_or_b32 s54, s54, s55",
                              "s_lshl_b32 s55, s%d, 2" % S_WAVE, "s_add_u32 s55, s55, %d" % (FLAG_LDS + 16)])
        assert g < 68 + 26
        P(68 + 26, "v_mov_b32 v32, s54"); P(68 + 30, "v_mov_b32 v33, s55")
        P(102 + 10, "ds_write_b32 v33, v32"); P(102 + 14, "v_mov_b32 v33, %d" % (FLAG_LDS + 16))
        P(102 + 26, "ds_read_b32 v32, v33")
        assert scalars(25, late_setup()) < 68
    out, left = schedule(mf, pin, fl)
    assert not left
    if 1 <= i <= 4:
        for pat in OPT.get("drop", []):
            out = [x for x in out if not x.startswith(pat)]
        for pat, a_, b_ in OPT.get("sub", []):
            out = [x.replace(a_, b_) if x.startswith(pat) else x for x in out]
    return out

def proposal():
    mm, t = OPT["mmin"], V_TMP
    S1 = ["s_add_u32 s54, s56, s57", "s_add_u32 s55, s58, s59", "s_add_u32 s54, s54, s55", "s_mul_i32 s54, s54, %d" % OPT["gain"], "s_sub_u32 s54, %d, s54" % (1280 - 768)]
    for n in range(4):
        S1 += ["s_mul_i32 s%d, s%d, %d" % (56 + n, 56 + n, 4 * OPT["gain"]), "s_add_u32 s%d, s%d, s54" % (56 + n, 56 + n), "s_add_u32 s54, s54, %d" % OPT["tie"][n]]
    V = ["v_lshl_add_u32 v%d, v0, 4, s%d" % (t + n, 56 + n) for n in range(4)] + ["v_ashrrev_i32 v%d, 8, v%d" % (t + n, t + n) for n in range(4)] + \
        ["v_med3_i32 v%d, v%d, %d, 20" % (t + n, t + n, mm) for n in range(4)] + \
        ["v_add3_u32 v32, v%d, v%d, v%d" % (t, t + 1, t + 2), "v_add_u32 v32, v32, v%d" % (t + 3), "v_cmp_le_i32 vcc, 20, v32"]
    S2 = ["s_ff1_i32_b64 s54, vcc", "s_and_b32 s54, s54, 63"]
    R = ["v_readlane_b32 s%d, v%d, s54" % (56 + n, t + n) for n in (0, 1, 3)]
    S3 = ["s_add_u32 s57, s57, s56", "s_sub_u32 s59, 20, s59", "s_min_u32 s56, s56, %d" % (20 - 3 * mm), "s_min_u32 s57, s57, %d" % (20 - 2 * mm),
          "s_add_u32 s54, s57, %d" % mm, "s_max_i32 s59, s59, s54", "s_lshl_b32 s57, s57, 8", "s_lshl_b32 s59, s59, 16", "s_or_b32 s56, s56, s57",
          "s_or_b32 s59, s59, 0x14000000", "s_or_b32 s%d, s56, s59" % S_REM]
    if OPT["fixed"]: S3.append("s_mov_b32 s%d, 0x%x" % (S_REM, OPT["fixed"]))
    return S1[:-1], V, S2, R, S3

def poll_a():
    a = V_PA
    return ("buffer_load_dwordx4 %s, v%d, %s, s%d offen%s" % (vr(a), V_FR, sr(S_WS), S_T2, SC),
            ["v_and_b32 v%d, v%d, v%d" % (a, a, a + 1), "v_and_b32 v%d, v%d, v%d" % (a + 2, a + 2, a + 3),
             "v_and_b32 v%d, v%d, v%d" % (a, a, a + 2), "v_cmp_eq_u32 vcc, 0, v%d" % a])

def poll_b():
    return ("buffer_load_dword v%d, v%d, %s, s%d offen%s" % (V_PL, V_B8, sr(S_WS), S_BC, SC), ["v_cmp_eq_u32 vcc, 0, v%d" % V_PL])

def poll_d():
    return ("buffer_load_dword v%d, v%d, %s, s%d offen%s" % (V_PL, V_B8, sr(S_WS), S_DF, SC), ["v_cmp_eq_u32 vcc, 0, v%d" % V_PL])

def spin(name, loads, check):
    return ["L_%s_spin:" % name, "s_mov_b32 s55, 0x%x" % OPT.get("spin", 0x100000), "L_%s_loop:" % name] + (["s_sleep %d" % OPT["sleep"]] if OPT["sleep"] and name == "s" else []) + loads + ["s_sub_u32 s55, s55, 1", "s_waitcnt vmcnt(0)"] + check + \
           ["s_cmp_eq_u32 s55, 0", "s_cbranch_scc1 L_%s_ret" % name, "s_cbranch_vccnz L_%s_loop" % name, "s_branch L_%s_ret" % name]

def guard(name):
    return ["s_cbranch_vccnz L_%s_spin" % name, "L_%s_ret:" % name]

def tail_setup():
    P = srd(S_X, 80, X_BYTES) + srd(S_AUX, 60, 0)
    A = P.append
    j, a, b, c, r = 42, 54, 55, 53, 46
    A("s_bfe_u32 s%d, s2, 0x20001" % j)
    A("s_xor_b32 s%d, s%d, s%d" % (a, j, S_WAVE))
    A("s_min_u32 s%d, s%d, 1" % (a, a))
    A("s_sub_u32 s%d, 1, s%d" % (a, a))
    A("s_lshl_b32 s%d, s%d, 28" % (S_AUX + 2, a))
    A("s_lshr_b32 s%d, s2, 5" % a)
    A("s_lshl_b32 s%d, s%d, 1" % (a, a))
    A("s_add_u32 s%d, s%d, s%d" % (a, a, S_HF))
    A("s_lshl_b32 s%d, s%d, 2" % (b, a))
    A("s_add_u32 s%d, s%d, s%d" % (b, b, S_WAVE))
    A("s_mul_i32 s%d, s%d, %d" % (S_XO, b, 32 * 1152))
    A("s_lshr_b32 s%d, s%d, 1" % (a, b))
    A("s_and_b32 s%d, s%d, 1" % (b, b))
    A("s_lshl_b32 s%d, s%d, 2" % (c, a))
    A("s_add_u32 s%d, s%d, s%d" % (c, c, j))
    A("s_lshl_b32 s%d, s%d, 5" % (S_BC, c))
    A("s_add_u32 s%d, s%d, 0x%x" % (S_BC, S_BC, FLAG_OFF))
    A("s_lshl_b32 s%d, s%d, 17" % (S_HA, c))
    A("s_lshl_b32 s%d, s%d, 14" % (S_H2, c))
    A("s_lshl_b32 s%d, s%d, 11" % (c, b))
    A("s_add_u32 s%d, s%d, s%d" % (S_HA, S_HA, c))
    A("s_lshl_b32 s%d, s%d, 10" % (c, b))
    A("s_add_u32 s%d, s%d, s%d" % (S_H2, S_H2, c))
    A("s_lshl_b32 s%d, s%d, 5" % (c, S_RB))
    A("s_add_u32 s%d, s%d, s%d" % (c, c, S_SL))
    A("s_lshl_b32 s%d, s%d, 2" % (c, c))
    A("s_add_u32 s%d, s%d, 0x%x" % (S_BP, c, FLAG_OFF))
    A("s_bfe_u32 s%d, s2, 0x20003" % a)
    A("s_mul_i32 s%d, s%d, 288" % (b, a))
    A("s_add_u32 s%d, s%d, s%d" % (S_XO, S_XO, b))
    A("s_mul_i32 s%d, s%d, 9216" % (a, a))
    A("s_lshl_b32 s%d, s%d, 5" % (b, j))
    A("s_add_u32 s%d, s%d, s%d" % (b, b, S_WAVE))
    A("s_mul_i32 s%d, s%d, %d" % (b, b, SLOT))
    A("s_add_u32 s%d, s%d, s%d" % (c, a, b))
    A("s_mul_i32 s%d, s%d, 28" % (a, j))
    A("s_sub_u32 s%d, 128, s%d" % (a, a))
    A("s_mul_i32 s%d, s%d, %d" % (S_W8, a, SLOT))
    P += rot(r)
    for n in range(9):
        P += slot_tile(a, r, n) + ["s_lshl_b32 s%d, s%d, 10" % (a, a), "s_add_u32 s%d, s%d, s%d" % (S_TO[n], a, c)]
    A("s_add_u32 s%d, s%d, 256" % (S_X8, S_XO))
    A("s_lshl_b32 s%d, s%d, 5" % (a, r))
    A("s_add_u32 s%d, s%d, s%d" % (S_XO, S_XO, a))
    P += slab_base(47)
    A("s_lshl_b32 s%d, s%d, 11" % (a, r))
    A("s_add_u32 s47, s47, s%d" % a)
    for n in range(3):
        A("s_add_u32 s%d, s%d, %d" % (a, j, n + 1))
        A("s_and_b32 s%d, s%d, 3" % (a, a))
        A("s_mul_i32 s%d, s%d, %d" % (a, a, 18 * 1024))
        A("s_add_u32 s%d, s%d, s47" % (S_IN + n, a))
    A("s_lshl_b32 s%d, s%d, 2" % (c, S_WAVE))
    for q in range(4):
        A("s_lshr_b32 s%d, 0x%x, s%d" % (a, sum(v << (4 * k) for k, v in enumerate(SUB[q])), c))
        A("s_and_b32 s%d, s%d, 15" % (a, a))
        A("s_add_u32 s%d, s%d, 4" % (b, a))
        A("s_lshr_b32 s%d, s%d, 4" % (b, b))
        A("s_mul_i32 s%d, s%d, 16320" % (b, b))
        A("s_mul_i32 s%d, s%d, 9216" % (a, a))
        A("s_add_u32 s%d, s%d, s%d" % (S_LB[q], a, b))
    V = ["v_and_b32 v%d, 15, v0" % V_XO, "v_mul_u32_u24 v%d, 1152, v%d" % (V_XO, V_XO), "v_lshrrev_b32 v%d, 4, v0" % (V_XO + 1),
         "v_lshl_add_u32 v%d, v%d, 3, v%d" % (V_XO, V_XO + 1, V_XO), "v_add_u32 v%d, %d, v%d" % (V_XO + 1, 16 * 1152, V_XO)]
    return P, V

def late_setup():
    return srd(S_OUT, 78, X_BYTES) + ["s_lshr_b32 s54, s2, 3", "s_lshl_b32 s54, s54, 1", "s_add_u32 s54, s54, s%d" % S_HF,
            "s_lshl_b32 s54, s54, 2", "s_add_u32 s54, s54, s%d" % S_WAVE, "s_lshl_b32 s54, s54, 4",
            "s_add_u32 s%d, s54, 0x%x" % (S_DF, FLAG_OFF + 8192), "s_bfe_u32 s54, s2, 0x20001", "s_lshl_b32 s54, s54, 2",
            "s_add_u32 s%d, s54, s%d" % (S_DO, S_DF)]

def loop_setup():
    P = slab_base(54)
    A = P.append
    A("s_mov_b32 s%d, 0x20000" % (S_SRC + 3))
    A("s_bfe_u32 s55, s2, 0x20001")
    A("s_mul_i32 s55, s55, %d" % (18 * 1024))
    A("s_add_u32 s%d, s55, s54" % S_SO)
    A("s_lshl_b32 s%d, s2, 2" % S_U)
    A("s_add_u32 s%d, s%d, 0x%x" % (S_AFL, S_U, FLAG_OFF + 4096))
    A("s_add_u32 s%d, s%d, s%d" % (S_U, S_U, S_WAVE))
    A("s_lshl_b32 s%d, s%d, 12" % (S_SCR, S_WAVE))
    A("s_add_u32 s%d, s%d, %d" % (S_SCR, S_SCR, SCR))
    A("s_lshr_b32 s54, s2, 3")
    A("s_lshl_b32 s54, s54, 1")
    A("s_add_u32 s54, s54, s%d" % S_HF)
    A("s_lshl_b32 s54, s54, 6")
    A("s_min_u32 s55, s%d, 1" % S_WAVE)
    A("s_lshl_b32 s55, s55, 30")
    A("s_add_u32 s54, s54, s55")
    A("s_add_u32 s%d, s54, 0x%x" % (S_PS, FLAG_OFF + 12288))
    A("s_bfe_u32 s55, s2, 0x20001")
    A("s_lshl_b32 s55, s55, 2")
    A("s_add_u32 s%d, s%d, s55" % (S_PG, S_PS))
    V = ["v_mov_b32 v%d, -1" % (V_M1 + r) for r in range(4)]
    V += ["v_mov_b32 v%d, 1" % V_1, "v_min_u32 v%d, 1, v0" % V_L0, "v_lshlrev_b32 v%d, 30, v%d" % (V_L0, V_L0),
         "v_add_u32 v%d, 0x10000, v%d" % (V_RD, V_FR), "v_add_u32 v%d, 0x20000, v%d" % (V_RD2, V_FR), "v_lshlrev_b32 v%d, 3, v0" % V_H2,
         "v_add_u32 v%d, 0x1000, v%d" % (V_F4, V_FR), "v_and_b32 v%d, 7, v0" % V_B8, "v_lshlrev_b32 v%d, 2, v%d" % (V_B8, V_B8)]
    return P, V

def accr(job, c, rt): return (VD if job == 0 else VSA) + 8 * c + 4 * rt
RING = [SUBOFF(6), SUBOFF(0), SUBOFF(12)]
V_RA = 12
S_KAP, S_WD, S_AD, S_REM = 47, 48, 42, 53
def stage(name, ring=None):
    k, n = name[0], int(name[1])
    if k == "p": return dict(name=name, job=0, ab=(144, 176, 208, 0)[n], sub=n, lb=S_LB[n], src=n if n < 3 else "h2", init=n == 0)
    if k == "f": return dict(name=name, job=0, ab=(144, 176, 208)[n], ring=n, lb=S_LB[n], src="dyn", init=False)
    r = n % 3 if ring is None else ring
    return dict(name=name, job=1, ab=(32, 64, 96, 0, 144, 176, 208, 32)[n], ring=r, lb=S_LB[r], src=9 + n, init=n == 0)
def act(st, k, rt, n=4, o=0): return ar(st["ab"] + 8 * k + 4 * rt + o, n)

def stage_loads(st):
    w, a = [], []
    src, nm = st["src"], st["name"]
    for c in range(9):
        def f(t, c=c):
            so = "s_add_u32 s%d, s%d, s%d" % (t, S_TO[c], S_W8 if src == "h2" else S_WD) if src in ("h2", "dyn") else \
                 "s_add_u32 s%d, s%d, 0x%x" % (t, S_TO[c], (4 * src if src < 8 else 144 + 4 * (src - 9)) * SLOT)
            return ("s_add_u32 m0, s%d, 0x%x" % (st["lb"], (c + st.get("sp", 0)) * 1024), so,
                    "buffer_load_dwordx4 v%d, %s, s%d offen%s lds ;@w%s" % (V_FR, sr(S_WF), t, SC, st.get("wn", nm)))
        w.append(f)
    for k in range(4):
        for hf in range(2 if src == "h2" else 1):
            for rt in range(2):
                def f(t, k=k, hf=hf, rt=rt):
                    if src == "h2":
                        return (None, "s_add_u32 s%d, s%d, 0x%x" % (t, S_H2, H2_OFF + k * 4096),
                                "buffer_load_dwordx2 %s, v%d, %s, s%d offen offset:%d%s ;@a%s" %
                                (act(st, k, rt, 2, 2 * hf), V_H2, sr(S_WS), t, hf * 2048 + rt * 512, SC, nm))
                    r, o = (S_AD, H_OFF + k * 4096) if src == "dyn" else \
                           (S_HA, H_OFF + (4 * src + k) * 4096 if src < 8 else O_OFF + (4 * (src - 9) + k) * 4096)
                    return (None, "s_add_u32 s%d, s%d, 0x%x" % (t, r, o),
                            "buffer_load_dwordx4 %s, v%d, %s, s%d offen offset:%d%s ;@a%s" % (act(st, k, rt), V_FR, sr(S_WS), t, rt * 1024, SC, nm))
                a.append(f)
    return w, a

def preload(i):
    w, a = zip(*[stage_loads(stage("p%d" % n)) for n in range(3)])
    return {29: a[0] + a[1] + a[2][:1] + w[0][:3], 30: w[0][3:] + w[1] + a[2][1:4], 31: w[2] + a[2][4:]}[i]

def wread(st, c, buf):
    out = []
    for k in range(4):
        if "sub" in st:
            off = SUBOFF(SUB[st["sub"]][k]) + (c + st.get("sp", 0)) * 1024
            adr, off = (V_FR, V_RD, V_RD2)[off >> 16], off & 0xffff
        else:
            adr, off = V_RA + st["ring"], k * 9216 + c * 1024
        out.append("ds_read_b128 %s, v%d offset:%d" % (vr(WBUF[buf] + 4 * k), adr, off))
    return out[::2] if OPT.get("emu8") else out

def inreg(job, c, n): return (VD if job == 0 else VSA) + 24 + 12 * (2 - n) + 4 * c
def fetch(job, ns=(2, 1, 0)):
    return ["buffer_load_dwordx4 %s, v%d, %s, s%d offen offset:%d%s ;@in%d" %
            (vr(inreg(job, c, n)), V_FR if c < 2 else V_F4, sr(S_WS if c < 2 else S_AUX), S_IN + n, (c & 1) * 2048 + job * 1024, SC, job)
            for n in ns for c in range(3)]
def arrived(ns):
    r = [inreg(1, 0, n) + k for n in ns for k in range(12)]
    P = ["v_max3_u32 v%d, v%d, v%d, v%d" % (VT + q, r[3 * q], r[3 * q + 1], r[3 * q + 2]) for q in range(4)]
    P += ["v_max3_u32 v%d, v%d, v%d, v%d" % (VT + k % 4, VT + k % 4, r[12 + 2 * k], r[13 + 2 * k]) for k in range((len(r) - 12) // 2)]
    return P + ["v_max3_u32 v%d, v%d, v%d, v%d" % (VT, VT, VT + 1, VT + 2), "v_max_u32 v%d, v%d, v%d" % (VT, VT, VT + 3), "v_cmp_eq_u32 vcc, -1, v%d" % VT]
def gather(job, c):
    return [mfma(vr(accr(job, c, rt)), vr(VSEL + 2 - 2 * rt), vr(inreg(job, c, n)), vr(accr(job, c, rt))) for rt in range(2) for n in range(3)]
def sel_setup():
    z, t = VSEL, VT
    return ["v_mov_b32 v%d, 0" % (z + r) for r in (0, 1, 4, 5)] + \
           ["v_bfe_u32 v%d, v0, 2, 2" % t, "v_lshrrev_b32 v%d, 4, v0" % (t + 1), "v_xor_b32 v%d, v%d, v%d" % (t, t, t + 1), "v_min_u32 v%d, 1, v%d" % (t, t),
            "v_sub_u32 v%d, 1, v%d" % (t, t), "v_mul_u32_u24 v%d, 0x3f80, v%d" % (t, t), "v_and_b32 v%d, 1, v0" % (t + 1), "v_lshlrev_b32 v%d, 4, v%d" % (t + 1, t + 1),
            "v_lshlrev_b32 v%d, v%d, v%d" % (t, t + 1, t), "v_bfe_i32 v%d, v0, 1, 1" % (t + 1), "v_and_b32 v%d, v%d, v%d" % (z + 3, t, t + 1),
            "v_xor_b32 v%d, v%d, v%d" % (z + 2, t, z + 3)]

class Seg:
    def __init__(self, seq, nxt=None):
        self.mf, self.pin, self.fl, self.done, self.ins = [], {}, [], {}, {}
        ext = seq + ([(nxt, c) for c in range(3)] if nxt else [])
        self.start = {}
        self.wstart = {}
        for n, (st, c) in enumerate(ext):
            self.start.setdefault(st["name"], 8 * n)
            self.wstart.setdefault(st.get("wn", st["name"]), 8 * n)
        for n, (st, c) in enumerate(seq):
            g0 = len(self.mf)
            for e, rt in enumerate(snake(2, n, "T")):
                d = vr(accr(st["job"], c, rt))
                for q, k in enumerate(snake(4, e, "t")):
                    self.mf.append(mfma(d, vr(WBUF[n % 3] + 4 * k), act(st, k, rt), (vr(240) if OPT.get("tb") else "0") if st["init"] and q == 0 else d))
            self.done[(st["job"], c)] = len(self.mf) - 1
            if n + 2 < len(ext):
                for i, x in enumerate(wread(ext[n + 2][0], ext[n + 2][1], (n + 2) % 3)): self.P(g0 + i, x)
            lw = "lgkmcnt(%d)" % ((2 if OPT.get("emu8") else 4) if n + 2 < len(ext) else 0)
            nxw = ["w" + q for q, g in self.wstart.items() if g == g0 + 24]
            nxa = ["a" + q for q, g in self.start.items() if g == g0 + 8]
            if nxw or nxa:
                self.P(g0 + 7, "WAITVM %s %s" % (",".join(nxw + nxa), lw))
                if nxw and not OPT.get("tnobar"): self.P(g0 + 7, "s_barrier")
            elif n + 1 < len(ext):
                self.P(g0 + 7, "s_waitcnt " + lw)
    def P(self, g, x): self.pin.setdefault(g, []).append(x)
    def put(self, g, f):
        m, so, x = f({4: S_T0, 5: S_AD, 6: S_T3}[g % 8])
        if m: self.P(g - 3 if g % 8 == 4 else g - 1, m)
        self.P(g - 2 if g % 8 == 5 else g - 4, so); self.P(g, x)
    def issue(self, g0, st, poll):
        w, a = stage_loads(st)
        for n, f in enumerate(w[:8] + a[:6] + w[8:] + a[6:]):
            if not (OPT.get("emu8") and n < 8 and n % 2): self.put(g0 + 8 * (n // 2) + 4 + 2 * (n % 2), f)
        if poll and not OPT["latepoll"]: self.P(g0 + 70, poll_b()[0] + " ;@pb")
    def advance(self, g0):
        for k, x in enumerate(["s_add_u32 s%d, s%d, 4" % (S_KAP, S_KAP), "s_and_b32 s54, s%d, 31" % S_KAP, "s_sub_u32 s54, s54, 1", "s_lshr_b32 s54, s54, 31",
                               "s_mul_i32 s54, s54, 12", "s_add_u32 s%d, s%d, s54" % (S_KAP, S_KAP), "s_lshl_b32 s54, s%d, 12" % S_KAP,
                               "s_mul_i32 s%d, s%d, %d" % (S_WD, S_KAP, SLOT), "s_add_u32 s%d, s%d, s54" % (S_AD, S_HA)]):
            self.P(g0 + 8 * k + 3, x)
    def spot(self, g):
        while self.pin.get(g) or g % 8 < 4: g += 1
        return g
    def flag(self, g, tag, soff):
        if tag in OPT.get("wb", ()):
            self.P(g - 44, "WAITVM " + tag)
            self.P(self.spot(g - 40), "buffer_wbl2 sc1 ;@" + tag)
        self.P(g - 4, "WAITVM " + tag)
        self.P(self.spot(g), "buffer_store_dword v%d, v%d, %s, s%d offen%s" % (V_1, V_L0, sr(S_WS), soff, SC))
    def code(self, cap=2, head=None):
        mf, pin, fl, o = self.mf, self.pin, self.fl, 0
        if head:
            mf0, pin0, fl0 = head
            o = len(mf0)
            for g, xs in pin.items(): pin0[g + o] = xs
            for f in fl:
                f.lo += o
                if f.hi is not None: f.hi += o
            mf, pin, fl = mf0 + mf, pin0, fl0 + fl
        out, left = schedule(mf, pin, fl, cap=cap)
        for tag in OPT.get("plain", ()):
            out = [x.replace(SC, OPT.get("plainf", "")) if x.startswith("buffer_store") and x.endswith(";@" + tag) else x for x in out]
        idx = [i for i, x in enumerate(out) if x.startswith("v_mfma")][o:]
        for g in sorted(self.ins, reverse=True): out[idx[g]:idx[g]] = self.ins[g]
        return out, [y for f in left for y in f.i.text.split("\n")]

def full(names, **kw): return [(stage(n, **kw), c) for n in names for c in range(9)]
def count_down(S, g0):
    S.P(g0 + 69, "s_sub_u32 s%d, s%d, 1" % (S_REM, S_REM)); S.P(g0 + 71, "s_cmp_le_i32 s%d, 2" % S_REM)

def seg_prefix():
    st = OPT["st"]
    S = Seg(full(["p0", "p1", "p2"]), stage("p3"))
    w, a = stage_loads(stage("p3"))
    pos = [8 * (n // 2) + 4 + 2 * (n % 2) for n in range(36)]
    slots = [pos[(n * 36) // 25] for n in range(25)]
    assert slots[9] >= OPT["a3"]
    for g, f in zip(slots, w + a): S.put(g, f)
    S.issue(144, stage("f0"), True); S.advance(144)
    S.P(144 + 71, "s_cmp_le_i32 s%d, 1" % S_REM)
    S.flag(OPT["ogap"], "o", S_BP)
    sc = ["s_mul_i32 s%d, s%d, 9216" % (S_LB[1], S_WAVE), "s_add_u32 s%d, s%d, %d" % (S_LB[2], S_LB[1], RING[2]),
          "s_bfe_u32 s54, s2, 0x20001", "s_lshl_b32 s55, s54, 3", "s_lshl_b32 s%d, s%d, 8" % (S_KAP, S_REM), "s_lshr_b32 s%d, s%d, s55" % (S_KAP, S_KAP),
          "s_and_b32 s%d, s%d, 31" % (S_KAP, S_KAP), "s_lshr_b32 s%d, s%d, s55" % (S_REM, S_REM), "s_and_b32 s%d, s%d, 31" % (S_REM, S_REM),
          "s_sub_u32 s%d, s%d, s%d" % (S_REM, S_REM, S_KAP), "s_mul_i32 s55, s%d, 52" % S_KAP, "s_lshr_b32 s55, s55, 8", "s_mul_i32 s55, s55, 3",
          "s_add_u32 s%d, s%d, s55" % (S_KAP, S_KAP), "s_add_u32 s%d, s%d, 3" % (S_KAP, S_KAP), "s_lshl_b32 s54, s54, 3", "s_sub_u32 s%d, s%d, s54" % (S_KAP, S_KAP),
          "s_lshl_b32 s%d, s%d, 2" % (S_KAP, S_KAP), "s_lshl_b32 s54, s%d, 12" % S_KAP, "s_mul_i32 s%d, s%d, %d" % (S_WD, S_KAP, SLOT),
          "s_add_u32 s%d, s%d, s54" % (S_AD, S_HA)]
    g = 0
    for x in sc:
        while g % 8 > 3 or any(cost(I(y)) == 0 for y in S.pin.get(g, [])): g += 1
        S.P(g, x)
    assert g < 140
    for r in range(3): S.P(144 + r, "v_add_u32 v%d, %d, v%d" % (V_RA + r, RING[r], V_FR))
    S.ins = {0: st("tail0"), 144: st("g2")}
    if OPT["pads"] and OPT["hopt"]: S.ins[OPT["hopt"]] = hop_round(len(OPT["hops"]) + len(OPT["hopg"]))
    out, left = S.code(cap=lambda g: OPT["cap31"] if g < 72 else OPT["ocap"], head=step_last())
    assert not left
    if OPT.get("verbose"):
        n = 0
        for x in out:
            n += x.startswith("v_mfma")
            if ";@o" in x: print("O store at", n - 72)
    return out

def seg_p3():
    S = Seg(full(["p3"]), stage("f0"))
    S.issue(0, stage("f1"), True); S.advance(0)
    S.P(71, "s_cmp_le_i32 s%d, 2" % S_REM)
    return S.code()[0] + OPT["st"]("g4")

def seg_flex(ph):
    S = Seg(full(["f%d" % ph]), stage("f%d" % ((ph + 1) % 3)))
    S.issue(0, stage("f%d" % ((ph + 2) % 3)), True); S.advance(0); count_down(S, 0)
    return S.code()[0]

def seg_bridge(v):
    ph = min(v, 2)
    b0, b1 = stage("b0", (ph + 2) % 3), stage("b1", ph)
    S = Seg(full(["f%d" % ph if v < 3 else "p3", "f%d" % ((ph + 1) % 3)]), b0)
    S.issue(0, b0, False); S.issue(72, b1, False)
    if OPT["latepoll"]: S.P(7, poll_b()[0] + " ;@pb")
    S.P(27, "WAITVM pb"); S.P(27, poll_b()[1][0])
    S.ins = {0: OPT["st"]("br"), 32: OPT["st"]("preb") + guard("b%d" % v) + OPT["st"]("postb")}
    if ph != 1:
        o = (0, 1, 2) if ph == 2 else (2, 1, 0)
        for k, (d, a_) in enumerate(((None, o[0]), (o[0], o[1]), (o[1], o[2]), (o[2], None))):
            S.P(72 + (65, 66, 67, 69)[k], "s_mov_b32 s%d, s%d" % (54 if d is None else S_LB[d], 54 if a_ is None else S_LB[a_]))
            S.P(72 + (69, 69, 70, 70)[k], "v_mov_b32 v%d, v%d" % (15 if d is None else V_RA + d, 15 if a_ is None else V_RA + a_))
    return S.code()[0]

def seg_rest():
    st, D = OPT["st"], OPT["defer"]
    B = [stage("b%d" % n) for n in range(8)]
    B[7].update(sub=4, lb=S_LB[3])
    blocks = [("k%d" % q, cs) for q, cs in enumerate(OPT["blocks"])] + [("own", (0, 1))]
    blk = lambda n, nm: dict(B[n], wn=nm)
    S = Seg([(B[n], c) for n in range(5) for c in range(9)] + [(blk(n, nm), c) for nm, cs in blocks for n in (5, 6, 7) for c in cs])
    for k, x in enumerate(["s_and_b32 s54, s%d, 1" % S_WAVE, "s_mul_i32 s54, s54, 9216", "s_lshr_b32 s55, s%d, 1" % S_WAVE, "s_mul_i32 s55, s55, %d" % (6 * 9216),
                           "s_add_u32 s54, s54, s55", "s_add_u32 s%d, s54, %d" % (S_LB[3], 4 * 9216)]):
        S.P(8 * k + 11, x)
    for n in range(3): S.issue(72 * n, B[n + 2], False)
    wl = lambda q, ns: [stage_loads(blk(n, blocks[q][0]))[0][c] for n in ns for c in blocks[q][1]]
    al = lambda n: stage_loads(B[n])[1]
    first = wl(0, (5, 7)) + al(5)
    ops = first + [None] * (14 - len(first)) + wl(0, (6,)) + al(6) + al(7)
    for q in range(1, len(blocks)): ops += wl(q, (5, 6, 7))
    for k, f in enumerate(ops):
        last = 216 + 8 * (k // 2) + 4 + 2 * (k % 2)
        if f: S.put(last, f)
    S.P(3, "v_and_b32 v%d, 12, v%d" % (V_B8, V_B8))
    for k, x in enumerate(["s_and_b32 s48, s2, 6", "s_sub_u32 s48, 8, s48", "s_lshl_b32 s48, s48, 11", "v_add_u32 v%d, s48, v%d" % (V_F4, V_FR)]):
        S.P(147 + 8 * k, x)
    if OPT["pf3"]:
        g = 72
        for k, x in enumerate(["s_lshr_b32 s47, s2, 3", "s_lshl_b32 s47, s47, 2", "s_add_u32 s47, s47, s%d" % S_WAVE, "s_lshl_b32 s47, s47, 6",
                               "s_add_u32 s47, s47, %d" % OPT["pf3o"], "s_min_u32 s47, s47, L_k2_last-L_k2_pc3", "s_getpc_b64 s[54:55]\nL_k2_pc3:"]):
            S.P(g + 8 * k + 3, x)
        g = OPT["pf3"]
        S.P(g, "v_mov_b32 v84, s47"); S.P(g + 1, "v_mov_b32 v85, s55"); S.P(g + 2, "v_add_co_u32 v84, vcc, s54, v84")
        S.P(g + 8, "v_addc_co_u32 v85, vcc, 0, v85, vcc")
        S.P(S.spot(g + 10), "global_load_dword v86, v[84:85], off")
    for k, (v, o) in enumerate(((5, 0), (6, 0), (5, 64), (6, 64))[:OPT["outpf"]]):
        S.P(S.spot(296 + 8 * k), "buffer_load_dword v87, v%d, %s, s%d offen offset:%d" % (v, sr(S_OUT), S_XO, o))
    S.flag(OPT["dflag"], "p0", S_DO)
    g = last // 8 * 8 + 8
    S.P((g - OPT["pollahead"]) // 8 * 8 + 5, poll_d()[0] + " ;@pd")
    S.P(g - 5, "WAITVM pd"); S.P(g - 5, poll_d()[1][0])
    S.ins = {0: st("rest"), g: st("pred") + guard("d") + st("postd")}
    for x in fetch(0):
        g = S.spot(g)
        S.P(g, x)
        g += OPT["fstep"]
    gd = len(S.mf) - 8 * OPT["gdend"]
    assert gd - 5 > g
    S.P(gd - 5, "WAITVM in0")
    S.ins[gd] = st("gd") + gather(0, 0) + gather(0, 1) + gather(0, 2)
    for q in S.wstart: S.ins.setdefault(S.wstart[q], st(q))
    fl, grp = S.fl, []
    for job in range(2):
        for c in range(2, 9):
            lo = S.done[(1, c)] + 6 if job else 6 + (c - 2) * OPT["dsp"]
            hi = min(OPT["dflag"] - 12, (OPT["pf3"] or 999) - 4) if job == 0 else None
            b = VPK[c - 2]
            for rt in range(2):
                for h in range(2):
                    r = accr(job, c, rt) + 2 * h
                    fl.append(Flt("v_cvt_pk_bf16_f32 v%d, v%d, v%d" % (b + 2 * rt + h, r, r + 1), lo, hi))
            if job == 1:
                for q in range(4): fl.append(Flt("v_min_u32 v%d, -2, v%d" % (b + q, b + q), lo, hi))
            grp.append("buffer_store_dwordx4 %s, v%d, %s, s%d offen offset:%d%s" % (vr(b), V_FR, sr(S_WS), S_PUB + c, job * 1024, SC) + " ;@p%d" % job)
            if c in OPT["pgrp"][job]:
                fl.append(Flt("\n".join(grp), lo, hi))
                grp = []
        if job == 0:
            fl += [Flt(x, 6, gd - 4) for x in sel_setup()]
            fl += [Flt(x, 6, 290) for x in ("v_and_b32 v5, 15, v0", "v_mul_u32_u24 v5, 1152, v5", "v_lshrrev_b32 v6, 5, v0", "v_lshl_add_u32 v5, v6, 4, v5",
                                       "v_bfe_u32 v6, v0, 4, 1", "v_mul_u32_u24 v15, %d, v6" % (16 * 1152), "v_add_u32 v15, v15, v5",
                                       "v_lshl_add_u32 v5, v6, 5, v5", "v_add_u32 v6, %d, v5" % (16 * 1152))]
            fl += [Flt("v_accvgpr_read_b32 v%d, a%d" % (VXX + r, AX + r), 80 if OPT.get("tb") else 6) for r in range(12)]
    for n in (2, 1, 0): fl += [Flt(x, S.done[(1, 8)] + 6 + OPT["sdel"][n]) for x in fetch(1, (n,))]
    for c in range(3):
        d, t = accr(0, c, 0), (VT, 64, VT)[c]
        for op in ("v_mul_f32 v%%d, s%d, v%%d" % S_NL2E, "v_exp_f32 v%d, v%d", "v_add_f32 v%d, 1.0, v%d", "v_rcp_f32 v%d, v%d"):
            fl += [Flt(op % (t + r, d + r if "mul" in op else t + r), gd + 5) for r in range(8)]
        fl += [Flt("v_mul_f32 v%d, v%d, v%d" % (d + r, d + r, t + r), gd + 5) for r in range(8)]
        for q in range(4):
            fl.append(Flt("v_lshlrev_b32 v%d, 16, v%d" % (XF + 8 * c + 2 * q, VXX + 4 * c + q), gd + 5))
            fl.append(Flt("v_and_b32 v%d, 0xffff0000, v%d" % (XF + 8 * c + 2 * q + 1, VXX + 4 * c + q), gd + 5))
    out, left = S.code()
    for tag in OPT.get("kill", ()):
        f = lambda xs: [x.replace(" v1,", " v7,").replace(" v9,", " v7,") if x.endswith(";@" + tag) else x for x in xs]
        out, left = f(out), f(left)
    return out + st("mlast") + left

def combine(st):
    P = st("dmath") + ["s_waitcnt vmcnt(3)"] + arrived((2, 1)) + guard("r") + ["s_waitcnt vmcnt(0)"] + arrived((0,)) + guard("s") + st("sarr")
    def wide(q, adr, parts, so=S_XO):
        o = []
        for n, (c, rt) in enumerate(parts):
            f = XF + 8 * c + 4 * rt
            o += ["v_fmac_f32 v%d, v%d, v%d" % (f + r, accr(1, c, rt) + r, accr(0, c, rt) + r) for r in range(4)]
        for n, (c, rt) in enumerate(parts):
            f = XF + 8 * c + 4 * rt
            o += ["v_cvt_pk_bf16_f32 v%d, v%d, v%d" % (q + 2 * n + h, f + 2 * h, f + 2 * h + 1) for h in range(2)]
        return o + ["s_nop 0", "v_permlane16_swap_b32 v%d, v%d" % (q, q + 2), "v_permlane16_swap_b32 v%d, v%d" % (q + 1, q + 3),
                    "buffer_store_dwordx4 %s, v%d, %s, s%d offen" % (vr(q), adr, sr(S_OUT), so) + OPT["outf"]]
    g0, g1, g2 = gather(1, 0), gather(1, 1), gather(1, 2)
    w0 = wide(VXX, 5, ((0, 0), (1, 0)))
    P += g0[:3] + g1[:3] + g0[3:] + g1[3:]
    for m in g2:
        P += [m] + w0[:2]
        w0 = w0[2:]
    P += w0 + wide(VXX + 4, 6, ((0, 1), (1, 1)))
    P += st("u2") + ["s_cmp_lg_u32 s%d, 0" % (S_AUX + 2), "s_cbranch_scc0 L_k2_done"]
    return P + wide(VXX + 8, 15, ((2, 0), (2, 1)), S_X8)

def step_last():
    par = 1
    mf, pin, fl = [], {}, []
    P = lambda g, x: pin.setdefault(g, []).append(x)
    P(0, C(par, 3, 3, 0)); P(1, E(3, 2)); P(3, E(3, 3)); P(4, C(par, 3, 3, 1))
    P(2, "v_readfirstlane_b32 s%d, v32" % S_REM)
    ends = {}
    for u in range(4):
        g0 = len(mf)
        mf += pv(VKF if u % 2 == 0 else VVF, par, u, False)
        ends[u] = len(mf) - 1
        if u < 3:
            tr = vread(VVF if u % 2 == 0 else VKF, 31, u + 1)
            gs = (0, 2, 4, 5, 6, 7, 8, 9) if u == 0 else range(8)
            for g, k in zip(gs, range(8)): P(g0 + g, tr[k])
        if u == 0:
            for t in range(4): mf += psum(par, t, False)
            lsum = len(mf) - 1
        if u < 2: P(len(mf) - 1, "s_waitcnt lgkmcnt(0)")
    RL = V_TMP
    for t in range(4):
        P(24 + 2 * t, "v_accvgpr_read_b32 v%d, a%d" % (RL + 4 + t, 128 + 4 * t))
        P(32 + t, "v_rcp_f32 v%d, v%d" % (RL + t, RL + 4 + t))
    P(36, "v_add_f32 v33, v%d, v%d" % (RL + 4, RL + 5)); P(36, "v_add_f32 v34, v%d, v%d" % (RL + 6, RL + 7))
    P(36, "s_lshl_b32 s55, s%d, 2" % S_WAVE); P(37, "s_add_u32 s55, s55, %d" % FLAG_LDS)
    P(37, "v_add_f32 v33, v33, v34"); P(37, "v_mov_b32 v32, %d" % FLAG_LDS)
    P(38, "v_add_f32 v34, v%d, v%d" % (RL, RL + 1)); P(38, "v_add_f32 v35, v%d, v%d" % (RL + 2, RL + 3))
    P(39, "v_add_f32 v33, v33, v34"); P(39, "v_mov_b32 v34, s55")
    P(40, "v_add_f32 v33, v33, v35")
    P(41, "v_cmp_nge_f32 vcc, %s, v33" % f32(2.0 ** 40))
    P(43, "s_or_b32 s54, vcc_lo, vcc_hi")
    P(44, "v_mov_b32 v33, s54")
    P(48, "ds_write_b32 v34, v33")
    P(55, "WAITVM wp0 lgkmcnt(0)"); P(55, "s_barrier")
    P(56, "ds_read_b128 v[36:39], v32")
    for k, x in enumerate(wread(stage("p0"), 0, 0)): P(57 + k, x)
    P(60, "s_waitcnt lgkmcnt(3)"); P(60, "v_or3_b32 v36, v36, v37, v38")
    P(61, "v_or_b32 v36, v36, v39")
    P(62, "v_readfirstlane_b32 s54, v36")
    P(63, "s_andn2_b32 s54, s54, s%d" % S_REDO); P(63, "s_cbranch_scc1 L_k2_redo")
    for k, x in enumerate(wread(stage("p0"), 1, 1)): P(64 + k, x)
    P(71, "WAITVM ap0 lgkmcnt(4)")
    if OPT.get("tb"):
        for r in range(4): P(64 + r, "v_mov_b32 v%d, %s" % (240 + r, f32(OPT["tb"])))
    tmp = [VP[0][0], VP[0][0] + 8, VP[0][1], VP[0][1] + 8] + ([VG + 16, VG + 24, VU, VU + 8] if OPT["ogrp"] > 1 else [])
    if OPT["ob"]:
        fl += [Flt("v_accvgpr_read_b32 v%d, a%d" % (RL + 4 + t, 252 + t), 37) for t in range(4)]
        fl += [Flt("v_mul_f32 v%d, v%d, v%d" % (RL + 4 + t, RL + 4 + t, RL + t), 37) for t in range(4)]
    k, grp = 0, []
    for u in range(4):
        for t in range(4):
            b = tmp[k % len(tmp)]; k += 1
            l0 = max(ends[u] + 6, 0 if VP[0][0] <= b < VU else 64)
            lo = max(l0, 37)
            for d in range(2):
                for r in range(4):
                    fl.append(Flt("v_accvgpr_read_b32 v%d, a%d" % (b + 4 * d + r, 16 * (2 * u + d) + 4 * t + r), l0, 72 + OPT["a3"] - 2 if u == 0 else None))
            for r in range(8):
                fl.append(Flt("v_fma_f32 v%d, v%d, v%d, -v%d" % (b + r, b + r, RL + t, RL + 4 + t) if OPT["ob"] else "v_mul_f32 v%d, v%d, v%d" % (b + r, b + r, RL + t), lo))
            for r in range(4): fl.append(Flt("v_cvt_pk_bf16_f32 v%d, v%d, v%d" % (b + r, b + 2 * r, b + 2 * r + 1), lo))
            grp.append("buffer_store_dwordx4 %s, v%d, %s, s%d offen offset:%d" % (vr(b), V_FR, sr(S_WS), 56 + u, t * 1024) + SC + " ;@o")
            if len(grp) == OPT["ogrp"]:
                fl.append(Flt("\n".join(grp), lo, 72 + OPT["ogap"] - 8))
                grp = []
    for u in range(4): P(4 + u, "s_add_u32 s%d, s%d, %d" % (56 + u, S_OST, u * 4096))
    free = [g for g in range(10, 70) if not pin.get(g)]
    ops = preload(31)
    for n, f in enumerate(ops):
        g = free[(n * len(free)) // len(ops)]
        for y in f(S_T0):
            if y: P(g, y)
    return mf, pin, fl

def redo():
    P = []
    A = P.append
    A("L_k2_redo:")
    A("s_mov_b32 s%d, -1" % S_REDO)
    A("s_waitcnt vmcnt(0) lgkmcnt(0)")
    A("s_barrier")
    for pre, x in kv_dmas("k", 0, "k0") + kv_dmas("k", 1, "s0") + kv_dmas("k", 2, "s0") + kv_dmas("v", 0, "s0") + kv_dmas("v", 1, "s0"):
        P += pre + [x]
    A("v_and_b32 v32, 15, v0")
    A("v_lshlrev_b32 v32, 8, v32")
    A("v_lshrrev_b32 v%d, 4, v0" % V_TMP)
    A("v_lshl_add_u32 v32, v%d, 4, v32" % V_TMP)
    A("s_lshl_b32 s54, s%d, 19" % S_SL)
    A("s_mov_b32 s55, 128")
    for r in range(16): A("v_mov_b32 v%d, 0xff800000" % (56 + r))
    B = []
    A = B.append
    for ks in range(4):
        A("buffer_load_dwordx4 %s, v32, %s, s54 offen offset:%d" % (vr(VKF + 4 * ks), sr(S_K), ks * 64))
    A("s_waitcnt vmcnt(0)")
    for t in range(4): B += qk(VKF, t, "0")
    A("s_nop 7")
    for r in range(16): A("v_max_f32 v%d, v%d, v%d" % (56 + r, 56 + r, VS + r))
    A("s_add_u32 s54, s54, 4096")
    A("s_sub_u32 s55, s55, 1")
    A("s_cmp_lg_u32 s55, 0")
    A("s_cbranch_scc1 L_k2_maxloop")
    T = rowmax(56) + ["s_getpc_b64 s[54:55]", "v_mov_b32 v%d, s54" % (V_TMP + 4), "v_mov_b32 v%d, s55" % (V_TMP + 5), "s_barrier"] + kread(VKF, 0, 0) + ["s_waitcnt lgkmcnt(0)", "s_branch L_k2_attn"]
    return P, B, T

def isize(i):
    lit = any(re.match(r"^(0x[0-9a-f]+|-?\d+|L_.*)$", o) and not (re.match(r"^-?\d+$", o) and -16 <= int(o) <= 64) and
              not (o.startswith("0x") and (int(o, 16) <= 64 or int(o, 16) & 0x7fffffff in (0x3f000000, 0x3f800000, 0x40000000, 0x40800000))) for o in i.ops)
    if i.kind in ("mfma", "lds", "vmem", "smem"): return 8
    if i.kind == "wait" or i.op.startswith("s_cbranch") or i.op in ("s_branch", "s_nop", "s_barrier", "s_endpgm", "s_sleep"): return 4
    if i.kind == "salu": return 8 if lit else 4
    call = i.op.replace("_e64", "")
    if call != i.op: return 8
    short = ("v_exp_f32", "v_rcp_f32", "v_mov_b32", "v_mul_f32", "v_add_f32", "v_sub_f32", "v_max_f32", "v_min_u32", "v_max_u32", "v_and_b32", "v_or_b32", "v_xor_b32",
             "v_lshlrev_b32", "v_lshrrev_b32", "v_ashrrev_i32", "v_add_u32", "v_sub_u32", "v_mul_u32_u24", "v_fmac_f32", "v_readfirstlane_b32", "v_permlane16_swap_b32",
             "v_permlane32_swap_b32", "v_add_co_u32", "v_addc_co_u32", "v_accvgpr_mov_b32", "v_min_f32")
    if call in short or call.startswith("v_cmp"): return 8 if lit else 4
    return 8

def hop_round(r):
    P = ["s_mov_b64 exec, 0"] if OPT["pads"] == "cond" else []
    for w in range(1, 4): P += ["s_cmp_eq_u32 s%d, %d" % (S_WAVE, w), "s_cbranch_scc1 L_hop%d_%d" % (r, w)]
    P += ["s_branch L_hop%d_0" % r, "L_hop%d_ret:" % r]
    return P + (["s_mov_b64 exec, -1"] if OPT["pads"] == "cond" else [])

def add_pads(lines, rounds, extra):
    flat = [x for l in lines for x in l.split("\n")]
    ins = [I(x) for x in flat]
    size = 4 if OPT["pads"] == "cond" else 8
    out, where, pos, want, stop = [], [], None, False, False
    for n, (x, i) in enumerate(zip(flat, ins)):
        out.append(x)
        if i.kind == "none":
            if x.startswith(".p2align"):
                al = 1 << int(x.split()[1])
                old, pos = pos, (0 if al == 4096 else -(-pos // al) * al)
                if old is not None and old >> 12 != pos >> 12: want, since = True, pos & ~4095
            if x == "L_k2_redo:": stop = True
            if x[:-1] in extra:
                where.append(len(out)); out.append(None)
                if pos is not None:
                    old, pos = pos, pos + size
                    if old >> 12 != pos >> 12: want, since = True, pos & ~4095
            continue
        if pos is None: continue
        old, pos = pos, pos + isize(i)
        if old >> 12 != pos >> 12: want, since = True, pos & ~4095
        if want and not stop:
            nx = next(y for y in ins[n + 1:] if y.kind != "none")
            free = i.kind == "mfma" and cost(nx) > 0 and nx.kind != "vmem" or i.kind == "mfma" and nx.kind == "mfma"
            if (free or pos - since >= 40) and i.op != "s_getpc_b64" and not i.op.startswith("s_branch") and i.op != "s_endpgm":
                where.append(len(out)); out.append(None)
                pos += size; want = False
    k = 0
    for r, cnt in enumerate(rounds):
        mine = where[k:k + cnt] if r < len(rounds) - 1 else where[k:]
        k += cnt
        nw = HOP["waves"] if r == 0 and HOP["waves"] else 4
        assert len(mine) >= nw
        for q, o in enumerate(mine):
            nxt = "L_hop%d_%d" % (r, q + nw) if q + nw < len(mine) else "L_hop%d_ret" % r
            lab = "L_hop%d_%d" % (r, q)
            out[o] = [lab + ":", "s_cbranch_execz " + nxt] if OPT["pads"] == "cond" else ["s_branch %s_x" % lab, lab + ":", "s_branch " + nxt, lab + "_x:"]
    return [y for x in out for y in (x if isinstance(x, list) else [x])]

def gen(stamp=False):
    clk = OPT.get("clk", "s_memrealtime")
    st = lambda n: ["%s s[100:101]" % clk, "s_waitcnt lgkmcnt(0)", "s_mov_b32 s%d, s100" % (92 + n)] if stamp else []
    names = OPT.get("stamps", ["start", "gemm0", "gemm1", "tail0", "tail1", "dmath", "sarr", "end"])
    st0 = st
    OPT["st"] = st = lambda nm: st0(names.index(nm)) if nm in names else []
    S = setup(st)
    S += st("p0")
    S += srd(S_WU, 66, WG_BYTES)
    alu = (["CODEPF"] if not OPT["pf0"] else []) + setup2()
    for unit in range(2):
        r = 56 + 2 * unit
        alu += unit_line(r, unit) + ["s_lshl_b32 s%d, s%d, 13" % (r, r), "s_add_u32 s%d, s%d, s%d" % (r, r, S_HST), "s_add_u32 s%d, s%d, 4096" % (r + 1, r)]
    kg = lambda n: [xn_load(ks, rt) for ks in range(3 * n, 3 * n + 3) for rt in range(4)]
    ld = (kg(0) + chunk_dmas(TS[0]) if OPT["xfirst"] else chunk_dmas(TS[0]) + kg(0)) + kg(1)[:OPT["k1n"]]
    for n, (pre, x) in enumerate(ld):
        S += pre + [x]
        if OPT["pads"] and n in OPT["hops"]: S += hop_round(OPT["hops"].index(n))
        if n >= OPT["mix0"]:
            k = OPT["mix"] + (len(alu) > OPT["mix"] and alu[OPT["mix"]].startswith("s_addc"))
            S += alu[:k]; alu = alu[k:]
    S += alu + st("p2")
    if OPT["gb"]:
        S += ["v_mov_b32 v%d, %s" % (V_TMP + r, f32(OPT["gb"])) for r in range(4)] + ["v_mul_f32 v%d, s%d, v%d" % (V_TMP + 7, S_NL2E, V_TMP)]
    S += ["WAITVM c0 lgkmcnt(0)"] + st("p3") + ["s_barrier"] + treads(0, 0, 0) + ["WAITVM x0 lgkmcnt(0)"]
    G = ["; ---- projections: h = sigmoid(xn Wg) * (xn Wu) for 144 columns, q = xn Wq * log2(e) / sqrt(128) for one head (xn resident in registers)"] + \
        st("gemm0") + projection() + st("gemm1") + ["; ---- exponent reference per row: score of key 0 plus a constant (checked at the end, true maximum on the fallback path)"] + first_ref()[2] + st("max")
    if OPT.get("cut"): G += ["v_min_u32 v%d, 1, v0" % V_L0, "v_lshlrev_b32 v%d, 30, v%d" % (V_L0, V_L0), "s_branch L_k2_done"]
    PRE = step_pre()
    S0 = st("pre") + step(0) + st("s0") + ["s_mov_b32 s%d, 7" % S_CNT]
    body = lambda part, end: step(1, part=part) + step(2, part=part) + step(3, part=part) + \
        step(4, ["s_sub_u32 s%d, s%d, 1" % (S_CNT, S_CNT), "s_cmp_lg_u32 s%d, %d" % (S_CNT, end)], part) + ["s_cbranch_scc1 L_k2_loop" + part]
    BA, BB = body("a", 4), body("b", 0)
    T0 = resolve_waits(st("loop") + ["s_waitcnt vmcnt(17)", "v_add_u32 v%d, v%d, v%d" % (V_TMP, V_TMP, V_TMP + 1),
                        "v_add3_u32 v%d, v%d, v%d, v%d" % (V_TMP, V_TMP, V_TMP + 2, V_TMP + 3)] + poll_a()[1] +
                       ["v_readlane_b32 s%d, v%d, %d" % (56 + n, V_TMP, n) for n in range(4)] + guard("a") + step(29) + st("s29") + step(30) + st("s30") + seg_prefix(), once=True)
    def after(prev, cur):
        pv_ = [x for x in prev if I(x).kind == "vmem"]
        return resolve_waits(pv_ + cur, once=True)[len(pv_):]
    FX = [after(seg_flex((ph + 2) % 3), seg_flex(ph)) for ph in range(3)]
    BR = [after(seg_flex((min(v, 2) + 2) % 3), seg_bridge(v)) for v in range(4)]
    T1 = T0 + ["s_cbranch_scc1 L_k2_br3"]
    T0 = T1 + after(seg_flex(1), seg_p3())
    RS = after(seg_bridge(1), seg_rest() + st("tail1") + combine(st))
    jb = lambda ph: ["s_cbranch_scc1 L_k2_br%d" % ph]
    TAIL = T0 + jb(0) + ["L_k2_flex:", "; ---- stages of d assigned by progress among the four workgroups of a tile"] + FX[0] + jb(1) + FX[1] + jb(2) + FX[2] + ["s_cbranch_scc0 L_k2_flex", "L_k2_br0:"] + BR[0] + ["L_k2_rest:", "; ---- s = O W_o, exchange of the partial tiles, out = x + s * silu(d)"] + RS
    SIDE = ["L_k2_br1:"] + BR[1] + ["s_branch L_k2_rest", "L_k2_br2:"] + BR[2] + ["s_branch L_k2_rest", "L_k2_br3:"] + BR[3] + ["s_branch L_k2_rest"]
    D = ["L_k2_done:"]
    if stamp:
        D += st("done") + ["s_waitcnt vmcnt(0)"] + st("end") + ["v_mov_b32 v%d, s%d" % (16 + n, 92 + n) for n in range(8)] + \
             ["s_lshl_b32 s54, s2, 2", "s_add_u32 s54, s54, s%d" % S_WAVE, "s_lshl_b32 s54, s54, 5", "s_add_u32 s54, s54, 0x%x" % STAMP_OFF,
              "buffer_store_dwordx4 v[16:19], v%d, %s, s54 offen" % (V_L0, sr(S_WS)), "buffer_store_dwordx4 v[20:23], v%d, %s, s54 offen offset:16" % (V_L0, sr(S_WS))]
    D += ["L_k2_end:", "s_endpgm"]
    R0, RB, RT = redo()
    R0 = resolve_waits(R0)
    strip = lambda xs: [(x.replace(" v1,", " v7,").replace(" v9,", " v7,") if "in1" in OPT.get("kill", ()) else x).split(";@")[0].rstrip() for x in xs]
    SP = spin("a", [poll_a()[0]], poll_a()[1]) + sum([spin("b%d" % ph, [poll_b()[0]], poll_b()[1]) for ph in range(4)], []) + spin("d", [poll_d()[0]], poll_d()[1]) + spin("r", strip(fetch(1, (2, 1))), arrived((2, 1))) + spin("s", strip(fetch(1, (0,))), arrived((0,)))
    rest = ["; ---- attention steps: P V of 64 keys beside the scores and exponentials of the next 64"] + S0 + ["L_k2_loopa:"] + BA + ["L_k2_loopb:"] + BB + \
           ["L_k2_exit:", "; ---- last attention steps, O epilogue, first stages of d = h W_down"] + TAIL + D + \
           ["; ---- bounded re-polls of the hand-off words"] + SP + ["; ---- other exits of the assigned-stage loop"] + SIDE + \
           ["; ---- fallback: true row maxima over all keys, then the attention pass is repeated"] + R0 + ["L_k2_maxloop:"] + RB + RT
    pf = []
    if OPT["codepf"]:
        pf = ["s_getpc_b64 s[54:55]", "L_k2_pc:", "s_lshr_b32 s56, s2, 3", "s_lshl_b32 s56, s56, 2", "s_add_u32 s56, s56, s%d" % S_WAVE,
              "s_mul_i32 s56, s56, %d" % (6 * 128), "v_min_u32 v2, 5, v0", "v_lshlrev_b32 v2, 7, v2", "v_add_u32 v2, s56, v2",
              "v_min_u32 v2, L_k2_last-L_k2_pc, v2", "v_mov_b32 v3, s55", "v_add_co_u32 v2, vcc, s54, v2", "s_nop 1",
              "v_addc_co_u32 v3, vcc, 0, v3, vcc", "global_load_dword v%d, v[2:3], off" % VG]
        a = V_TMP + 4
        pf += ["s_lshr_b32 s56, s56, 1", "s_add_u32 s56, s56, L_k2_exit-L_k2_pc", "v_min_u32 v%d, 2, v0" % a, "v_lshlrev_b32 v%d, 7, v%d" % (a, a),
               "v_add_u32 v%d, s56, v%d" % (a, a), "v_min_u32 v%d, L_k2_last-L_k2_pc, v%d" % (a, a), "v_mov_b32 v%d, s55" % (a + 1),
               "v_add_co_u32 v%d, vcc, s54, v%d" % (a, a), "s_nop 1", "v_addc_co_u32 v%d, vcc, 0, v%d, vcc" % (a + 1, a + 1)]
    rest = rest[:-1] + ["L_k2_last:"] + rest[-1:]
    k = S.index("CODEPF")
    S = S[:k] + pf + S[k + 1:]
    head = resolve_waits(["; ---- set-up and first loads"] + S + G + ["L_k2_attn:", "; ---- attention: scores and probabilities of the first 64 keys"] + PRE, once=True)
    pre_only = head[head.index("L_k2_attn:"):]
    traces = [head + S0 + BA + BA + BB + BB + TAIL + D,
              TAIL[:TAIL.index("s_cbranch_scc1 L_k2_redo") + 1] + R0 + RB + RB + RT + pre_only + S0, SP,
              T1 + BR[3] + jb(0) + RS, T0 + jb(0) + BR[0] + RS, T0 + jb(0) + FX[0] + jb(1) + BR[1] + jb(0) + RS, T0 + jb(0) + FX[0] + jb(1) + FX[1] + jb(2) + BR[2] + jb(0) + RS,
              T0 + jb(0) + FX[0] + jb(1) + FX[1] + jb(2) + FX[2] + jb(0) + FX[0] + jb(1) + BR[1] + jb(0) + RS]
    lines = head + rest
    if OPT["pads"]: lines = add_pads(lines, OPT["rounds"], OPT["padl"])
    for v in OPT.get("nt", []):
        lines = [x.replace(" offen lds", " offen%s lds" % OPT.get("ntf", " nt")) if x.startswith("buffer_load_dwordx4 v%d," % v) else x for x in lines]
    return dict(name="attn_kernel", lines=lines, traces=traces, grid=256, block=256, lds=163840, vgpr=512, acc=256, sgpr=102)
```

```python
from asmlib import *
from layout import *

OPT = dict(code=True, stf=" sc1", wpf=4, both=0, stamp=0, bar=1, tlb=0, one=0)

def gen():
    L = []
    A = L.append
    sep = HOP["waves"] == 9
    A("s_cmp_ge_u32 s2, 256")
    A("s_cbranch_scc1 %s" % ("L_ln_hop" if sep else "L_ln_end"))
    st = lambda n: L.extend(["s_memrealtime s[%d:%d]" % (40 + 2 * n, 41 + 2 * n)] if OPT.get("stamp") else [])
    st(0)
    if HOP["waves"] and not sep:
        A("v_readfirstlane_b32 s3, v0")
        A("s_cmp_ge_u32 s3, 576")
        A("s_cbranch_scc1 L_ln_hop")
    A("s_load_dwordx2 s[4:5], s[0:1], %d" % ARG["x"])
    A("s_load_dwordx2 s[6:7], s[0:1], %d" % ARG["ws"])
    A("s_load_dwordx4 s[20:23], s[0:1], %d" % ARG["wg"])
    n = 0
    if OPT["code"]:
        A("; ---- code lines of both kernels are requested early")
        A("s_getpc_b64 s[26:27]")
        A("L_ln_pc:")
        A("s_lshr_b32 s16, s2, 3")
        A("v_lshl_add_u32 v30, v0, 5, s16")
        A("v_lshlrev_b32 v30, 7, v30")
        A("v_min_u32 v30, L_k2_last-L_ln_pc, v30")
        A("v_mov_b32 v31, s27")
        A("v_add_co_u32 v30, vcc, s26, v30")
        A("v_and_b32 v3, 7, v0")
        A("v_lshrrev_b32 v4, 3, v0")
        A("v_addc_co_u32 v31, vcc, 0, v31, vcc")
        if OPT["code"] == 1: A("global_load_dword v32, v[30:31], off")
    else:
        A("v_and_b32 v3, 7, v0")
        A("v_lshrrev_b32 v4, 3, v0")
    A("v_mul_u32_u24 v5, 1152, v3")
    A("v_lshl_add_u32 v5, v4, 4, v5")
    A("s_mul_i32 s3, s2, %d" % (8 * 1152))
    A("v_lshrrev_b32 v2, 6, v0")
    A("v_and_b32 v1, 63, v0")
    A("v_readfirstlane_b32 s16, v2")
    A("s_waitcnt lgkmcnt(0)")
    st(1)
    L += srd(8, 4, X_BYTES)
    A("buffer_load_dwordx4 v[8:11], v5, s[8:11], s3 offen")
    if OPT["one"]:
        A("v_mul_u32_u24 v12, 1152, v3")
        A("buffer_load_ushort v13, v12, s[8:11], s3 offen")
    L += srd(12, 6, WS_BYTES)
    A("s_mul_i32 s17, s2, 9")
    A("s_add_u32 s33, s16, s17")
    A("s_lshl_b32 s17, s2, 2")
    A("s_add_u32 s17, s17, s16")
    A("s_lshl_b32 s18, s16, 8")
    A("s_add_u32 s18, s18, s2")
    A("s_cmp_lt_u32 s16, 4")
    A("s_cselect_b32 s16, s17, s18")
    A("s_and_b32 s17, s16, 31")
    A("s_lshr_b32 s16, s16, 5")
    A("s_mul_i32 s19, s17, 36")
    A("s_add_u32 s19, s19, s16")
    A("s_lshl_b32 s19, s19, 10")
    A("s_add_u32 s19, s19, 0x%x" % HW_OFF)
    A("s_cmp_lt_u32 s16, 36")
    A("s_cselect_b32 s19, s19, 0x40000000")
    A("s_cmp_lt_u32 s16, 18")
    A("s_cselect_b32 s24, s20, s22")
    A("s_cselect_b32 s25, s21, s23")
    A("s_cselect_b32 s18, 0, 18")
    A("s_sub_u32 s16, s16, s18")
    L += srd(28, 24, WG_BYTES)
    A("s_mul_i32 s16, s16, %d" % (32 * 9216))
    A("s_lshl_b32 s17, s17, 5")
    A("s_add_u32 s16, s16, s17")
    A("s_add_u32 s16, s16, 8192")
    A("v_bfe_u32 v16, v1, 3, 2")
    A("v_lshlrev_b32 v16, 3, v16")
    A("v_lshrrev_b32 v17, 5, v1")
    A("v_lshl_add_u32 v16, v17, 2, v16")
    A("v_bfe_u32 v17, v1, 1, 2")
    A("v_add_u32 v16, v16, v17")
    A("v_mul_u32_u24 v16, 9216, v16")
    A("v_and_b32 v17, 1, v1")
    A("v_lshl_add_u32 v16, v17, 4, v16")
    if OPT["bar"] == 1: A("s_barrier")
    if OPT["bar"] == 2: A("s_waitcnt vmcnt(0)")
    A("buffer_load_dwordx4 v[36:39], v16, s[28:31], s16 offen")
    n += 1
    if OPT["code"] == 2:
        A("global_load_dword v32, v[30:31], off")
        n += 1
    if OPT["wpf"]:
        A("s_lshr_b32 s16, s2, 3")
        A("s_mul_i32 s16, s16, 9")
        A("v_add_u32 v16, s16, v2")
        A("v_mul_u32_u24 v16, 9216, v16")
        A("v_and_b32 v17, %d, v1" % (7 if OPT["both"] else 3))
        A("v_lshl_add_u32 v16, v17, %d, v16" % (7 if OPT["both"] else 8))
        A("s_and_b32 s16, s2, 7")
        A("s_lshl_b32 s16, s16, 10")
        for k in range(OPT["wpf"]):
            L += srd(28, 20 + 2 * (k & 1), WG_BYTES)
            if k == 2: A("s_add_u32 s16, s16, %d" % (288 * 9216))
            A("buffer_load_dword v%d, v16, s[28:31], s16 offen" % (33 + k % 3))
            n += 1
    A("v_mov_b32 v6, 0")
    A("v_lshrrev_b32 v7, 4, v0")
    A("v_min_u32 v7, 1, v7")
    A("v_lshlrev_b32 v7, 30, v7")
    A("v_lshl_add_u32 v7, v0, 2, v7")
    A("s_lshl_b32 s16, s2, 6")
    A("s_add_u32 s16, s16, 0x%x" % FLAG_OFF)
    A("buffer_store_dword v6, v7, s[12:15], s16 offen" + OPT["stf"])
    A("v_mul_u32_u24 v6, 48, v3")
    A("v_lshl_add_u32 v7, v2, 2, v6")
    A("v_lshrrev_b32 v5, 2, v4")
    A("v_lshlrev_b32 v5, 12, v5")
    A("v_and_b32 v4, 3, v4")
    A("v_lshl_add_u32 v5, v4, 8, v5")
    A("v_lshl_add_u32 v5, v3, 4, v5")
    A("s_lshr_b32 s16, s2, 3")
    A("s_mul_i32 s16, s16, %d" % (18 * 4096))
    A("s_bfe_u32 s17, s2, 0x20001")
    A("s_lshl_b32 s17, s17, 10")
    A("s_add_u32 s16, s16, s17")
    A("s_and_b32 s17, s2, 1")
    A("s_lshl_b32 s17, s17, 7")
    A("s_add_u32 s16, s16, s17")
    A("v_lshlrev_b32 v1, 4, v1")
    if OPT["tlb"]:
        A("v_mov_b32 v26, 0")
        A("s_and_b32 s17, s16, 0xffe00000")
        A("s_add_u32 s17, s17, 0x%x" % OPT["tlb"])
        A("buffer_load_dword v27, v26, s[12:15], s17 offen")
        n += 1
    st(2)
    A("s_waitcnt vmcnt(%d)" % (n + 1))
    st(3)
    for i in range(4):
        A("v_lshlrev_b32 v%d, 16, v%d" % (16 + 2 * i, 8 + i))
        A("v_and_b32 v%d, 0xffff0000, v%d" % (17 + 2 * i, 8 + i))
    def reduce(off, dst):
        A("s_nop 1")
        A("v_add_f32_dpp v40, v40, v40 row_ror:8 row_mask:0xf bank_mask:0xf")
        for op in ("v_permlane16_swap_b32", "v_permlane32_swap_b32"):
            A("v_mov_b32 v41, v40")
            A("s_nop 1")
            A("%s v40, v41" % op)
            A("v_add_f32 v40, v40, v41")
        A("ds_write_b32 v7, v40 offset:%d" % off)
        A("s_waitcnt lgkmcnt(0)")
        A("s_barrier")
        A("ds_read_b128 v[40:43], v6 offset:%d" % off)
        A("ds_read_b128 v[44:47], v6 offset:%d" % (off + 16))
        A("ds_read_b32 v48, v6 offset:%d" % (off + 32))
        A("s_waitcnt lgkmcnt(1)")
        for i in range(4): A("v_add_f32 v%d, v%d, v%d" % (40 + i, 40 + i, 44 + i))
        A("v_add_f32 v40, v40, v42")
        A("v_add_f32 v41, v41, v43")
        A("s_waitcnt lgkmcnt(0)")
        A("v_add_f32 v40, v40, v48")
        A("v_add_f32 v40, v40, v41")
        A("v_mul_f32 v%d, %s, v40" % (dst, f32(1.0 / 576)))
    if OPT["one"]:
        A("v_lshlrev_b32 v13, 16, v13")
        for i in range(8): A("v_sub_f32 v%d, v%d, v13" % (48 + i, 16 + i))
        for i in range(4): A("v_add_f32 v%d, v%d, v%d" % (40 + i, 48 + i, 52 + i))
        A("v_mul_f32 v44, v48, v48")
        A("v_mul_f32 v45, v49, v49")
        A("v_add_f32 v40, v40, v42")
        A("v_add_f32 v41, v41, v43")
        for i in range(2, 8): A("v_fmac_f32 v%d, v%d, v%d" % (44 + i % 2, 48 + i, 48 + i))
        A("v_add_f32 v40, v40, v41")
        A("v_add_f32 v41, v44, v45")
        A("s_nop 0")
        A("v_add_f32_dpp v40, v40, v40 row_ror:8 row_mask:0xf bank_mask:0xf")
        A("v_add_f32_dpp v41, v41, v41 row_ror:8 row_mask:0xf bank_mask:0xf")
        for op in ("v_permlane16_swap_b32", "v_permlane32_swap_b32"):
            L.extend(["v_mov_b32 v42, v40", "v_mov_b32 v43, v41", "s_nop 0", "%s v40, v42" % op, "%s v41, v43" % op, "v_add_f32 v40, v40, v42", "v_add_f32 v41, v41, v43"])
        A("ds_write2_b32 v7, v40, v41 offset0:0 offset1:96")
        A("s_waitcnt lgkmcnt(0)")
        A("s_barrier")
        for q, o in ((40, 0), (44, 16), (48, 384), (52, 400)): A("ds_read_b128 v[%d:%d], v6 offset:%d" % (q, q + 3, o))
        A("ds_read2_b32 v[14:15], v6 offset0:8 offset1:104")
        A("s_waitcnt lgkmcnt(1)")
        for i in range(4):
            A("v_add_f32 v%d, v%d, v%d" % (40 + i, 40 + i, 44 + i))
            A("v_add_f32 v%d, v%d, v%d" % (48 + i, 48 + i, 52 + i))
        for q in (40, 48):
            A("v_add_f32 v%d, v%d, v%d" % (q, q, q + 2))
            A("v_add_f32 v%d, v%d, v%d" % (q + 1, q + 1, q + 3))
        A("s_waitcnt lgkmcnt(0)")
        A("v_add_f32 v40, v40, v14")
        A("v_add_f32 v48, v48, v15")
        A("v_add_f32 v40, v40, v41")
        A("v_add_f32 v48, v48, v49")
        A("v_mul_f32 v40, %s, v40" % f32(1.0 / 576))
        A("v_mul_f32 v48, %s, v48" % f32(1.0 / 576))
        A("v_add_f32 v24, v13, v40")
        A("v_fma_f32 v25, -v40, v40, v48")
        A("v_max_f32 v25, 0, v25")
        A("v_cvt_pk_bf16_f32 v24, v24, v24")
        A("v_lshlrev_b32 v24, 16, v24")
        for i in range(8): A("v_sub_f32 v%d, v%d, v24" % (16 + i, 16 + i))
        for i in range(4): A("v_cvt_pk_bf16_f32 v%d, v%d, v%d" % (8 + i, 16 + 2 * i, 17 + 2 * i))
    else:
        for i in range(4): A("v_add_f32 v%d, v%d, v%d" % (40 + i, 16 + i, 20 + i))
        A("v_add_f32 v40, v40, v42")
        A("v_add_f32 v41, v41, v43")
        A("v_add_f32 v40, v40, v41")
        reduce(0, 24)
        for i in range(8): A("v_sub_f32 v%d, v%d, v24" % (48 + i, 16 + i))
        A("v_mul_f32 v40, v48, v48")
        A("v_mul_f32 v41, v49, v49")
        for i in range(2, 8): A("v_fmac_f32 v%d, v%d, v%d" % (40 + i % 2, 48 + i, 48 + i))
        A("v_add_f32 v40, v40, v41")
        A("v_cvt_pk_bf16_f32 v24, v24, v24")
        A("v_lshlrev_b32 v24, 16, v24")
        for i in range(8): A("v_sub_f32 v%d, v%d, v24" % (16 + i, 16 + i))
        for i in range(4): A("v_cvt_pk_bf16_f32 v%d, v%d, v%d" % (8 + i, 16 + 2 * i, 17 + 2 * i))
        reduce(384, 25)
    A("v_cvt_pk_bf16_f32 v25, v25, v25")
    A("v_lshlrev_b32 v25, 16, v25")
    A("v_add_f32 v25, %s, v25" % f32(1e-5))
    A("v_cvt_pk_bf16_f32 v25, v25, v25")
    A("v_lshlrev_b32 v25, 16, v25")
    A("v_sqrt_f32 v25, v25")
    for i in range(4):
        A("v_lshlrev_b32 v%d, 16, v%d" % (16 + 2 * i, 8 + i))
        A("v_and_b32 v%d, 0xffff0000, v%d" % (17 + 2 * i, 8 + i))
    A("v_cvt_pk_bf16_f32 v25, v25, v25")
    A("v_lshlrev_b32 v25, 16, v25")
    A("v_rcp_f32 v25, v25")
    A("s_nop 0")
    if SCALE["XE"]: A("v_mul_f32 v25, %s, v25" % f32(2.0 ** -SCALE["XE"]))
    for i in range(8): A("v_mul_f32 v%d, v%d, v25" % (16 + i, 16 + i))
    for i in range(4): A("v_cvt_pk_bf16_f32 v%d, v%d, v%d" % (8 + i, 16 + 2 * i, 17 + 2 * i))
    A("buffer_store_dwordx4 v[8:11], v5, s[12:15], s16 offen" + OPT["stf"])
    A("s_waitcnt vmcnt(%d)" % (n + 1))
    A("buffer_store_dwordx4 v[36:39], v1, s[12:15], s19 offen" + OPT["stf"])
    if OPT.get("stamp"):
        st(4); A("s_waitcnt vmcnt(0)"); st(5); A("s_waitcnt lgkmcnt(0)")
        for q in range(6): A("v_mov_b32 v%d, s%d" % (16 + q, 40 + 2 * q))
        A("s_lshl_b32 s16, s33, 5"); A("s_add_u32 s16, s16, 0x%x" % (STAMP_OFF + 0x20000)); A("v_mov_b32 v1, 0"); A("s_mov_b64 exec, 1")
        A("buffer_store_dwordx4 v[16:19], v1, s[12:15], s16 offen"); A("buffer_store_dwordx2 v[20:21], v1, s[12:15], s16 offen offset:16")
    A("L_ln_end:")
    A("s_endpgm")
    H = []
    if HOP["waves"]:
        H = ["; ---- workgroups 256..511: with EXEC = 0 each wave branches through landing points placed after the 4 KiB boundaries of",
             "; ---- attn_kernel, which loads those lines into the instruction cache (its fetch does not run ahead across a page)", "L_ln_hop:"] + (["s_cmp_ge_u32 s2, 512", "s_cbranch_scc1 L_hop0_ret", "v_readfirstlane_b32 s3, v0"] if sep else []) + ["s_mov_b64 exec, 0"]
        for w in range(1, HOP["waves"]): H += ["s_cmp_eq_u32 s3, %d" % ((0 if sep else 576) + 64 * w), "s_cbranch_scc1 L_hop0_%d" % w]
        H += ["s_branch L_hop0_0", "L_hop0_ret:", "s_endpgm"]
    return dict(name="ln_kernel", lines=L + H, traces=[L], grid=512 if sep else 256, block=576 if sep else 576 + 64 * HOP["waves"], lds=768, vgpr=56, acc=56, sgpr=56 if OPT.get("stamp") else 40)
```

```python
import re
from asmlib import *
from layout import *

SLOT = 36864
V_FR, V_TU, V_TQ, V_TH = 1, 2, 6, 8
V_DG, V_DQ, V_DH, V_DK, V_DV, V_DS, V_TS = 9, 10, 11, 12, 13, 14, 15
VA, VXN, VG, VU, VH = 16, 40, 72, 136, 200
V_KA, V_VA, V_ONE, V_TMP = 232, 236, 244, 248
VS, VNEG, VVF, VKF = 16, 40, 200, 216
VP = [[VG + 32, VG + 48], [VU + 16, VU + 48]]
S_WS, S_WG, S_WU, S_WQ, S_K, S_V, S_WH = 4, 8, 12, 16, 20, 24, 72
S_WAVE, S_SL, S_RB = 32, 33, 34
S_L1K, S_GB, S_QB, S_HB, S_HL, S_XN = 35, 36, 37, 38, 39, 40
S_T0, S_T1, S_HST, S_HHST, S_OST = 41, 42, 43, 44, 45
S_KO, S_VO, S_CNT, S_NL2E, S_QC, S_REDO, S_KV0 = 46, 47, 48, 49, 50, 51, 52
S_T2 = 53
S_GB1 = 83
S_T3 = 46
S_RT = [28, 29, 30, 31, 46, 47, 48, 82, 84]
S_HF = 3
KOFF = lambda j: (((j - 1) // 2) & 1) * 32768 + ((j - 1) & 1) * 16384
VOFF = lambda j: ((j // 2) & 1) * 32768 + (j & 1) * 16384
FLAG_LDS = 163776
SCR = 131072
V_SH, V_M1, V_FL = 56, 36, 8
S_SRC, S_SEN, S_WF = 8, 12, 88
S_PUB = 60
S_SHS, S_SHD, S_SCR, S_SO = 56, 57, 58, 59
S_U, S_AFL, S_DF = 42, 75, 50
SC = " sc1"
SUB = [[6, 7, 8, 9], [0, 1, 2, 13], [14, 15, 3, 4], [5, 10, 11, 12], [4, 5, 10, 11]]
SUBOFF = lambda i: i * 9216 + (16320 if i >= 12 else 0)
AX = 240
S_PG, S_PS = 50, 44
S_X8 = 1
VD, VSA, VXX, VT, XF, VSEL = 16, 88, 232, 248, 40, 76
VPK = [160, 164, 184, 188, 192, 196, 244]
WBUF = [216, 168, 200]
V_RD, V_RD2, V_H2, V_XO, V_L0, V_PL, V_F4, V_B8, V_1 = 2, 3, 4, 5, 7, 8, 9, 10, 11
V_PA = 32
S_X, S_OUT, S_AUX = 8, 12, 16
S_TO = [28, 29, 30, 31, 36, 37, 38, 39, 40]
S_LB = [69, 72, 73, 74]
S_HA, S_H2, S_XO, S_W8, S_BP, S_BC, S_DO = 43, 82, 83, 84, 80, 81, 44
S_IN = 85
OPT = dict(codepf=True, nt=[9, 10, 12, 13, 14], ogap=133, latepoll=0, coop=0, gb=1.5, ob=5, obx=(), ogrp=1, pgrp=(range(9), range(9)), outpf=0, pads="cond", hops=(None,), hopg=(), rounds=(18, 99), hopt=176, padl=("L_k2_body", "L_k2_br0", "L_k2_br1", "L_k2_br2", "L_k2_br3", "L_k2_rest", "L_r_spin"), lead=0, tie=(16, 16, 16, 0), mmin=1, dsp=28, pf3=240, pf3o=4096, perm16=0, ocap=4, k3=4, k5=0, rotw=1, rotkv=0, kvmix=0, early=0, sgaps=((6, 8, 10),) * 3, xfirst=0, k1n=12, mix=12, mix0=8, pf0=0,
           hspread=((4.3, 66), (8.0, 54)), park=1, a3=48, o0=0, odt=0, cap31=4, codepf2=1, single=0, margin=8, pollahead=96, defer=4, dflag=261, hfmask=3, gain=30, fixed=0, dget=-72, dlat=999, gdend=6, fstep=0, sdel=(60, 30, 16), blocks=((2, 3, 4), (5, 6), (7, 8)), sleep=0, refc=-6.0, snake="qpgtPGT", codepf3=[], outf=" sc1",
           quota=[10, 10, 18, 18, 18, 18, 18, 18, 15, 15, 18, 18, 18, 18, 18])

def snake(n, i, key):
    return list(range(n))[::-1] if i % 2 and key in OPT["snake"] else list(range(n))

def xn(ks, rt):
    return ar(16 * ks + 4 * rt) if ks < 16 else vr(VXN + 16 * (ks - 16) + 4 * rt)
def qf(t, ks):
    return vr((VG, VG + 16, VU, VU + 32)[ks] + 4 * t)
def oacc(dt, t): return ar(16 * dt + 4 * t)
def lacc(t): return ar(128 + 4 * t)

def dma(srd_, voff, sbase, sconst, lbase, lconst, tag, tmp=S_T0):
    return (["s_add_u32 m0, s%d, 0x%x" % (lbase, lconst), "s_add_u32 s%d, s%d, 0x%x" % (tmp, sbase, sconst)],
            "buffer_load_dwordx4 v%d, %s, s%d offen lds ;@%s" % (voff, sr(srd_), tmp, tag))

def chunk_slot(c): return 3 * SLOT if c == 11 else ((c + 1) % 3) * SLOT
TS = []
for c in range(12):
    TS.append(dict(kind="gugugguuqqqq"[c], unit=(c // 4) if c < 8 else (c - 8) // 2, half=(c >> 1 if c < 4 else c & 1), off=chunk_slot(c), tag="c%d" % c))
TS.insert(8, dict(kind="h", unit=0, half=0, off=3 * SLOT, tag="h"))

def chunk_dmas(ts):
    out = []
    for i in range(9):
        if ts["kind"] == "h":
            pre, x = dma(S_WS, V_FR, S_HB, i * 1024, S_HL, 3 * SLOT + i * 1024, "h")
            out.append((pre, x.replace(" offen lds", " offen sc1 lds")))
        else:
            q = ts["kind"] == "q"
            const = ts["half"] * 288 * (8192 if q else 9216) + (ts["unit"] * 128 if q else 0)
            pre = ["s_add_u32 m0, s%d, 0x%x" % (S_RT[i], ts["off"]), "s_mul_i32 s%d, s%d, %d" % (S_T0, S_RT[i], 64 if q else 72),
                   "s_add_u32 s%d, s%d, s%d" % (S_T0, S_T0, S_QB if q else (S_GB, S_GB1)[ts["unit"]])]
            if const: pre.append("s_add_u32 s%d, s%d, 0x%x" % (S_T0, S_T0, const))
            out.append((pre, "buffer_load_dwordx4 v%d, %s, s%d offen lds ;@%s" %
                        (V_DQ if q else V_DG, sr(S_WQ if q else (S_WG if ts["kind"] == "g" else S_WU)), S_T0, ts["tag"])))
    return out

def kv_dmas(which, j, tag):
    out = []
    for n in range(4):
        if which == "k":
            out.append(dma(S_K, V_DK, S_KV0, j * 16384 + n * 4096, S_L1K, KOFF(j) + n * 4096, tag))
        else:
            out.append(dma(S_V, V_DV, S_KV0, j * 16384 + n * 4096, S_L1K, 65536 + VOFF(j) + n * 4096, tag))
    return out

def xn_load(ks, rt):
    so = (S_T1, S_T2)[ks & 1]
    pre = ["s_add_u32 s%d, s%d, 0x%x" % (so, S_XN, ks * 4096)] if rt == 0 else []
    return (pre, "buffer_load_dwordx4 %s, v%d, %s, s%d offen offset:%d%s ;@x%d" % (xn(ks, rt), V_FR, sr(S_WS), so, rt * 1024, SC if OPT["coop"] else "", ks // 3))

def unit_line(r, u):
    if not OPT.get("perm", True):
        return ["s_lshl_b32 s%d, s%d, 1" % (r, S_SL), "s_add_u32 s%d, s%d, %d" % (r, r, u)]
    return ["s_add_u32 s%d, s%d, %d" % (r, S_SL, u + 1), "s_and_b32 s%d, s%d, 3" % (r, r), "s_and_b32 s%d, s%d, 28" % (r + 1, S_SL),
            "s_add_u32 s%d, s%d, s%d" % (r, r, r + 1), "s_lshl_b32 s%d, s%d, 1" % (r, r), "s_add_u32 s%d, s%d, %d" % (r, r, u)]

def setup(st):
    P = []
    A = P.append
    A("s_cmp_ge_u32 s2, 256")
    A("s_cbranch_scc1 L_k2_end")
    A("L_k2_entry:")
    P += st("start")
    A("s_load_dwordx2 s[60:61], s[0:1], %d" % ARG["ws"])
    A("s_load_dwordx4 s[64:67], s[0:1], %d" % ARG["wg"])
    A("s_load_dwordx2 s[68:69], s[0:1], %d" % ARG["k"])
    A("s_load_dwordx4 s[72:75], s[0:1], %d" % ARG["v"])
    A("s_load_dwordx2 s[70:71], s[0:1], %d" % ARG["wo"])
    A("s_load_dwordx4 s[76:79], s[0:1], %d" % ARG["wd"])
    A("s_load_dwordx2 s[80:81], s[0:1], %d" % ARG["x"])
    if OPT["pads"] and not OPT["coop"]: P += ["s_branch L_k2_body", ".p2align 12", "L_k2_body:"]
    A("v_lshrrev_b32 v15, 6, v0")
    A("v_and_b32 v0, 63, v0")
    A("v_readfirstlane_b32 s%d, v15" % S_WAVE)
    A("v_lshlrev_b32 v%d, 4, v0" % V_FR)
    A("s_and_b32 s54, s2, 7")
    A("s_lshl_b32 s54, s54, 2")
    A("s_bfe_u32 s55, s2, 0x20003")
    A("s_add_u32 s%d, s54, s55" % S_SL)
    if OPT["coop"]: P += coop()[0] + ["s_branch L_k2_body", ".p2align 12", "L_k2_body:", "CODEPF"]
    A("s_lshr_b32 s54, s2, 5")
    A("s_lshl_b32 s54, s54, 2")
    A("s_add_u32 s%d, s54, s%d" % (S_RB, S_WAVE))
    A("s_lshl_b32 s%d, s%d, 10" % (S_L1K, S_WAVE))
    A("s_mul_i32 s%d, s%d, %d" % (S_XN, S_RB, 18 * 4096))
    A("s_lshl_b32 s%d, s%d, 8" % (S_QB, S_SL))
    for u_, r_ in ((0, S_GB), (1, S_GB1)):
        P += unit_line(56, u_)
        A("s_lshl_b32 s%d, s56, 7" % r_)
    A("s_lshr_b32 s54, s2, 5")
    A("s_lshl_b32 s54, s54, 12")
    A("s_and_b32 s55, s2, %d" % OPT["hfmask"])
    A("s_bcnt1_i32_b32 s55, s55")
    A("s_and_b32 s%d, s55, 1" % S_HF)
    A("s_mul_i32 s54, s54, %d" % OPT["rotw"])
    A("s_add_u32 s%d, s54, s%d" % (S_RT[0], S_L1K))
    for i in range(1, 9):
        A("s_add_u32 s54, s%d, %d" % (S_RT[0], i * 4096))
        A("s_sub_u32 s55, s54, %d" % SLOT)
        A("s_min_u32 s%d, s54, s55" % S_RT[i])
    A("v_lshrrev_b32 v15, 3, v0")
    A("v_bfe_u32 v%d, v0, 4, 1" % V_TMP)
    A("s_and_b32 s54, s%d, 1" % S_WAVE)
    A("s_lshl_b32 s54, s54, 1")
    A("v_or_b32 v%d, s54, v%d" % (V_TMP, V_TMP))
    A("v_lshlrev_b32 v%d, 1, v%d" % (V_TMP, V_TMP))
    A("v_and_b32 v%d, 7, v0" % (V_TMP + 1))
    A("v_xor_b32 v%d, v%d, v%d" % (V_TMP, V_TMP, V_TMP + 1))
    A("v_lshlrev_b32 v%d, 4, v%d" % (V_TMP, V_TMP))
    A("v_mul_u32_u24 v%d, 9216, v15" % V_DG)
    A("v_add_u32 v%d, v%d, v%d" % (V_DG, V_DG, V_TMP))
    A("v_lshl_add_u32 v%d, v15, 13, v%d" % (V_DQ, V_TMP))
    if OPT["pf0"]: A("CODEPF")
    if OPT["pads"] and -1 in OPT["hops"]: P += hop_round(0)
    A("s_waitcnt lgkmcnt(0)")
    P += srd(S_WS, 60, WS_BYTES) + srd(S_WG, 64, WG_BYTES)
    return P

def coop():
    X, F, R = 76, 88, 136
    L = ["s_cmp_eq_u32 s%d, 3" % S_WAVE, "s_cselect_b32 s16, 0, s%d" % S_WAVE, "s_cselect_b32 s17, 0x40000000, 0",
         "v_and_b32 v4, 7, v0", "v_lshrrev_b32 v5, 3, v0", "v_mul_u32_u24 v6, 1152, v4", "v_lshl_add_u32 v6, v5, 4, v6",
         "s_and_b32 s18, s2, 0xe0", "s_add_u32 s18, s18, s%d" % S_SL, "s_mul_i32 s19, s18, %d" % (8 * 1152), "s_mul_i32 s54, s16, 384", "s_add_u32 s19, s19, s54",
         "s_waitcnt lgkmcnt(0)"] + srd(20, 80, X_BYTES)
    L += ["buffer_load_dwordx4 %s, v6, s[20:23], s19 offen offset:%d ;@xr" % (vr(X + 4 * i), 128 * i) for i in range(3)]
    P = []
    A = P.append
    A("v_lshlrev_b32 v6, 4, v4")
    A("v_add_u32 v6, %d, v6" % (4 * SLOT))
    A("s_lshl_b32 s54, s16, 2")
    A("v_add_u32 v7, s54, v6")
    A("v_lshrrev_b32 v8, 5, v0")
    A("v_lshlrev_b32 v8, 12, v8")
    A("v_bfe_u32 v12, v0, 3, 2")
    A("v_lshl_add_u32 v8, v12, 8, v8")
    A("v_lshl_add_u32 v8, v4, 4, v8")
    for x in ["s_lshr_b32 s19, s18, 3", "s_mul_i32 s24, s19, 384", "s_mul_i32 s19, s19, %d" % (18 * 4096), "s_bfe_u32 s54, s18, 0x20001", "s_lshl_b32 s54, s54, 10",
              "s_add_u32 s19, s19, s54", "s_and_b32 s54, s18, 1", "s_lshl_b32 s54, s54, 7", "s_add_u32 s19, s19, s54", "s_mul_i32 s54, s16, %d" % (6 * 4096),
              "s_add_u32 s19, s19, s54", "s_add_u32 s19, s19, s17", "s_lshl_b32 s54, s16, 7", "s_add_u32 s24, s24, s54", "s_and_b32 s54, s18, 7",
              "s_lshl_b32 s54, s54, 2", "s_add_u32 s24, s24, s54", "s_add_u32 s24, s24, s17", "s_add_u32 s85, s24, 0x%x" % (FLAG_OFF + 16384)]: A(x)
    P += OPT["st"]("z0") + ["WAITVM xr"] + OPT["st"]("z1")
    for i in range(12):
        A("v_lshlrev_b32 v%d, 16, v%d" % (F + 2 * i, X + i))
        A("v_and_b32 v%d, 0xffff0000, v%d" % (F + 2 * i + 1, X + i))
    def tree(n):
        while n > 1:
            h = n // 2
            for i in range(h): A("v_add_f32 v%d, v%d, v%d" % (R + i, R + i, R + n - 1 - i))
            n -= h
    def reduce(off, dst, fill):
        A("s_nop 1")
        A("v_add_f32_dpp v%d, v%d, v%d row_ror:8 row_mask:0xf bank_mask:0xf" % (R, R, R))
        for op in ("v_permlane16_swap_b32", "v_permlane32_swap_b32"):
            P.extend(["v_mov_b32 v%d, v%d" % (R + 1, R), "s_nop 1", "%s v%d, v%d" % (op, R, R + 1), "v_add_f32 v%d, v%d, v%d" % (R, R, R + 1)])
        A("ds_write_b32 v7, v%d offset:%d" % (R, off))
        P.extend(fill[:len(fill) // 2])
        P.extend(["s_waitcnt lgkmcnt(0)", "s_barrier", "ds_read_b128 %s, v6 offset:%d" % (vr(R), off)])
        P.extend(fill[len(fill) // 2:])
        P.extend(["s_waitcnt lgkmcnt(0)", "v_add_f32 v%d, v%d, v%d" % (R, R, R + 1), "v_add_f32 v%d, v%d, v%d" % (R, R, R + 2),
                  "v_mul_f32 v%d, %s, v%d" % (dst, f32(1.0 / 576), R)])
    for i in range(12): A("v_add_f32 v%d, v%d, v%d" % (R + i, F + i, F + 12 + i))
    tree(12)
    reduce(0, 11, [])
    for i in range(24): A("v_sub_f32 v%d, v%d, v11" % (R + 4 + i, F + i))
    for i in range(4): A("v_mul_f32 v%d, v%d, v%d" % (R + i, R + 4 + i, R + 4 + i))
    for i in range(4, 24): A("v_fmac_f32 v%d, v%d, v%d" % (R + i % 4, R + 4 + i, R + 4 + i))
    tree(4)
    fill = ["v_cvt_pk_bf16_f32 v11, v11, v11", "v_lshlrev_b32 v11, 16, v11"] + ["v_sub_f32 v%d, v%d, v11" % (F + i, F + i) for i in range(24)] + \
           ["v_cvt_pk_bf16_f32 v%d, v%d, v%d" % (X + i, F + 2 * i, F + 2 * i + 1) for i in range(12)]
    for i in range(12): fill += ["v_lshlrev_b32 v%d, 16, v%d" % (F + 2 * i, X + i), "v_and_b32 v%d, 0xffff0000, v%d" % (F + 2 * i + 1, X + i)]
    reduce(128, 12, fill)
    for x in ["v_cvt_pk_bf16_f32 v12, v12, v12", "v_lshlrev_b32 v12, 16, v12", "v_add_f32 v12, %s, v12" % f32(1e-5), "v_cvt_pk_bf16_f32 v12, v12, v12",
              "v_lshlrev_b32 v12, 16, v12", "v_sqrt_f32 v12, v12", "s_nop 0", "v_cvt_pk_bf16_f32 v12, v12, v12", "v_lshlrev_b32 v12, 16, v12", "v_rcp_f32 v12, v12",
              "s_nop 0", "v_mul_f32 v12, %s, v12" % f32(2.0 ** -SCALE["XE"])]: A(x)
    for i in range(3):
        for k in range(8): A("v_mul_f32 v%d, v%d, v12" % (F + 8 * i + k, F + 8 * i + k))
        for k in range(4): A("v_cvt_pk_bf16_f32 v%d, v%d, v%d" % (X + 4 * i + k, F + 8 * i + 2 * k, F + 8 * i + 2 * k + 1))
        A("buffer_store_dwordx4 %s, v8, %s, s19 offen%s ;@xs" % (vr(X + 4 * i), sr(S_WS), SC))
        A("s_add_u32 s19, s19, 8192")
    P += OPT["st"]("z2")
    G = ["v_min_u32 v200, 1, v0", "v_lshlrev_b32 v200, 30, v200", "v_mov_b32 v201, 1", "WAITVM xs"] + OPT["st"]("z3") + \
        ["buffer_store_dword v201, v200, %s, s85 offen%s" % (sr(S_WS), SC)]
    W = ["v_min_u32 v200, 23, v0", "v_lshrrev_b32 v202, 3, v200", "v_and_b32 v200, 7, v200", "v_lshlrev_b32 v200, 2, v200", "v_lshl_add_u32 v200, v202, 7, v200",
         "s_mul_i32 s85, s%d, 384" % S_RB, "s_add_u32 s85, s85, 0x%x" % (FLAG_OFF + 16384), "s_mov_b32 s86, 0x100000", "L_p0_spin:",
         "buffer_load_dword v202, v200, %s, s85 offen%s" % (sr(S_WS), SC), "s_sub_u32 s86, s86, 1", "s_waitcnt vmcnt(0)", "v_cmp_eq_u32 vcc, 0, v202",
         "s_cmp_eq_u32 s86, 0", "s_cbranch_scc1 L_p0_done", "s_cbranch_vccnz L_p0_spin", "L_p0_done:"] + OPT["st"]("z4")
    return L, P, G, W

def setup2():
    P = []
    A = P.append
    P += srd(S_WQ, 74, WQ_BYTES) + srd(S_K, 68, KV_BYTES) + srd(S_V, 72, KV_BYTES)
    t0, t1, t2, t3 = V_TMP, V_TMP + 1, V_TMP + 2, V_TMP + 3
    A("v_lshrrev_b32 v%d, 4, v0" % t0)
    A("v_bfe_u32 v%d, v0, 2, 2" % t1)
    A("v_lshl_add_u32 v15, v%d, 3, v%d" % (t0, t1))
    A("v_lshlrev_b32 v15, 7, v15")
    A("v_add_u32 v15, %d, v15" % TS[0]["off"])
    A("v_bfe_u32 v%d, v0, 3, 2" % t2)
    A("v_and_b32 v%d, 3, v0" % t3)
    for j in range(4):
        A("v_xor_b32 v%d, %d, v%d" % (V_TU + j, j, t2))
        A("v_lshl_add_u32 v%d, v%d, 5, v15" % (V_TU + j, V_TU + j))
        A("v_lshl_add_u32 v%d, v%d, 3, v%d" % (V_TU + j, t3, V_TU + j))
    A("v_add_u32 v15, %d, v15" % ((TS[9]["off"] - TS[0]["off"]) & 0xffffffff))
    A("v_lshlrev_b32 v%d, 1, v%d" % (t2, t2))
    for m in range(2):
        A("v_or_b32 v%d, %d, v%d" % (V_TQ + m, 4 * m, t3))
        A("v_xor_b32 v%d, v%d, v%d" % (V_TQ + m, V_TQ + m, t2))
        A("v_lshl_add_u32 v%d, v%d, 4, v15" % (V_TQ + m, V_TQ + m))
        if OPT.get("qfree"): A("v_add_u32 v%d, %d, v%d" % (V_TQ + m, (TS[9]["off"] - TS[0]["off"]) & 0xffffffff, V_TU + 2 * m))
    A("v_lshlrev_b32 v%d, 3, v0" % V_TH)
    A("v_add_u32 v%d, %d, v%d" % (V_TH, 3 * SLOT, V_TH))
    A("s_mul_i32 s%d, s%d, 9216" % (S_HL, S_WAVE))
    A("s_mul_i32 s54, s%d, %d" % (S_SL, SLOT))
    A("s_add_u32 s54, s54, s%d" % S_HL)
    A("s_add_u32 s%d, s54, 0x%x" % (S_HB, HW_OFF))
    A("s_lshl_b32 s54, s%d, 19" % S_RB)
    A("s_add_u32 s%d, s54, 0x%x" % (S_HST, H_OFF))
    A("s_lshl_b32 s55, s%d, 14" % S_SL)
    A("s_add_u32 s54, s54, s55")
    A("s_add_u32 s%d, s54, 0x%x" % (S_OST, O_OFF))
    A("s_lshr_b32 s54, s54, 3")
    A("s_add_u32 s%d, s54, 0x%x" % (S_HHST, H2_OFF - 3 * SLOT))
    A("s_mov_b32 s%d, %s" % (S_NL2E, f32(-LOG2E * 2.0 ** SCALE["XE"])))
    A("s_mov_b32 s%d, %s" % (S_QC, f32(LOG2E * 128 ** -0.5 * 2.0 ** SCALE["XE"])))
    A("s_mov_b32 s%d, 0" % S_REDO)
    A("s_mov_b32 s0, 0x07060302")
    A("s_lshl_b32 s54, s%d, 19" % S_SL)
    A("s_add_u32 s%d, s54, s%d" % (S_KV0, S_L1K))
    A("s_lshl_b32 s54, s%d, 2" % S_WAVE)
    A("v_add_u32 v15, s54, v%d" % t0)
    A("v_and_b32 v%d, 15, v0" % t2)
    A("v_xor_b32 v%d, v%d, v15" % (V_DK, t2))
    A("v_lshlrev_b32 v%d, 4, v%d" % (V_DK, V_DK))
    A("v_lshl_add_u32 v%d, v%d, 8, v%d" % (V_DK, t0, V_DK))
    A("v_and_b32 v15, 7, v15")
    A("v_lshlrev_b32 v15, 1, v15")
    A("v_xor_b32 v%d, v%d, v15" % (V_DV, t2))
    A("v_lshlrev_b32 v%d, 4, v%d" % (V_DV, V_DV))
    A("v_lshl_add_u32 v%d, v%d, 8, v%d" % (V_DV, t0, V_DV))
    for ks in range(4):
        A("v_or_b32 v15, %d, v%d" % (4 * ks, t0))
        A("v_xor_b32 v15, v15, v%d" % t2)
        A("v_lshlrev_b32 v15, 4, v15")
        A("v_lshl_add_u32 v%d, v%d, 8, v15" % (V_KA + ks, t2))
    A("v_lshrrev_b32 v%d, 2, v0" % t1)
    A("v_and_b32 v%d, 7, v%d" % (t2, t1))
    A("v_lshlrev_b32 v%d, 8, v%d" % (t1, t1))
    A("v_lshl_add_u32 v%d, v%d, 3, v%d" % (t1, t3, t1))
    A("v_add_u32 v%d, 0x10000, v%d" % (t1, t1))
    for dt in range(8):
        A("v_xor_b32 v15, %d, v%d" % (dt, t2))
        A("v_lshl_add_u32 v%d, v15, 5, v%d" % (V_VA + dt, t1))
    for r in range(4):
        A("v_mov_b32 v%d, 0x%x" % (V_ONE + r, (0x3f80 - 0x80 * SCALE["XE"]) * 0x10001))
    A("s_add_u32 s%d, s60, 0x%x" % (S_WF, WF_OFF))
    A("s_addc_u32 s%d, s61, 0" % (S_WF + 1))
    A("s_and_b32 s%d, s%d, 0xffff" % (S_WF + 1, S_WF + 1))
    A("s_mov_b32 s%d, 0x%x" % (S_WF + 2, 272 * SLOT))
    A("s_mov_b32 s%d, 0x20000" % (S_WF + 3))
    A("v_lshrrev_b32 v%d, 3, v0" % t0)
    A("v_mul_u32_u24 v%d, 1152, v%d" % (t0, t0))
    A("v_and_b32 v%d, 7, v0" % t1)
    A("v_lshl_add_u32 v%d, v%d, 4, v%d" % (V_DS, t1, t0))
    A("s_lshl_b32 s54, s%d, 12" % S_WAVE)
    A("s_add_u32 s54, s54, %d" % SCR)
    A("v_lshrrev_b32 v%d, 2, v0" % t0)
    A("v_lshlrev_b32 v%d, 7, v%d" % (t0, t0))
    A("v_lshl_add_u32 v%d, v%d, 3, v%d" % (t0, t3, t0))
    A("v_add_u32 v%d, s54, v%d" % (V_TS, t0))
    P += slab_base(54) + rot(55)
    A("s_bfe_u32 s56, s2, 0x20001")
    A("s_mul_i32 s56, s56, %d" % (18 * 1024))
    A("s_add_u32 s54, s54, s56")
    for c in range(2, 9):
        P += slot_tile(56, 55, c)
        A("s_lshl_b32 s56, s56, 11")
        A("s_add_u32 s%d, s54, s56" % (S_PUB + c))
    return P

def slab_base(r):
    return ["s_lshr_b32 s%d, s2, 3" % r, "s_lshl_b32 s%d, s%d, 1" % (r, r),
            "s_add_u32 s%d, s%d, s%d" % (r, r, S_HF), "s_lshl_b32 s%d, s%d, 2" % (r, r), "s_add_u32 s%d, s%d, s%d" % (r, r, S_WAVE),
            "s_mul_i32 s%d, s%d, %d" % (r, r, 72 * 1024), "s_add_u32 s%d, s%d, 0x%x" % (r, r, PART_OFF)]

def rot(r):
    return ["s_and_b32 s%d, s2, 6" % r]

def slot_tile(d, r, c):
    if c == 2: return ["s_mov_b32 s%d, 8" % d]
    return ["s_add_u32 s%d, s%d, %d" % (d, r, c if c < 2 else c - 1), "s_and_b32 s%d, s%d, 7" % (d, d)]

def relayout():
    sc = [["s_mul_i32 s55, s%d, 7282" % S_U], ["s_lshr_b32 s55, s55, 16"],
          ["s_lshl_b32 s%d, s%d, 12" % (S_SHD, S_U)], ["s_mul_i32 s%d, s55, 9" % S_SHS], ["s_sub_u32 s54, s%d, s%d" % (S_U, S_SHS)],
          ["s_lshl_b32 s54, s54, 7"],
          ["s_cmp_lt_u32 s55, 144", "s_cselect_b32 s%d, s76, s70" % S_SRC, "s_cselect_b32 s%d, s77, s71" % (S_SRC + 1)],
          ["s_cmp_lt_u32 s55, 144", "s_cselect_b32 s%d, 0, 144" % S_SHS, "s_cselect_b32 s%d, 9, 8" % (S_SRC + 2)],
          ["s_mul_i32 s%d, s%d, %d" % (S_SRC + 2, S_SRC + 2, 512 * 1152)],
          ["s_and_b32 s%d, s%d, 0xffff" % (S_SRC + 1, S_SRC + 1)],
          ["s_sub_u32 s55, s55, s%d" % S_SHS], ["s_mul_i32 s55, s55, %d" % SLOT], ["s_add_u32 s%d, s55, s54" % S_SHS],
          ["s_add_u32 s%d, s%d, 1024" % (S_U, S_U)]]
    dm = [dma(S_SRC, V_DS, S_SHS, n * 9216, S_SCR, n * 1024, "sh") for n in range(4)]
    rd = [["ds_read_b64_tr_b16 %s, v%d offset:%d" % (vr(V_SH + 4 * q + 2 * h, 2), V_TS, q * 32 + h * 2048) for h in range(2)] for q in range(4)]
    stv = ["buffer_store_dwordx4 %s, v%d, %s, s%d offen offset:%d%s" % (vr(V_SH + 4 * q), V_FR, sr(S_WF), S_SHD, q * 1024, SC) for q in range(4)]
    mk = ["buffer_store_dwordx4 %s, v%d, %s, s%d offen offset:%d%s" % (vr(V_M1), v, sr(S_WS), S_SO, o, SC) for v, o in ((V_FR, 1024), (V_FR, 3072), (V_F4, 1024))]
    return sc, dm, rd, stv, mk

def groups(tau):
    ts = TS[tau]
    if ts["kind"] == "h":
        return [(t, 3 * kg) for t in range(2) for kg in snake(6, t, "G")]
    if tau in (0, 2):
        return [(t, 9 * ts["half"] + 3 * kg) for kg in range(3) for t in snake(4, kg, "G")]
    return [(t, 9 * ts["half"] + 3 * kg) for t in range(4) for kg in snake(3, t, "G")]

BLK = {("g", 0): [VG, VG + 16, VG + 32, VG + 48], ("g", 1): [VH, VH + 16, VG, VG + 16], ("h", 0): [VG + 32, VG + 48],
       ("q", 0): [VG, VH, VG + 16, VH + 16]}
for key in (("u", 0), ("u", 1), ("q", 1)): BLK[key] = [VU, VU + 16, VU + 32, VU + 48]

def treads(tau, grp, buf):
    ts = TS[tau]
    t, k0 = groups(tau)[grp]
    out = []
    for kk in range(3):
        for h in range(2):
            d = vr(VA + 12 * buf + 4 * kk + 2 * h, 2)
            if ts["kind"] == "h":
                out.append("ds_read_b64_tr_b16 %s, v%d offset:%d" % (d, V_TH, t * 18432 + (k0 + kk) * 1024 + h * 512))
            else:
                o = (k0 + kk - 9 * ts["half"]) * 4096 + h * 512
                if ts["kind"] == "q":
                    out.append("ds_read_b64_tr_b16 %s, v%d offset:%d" % (d, V_TQ + t // 2, o + (t & 1) * (0 if OPT.get("qfree") else 8)))
                else:
                    out.append("ds_read_b64_tr_b16 %s, v%d offset:%d" % (d, V_TU + t, o))
    return out

def projection():
    mf, pin = [], {}
    done, first, blocked = {}, {}, set()
    XW = {(0, 3): 1, (0, 7): 2, (1, 11): 3, (2, 3): 4, (2, 7): 5}
    P = lambda g, x: pin.setdefault(g, []).append(x)
    for tau in range(13):
        blk = BLK[(TS[tau]["kind"], TS[tau]["unit"])]
        for gi, (t, k0) in enumerate(groups(tau)):
            buf = (12 * tau + gi) & 1
            g0 = len(mf)
            for c, rt in enumerate(snake(4, gi, "G")):
                d = vr(blk[t] + 4 * rt)
                key = (TS[tau]["kind"], TS[tau]["unit"], t, rt)
                for kk in snake(3, c, "g"):
                    if key not in done: first.setdefault(blk[t] + 4 * rt, []).append(len(mf))
                    mf.append(mfma(d, vr(VA + 12 * buf + 4 * kk), xn(k0 + kk, rt), d if key in done else (vr(V_TMP) if OPT["gb"] and (key[0] == "g" or key[0] == "h" and t == 0) else "0")))
                    done[key] = len(mf) - 1
            nt, ng = (tau, gi + 1) if gi < 11 else (tau + 1, 0)
            if nt < 13:
                for i, x in enumerate(treads(nt, ng, buf ^ 1)): P(g0 + i, x)
            w = "s_waitcnt lgkmcnt(0)"
            if (tau, gi) in XW: w = "WAITVM x%d lgkmcnt(0)" % XW[(tau, gi)]
            if gi == 10 and tau < 12:
                tags = TS[tau + 1]["tag"] + (",k0" if tau == 11 else "")
                P(g0 + 11, "WAITVM %s lgkmcnt(0)" % tags)
                P(g0 + 11, "s_barrier")
            elif nt < 13:
                P(g0 + 11, w)
        ts = TS[tau]
        nxt = [x for x in TS[tau + 1:] if (x["kind"] == "q") == (ts["kind"] == "q") and x["kind"] != "h"]
        if ts["kind"] != "h" and nxt:
            delta = (nxt[0]["off"] - ts["off"]) & 0xffffffff
            regs = {}
            for gi, (t, k0) in enumerate(groups(tau)):
                regs[V_TQ + t // 2 if ts["kind"] == "q" else V_TU + t] = gi
            for r, gi in regs.items():
                P(144 * tau + 12 * (gi - 1) + 6, "v_add_u32 v%d, 0x%x, v%d" % (r, delta, r))
    plan = {t: [] for t in range(13)}
    order = [0, 1, 2, 3, 4, 5, 6, 7, 9, 10, 11, 12]
    hd = chunk_dmas(TS[8])
    kg = lambda n: [xn_load(ks, rt) for ks in range(3 * n, 3 * n + 3) for rt in range(4)]
    plan[0] = kg(1)[OPT["k1n"]:] + kg(2) + (chunk_dmas(TS[1]) if not OPT["coop"] else []) + kg(3)[:OPT["k3"]]
    plan[1] = chunk_dmas(TS[2]) + kg(3)[OPT["k3"]:] + kg(4) + kg(5)[:OPT["k5"]]
    plan[2] = kg(5)[OPT["k5"]:] + chunk_dmas(TS[3]) + chunk_dmas(TS[4])
    for tau in range(3, 10): plan[tau] = chunk_dmas(TS[tau + 2 if tau < 7 else tau + 3])
    plan[5] += chunk_dmas(TS[8])[:3]
    plan[6] = chunk_dmas(TS[8])[3:] + chunk_dmas(TS[9])[:6]
    plan[7] = chunk_dmas(TS[9])[6:] + plan[7]
    plan[10] = kv_dmas("k", 1, "s0") + kv_dmas("k", 2, "s0")
    plan[11] = kv_dmas("k", 0, "k0")
    plan[12] = kv_dmas("v", 0, "s0") + kv_dmas("v", 1, "s0")
    for tau in range(13):
        ops = plan[tau]
        if tau < 3:
            free = [g for g in range(144 * tau, 144 * tau + 144) if g % 12 in OPT["sgaps"][tau] and not pin.get(g)]
            for g, (pre, x) in zip(free, ops):
                for y in pre: P(g, y)
                P(g, x)
            assert len(ops) <= len(free)
        else:
            for i, (pre, x) in enumerate(ops):
                g = 144 * tau + 12 * i + 8 - OPT["lead"]
                assert i < 12
                for k, y in enumerate(pre): P(g - 7 + k, y)
                P(g, x)
    sc, va = tail_setup()
    g = 144 * 10
    for x in sc:
        while g % 12 > 5 or any(cost(I(y)) == 0 for y in pin.get(g, [])): g += 1
        P(g, x)
    assert g < 144 * 13 - 12, g
    for k, x in enumerate(va): P(144 * 12 + 72 + 12 * k, x)
    P(144 * 12 + 60, "v_lshrrev_b32 v%d, 4, v0" % V_TMP)
    P(144 * 12 + 61, "v_lshlrev_b32 v%d, 4, v%d" % (V_TMP, V_TMP))
    for ks in range(4):
        P(144 * 12 + 102 + ks, "ds_read_b128 %s, v%d offset:%d" % (vr(VVF + 4 * ks), V_TMP, KOFF(0) + 64 * ks))
    for r in range(16):
        P(144 * 12 + (114, 115, 116, 117, 118, 126, 127, 128)[r // 2], ("v_xor_b32 v%d, 0x80008000, v%d" if not OPT.get("cref") else "v_and_b32 v%d, 0x80008000, v%d") % (VVF + r, VVF + r))
    for r in range(4): P(144 * 12 + 129 + r // 2, "v_mov_b32 v%d, %s" % (V_TMP + r, f32(OPT["refc"])))
    for ks in range(4):
        P(144 * 12 + 132 + ks, "ds_read_b128 %s, v%d offset:%d" % (vr(VKF + 4 * ks), V_KA + ks, KOFF(0)))
    fl = []
    LAT = 6
    END = 144 * 12
    def reuse(reg, after):
        return min([g for g in first[reg] if g > after] + [END + 4]) - 4
    def add(text, lo, hi): fl.append(Flt(text, lo, hi))
    def glu(gkey, gt, ukey, ut, rt, dst):
        gb, ub = BLK[gkey][gt] + 4 * rt, BLK[ukey][ut] + 4 * rt
        lo, lu = done[gkey + (gt, rt)] + LAT, done[ukey + (ut, rt)] + LAT
        hu = min(reuse(ub, lu), reuse(dst & ~3, lu))
        hi = min(reuse(gb, lo), hu)
        first_op = "v_fma_f32 v%%d, s%d, v%%d, -v%d" % (S_NL2E, V_TMP + 7) if OPT["gb"] else "v_mul_f32 v%%d, s%d, v%%d" % S_NL2E
        for op in (first_op, "v_exp_f32 v%d, v%d", "v_add_f32 v%d, 1.0, v%d", "v_rcp_f32 v%d, v%d"):
            for r in range(4): add(op % (gb + r, gb + r), lo, hi)
        for r in range(4): add("v_mul_f32 v%d, v%d, v%d" % (ub + r, ub + r, gb + r), lu, hi)
        for h in range(2): add("v_cvt_pk_bf16_f32 v%d, v%d, v%d" % (dst + h, ub + 2 * h, ub + 2 * h + 1), lu, hu)
        return lu
    for unit in range(2):
        for t in range(4):
            for rt in range(4):
                d = VU + 16 * (t & 2) + 4 * rt if unit or t < 2 or not OPT["park"] else VG + 32 + 4 * rt
                lu = glu(("g", unit), t, ("u", unit), t, rt, d + 2 * (t & 1))
                if t & 1:
                    t0_, dt_ = OPT["hspread"][unit]
                    add("buffer_store_dwordx4 %s, v%d, %s, s%d offen offset:%d" % (vr(d), V_FR, sr(S_WS), 56 + 2 * unit + t // 2, rt * 1024) + SC,
                        max(lu, int(144 * t0_) + (2 * (t & 2) + rt) * dt_), reuse(d, lu))
    for rt in range(4):
        d = BLK[("h", 0)][0] + 4 * rt
        lu = glu(("h", 0), 0, ("h", 0), 1, rt, d)
        add("buffer_store_dwordx2 %s, v%d, %s, s%d offen offset:%d" % (vr(d, 2), V_TH, sr(S_WS), S_HHST, rt * 512) + SC, max(lu, 144 * 11 + 30 * rt), END)
    for unit in range(2):
        blk = BLK[("q", unit)]
        for t in range(4):
            for rt in range(4):
                lo = done[("q", unit, t, rt)] + LAT
                hi = END + 96 if unit == 0 else (END + 140 if t < 2 else None)
                r0 = blk[t] + 4 * rt
                for r in range(4): add("v_mul_f32 v%d, s%d, v%d" % (r0 + r, S_QC, r0 + r), lo, hi)
                d = blk[t & 2] + 4 * rt + 2 * (t & 1)
                for h in range(2): add("v_cvt_pk_bf16_f32 v%d, v%d, v%d" % (d + h, r0 + 2 * h, r0 + 2 * h + 1), lo, hi)
    fl.sort(key=lambda f: f.hi if f.hi is not None else 1 << 30)
    head, xl, _ = first_ref()
    P(len(mf), xl[0]); P(len(mf) + 1, xl[1])
    mf += head
    out, left = schedule(mf, pin, fl, window=64, blocked=blocked)
    out += [f.i.text for f in left]
    if OPT.get("hflag") is not None: out = [x.replace(SC, OPT["hflag"]) if x.startswith("buffer_store") else x for x in out]
    for pat in OPT.get("gdrop", []): out = [x for x in out if not x.startswith(pat)]
    idx = [i for i, x in enumerate(out) if x.startswith("v_mfma")]
    for g in range(len(idx) - 1, 0, -1):
        ins = OPT["st"]("t%d" % (g // 144)) if g % 144 == 0 else []
        if OPT["pads"] and g in OPT["hopg"]: ins = ins + hop_round(len(OPT["hops"]) + OPT["hopg"].index(g))
        out[idx[g]:idx[g]] = ins
    return out

def kread(buf, j, kt):
    return ["ds_read_b128 %s, v%d offset:%d" % (vr(buf + 4 * ks), V_KA + ks, KOFF(j) + kt * 4096) for ks in range(4)]
def vread(buf, j, u):
    return ["ds_read_b64_tr_b16 %s, v%d offset:%d" % (vr(buf + 8 * d + 4 * b + 2 * h, 2), V_VA + 2 * u + d, VOFF(j) + b * 8192 + h * 4096)
            for d in range(2) for b in range(2) for h in range(2)]
def E(t, r): return "v_exp_f32 v%d, v%d" % (VS + 4 * t + r, VS + 4 * t + r)
def C(par, kt, t, h):
    if OPT["perm16"]:
        return "v_perm_b32 v%d, v%d, v%d, s0" % (VP[par][kt >> 1] + 4 * t + 2 * (kt & 1) + h, VS + 4 * t + 2 * h + 1, VS + 4 * t + 2 * h)
    return "v_cvt_pk_bf16_f32 v%d, v%d, v%d" % (VP[par][kt >> 1] + 4 * t + 2 * (kt & 1) + h, VS + 4 * t + 2 * h, VS + 4 * t + 2 * h + 1)
def qk(kbuf, t, c0):
    d = vr(VS + 4 * t)
    return [mfma(d, vr(kbuf + 4 * ks), qf(t, ks), c0 if n == 0 else d) for n, ks in enumerate(snake(4, t, "q"))]
def pv(vbuf, par, u, init):
    ts = [(u + k) % 4 for k in range(4)] if "P" in OPT["snake"] else list(range(4))
    return [mfma(oacc(2 * u + d, ts[k]), vr(vbuf + 8 * d + 4 * b), vr(VP[par][b] + 4 * ts[k]), (ar(252) if OPT["ob"] else "0") if init and n == 0 else oacc(2 * u + d, ts[k]))
            for d in range(2) for c, k in enumerate(snake(4, d, "P")) for n, b in enumerate(snake(2, c + 1, "p"))]
def psum(par, t, init):
    return [mfma(lacc(t), vr(V_ONE), vr(VP[par][b] + 4 * t), "0" if init and n == 0 else lacc(t)) for n, b in enumerate(snake(2, 1, "P"))]

def rowmax(src):
    P = []
    A = P.append
    for t in range(4):
        A("v_max3_f32 v%d, v%d, v%d, v%d" % (V_TMP + t, src + 4 * t, src + 4 * t + 1, src + 4 * t + 2))
    for t in range(4):
        A("v_max_f32 v%d, v%d, v%d" % (V_TMP + t, V_TMP + t, src + 4 * t + 3))
    for op in ("v_permlane32_swap_b32", "v_permlane16_swap_b32"):
        for t in range(4): A("v_mov_b32 v%d, v%d" % (32 + t, V_TMP + t))
        A("s_nop 1")
        for t in range(4): A("%s v%d, v%d" % (op, V_TMP + t, 32 + t))
        for t in range(4): A("v_max_f32 v%d, v%d, v%d" % (V_TMP + t, V_TMP + t, 32 + t))
    for t in range(4):
        for r in range(4): A("v_sub_f32 v%d, 0, v%d" % (VNEG + 4 * t + r, V_TMP + t))
    return P

def first_ref():
    xl = ["buffer_load_dwordx2 %s, v%d, %s, s%d offen offset:%d" % (ar(AX + 4 * c + 2 * rt, 2), V_XO + rt, sr(S_X), S_XO if c < 2 else S_X8, (c & 1) * 32)
          for rt in range(2) for c in range(3)]
    m = lambda t, ks, c: mfma(vr(VNEG + 4 * t), vr(VVF + 4 * ks), qf(t, ks), c or vr(VNEG + 4 * t))
    head = [m(t, ks, vr(V_TMP) if n == 0 else None) for t in range(4) for n, ks in enumerate(snake(3, t, "q"))]
    P = ["s_waitcnt lgkmcnt(0)", "s_nop 0"]
    for t in range(4): P += [m(t, 3, None), xl[2 + t]]
    return head, xl[:2], P

def step_pre():
    P = ["s_add_u32 s%d, s%d, %d" % (S_KO, S_KV0, 3 * 16384), "s_add_u32 s%d, s%d, %d" % (S_VO, S_KV0, 2 * 16384)]
    for n in range(16):
        kt, t = n >> 2, n & 3
        kbuf = VKF if kt % 2 == 0 else VVF
        ms = qk(kbuf, t, vr(VNEG + 4 * t))
        rd = []
        if t == 0:
            if kt > 0: P.append("s_waitcnt lgkmcnt(0)")
            if kt == 3: P += ["WAITVM s0", "s_barrier"] + (["ds_read_b128 v[32:35], v36"] if OPT["ob"] else [])
            rd = kread(VVF if kt % 2 == 0 else VKF, 0, kt + 1) if kt < 3 else kread(VKF, 1, 0)
        for i, m in enumerate(ms):
            P.append(m)
            if rd: P.append(rd[i])
            if n >= 2: P.append(E((n - 2) & 3, i))
            if n == 1: P.append(("v_lshrrev_b32 v36, 4, v0", "v_lshlrev_b32 v36, 4, v36", "v_add_u32 v36, 0x10000, v36", "s_nop 0")[i])
        if n >= 2:
            P += [C(0, (n - 2) >> 2, (n - 2) & 3, 0), C(0, (n - 2) >> 2, (n - 2) & 3, 1)]
    if not OPT["ob"]:
        return P + [E(2, r) for r in range(4)] + [C(0, 3, 2, 0), C(0, 3, 2, 1), "s_nop 1", E(3, 0), E(3, 1), "s_waitcnt lgkmcnt(0)"]
    P += ["s_waitcnt lgkmcnt(0)"] + ["v_and_b32 v%d, 0x7fff7fff, v%d" % (32 + r, 32 + r) for r in range(4)]
    P += ["v_add_u32 v%d, 0x%x, v%d" % (32 + r, OPT["ob"] * 0x800080, 32 + r) for r in range(4)] + [E(2, 0), E(2, 1)]
    rest = [[E(2, 2)], [E(2, 3)], [C(0, 3, 2, 0), C(0, 3, 2, 1)], [E(3, 0), E(3, 1)]]
    for t in range(4): P += [mfma(vr(V_SH + 4 * t), vr(32), vr(VP[0][0] + 4 * t), "0")] + rest[t]
    return P

def step(i, tail_scalars=(), part=""):
    par = i & 1
    mf, pin, fl = [], {}, []
    P = lambda g, x: pin.setdefault(g, []).append(x)
    for u in range(4):
        g0 = 34 * u
        for t in range(4): mf += qk(VKF, t, vr(VNEG + 4 * t))
        mf += pv(VVF, par, u, i == 0) + psum(par, u, i == 0)
        ppar, pkt = (par, 3) if u == 0 else (par ^ 1, u - 1)
        tr = vread(VVF, i, u)
        for g, k in zip(OPT.get('tpos', (0, 2, 2, 4, 6, 6, 8, 8)), range(8)): P(g0 + g, tr[k])
        P(g0 + 0, C(ppar, pkt, 3, 0)); P(g0 + 1, E(3, 2)); P(g0 + 3, E(3, 3)); P(g0 + 4, C(ppar, pkt, 3, 1))
        for e in range(14): P(g0 + 7 + 2 * e, E(e >> 2, e & 3))
        for c in range(6): P(g0 + 10 + 4 * c, C(par ^ 1, u, c >> 1, c & 1))
        if u == 3 and par == 1:
            P(g0 + 15, "s_waitcnt vmcnt(%d) lgkmcnt(0)" % {(1, 'a'): 7, (3, 'a'): 4, (1, 'b'): 1, (3, 'b'): 6, (29, ''): 17}[(i, part)]); P(g0 + 15, "s_barrier")
        elif u == 3 and i == 30:
            P(g0 + 15, "s_waitcnt lgkmcnt(0)"); P(g0 + 15, "s_barrier")
        else:
            P(g0 + 15, "s_waitcnt lgkmcnt(0)")
        if i == 30 and u == 3:
            tr = vread(VKF, 31, 0)
            for g, k in zip((16, 16, 18, 20, 20, 22, 24, 24), range(8)): P(g0 + g, tr[k])
        else:
            rd = kread(VKF, i + 1, u + 1) if u < 3 else kread(VKF, i + 2, 0)
            for g, k in zip((16, 18, 20, 22), range(4)): P(g0 + g, rd[k])
        P(g0 + 33, "s_waitcnt lgkmcnt(0)")
        if par == 0 and i < 30:
            for n, g in enumerate(OPT.get('gpos', (5, 12, 24, 28))):
                k = 4 * u + n
                isk, pc = (k % 2 == 0, k // 2) if OPT["kvmix"] else (k < 8, k & 7)
                so = S_KO if isk else S_VO
                P(g0 + g - 2, "s_add_u32 m0, s%d, 0x%x" % (S_L1K, (KOFF(i + 3) if isk else 65536 + VOFF(i + 2)) + pc * 4096))
                P(g0 + g - 1, "s_add_u32 s%d, s%d, %d" % (S_T0, so, pc * 4096))
                P(g0 + g, "buffer_load_dwordx4 v%d, %s, s%d offen lds" % (V_DK if isk else V_DV, sr(S_K if isk else S_V), S_T0))
            if u == 3:
                P(g0 + 29, "s_add_u32 s%d, s%d, 32768" % (S_KO, S_KO)); P(g0 + 30, "s_add_u32 s%d, s%d, 32768" % (S_VO, S_VO))
    for k, x in enumerate(tail_scalars): P(102 + 31 + k, x)
    if i == 0:
        sc, va = loop_setup()
        fl = [Flt(x) for x in va]
        if OPT["ob"]:
            z = V_SH
            ops = ["v_min3_f32 v%d, v%d, v%d, v%d" % (z, z, z + 4, z + 8), "v_min_f32 v%d, v%d, v%d" % (z, z, z + 12)]
            for sh in OPT["obx"]: ops += ["s_nop 1\nv_min_f32_dpp v%d, v%d, v%d row_ror:%d row_mask:0xf bank_mask:0xf" % (z, z, z, sh)]
            ops += ["v_and_b32 v%d, 0x7f800000, v%d" % (z, z), "v_mul_f32 v%d, %s, v%d" % (z, f32(1.5), z)] + ["v_accvgpr_write_b32 a%d, v%d" % (252 + r, z) for r in range(4)]
            for g, x in zip((3, 4, 6, 7, 8, 9, 10, 11, 13, 13, 14, 14)[-len(ops):], ops): P(g, x)
        g = 0
        for x in sc:
            while any(cost(I(y)) == 0 or I(y).kind == "vmem" for y in pin.get(g, [])): g += 1
            P(g, x)
        assert g < 136
    if i == 1 and part == 'a':
        sc, dm, rd, stv, mk = relayout()
        g = 0
        for grp in sc:
            while (pin.get(g) if len(grp) > 1 else any(cost(I(y)) == 0 for y in pin.get(g, []))): g += 1
            for x in grp: P(g, x)
            g += 1
        assert g <= 42, g
        for g, (pre, x) in zip((34 + 12, 34 + 24, 34 + 28, 34 + 32), dm):
            P(g - 2, pre[0]); P(g - 1, pre[1]); P(g, x.split(";@")[0].rstrip())
        for g, x in zip((68 + 12, 68 + 28, 102 + 12), mk): P(g, x)
        P(102 + 13, "s_add_u32 s%d, s%d, 6144" % (S_SO, S_SO))
    if i == 1 and part == 'b':
        P(0, "s_lshl_b32 s54, s%d, 3" % S_WAVE); P(1, "s_add_u32 s54, s54, s%d" % S_CNT)
        P(5, "s_cmp_eq_u32 s54, 4"); P(5, "s_cselect_b32 s%d, s%d, 0x40000000" % (S_T2, S_AFL))
        P(102 + 24, "buffer_store_dword v%d, v%d, %s, s%d offen%s" % (V_1, V_L0, sr(S_WS), S_T2, SC))
    if i == 3 and part == 'a':
        sc, dm, rd, stv, mk = relayout()
        P(23, "s_waitcnt vmcnt(19)")
        for g, xs in zip((24, 28, 34 + 24, 34 + 28), rd):
            for x in xs: P(g, x)
        for g, x in zip((34 + 5, 34 + 32, 68 + 5, 68 + 24), stv): P(g, x)
    if part == 'b':
        P(68 + 32, "buffer_atomic_add v%d, v%d, %s, s%d offen%s" % (V_1, V_L0, sr(S_WS), S_PG, SC))
    if i == 3 and part == 'b':
        P(102 + 5, "global_load_dword v%d, %s, off" % (V_TMP + 6, vr(V_TMP + 4, 2)))
        for u in range(4): P(34 * u + 12, "buffer_load_dword v%d, v%d, %s, s%d offen%s" % (V_TMP + u, V_B8, sr(S_WS), S_PS, SC))
    if i == 3 and part == 'b':
        P(102 + 24, "s_cmp_eq_u32 s%d, 1" % S_CNT); P(102 + 24, "s_cselect_b32 s%d, 0, 0x40000000" % S_T2)
        P(102 + 25, "s_add_u32 s%d, s%d, 0x%x" % (S_T2, S_T2, FLAG_OFF + 4096))
        P(102 + 28, poll_a()[0])
    if i in (29, 30):
        gaps = [34 * u + g for u in range(4) for g in (5, 12, 24, 28, 32) if i == 29 or (u, g) not in ((0, 24), (3, 24))]
        ops = preload(i)
        assert len(ops) == len(gaps)
        for g, f in zip(gaps, ops):
            m, so, x = f(S_T0)
            if m: P(g - 2, m)
            P(g - 1, so); P(g, x)
        def scalars(g, xs):
            for x in xs:
                while any(cost(I(y)) == 0 or I(y).kind == "vmem" for y in pin.get(g, [])): g += 1
                P(g, x)
            return g
    if i == 29:
        t = V_TMP
        free = [34 * u + g for u in range(4) for g in (10, 14, 16, 20, 26, 30)]
        S1, V, S2, R, S3 = proposal()
        g = scalars(0, S1)
        free = [x for x in free if x > g]
        for x in V:
            g = free.pop(0)
            P(g, x)
        g = scalars(g + 1, S2)
        free = [x for x in free if x > g]
        for x in R: P(free.pop(0), x)
    if i == 30:
        assert scalars(0, proposal()[4]) < 20
        P(16, "v_mov_b32 v33, 0"); P(20, "v_mov_b32 v32, s%d" % S_REM)
        P(24, "buffer_atomic_cmpswap v[32:33], v%d, %s, s%d offen offset:16 sc0 sc1 ;@cas" % (V_L0, sr(S_WS), S_PS))
    if i == 30:
        P(68 + 13, "WAITVM cas"); P(68 + 14, "v_readfirstlane_b32 s54, v32")
        g = scalars(68 + 16, ["s_min_u32 s55, s54, 1", "s_sub_u32 s55, s55, 1", "s_and_b32 s55, s55, s%d" % S_REM, "s_or_b32 s54, s54, s55",
                              "s_lshl_b32 s55, s%d, 2" % S_WAVE, "s_add_u32 s55, s55, %d" % (FLAG_LDS + 16)])
        assert g < 68 + 26
        P(68 + 26, "v_mov_b32 v32, s54"); P(68 + 30, "v_mov_b32 v33, s55")
        P(102 + 10, "ds_write_b32 v33, v32"); P(102 + 14, "v_mov_b32 v33, %d" % (FLAG_LDS + 16))
        P(102 + 26, "ds_read_b32 v32, v33")
        assert scalars(25, late_setup()) < 68
    out, left = schedule(mf, pin, fl)
    assert not left
    if 1 <= i <= 4:
        for pat in OPT.get("drop", []):
            out = [x for x in out if not x.startswith(pat)]
        for pat, a_, b_ in OPT.get("sub", []):
            out = [x.replace(a_, b_) if x.startswith(pat) else x for x in out]
    return out

def proposal():
    mm, t = OPT["mmin"], V_TMP
    S1 = ["s_add_u32 s54, s56, s57", "s_add_u32 s55, s58, s59", "s_add_u32 s54, s54, s55", "s_mul_i32 s54, s54, %d" % OPT["gain"], "s_sub_u32 s54, %d, s54" % (1280 - 768)]
    for n in range(4):
        S1 += ["s_mul_i32 s%d, s%d, %d" % (56 + n, 56 + n, 4 * OPT["gain"]), "s_add_u32 s%d, s%d, s54" % (56 + n, 56 + n), "s_add_u32 s54, s54, %d" % OPT["tie"][n]]
    V = ["v_lshl_add_u32 v%d, v0, 4, s%d" % (t + n, 56 + n) for n in range(4)] + ["v_ashrrev_i32 v%d, 8, v%d" % (t + n, t + n) for n in range(4)] + \
        ["v_med3_i32 v%d, v%d, %d, 20" % (t + n, t + n, mm) for n in range(4)] + \
        ["v_add3_u32 v32, v%d, v%d, v%d" % (t, t + 1, t + 2), "v_add_u32 v32, v32, v%d" % (t + 3), "v_cmp_le_i32 vcc, 20, v32"]
    S2 = ["s_ff1_i32_b64 s54, vcc", "s_and_b32 s54, s54, 63"]
    R = ["v_readlane_b32 s%d, v%d, s54" % (56 + n, t + n) for n in (0, 1, 3)]
    S3 = ["s_add_u32 s57, s57, s56", "s_sub_u32 s59, 20, s59", "s_min_u32 s56, s56, %d" % (20 - 3 * mm), "s_min_u32 s57, s57, %d" % (20 - 2 * mm),
          "s_add_u32 s54, s57, %d" % mm, "s_max_i32 s59, s59, s54", "s_lshl_b32 s57, s57, 8", "s_lshl_b32 s59, s59, 16", "s_or_b32 s56, s56, s57",
          "s_or_b32 s59, s59, 0x14000000", "s_or_b32 s%d, s56, s59" % S_REM]
    if OPT["fixed"]: S3.append("s_mov_b32 s%d, 0x%x" % (S_REM, OPT["fixed"]))
    return S1[:-1], V, S2, R, S3

def poll_a():
    a = V_PA
    return ("buffer_load_dwordx4 %s, v%d, %s, s%d offen%s" % (vr(a), V_FR, sr(S_WS), S_T2, SC),
            ["v_and_b32 v%d, v%d, v%d" % (a, a, a + 1), "v_and_b32 v%d, v%d, v%d" % (a + 2, a + 2, a + 3),
             "v_and_b32 v%d, v%d, v%d" % (a, a, a + 2), "v_cmp_eq_u32 vcc, 0, v%d" % a])

def poll_b():
    return ("buffer_load_dword v%d, v%d, %s, s%d offen%s" % (V_PL, V_B8, sr(S_WS), S_BC, SC), ["v_cmp_eq_u32 vcc, 0, v%d" % V_PL])

def poll_d():
    return ("buffer_load_dword v%d, v%d, %s, s%d offen%s" % (V_PL, V_B8, sr(S_WS), S_DF, SC), ["v_cmp_eq_u32 vcc, 0, v%d" % V_PL])

def spin(name, loads, check):
    return ["L_%s_spin:" % name, "s_mov_b32 s55, 0x%x" % OPT.get("spin", 0x100000), "L_%s_loop:" % name] + (["s_sleep %d" % OPT["sleep"]] if OPT["sleep"] and name == "s" else []) + loads + ["s_sub_u32 s55, s55, 1", "s_waitcnt vmcnt(0)"] + check + \
           ["s_cmp_eq_u32 s55, 0", "s_cbranch_scc1 L_%s_ret" % name, "s_cbranch_vccnz L_%s_loop" % name, "s_branch L_%s_ret" % name]

def guard(name):
    return ["s_cbranch_vccnz L_%s_spin" % name, "L_%s_ret:" % name]

def tail_setup():
    P = srd(S_X, 80, X_BYTES) + srd(S_AUX, 60, 0)
    A = P.append
    j, a, b, c, r = 42, 54, 55, 53, 46
    A("s_bfe_u32 s%d, s2, 0x20001" % j)
    A("s_xor_b32 s%d, s%d, s%d" % (a, j, S_WAVE))
    A("s_min_u32 s%d, s%d, 1" % (a, a))
    A("s_sub_u32 s%d, 1, s%d" % (a, a))
    A("s_lshl_b32 s%d, s%d, 28" % (S_AUX + 2, a))
    A("s_lshr_b32 s%d, s2, 5" % a)
    A("s_lshl_b32 s%d, s%d, 1" % (a, a))
    A("s_add_u32 s%d, s%d, s%d" % (a, a, S_HF))
    A("s_lshl_b32 s%d, s%d, 2" % (b, a))
    A("s_add_u32 s%d, s%d, s%d" % (b, b, S_WAVE))
    A("s_mul_i32 s%d, s%d, %d" % (S_XO, b, 32 * 1152))
    A("s_lshr_b32 s%d, s%d, 1" % (a, b))
    A("s_and_b32 s%d, s%d, 1" % (b, b))
    A("s_lshl_b32 s%d, s%d, 2" % (c, a))
    A("s_add_u32 s%d, s%d, s%d" % (c, c, j))
    A("s_lshl_b32 s%d, s%d, 5" % (S_BC, c))
    A("s_add_u32 s%d, s%d, 0x%x" % (S_BC, S_BC, FLAG_OFF))
    A("s_lshl_b32 s%d, s%d, 17" % (S_HA, c))
    A("s_lshl_b32 s%d, s%d, 14" % (S_H2, c))
    A("s_lshl_b32 s%d, s%d, 11" % (c, b))
    A("s_add_u32 s%d, s%d, s%d" % (S_HA, S_HA, c))
    A("s_lshl_b32 s%d, s%d, 10" % (c, b))
    A("s_add_u32 s%d, s%d, s%d" % (S_H2, S_H2, c))
    A("s_lshl_b32 s%d, s%d, 5" % (c, S_RB))
    A("s_add_u32 s%d, s%d, s%d" % (c, c, S_SL))
    A("s_lshl_b32 s%d, s%d, 2" % (c, c))
    A("s_add_u32 s%d, s%d, 0x%x" % (S_BP, c, FLAG_OFF))
    A("s_bfe_u32 s%d, s2, 0x20003" % a)
    A("s_mul_i32 s%d, s%d, 288" % (b, a))
    A("s_add_u32 s%d, s%d, s%d" % (S_XO, S_XO, b))
    A("s_mul_i32 s%d, s%d, 9216" % (a, a))
    A("s_lshl_b32 s%d, s%d, 5" % (b, j))
    A("s_add_u32 s%d, s%d, s%d" % (b, b, S_WAVE))
    A("s_mul_i32 s%d, s%d, %d" % (b, b, SLOT))
    A("s_add_u32 s%d, s%d, s%d" % (c, a, b))
    A("s_mul_i32 s%d, s%d, 28" % (a, j))
    A("s_sub_u32 s%d, 128, s%d" % (a, a))
    A("s_mul_i32 s%d, s%d, %d" % (S_W8, a, SLOT))
    P += rot(r)
    for n in range(9):
        P += slot_tile(a, r, n) + ["s_lshl_b32 s%d, s%d, 10" % (a, a), "s_add_u32 s%d, s%d, s%d" % (S_TO[n], a, c)]
    A("s_add_u32 s%d, s%d, 256" % (S_X8, S_XO))
    A("s_lshl_b32 s%d, s%d, 5" % (a, r))
    A("s_add_u32 s%d, s%d, s%d" % (S_XO, S_XO, a))
    P += slab_base(47)
    A("s_lshl_b32 s%d, s%d, 11" % (a, r))
    A("s_add_u32 s47, s47, s%d" % a)
    for n in range(3):
        A("s_add_u32 s%d, s%d, %d" % (a, j, n + 1))
        A("s_and_b32 s%d, s%d, 3" % (a, a))
        A("s_mul_i32 s%d, s%d, %d" % (a, a, 18 * 1024))
        A("s_add_u32 s%d, s%d, s47" % (S_IN + n, a))
    A("s_lshl_b32 s%d, s%d, 2" % (c, S_WAVE))
    for q in range(4):
        A("s_lshr_b32 s%d, 0x%x, s%d" % (a, sum(v << (4 * k) for k, v in enumerate(SUB[q])), c))
        A("s_and_b32 s%d, s%d, 15" % (a, a))
        A("s_add_u32 s%d, s%d, 4" % (b, a))
        A("s_lshr_b32 s%d, s%d, 4" % (b, b))
        A("s_mul_i32 s%d, s%d, 16320" % (b, b))
        A("s_mul_i32 s%d, s%d, 9216" % (a, a))
        A("s_add_u32 s%d, s%d, s%d" % (S_LB[q], a, b))
    V = ["v_and_b32 v%d, 15, v0" % V_XO, "v_mul_u32_u24 v%d, 1152, v%d" % (V_XO, V_XO), "v_lshrrev_b32 v%d, 4, v0" % (V_XO + 1),
         "v_lshl_add_u32 v%d, v%d, 3, v%d" % (V_XO, V_XO + 1, V_XO), "v_add_u32 v%d, %d, v%d" % (V_XO + 1, 16 * 1152, V_XO)]
    return P, V

def late_setup():
    return srd(S_OUT, 78, X_BYTES) + ["s_lshr_b32 s54, s2, 3", "s_lshl_b32 s54, s54, 1", "s_add_u32 s54, s54, s%d" % S_HF,
            "s_lshl_b32 s54, s54, 2", "s_add_u32 s54, s54, s%d" % S_WAVE, "s_lshl_b32 s54, s54, 4",
            "s_add_u32 s%d, s54, 0x%x" % (S_DF, FLAG_OFF + 8192), "s_bfe_u32 s54, s2, 0x20001", "s_lshl_b32 s54, s54, 2",
            "s_add_u32 s%d, s54, s%d" % (S_DO, S_DF)]

def loop_setup():
    P = slab_base(54)
    A = P.append
    A("s_mov_b32 s%d, 0x20000" % (S_SRC + 3))
    A("s_bfe_u32 s55, s2, 0x20001")
    A("s_mul_i32 s55, s55, %d" % (18 * 1024))
    A("s_add_u32 s%d, s55, s54" % S_SO)
    A("s_lshl_b32 s%d, s2, 2" % S_U)
    A("s_add_u32 s%d, s%d, 0x%x" % (S_AFL, S_U, FLAG_OFF + 4096))
    A("s_add_u32 s%d, s%d, s%d" % (S_U, S_U, S_WAVE))
    A("s_lshl_b32 s%d, s%d, 12" % (S_SCR, S_WAVE))
    A("s_add_u32 s%d, s%d, %d" % (S_SCR, S_SCR, SCR))
    A("s_lshr_b32 s54, s2, 3")
    A("s_lshl_b32 s54, s54, 1")
    A("s_add_u32 s54, s54, s%d" % S_HF)
    A("s_lshl_b32 s54, s54, 6")
    A("s_min_u32 s55, s%d, 1" % S_WAVE)
    A("s_lshl_b32 s55, s55, 30")
    A("s_add_u32 s54, s54, s55")
    A("s_add_u32 s%d, s54, 0x%x" % (S_PS, FLAG_OFF + 12288))
    A("s_bfe_u32 s55, s2, 0x20001")
    A("s_lshl_b32 s55, s55, 2")
    A("s_add_u32 s%d, s%d, s55" % (S_PG, S_PS))
    V = ["v_mov_b32 v%d, -1" % (V_M1 + r) for r in range(4)]
    V += ["v_mov_b32 v%d, 1" % V_1, "v_min_u32 v%d, 1, v0" % V_L0, "v_lshlrev_b32 v%d, 30, v%d" % (V_L0, V_L0),
         "v_add_u32 v%d, 0x10000, v%d" % (V_RD, V_FR), "v_add_u32 v%d, 0x20000, v%d" % (V_RD2, V_FR), "v_lshlrev_b32 v%d, 3, v0" % V_H2,
         "v_add_u32 v%d, 0x1000, v%d" % (V_F4, V_FR), "v_and_b32 v%d, 7, v0" % V_B8, "v_lshlrev_b32 v%d, 2, v%d" % (V_B8, V_B8)]
    return P, V

def accr(job, c, rt): return (VD if job == 0 else VSA) + 8 * c + 4 * rt
RING = [SUBOFF(6), SUBOFF(0), SUBOFF(12)]
V_RA = 12
S_KAP, S_WD, S_AD, S_REM = 47, 48, 42, 53
def stage(name, ring=None):
    k, n = name[0], int(name[1])
    if k == "p": return dict(name=name, job=0, ab=(144, 176, 208, 0)[n], sub=n, lb=S_LB[n], src=n if n < 3 else "h2", init=n == 0)
    if k == "f": return dict(name=name, job=0, ab=(144, 176, 208)[n], ring=n, lb=S_LB[n], src="dyn", init=False)
    r = n % 3 if ring is None else ring
    return dict(name=name, job=1, ab=(32, 64, 96, 0, 144, 176, 208, 32)[n], ring=r, lb=S_LB[r], src=9 + n, init=n == 0)
def act(st, k, rt, n=4, o=0): return ar(st["ab"] + 8 * k + 4 * rt + o, n)

def stage_loads(st):
    w, a = [], []
    src, nm = st["src"], st["name"]
    for c in range(9):
        def f(t, c=c):
            so = "s_add_u32 s%d, s%d, s%d" % (t, S_TO[c], S_W8 if src == "h2" else S_WD) if src in ("h2", "dyn") else \
                 "s_add_u32 s%d, s%d, 0x%x" % (t, S_TO[c], (4 * src if src < 8 else 144 + 4 * (src - 9)) * SLOT)
            return ("s_add_u32 m0, s%d, 0x%x" % (st["lb"], (c + st.get("sp", 0)) * 1024), so,
                    "buffer_load_dwordx4 v%d, %s, s%d offen%s lds ;@w%s" % (V_FR, sr(S_WF), t, SC, st.get("wn", nm)))
        w.append(f)
    for k in range(4):
        for hf in range(2 if src == "h2" else 1):
            for rt in range(2):
                def f(t, k=k, hf=hf, rt=rt):
                    if src == "h2":
                        return (None, "s_add_u32 s%d, s%d, 0x%x" % (t, S_H2, H2_OFF + k * 4096),
                                "buffer_load_dwordx2 %s, v%d, %s, s%d offen offset:%d%s ;@a%s" %
                                (act(st, k, rt, 2, 2 * hf), V_H2, sr(S_WS), t, hf * 2048 + rt * 512, SC, nm))
                    r, o = (S_AD, H_OFF + k * 4096) if src == "dyn" else \
                           (S_HA, H_OFF + (4 * src + k) * 4096 if src < 8 else O_OFF + (4 * (src - 9) + k) * 4096)
                    return (None, "s_add_u32 s%d, s%d, 0x%x" % (t, r, o),
                            "buffer_load_dwordx4 %s, v%d, %s, s%d offen offset:%d%s ;@a%s" % (act(st, k, rt), V_FR, sr(S_WS), t, rt * 1024, SC, nm))
                a.append(f)
    return w, a

def preload(i):
    w, a = zip(*[stage_loads(stage("p%d" % n)) for n in range(3)])
    return {29: a[0] + a[1] + a[2][:1] + w[0][:3], 30: w[0][3:] + w[1] + a[2][1:4], 31: w[2] + a[2][4:]}[i]

def wread(st, c, buf):
    out = []
    for k in range(4):
        if "sub" in st:
            off = SUBOFF(SUB[st["sub"]][k]) + (c + st.get("sp", 0)) * 1024
            adr, off = (V_FR, V_RD, V_RD2)[off >> 16], off & 0xffff
        else:
            adr, off = V_RA + st["ring"], k * 9216 + c * 1024
        out.append("ds_read_b128 %s, v%d offset:%d" % (vr(WBUF[buf] + 4 * k), adr, off))
    return out[::2] if OPT.get("emu8") else out

def inreg(job, c, n): return (VD if job == 0 else VSA) + 24 + 12 * (2 - n) + 4 * c
def fetch(job, ns=(2, 1, 0)):
    return ["buffer_load_dwordx4 %s, v%d, %s, s%d offen offset:%d%s ;@in%d" %
            (vr(inreg(job, c, n)), V_FR if c < 2 else V_F4, sr(S_WS if c < 2 else S_AUX), S_IN + n, (c & 1) * 2048 + job * 1024, SC, job)
            for n in ns for c in range(3)]
def arrived(ns):
    r = [inreg(1, 0, n) + k for n in ns for k in range(12)]
    P = ["v_max3_u32 v%d, v%d, v%d, v%d" % (VT + q, r[3 * q], r[3 * q + 1], r[3 * q + 2]) for q in range(4)]
    P += ["v_max3_u32 v%d, v%d, v%d, v%d" % (VT + k % 4, VT + k % 4, r[12 + 2 * k], r[13 + 2 * k]) for k in range((len(r) - 12) // 2)]
    return P + ["v_max3_u32 v%d, v%d, v%d, v%d" % (VT, VT, VT + 1, VT + 2), "v_max_u32 v%d, v%d, v%d" % (VT, VT, VT + 3), "v_cmp_eq_u32 vcc, -1, v%d" % VT]
def gather(job, c, ns=(0, 1, 2)):
    return [mfma(vr(accr(job, c, rt)), vr(VSEL + 2 - 2 * rt), vr(inreg(job, c, n)), vr(accr(job, c, rt))) for rt in range(2) for n in ns]
def sel_setup():
    z, t = VSEL, VT
    return ["v_mov_b32 v%d, 0" % (z + r) for r in (0, 1, 4, 5)] + \
           ["v_bfe_u32 v%d, v0, 2, 2" % t, "v_lshrrev_b32 v%d, 4, v0" % (t + 1), "v_xor_b32 v%d, v%d, v%d" % (t, t, t + 1), "v_min_u32 v%d, 1, v%d" % (t, t),
            "v_sub_u32 v%d, 1, v%d" % (t, t), "v_mul_u32_u24 v%d, 0x3f80, v%d" % (t, t), "v_and_b32 v%d, 1, v0" % (t + 1), "v_lshlrev_b32 v%d, 4, v%d" % (t + 1, t + 1),
            "v_lshlrev_b32 v%d, v%d, v%d" % (t, t + 1, t), "v_bfe_i32 v%d, v0, 1, 1" % (t + 1), "v_and_b32 v%d, v%d, v%d" % (z + 3, t, t + 1),
            "v_xor_b32 v%d, v%d, v%d" % (z + 2, t, z + 3)]

class Seg:
    def __init__(self, seq, nxt=None):
        self.mf, self.pin, self.fl, self.done, self.ins = [], {}, [], {}, {}
        ext = seq + ([(nxt, c) for c in range(3)] if nxt else [])
        self.start = {}
        self.wstart = {}
        for n, (st, c) in enumerate(ext):
            self.start.setdefault(st["name"], 8 * n)
            self.wstart.setdefault(st.get("wn", st["name"]), 8 * n)
        for n, (st, c) in enumerate(seq):
            g0 = len(self.mf)
            for e, rt in enumerate(snake(2, n, "T")):
                d = vr(accr(st["job"], c, rt))
                for q, k in enumerate(snake(4, e, "t")):
                    self.mf.append(mfma(d, vr(WBUF[n % 3] + 4 * k), act(st, k, rt), (vr(240) if OPT.get("tb") else "0") if st["init"] and q == 0 else d))
            self.done[(st["job"], c)] = len(self.mf) - 1
            if n + 2 < len(ext):
                for i, x in enumerate(wread(ext[n + 2][0], ext[n + 2][1], (n + 2) % 3)): self.P(g0 + i, x)
            lw = "lgkmcnt(%d)" % ((2 if OPT.get("emu8") else 4) if n + 2 < len(ext) else 0)
            nxw = ["w" + q for q, g in self.wstart.items() if g == g0 + 24]
            nxa = ["a" + q for q, g in self.start.items() if g == g0 + 8]
            if nxw or nxa:
                self.P(g0 + 7, "WAITVM %s %s" % (",".join(nxw + nxa), lw))
                if nxw and not OPT.get("tnobar"): self.P(g0 + 7, "s_barrier")
            elif n + 1 < len(ext):
                self.P(g0 + 7, "s_waitcnt " + lw)
    def P(self, g, x): self.pin.setdefault(g, []).append(x)
    def put(self, g, f):
        m, so, x = f({4: S_T0, 5: S_AD, 6: S_T3}[g % 8])
        if m: self.P(g - 3 if g % 8 == 4 else g - 1, m)
        self.P(g - 2 if g % 8 == 5 else g - 4, so); self.P(g, x)
    def issue(self, g0, st, poll):
        w, a = stage_loads(st)
        for n, f in enumerate(w[:8] + a[:6] + w[8:] + a[6:]):
            if not (OPT.get("emu8") and n < 8 and n % 2): self.put(g0 + 8 * (n // 2) + 4 + 2 * (n % 2), f)
        if poll and not OPT["latepoll"]: self.P(g0 + 70, poll_b()[0] + " ;@pb")
    def advance(self, g0):
        for k, x in enumerate(["s_add_u32 s%d, s%d, 4" % (S_KAP, S_KAP), "s_and_b32 s54, s%d, 31" % S_KAP, "s_sub_u32 s54, s54, 1", "s_lshr_b32 s54, s54, 31",
                               "s_mul_i32 s54, s54, 12", "s_add_u32 s%d, s%d, s54" % (S_KAP, S_KAP), "s_lshl_b32 s54, s%d, 12" % S_KAP,
                               "s_mul_i32 s%d, s%d, %d" % (S_WD, S_KAP, SLOT), "s_add_u32 s%d, s%d, s54" % (S_AD, S_HA)]):
            self.P(g0 + 8 * k + 3, x)
    def spot(self, g):
        while self.pin.get(g) or g % 8 < 4: g += 1
        return g
    def flag(self, g, tag, soff):
        if tag in OPT.get("wb", ()):
            self.P(g - 44, "WAITVM " + tag)
            self.P(self.spot(g - 40), "buffer_wbl2 sc1 ;@" + tag)
        self.P(g - 4, "WAITVM " + tag)
        self.P(self.spot(g), "buffer_store_dword v%d, v%d, %s, s%d offen%s" % (V_1, V_L0, sr(S_WS), soff, SC))
    def code(self, cap=2, head=None):
        mf, pin, fl, o = self.mf, self.pin, self.fl, 0
        if head:
            mf0, pin0, fl0 = head
            o = len(mf0)
            for g, xs in pin.items(): pin0[g + o] = xs
            for f in fl:
                f.lo += o
                if f.hi is not None: f.hi += o
            mf, pin, fl = mf0 + mf, pin0, fl0 + fl
        out, left = schedule(mf, pin, fl, cap=cap)
        for tag in OPT.get("plain", ()):
            out = [x.replace(SC, OPT.get("plainf", "")) if x.startswith("buffer_store") and x.endswith(";@" + tag) else x for x in out]
        idx = [i for i, x in enumerate(out) if x.startswith("v_mfma")][o:]
        for g in sorted(self.ins, reverse=True): out[idx[g]:idx[g]] = self.ins[g]
        return out, [y for f in left for y in f.i.text.split("\n")]

def full(names, **kw): return [(stage(n, **kw), c) for n in names for c in range(9)]
def count_down(S, g0):
    S.P(g0 + 69, "s_sub_u32 s%d, s%d, 1" % (S_REM, S_REM)); S.P(g0 + 71, "s_cmp_le_i32 s%d, 2" % S_REM)

def seg_prefix():
    st = OPT["st"]
    S = Seg(full(["p0", "p1", "p2"]), stage("p3"))
    w, a = stage_loads(stage("p3"))
    pos = [8 * (n // 2) + 4 + 2 * (n % 2) for n in range(36)]
    slots = [pos[(n * 36) // 25] for n in range(25)]
    assert slots[9] >= OPT["a3"]
    for g, f in zip(slots, w + a): S.put(g, f)
    S.issue(144, stage("f0"), True); S.advance(144)
    S.P(144 + 71, "s_cmp_le_i32 s%d, 1" % S_REM)
    S.flag(OPT["ogap"], "o", S_BP)
    sc = ["s_mul_i32 s%d, s%d, 9216" % (S_LB[1], S_WAVE), "s_add_u32 s%d, s%d, %d" % (S_LB[2], S_LB[1], RING[2]),
          "s_bfe_u32 s54, s2, 0x20001", "s_lshl_b32 s55, s54, 3", "s_lshl_b32 s%d, s%d, 8" % (S_KAP, S_REM), "s_lshr_b32 s%d, s%d, s55" % (S_KAP, S_KAP),
          "s_and_b32 s%d, s%d, 31" % (S_KAP, S_KAP), "s_lshr_b32 s%d, s%d, s55" % (S_REM, S_REM), "s_and_b32 s%d, s%d, 31" % (S_REM, S_REM),
          "s_sub_u32 s%d, s%d, s%d" % (S_REM, S_REM, S_KAP), "s_mul_i32 s55, s%d, 52" % S_KAP, "s_lshr_b32 s55, s55, 8", "s_mul_i32 s55, s55, 3",
          "s_add_u32 s%d, s%d, s55" % (S_KAP, S_KAP), "s_add_u32 s%d, s%d, 3" % (S_KAP, S_KAP), "s_lshl_b32 s54, s54, 3", "s_sub_u32 s%d, s%d, s54" % (S_KAP, S_KAP),
          "s_lshl_b32 s%d, s%d, 2" % (S_KAP, S_KAP), "s_lshl_b32 s54, s%d, 12" % S_KAP, "s_mul_i32 s%d, s%d, %d" % (S_WD, S_KAP, SLOT),
          "s_add_u32 s%d, s%d, s54" % (S_AD, S_HA)]
    g = 0
    for x in sc:
        while g % 8 > 3 or any(cost(I(y)) == 0 for y in S.pin.get(g, [])): g += 1
        S.P(g, x)
    assert g < 140
    for r in range(3): S.P(144 + r, "v_add_u32 v%d, %d, v%d" % (V_RA + r, RING[r], V_FR))
    S.ins = {0: st("tail0"), 144: st("g2")}
    if OPT["pads"] and OPT["hopt"]: S.ins[OPT["hopt"]] = hop_round(len(OPT["hops"]) + len(OPT["hopg"]))
    out, left = S.code(cap=lambda g: OPT["cap31"] if g < 72 else OPT["ocap"], head=step_last())
    assert not left
    if OPT.get("verbose"):
        n = 0
        for x in out:
            n += x.startswith("v_mfma")
            if ";@o" in x: print("O store at", n - 72)
    return out

def seg_p3():
    S = Seg(full(["p3"]), stage("f0"))
    S.issue(0, stage("f1"), True); S.advance(0)
    S.P(71, "s_cmp_le_i32 s%d, 2" % S_REM)
    return S.code()[0] + OPT["st"]("g4")

def seg_flex(ph):
    S = Seg(full(["f%d" % ph]), stage("f%d" % ((ph + 1) % 3)))
    S.issue(0, stage("f%d" % ((ph + 2) % 3)), True); S.advance(0); count_down(S, 0)
    return S.code()[0]

def seg_bridge(v):
    ph = min(v, 2)
    b0, b1 = stage("b0", (ph + 2) % 3), stage("b1", ph)
    S = Seg(full(["f%d" % ph if v < 3 else "p3", "f%d" % ((ph + 1) % 3)]), b0)
    S.issue(0, b0, False); S.issue(72, b1, False)
    if OPT["latepoll"]: S.P(7, poll_b()[0] + " ;@pb")
    S.P(27, "WAITVM pb"); S.P(27, poll_b()[1][0])
    S.ins = {0: OPT["st"]("br"), 32: OPT["st"]("preb") + guard("b%d" % v) + OPT["st"]("postb")}
    if ph != 1:
        o = (0, 1, 2) if ph == 2 else (2, 1, 0)
        for k, (d, a_) in enumerate(((None, o[0]), (o[0], o[1]), (o[1], o[2]), (o[2], None))):
            S.P(72 + (65, 66, 67, 69)[k], "s_mov_b32 s%d, s%d" % (54 if d is None else S_LB[d], 54 if a_ is None else S_LB[a_]))
            S.P(72 + (69, 69, 70, 70)[k], "v_mov_b32 v%d, v%d" % (15 if d is None else V_RA + d, 15 if a_ is None else V_RA + a_))
    return S.code()[0]

def seg_rest():
    st, D = OPT["st"], OPT["defer"]
    B = [stage("b%d" % n) for n in range(8)]
    B[7].update(sub=4, lb=S_LB[3])
    blocks = [("k%d" % q, cs) for q, cs in enumerate(OPT["blocks"])] + [("own", (0, 1))]
    blk = lambda n, nm: dict(B[n], wn=nm)
    S = Seg([(B[n], c) for n in range(5) for c in range(9)] + [(blk(n, nm), c) for nm, cs in blocks for n in (5, 6, 7) for c in cs])
    for k, x in enumerate(["s_and_b32 s54, s%d, 1" % S_WAVE, "s_mul_i32 s54, s54, 9216", "s_lshr_b32 s55, s%d, 1" % S_WAVE, "s_mul_i32 s55, s55, %d" % (6 * 9216),
                           "s_add_u32 s54, s54, s55", "s_add_u32 s%d, s54, %d" % (S_LB[3], 4 * 9216)]):
        S.P(8 * k + 11, x)
    for n in range(3): S.issue(72 * n, B[n + 2], False)
    wl = lambda q, ns: [stage_loads(blk(n, blocks[q][0]))[0][c] for n in ns for c in blocks[q][1]]
    al = lambda n: stage_loads(B[n])[1]
    first = wl(0, (5, 7)) + al(5)
    ops = first + [None] * (14 - len(first)) + wl(0, (6,)) + al(6) + al(7)
    for q in range(1, len(blocks)): ops += wl(q, (5, 6, 7))
    for k, f in enumerate(ops):
        last = 216 + 8 * (k // 2) + 4 + 2 * (k % 2)
        if f: S.put(last, f)
    S.P(3, "v_and_b32 v%d, 12, v%d" % (V_B8, V_B8))
    for k, x in enumerate(["s_and_b32 s48, s2, 6", "s_sub_u32 s48, 8, s48", "s_lshl_b32 s48, s48, 11", "v_add_u32 v%d, s48, v%d" % (V_F4, V_FR)]):
        S.P(147 + 8 * k, x)
    if OPT["pf3"]:
        g = 72
        for k, x in enumerate(["s_lshr_b32 s47, s2, 3", "s_lshl_b32 s47, s47, 2", "s_add_u32 s47, s47, s%d" % S_WAVE, "s_lshl_b32 s47, s47, 6",
                               "s_add_u32 s47, s47, %d" % OPT["pf3o"], "s_min_u32 s47, s47, L_k2_last-L_k2_pc3", "s_getpc_b64 s[54:55]\nL_k2_pc3:"]):
            S.P(g + 8 * k + 3, x)
        g = OPT["pf3"]
        S.P(g, "v_mov_b32 v84, s47"); S.P(g + 1, "v_mov_b32 v85, s55"); S.P(g + 2, "v_add_co_u32 v84, vcc, s54, v84")
        S.P(g + 8, "v_addc_co_u32 v85, vcc, 0, v85, vcc")
        S.P(S.spot(g + 10), "global_load_dword v86, v[84:85], off")
    for k, (v, o) in enumerate(((5, 0), (6, 0), (5, 64), (6, 64))[:OPT["outpf"]]):
        S.P(S.spot(296 + 8 * k), "buffer_load_dword v87, v%d, %s, s%d offen offset:%d" % (v, sr(S_OUT), S_XO, o))
    S.flag(OPT["dflag"], "p0", S_DO)
    g = last // 8 * 8 + 8
    S.P((g - OPT["pollahead"]) // 8 * 8 + 5, poll_d()[0] + " ;@pd")
    S.P(g - 5, "WAITVM pd"); S.P(g - 5, poll_d()[1][0])
    S.ins = {0: st("rest"), g: st("pred") + guard("d") + st("postd")}
    for x in fetch(0):
        g = S.spot(g)
        S.P(g, x)
        g += OPT["fstep"]
    gd = len(S.mf) - 8 * OPT["gdend"]
    assert gd - 5 > g
    S.P(gd - 5, "WAITVM in0")
    S.ins[gd] = st("gd") + gather(0, 0) + gather(0, 1) + gather(0, 2)
    for q in S.wstart: S.ins.setdefault(S.wstart[q], st(q))
    fl, grp = S.fl, []
    for job in range(2):
        for c in range(2, 9):
            lo = S.done[(1, c)] + 6 if job else 6 + (c - 2) * OPT["dsp"]
            hi = min(OPT["dflag"] - 12, (OPT["pf3"] or 999) - 4) if job == 0 else None
            b = VPK[c - 2]
            for rt in range(2):
                for h in range(2):
                    r = accr(job, c, rt) + 2 * h
                    fl.append(Flt("v_cvt_pk_bf16_f32 v%d, v%d, v%d" % (b + 2 * rt + h, r, r + 1), lo, hi))
            if job == 1:
                for q in range(4): fl.append(Flt("v_min_u32 v%d, -2, v%d" % (b + q, b + q), lo, hi))
            grp.append("buffer_store_dwordx4 %s, v%d, %s, s%d offen offset:%d%s" % (vr(b), V_FR, sr(S_WS), S_PUB + c, job * 1024, SC) + " ;@p%d" % job)
            if c in OPT["pgrp"][job]:
                fl.append(Flt("\n".join(grp), lo, hi))
                grp = []
        if job == 0:
            fl += [Flt(x, 6, gd - 4) for x in sel_setup()]
            fl += [Flt(x, 6, 290) for x in ("v_and_b32 v5, 15, v0", "v_mul_u32_u24 v5, 1152, v5", "v_lshrrev_b32 v6, 5, v0", "v_lshl_add_u32 v5, v6, 4, v5",
                                       "v_bfe_u32 v6, v0, 4, 1", "v_mul_u32_u24 v15, %d, v6" % (16 * 1152), "v_add_u32 v15, v15, v5",
                                       "v_lshl_add_u32 v5, v6, 5, v5", "v_add_u32 v6, %d, v5" % (16 * 1152))]
            fl += [Flt("v_accvgpr_read_b32 v%d, a%d" % (VXX + r, AX + r), 80 if OPT.get("tb") else 6) for r in range(12)]
    for n in (2, 1, 0): fl += [Flt(x, S.done[(1, 8)] + 6 + OPT["sdel"][n]) for x in fetch(1, (n,))]
    for c in range(3):
        d, t = accr(0, c, 0), (VT, 64, VT)[c]
        for op in ("v_mul_f32 v%%d, s%d, v%%d" % S_NL2E, "v_exp_f32 v%d, v%d", "v_add_f32 v%d, 1.0, v%d", "v_rcp_f32 v%d, v%d"):
            fl += [Flt(op % (t + r, d + r if "mul" in op else t + r), gd + 5) for r in range(8)]
        fl += [Flt("v_mul_f32 v%d, v%d, v%d" % (d + r, d + r, t + r), gd + 5) for r in range(8)]
        for q in range(4):
            fl.append(Flt("v_lshlrev_b32 v%d, 16, v%d" % (XF + 8 * c + 2 * q, VXX + 4 * c + q), gd + 5))
            fl.append(Flt("v_and_b32 v%d, 0xffff0000, v%d" % (XF + 8 * c + 2 * q + 1, VXX + 4 * c + q), gd + 5))
    out, left = S.code()
    for tag in OPT.get("kill", ()):
        f = lambda xs: [x.replace(" v1,", " v7,").replace(" v9,", " v7,") if x.endswith(";@" + tag) else x for x in xs]
        out, left = f(out), f(left)
    return out + st("mlast") + left

def combine(st):
    P = st("dmath") + ["s_waitcnt vmcnt(3)"] + arrived((2, 1)) + guard("r") + sum([gather(1, c, (2, 1)) for c in range(3)], []) + ["s_waitcnt vmcnt(0)"] + arrived((0,)) + guard("s") + st("sarr")
    def wide(q, adr, parts, so=S_XO):
        o = []
        for n, (c, rt) in enumerate(parts):
            f = XF + 8 * c + 4 * rt
            o += ["v_fmac_f32 v%d, v%d, v%d" % (f + r, accr(1, c, rt) + r, accr(0, c, rt) + r) for r in range(4)]
        for n, (c, rt) in enumerate(parts):
            f = XF + 8 * c + 4 * rt
            o += ["v_cvt_pk_bf16_f32 v%d, v%d, v%d" % (q + 2 * n + h, f + 2 * h, f + 2 * h + 1) for h in range(2)]
        return o + ["s_nop 0", "v_permlane16_swap_b32 v%d, v%d" % (q, q + 2), "v_permlane16_swap_b32 v%d, v%d" % (q + 1, q + 3),
                    "buffer_store_dwordx4 %s, v%d, %s, s%d offen" % (vr(q), adr, sr(S_OUT), so) + OPT["outf"]]
    g0, g1, g2 = [gather(1, c, (0,)) for c in range(3)]
    P += [g0[0], g1[0], g0[1], g1[1]] + g2 + ["s_nop 2"] + wide(VXX, 5, ((0, 0), (1, 0))) + wide(VXX + 4, 6, ((0, 1), (1, 1)))
    P += st("u2") + ["s_cmp_lg_u32 s%d, 0" % (S_AUX + 2), "s_cbranch_scc0 L_k2_done"]
    return P + wide(VXX + 8, 15, ((2, 0), (2, 1)), S_X8)

def step_last():
    par = 1
    mf, pin, fl = [], {}, []
    P = lambda g, x: pin.setdefault(g, []).append(x)
    P(0, C(par, 3, 3, 0)); P(1, E(3, 2)); P(3, E(3, 3)); P(4, C(par, 3, 3, 1))
    P(2, "v_readfirstlane_b32 s%d, v32" % S_REM)
    ends = {}
    for u in range(4):
        g0 = len(mf)
        mf += pv(VKF if u % 2 == 0 else VVF, par, u, False)
        ends[u] = len(mf) - 1
        if u < 3:
            tr = vread(VVF if u % 2 == 0 else VKF, 31, u + 1)
            gs = (0, 2, 4, 5, 6, 7, 8, 9) if u == 0 else range(8)
            for g, k in zip(gs, range(8)): P(g0 + g, tr[k])
        if u == 0:
            for t in range(4): mf += psum(par, t, False)
            lsum = len(mf) - 1
        if u < 2: P(len(mf) - 1, "s_waitcnt lgkmcnt(0)")
    RL = V_TMP
    for t in range(4):
        P(24 + 2 * t, "v_accvgpr_read_b32 v%d, a%d" % (RL + 4 + t, 128 + 4 * t))
        P(32 + t, "v_rcp_f32 v%d, v%d" % (RL + t, RL + 4 + t))
    P(36, "v_add_f32 v33, v%d, v%d" % (RL + 4, RL + 5)); P(36, "v_add_f32 v34, v%d, v%d" % (RL + 6, RL + 7))
    P(36, "s_lshl_b32 s55, s%d, 2" % S_WAVE); P(37, "s_add_u32 s55, s55, %d" % FLAG_LDS)
    P(37, "v_add_f32 v33, v33, v34"); P(37, "v_mov_b32 v32, %d" % FLAG_LDS)
    P(38, "v_add_f32 v34, v%d, v%d" % (RL, RL + 1)); P(38, "v_add_f32 v35, v%d, v%d" % (RL + 2, RL + 3))
    P(39, "v_add_f32 v33, v33, v34"); P(39, "v_mov_b32 v34, s55")
    P(40, "v_add_f32 v33, v33, v35")
    P(41, "v_cmp_nge_f32 vcc, %s, v33" % f32(2.0 ** 40))
    P(43, "s_or_b32 s54, vcc_lo, vcc_hi")
    P(44, "v_mov_b32 v33, s54")
    P(48, "ds_write_b32 v34, v33")
    P(55, "WAITVM wp0 lgkmcnt(0)"); P(55, "s_barrier")
    P(56, "ds_read_b128 v[36:39], v32")
    for k, x in enumerate(wread(stage("p0"), 0, 0)): P(57 + k, x)
    P(60, "s_waitcnt lgkmcnt(3)"); P(60, "v_or3_b32 v36, v36, v37, v38")
    P(61, "v_or_b32 v36, v36, v39")
    P(62, "v_readfirstlane_b32 s54, v36")
    P(63, "s_andn2_b32 s54, s54, s%d" % S_REDO); P(63, "s_cbranch_scc1 L_k2_redo")
    for k, x in enumerate(wread(stage("p0"), 1, 1)): P(64 + k, x)
    P(71, "WAITVM ap0 lgkmcnt(4)")
    if OPT.get("tb"):
        for r in range(4): P(64 + r, "v_mov_b32 v%d, %s" % (240 + r, f32(OPT["tb"])))
    tmp = [VP[0][0], VP[0][0] + 8, VP[0][1], VP[0][1] + 8] + ([VG + 16, VG + 24, VU, VU + 8] if OPT["ogrp"] > 1 else [])
    if OPT["ob"]:
        fl += [Flt("v_accvgpr_read_b32 v%d, a%d" % (RL + 4 + t, 252 + t), 37) for t in range(4)]
        fl += [Flt("v_mul_f32 v%d, v%d, v%d" % (RL + 4 + t, RL + 4 + t, RL + t), 37) for t in range(4)]
    k, grp = 0, []
    for u in range(4):
        for t in range(4):
            b = tmp[k % len(tmp)]; k += 1
            l0 = max(ends[u] + 6, 0 if VP[0][0] <= b < VU else 64)
            lo = max(l0, 37)
            for d in range(2):
                for r in range(4):
                    fl.append(Flt("v_accvgpr_read_b32 v%d, a%d" % (b + 4 * d + r, 16 * (2 * u + d) + 4 * t + r), l0, 72 + OPT["a3"] - 2 if u == 0 else None))
            for r in range(8):
                fl.append(Flt("v_fma_f32 v%d, v%d, v%d, -v%d" % (b + r, b + r, RL + t, RL + 4 + t) if OPT["ob"] else "v_mul_f32 v%d, v%d, v%d" % (b + r, b + r, RL + t), lo))
            for r in range(4): fl.append(Flt("v_cvt_pk_bf16_f32 v%d, v%d, v%d" % (b + r, b + 2 * r, b + 2 * r + 1), lo))
            grp.append("buffer_store_dwordx4 %s, v%d, %s, s%d offen offset:%d" % (vr(b), V_FR, sr(S_WS), 56 + u, t * 1024) + SC + " ;@o")
            if len(grp) == OPT["ogrp"]:
                fl.append(Flt("\n".join(grp), lo, 72 + OPT["ogap"] - 8))
                grp = []
    for u in range(4): P(4 + u, "s_add_u32 s%d, s%d, %d" % (56 + u, S_OST, u * 4096))
    free = [g for g in range(10, 70) if not pin.get(g)]
    ops = preload(31)
    for n, f in enumerate(ops):
        g = free[(n * len(free)) // len(ops)]
        for y in f(S_T0):
            if y: P(g, y)
    return mf, pin, fl

def redo():
    P = []
    A = P.append
    A("L_k2_redo:")
    A("s_mov_b32 s%d, -1" % S_REDO)
    A("s_waitcnt vmcnt(0) lgkmcnt(0)")
    A("s_barrier")
    for pre, x in kv_dmas("k", 0, "k0") + kv_dmas("k", 1, "s0") + kv_dmas("k", 2, "s0") + kv_dmas("v", 0, "s0") + kv_dmas("v", 1, "s0"):
        P += pre + [x]
    A("v_and_b32 v32, 15, v0")
    A("v_lshlrev_b32 v32, 8, v32")
    A("v_lshrrev_b32 v%d, 4, v0" % V_TMP)
    A("v_lshl_add_u32 v32, v%d, 4, v32" % V_TMP)
    A("s_lshl_b32 s54, s%d, 19" % S_SL)
    A("s_mov_b32 s55, 128")
    for r in range(16): A("v_mov_b32 v%d, 0xff800000" % (56 + r))
    B = []
    A = B.append
    for ks in range(4):
        A("buffer_load_dwordx4 %s, v32, %s, s54 offen offset:%d" % (vr(VKF + 4 * ks), sr(S_K), ks * 64))
    A("s_waitcnt vmcnt(0)")
    for t in range(4): B += qk(VKF, t, "0")
    A("s_nop 7")
    for r in range(16): A("v_max_f32 v%d, v%d, v%d" % (56 + r, 56 + r, VS + r))
    A("s_add_u32 s54, s54, 4096")
    A("s_sub_u32 s55, s55, 1")
    A("s_cmp_lg_u32 s55, 0")
    A("s_cbranch_scc1 L_k2_maxloop")
    T = rowmax(56) + ["s_getpc_b64 s[54:55]", "v_mov_b32 v%d, s54" % (V_TMP + 4), "v_mov_b32 v%d, s55" % (V_TMP + 5), "s_barrier"] + kread(VKF, 0, 0) + ["s_waitcnt lgkmcnt(0)", "s_branch L_k2_attn"]
    return P, B, T

def isize(i):
    lit = any(re.match(r"^(0x[0-9a-f]+|-?\d+|L_.*)$", o) and not (re.match(r"^-?\d+$", o) and -16 <= int(o) <= 64) and
              not (o.startswith("0x") and (int(o, 16) <= 64 or int(o, 16) & 0x7fffffff in (0x3f000000, 0x3f800000, 0x40000000, 0x40800000))) for o in i.ops)
    if i.kind in ("mfma", "lds", "vmem", "smem"): return 8
    if i.kind == "wait" or i.op.startswith("s_cbranch") or i.op in ("s_branch", "s_nop", "s_barrier", "s_endpgm", "s_sleep"): return 4
    if i.kind == "salu": return 8 if lit else 4
    call = i.op.replace("_e64", "")
    if call != i.op: return 8
    short = ("v_exp_f32", "v_rcp_f32", "v_mov_b32", "v_mul_f32", "v_add_f32", "v_sub_f32", "v_max_f32", "v_min_u32", "v_max_u32", "v_and_b32", "v_or_b32", "v_xor_b32",
             "v_lshlrev_b32", "v_lshrrev_b32", "v_ashrrev_i32", "v_add_u32", "v_sub_u32", "v_mul_u32_u24", "v_fmac_f32", "v_readfirstlane_b32", "v_permlane16_swap_b32",
             "v_permlane32_swap_b32", "v_add_co_u32", "v_addc_co_u32", "v_accvgpr_mov_b32", "v_min_f32", "v_sqrt_f32")
    if call in short or call.startswith("v_cmp"): return 8 if lit else 4
    return 8

def hop_round(r):
    P = ["s_mov_b64 exec, 0"] if OPT["pads"] == "cond" else []
    for w in range(1, 4): P += ["s_cmp_eq_u32 s%d, %d" % (S_WAVE, w), "s_cbranch_scc1 L_hop%d_%d" % (r, w)]
    P += ["s_branch L_hop%d_0" % r, "L_hop%d_ret:" % r]
    return P + (["s_mov_b64 exec, -1"] if OPT["pads"] == "cond" else [])

def add_pads(lines, rounds, extra):
    flat = [x for l in lines for x in l.split("\n")]
    ins = [I(x) for x in flat]
    size = 4 if OPT["pads"] == "cond" else 8
    out, where, pos, want, stop = [], [], None, False, False
    for n, (x, i) in enumerate(zip(flat, ins)):
        out.append(x)
        if i.kind == "none":
            if x.startswith(".p2align"):
                al = 1 << int(x.split()[1])
                old, pos = pos, (0 if al == 4096 else -(-pos // al) * al)
                if old is not None and old >> 12 != pos >> 12: want, since = True, pos & ~4095
            if x == "L_k2_redo:": stop = True
            if x[:-1] in extra:
                where.append(len(out)); out.append(None)
                if pos is not None:
                    old, pos = pos, pos + size
                    if old >> 12 != pos >> 12: want, since = True, pos & ~4095
            continue
        if pos is None: continue
        old, pos = pos, pos + isize(i)
        if old >> 12 != pos >> 12: want, since = True, pos & ~4095
        if want and not stop:
            nx = next(y for y in ins[n + 1:] if y.kind != "none")
            free = i.kind == "mfma" and cost(nx) > 0 and nx.kind != "vmem" or i.kind == "mfma" and nx.kind == "mfma"
            if (free or pos - since >= 40) and i.op != "s_getpc_b64" and not i.op.startswith("s_branch") and i.op != "s_endpgm":
                where.append(len(out)); out.append(None)
                pos += size; want = False
    k = 0
    for r, cnt in enumerate(rounds):
        mine = where[k:k + cnt] if r < len(rounds) - 1 else where[k:]
        k += cnt
        nw = HOP["waves"] if r == 0 and HOP["waves"] else 4
        assert len(mine) >= nw
        for q, o in enumerate(mine):
            nxt = "L_hop%d_%d" % (r, q + nw) if q + nw < len(mine) else "L_hop%d_ret" % r
            lab = "L_hop%d_%d" % (r, q)
            out[o] = [lab + ":", "s_cbranch_execz " + nxt] if OPT["pads"] == "cond" else ["s_branch %s_x" % lab, lab + ":", "s_branch " + nxt, lab + "_x:"]
    return [y for x in out for y in (x if isinstance(x, list) else [x])]

def gen(stamp=False):
    clk = OPT.get("clk", "s_memrealtime")
    st = lambda n: ["%s s[100:101]" % clk, "s_waitcnt lgkmcnt(0)", "s_mov_b32 s%d, s100" % (92 + n)] if stamp else []
    names = OPT.get("stamps", ["start", "gemm0", "gemm1", "tail0", "tail1", "dmath", "sarr", "end"])
    st0 = st
    OPT["st"] = st = lambda nm: st0(names.index(nm)) if nm in names else []
    S = setup(st)
    S += st("p0")
    S += srd(S_WU, 66, WG_BYTES)
    alu = (["CODEPF"] if not OPT["pf0"] and not OPT["coop"] else []) + setup2()
    for unit in range(2):
        r = 56 + 2 * unit
        alu += unit_line(r, unit) + ["s_lshl_b32 s%d, s%d, 13" % (r, r), "s_add_u32 s%d, s%d, s%d" % (r, r, S_HST), "s_add_u32 s%d, s%d, 4096" % (r + 1, r)]
    kg = lambda n: [xn_load(ks, rt) for ks in range(3 * n, 3 * n + 3) for rt in range(4)]
    ld = (kg(0) + chunk_dmas(TS[0]) if OPT["xfirst"] else chunk_dmas(TS[0]) + kg(0)) + kg(1)[:OPT["k1n"]]
    if OPT["coop"]:
        flat = lambda ops: [y for pre, x in ops for y in pre + [x]]
        _, c1, c2, c3 = coop()
        h = len(alu) // 2
        S += flat(chunk_dmas(TS[0])) + c1 + flat(chunk_dmas(TS[1])) + alu + c2 + hop_round(0) + c3
        alu, ld = [], kg(0) + kg(1)
    for n, (pre, x) in enumerate(ld):
        S += pre + [x]
        if OPT["pads"] and n in OPT["hops"]: S += hop_round(OPT["hops"].index(n))
        if n >= OPT["mix0"]:
            k = OPT["mix"] + (len(alu) > OPT["mix"] and alu[OPT["mix"]].startswith("s_addc"))
            S += alu[:k]; alu = alu[k:]
    S += alu + st("p2")
    if OPT["gb"]:
        S += ["v_mov_b32 v%d, %s" % (V_TMP + r, f32(OPT["gb"])) for r in range(4)] + ["v_mul_f32 v%d, s%d, v%d" % (V_TMP + 7, S_NL2E, V_TMP)]
    S += ["WAITVM c0 lgkmcnt(0)"] + st("p3") + ["s_barrier"] + treads(0, 0, 0) + ["WAITVM x0 lgkmcnt(0)"]
    G = ["; ---- projections: h = sigmoid(xn Wg) * (xn Wu) for 144 columns, q = xn Wq * log2(e) / sqrt(128) for one head (xn resident in registers)"] + \
        st("gemm0") + projection() + st("gemm1") + ["; ---- exponent reference per row: score of key 0 plus a constant (checked at the end, true maximum on the fallback path)"] + first_ref()[2] + st("max")
    if OPT.get("cut"): G += ["v_min_u32 v%d, 1, v0" % V_L0, "v_lshlrev_b32 v%d, 30, v%d" % (V_L0, V_L0), "s_branch L_k2_done"]
    PRE = step_pre()
    S0 = st("pre") + step(0) + st("s0") + ["s_mov_b32 s%d, 7" % S_CNT]
    body = lambda part, end: step(1, part=part) + step(2, part=part) + step(3, part=part) + \
        step(4, ["s_sub_u32 s%d, s%d, 1" % (S_CNT, S_CNT), "s_cmp_lg_u32 s%d, %d" % (S_CNT, end)], part) + ["s_cbranch_scc1 L_k2_loop" + part]
    BA, BB = body("a", 4), body("b", 0)
    T0 = resolve_waits(st("loop") + ["s_waitcnt vmcnt(17)", "v_add_u32 v%d, v%d, v%d" % (V_TMP, V_TMP, V_TMP + 1),
                        "v_add3_u32 v%d, v%d, v%d, v%d" % (V_TMP, V_TMP, V_TMP + 2, V_TMP + 3)] + poll_a()[1] +
                       ["v_readlane_b32 s%d, v%d, %d" % (56 + n, V_TMP, n) for n in range(4)] + guard("a") + step(29) + st("s29") + step(30) + st("s30") + seg_prefix(), once=True)
    def after(prev, cur):
        pv_ = [x for x in prev if I(x).kind == "vmem"]
        return resolve_waits(pv_ + cur, once=True)[len(pv_):]
    FX = [after(seg_flex((ph + 2) % 3), seg_flex(ph)) for ph in range(3)]
    BR = [after(seg_flex((min(v, 2) + 2) % 3), seg_bridge(v)) for v in range(4)]
    T1 = T0 + ["s_cbranch_scc1 L_k2_br3"]
    T0 = T1 + after(seg_flex(1), seg_p3())
    RS = after(seg_bridge(1), seg_rest() + st("tail1") + combine(st))
    jb = lambda ph: ["s_cbranch_scc1 L_k2_br%d" % ph]
    TAIL = T0 + jb(0) + ["L_k2_flex:", "; ---- stages of d assigned by progress among the four workgroups of a tile"] + FX[0] + jb(1) + FX[1] + jb(2) + FX[2] + ["s_cbranch_scc0 L_k2_flex", "L_k2_br0:"] + BR[0] + ["L_k2_rest:", "; ---- s = O W_o, exchange of the partial tiles, out = x + s * silu(d)"] + RS
    SIDE = ["L_k2_br1:"] + BR[1] + ["s_branch L_k2_rest", "L_k2_br2:"] + BR[2] + ["s_branch L_k2_rest", "L_k2_br3:"] + BR[3] + ["s_branch L_k2_rest"]
    D = ["L_k2_done:"]
    if stamp:
        D += st("done") + ["s_waitcnt vmcnt(0)"] + st("end") + ["v_mov_b32 v%d, s%d" % (16 + n, 92 + n) for n in range(8)] + \
             ["s_lshl_b32 s54, s2, 2", "s_add_u32 s54, s54, s%d" % S_WAVE, "s_lshl_b32 s54, s54, 5", "s_add_u32 s54, s54, 0x%x" % STAMP_OFF,
              "buffer_store_dwordx4 v[16:19], v%d, %s, s54 offen" % (V_L0, sr(S_WS)), "buffer_store_dwordx4 v[20:23], v%d, %s, s54 offen offset:16" % (V_L0, sr(S_WS))]
    D += ["L_k2_end:", "s_endpgm"]
    R0, RB, RT = redo()
    R0 = resolve_waits(R0)
    strip = lambda xs: [(x.replace(" v1,", " v7,").replace(" v9,", " v7,") if "in1" in OPT.get("kill", ()) else x).split(";@")[0].rstrip() for x in xs]
    SP = spin("a", [poll_a()[0]], poll_a()[1]) + sum([spin("b%d" % ph, [poll_b()[0]], poll_b()[1]) for ph in range(4)], []) + spin("d", [poll_d()[0]], poll_d()[1]) + spin("r", strip(fetch(1, (2, 1))), arrived((2, 1))) + spin("s", strip(fetch(1, (0,))), arrived((0,)))
    rest = ["; ---- attention steps: P V of 64 keys beside the scores and exponentials of the next 64"] + S0 + ["L_k2_loopa:"] + BA + ["L_k2_loopb:"] + BB + \
           ["L_k2_exit:", "; ---- last attention steps, O epilogue, first stages of d = h W_down"] + TAIL + D + \
           ["; ---- bounded re-polls of the hand-off words"] + SP + ["; ---- other exits of the assigned-stage loop"] + SIDE + \
           ["; ---- fallback: true row maxima over all keys, then the attention pass is repeated"] + R0 + ["L_k2_maxloop:"] + RB + RT
    pf = []
    if OPT["codepf"]:
        pf = ["s_getpc_b64 s[54:55]", "L_k2_pc:", "s_lshr_b32 s56, s2, 3", "s_lshl_b32 s56, s56, 2", "s_add_u32 s56, s56, s%d" % S_WAVE,
              "s_mul_i32 s56, s56, %d" % (6 * 128), "v_min_u32 v2, 5, v0", "v_lshlrev_b32 v2, 7, v2", "v_add_u32 v2, s56, v2",
              "v_min_u32 v2, L_k2_last-L_k2_pc, v2", "v_mov_b32 v3, s55", "v_add_co_u32 v2, vcc, s54, v2", "s_nop 1",
              "v_addc_co_u32 v3, vcc, 0, v3, vcc", "global_load_dword v%d, v[2:3], off" % VG]
        a = V_TMP + 4
        pf += ["s_lshr_b32 s56, s56, 1", "s_add_u32 s56, s56, L_k2_exit-L_k2_pc", "v_min_u32 v%d, 2, v0" % a, "v_lshlrev_b32 v%d, 7, v%d" % (a, a),
               "v_add_u32 v%d, s56, v%d" % (a, a), "v_min_u32 v%d, L_k2_last-L_k2_pc, v%d" % (a, a), "v_mov_b32 v%d, s55" % (a + 1),
               "v_add_co_u32 v%d, vcc, s54, v%d" % (a, a), "s_nop 1", "v_addc_co_u32 v%d, vcc, 0, v%d, vcc" % (a + 1, a + 1)]
    rest = rest[:-1] + ["L_k2_last:"] + rest[-1:]
    k = S.index("CODEPF")
    S = S[:k] + pf + S[k + 1:]
    head = resolve_waits(["; ---- set-up and first loads"] + S + G + ["L_k2_attn:", "; ---- attention: scores and probabilities of the first 64 keys"] + PRE, once=True)
    pre_only = head[head.index("L_k2_attn:"):]
    traces = [head + S0 + BA + BA + BB + BB + TAIL + D,
              TAIL[:TAIL.index("s_cbranch_scc1 L_k2_redo") + 1] + R0 + RB + RB + RT + pre_only + S0, SP,
              T1 + BR[3] + jb(0) + RS, T0 + jb(0) + BR[0] + RS, T0 + jb(0) + FX[0] + jb(1) + BR[1] + jb(0) + RS, T0 + jb(0) + FX[0] + jb(1) + FX[1] + jb(2) + BR[2] + jb(0) + RS,
              T0 + jb(0) + FX[0] + jb(1) + FX[1] + jb(2) + FX[2] + jb(0) + FX[0] + jb(1) + BR[1] + jb(0) + RS]
    lines = head + rest
    if OPT["pads"]: lines = add_pads(lines, OPT["rounds"], OPT["padl"])
    for v in OPT.get("nt", []):
        lines = [x.replace(" offen lds", " offen%s lds" % OPT.get("ntf", " nt")) if x.startswith("buffer_load_dwordx4 v%d," % v) else x for x in lines]
    return dict(name="attn_kernel", lines=lines, traces=traces, grid=256, block=256, lds=163840, vgpr=512, acc=256, sgpr=102)
```

```python
import k1, k2
from build import emit
k2.OPT.update(fixed=0x140e0b03)
a, b = k1.gen(), k2.gen(False)
emit([a, b], "j0.s", check=False)
for name, before, amount in (("j1", False, 12), ("j2", True, 12), ("j3", False, 30)):
    out, n = [], 0
    for l in b["lines"]:
        d = []
        if l == "s_barrier":
            n += 1
            d = ["s_mov_b32 s98, s%d" % k2.S_WAVE, "s_cselect_b32 s99, 1, 0", "s_add_u32 s98, s98, s2", "s_and_b32 s98, s98, 3", "s_cmp_lg_u32 s98, %d" % (n % 4),
                 "s_cbranch_scc1 L_j%d" % n, "s_sleep %d" % amount, "L_j%d:" % n, "s_cmp_lg_u32 s99, 0"]
        out += (d + [l]) if before else ([l] + d)
    emit([a, dict(b, lines=out)], "o/%s.s" % name, check=False)
```
